```python
import torch

def _softmax(x, axis=-1):
    return torch.softmax(x, dim=axis)
def _gelu(x):
    return torch.nn.functional.gelu(x, approximate="tanh")
def _silu(x):
    return torch.nn.functional.silu(x)
def _sigmoid(x):
    return torch.sigmoid(x)
def _layernorm(x, axis=-1, eps=1e-5):
    m = x.mean(dim=axis, keepdim=True)
    v = x.var(dim=axis, keepdim=True, unbiased=False)
    return (x - m) / torch.sqrt(v + eps)
def _scatter_add(tgt, idx, src, axis=0):
    return tgt.clone().index_add_(axis, idx, src)
def _segment_sum(src, seg, n):
    out = torch.zeros((n,) + src.shape[1:], dtype=src.dtype)
    return out.index_add_(0, seg, src)
def _pad(x, pw):
    flat = tuple(v for pair in reversed(pw) for v in pair)
    return torch.nn.functional.pad(x, flat)

kernel_name = 'gated_mix__ssm_conv_s5__softmax_full_mha__prompt'

def setup_inputs():

    _w = (lambda a: (lambda t: t.to(torch.bfloat16) if t.is_floating_point() else t)(torch.as_tensor(a)))
    def _A_setup():
        B, S, D = 1, 2048, 576
        P = D
        Lambda_re = -0.5 * (lambda _x: torch.exp(torch.as_tensor(_x)))((lambda *s: torch.randn(*s, dtype=torch.bfloat16) * 0.4)(P))
        Lambda_im = (lambda *s: torch.randn(*s, dtype=torch.bfloat16) * 0.8)(P) * 1.0
        B_re = (lambda *s: torch.randn(*s, dtype=torch.bfloat16) * 0.8)(P, D) * (D ** -0.5)
        B_im = (lambda *s: torch.randn(*s, dtype=torch.bfloat16) * 0.8)(P, D) * (D ** -0.5)
        C_re = (lambda *s: torch.randn(*s, dtype=torch.bfloat16) * 0.8)(D, P) * (P ** -0.5)
        C_im = (lambda *s: torch.randn(*s, dtype=torch.bfloat16) * 0.8)(D, P) * (P ** -0.5)
        log_dt = (lambda *s: torch.randn(*s, dtype=torch.bfloat16) * 0.4)(P) * 0.3 - 2.0
        Dskip = (lambda *s: torch.randn(*s, dtype=torch.bfloat16) * 0.1)(D)
        return {
            "x": _w((lambda *s: torch.randn(*s, dtype=torch.bfloat16) * 0.05)(B, S, D)),
            "Lambda_re": _w(Lambda_re),
            "Lambda_im": _w(Lambda_im),
            "B_re": _w(B_re),
            "B_im": _w(B_im),
            "C_re": _w(C_re),
            "C_im": _w(C_im),
            "log_dt": _w(log_dt),
            "Dskip": _w(Dskip),
        }
    _A_in = _A_setup()

    def _B_setup():
        B, S, D = 1, 2048, 576
        return {
            "x": _w((lambda *s: torch.randn(*s, dtype=torch.bfloat16) * 0.05)(B, S, D)),
            "wqkv": _w((lambda *s: torch.randn(*s, dtype=torch.bfloat16) * 0.8)(D, 3 * D)),
            "wo": _w((lambda *s: torch.randn(*s, dtype=torch.bfloat16) * 0.05)(D, D)),
        }
    _B_in = _B_setup()

    return {
        "A_x": _A_in["x"],
        "A_Lambda_re": _A_in["Lambda_re"],
        "A_Lambda_im": _A_in["Lambda_im"],
        "A_B_re": _A_in["B_re"],
        "A_B_im": _A_in["B_im"],
        "A_C_re": _A_in["C_re"],
        "A_C_im": _A_in["C_im"],
        "A_log_dt": _A_in["log_dt"],
        "A_Dskip": _A_in["Dskip"],
        "B_x": _B_in["x"],
        "B_wqkv": _B_in["wqkv"],
        "B_wo": _B_in["wo"],
        "gate_w": _w((lambda *s: torch.randn(*s, dtype=torch.bfloat16) * 0.05)(576) * 16.0),
    }

def reference(A_x, A_Lambda_re, A_Lambda_im, A_B_re, A_B_im, A_C_re, A_C_im, A_log_dt, A_Dskip, B_x, B_wqkv, B_wo, gate_w):
    def _A_ref(x, Lambda_re, Lambda_im, B_re, B_im, C_re, C_im, log_dt, Dskip):
        Bsz, L, H = x.shape
        Lam = Lambda_re + 1j * Lambda_im
        Bmat = B_re + 1j * B_im
        Cmat = C_re + 1j * C_im
        dt = torch.exp(log_dt)
        Lam_bar = torch.exp(dt * Lam)
        B_bar = ((Lam_bar - 1.0) / Lam)[:, None] * Bmat
        Bu = torch.einsum("bld,pd->blp", x + 0j, B_bar)
        h = torch.zeros_like(Bu[:, 0, :])
        hs = []
        for t in range(L):
            h = Lam_bar[None, :] * h + Bu[:, t, :]
            hs.append(h)
        hseq = torch.stack(hs, 1)
        y = 2.0 * torch.einsum("blp,dp->bld", hseq, Cmat).real + x * Dskip[None, None, :]
        return y

    def _B_ref(x, wqkv, wo):
        B, S, D = x.shape
        H = 32; Dh = D // H
        qkv = (lambda x, *d: x.permute(*d))((x @ wqkv).reshape(B, S, 3, H, Dh), 2, 0, 3, 1, 4)
        q, k, v = qkv[0], qkv[1], qkv[2]
        scale = Dh ** -0.5
        scores = torch.einsum("bhqd,bhkd->bhqk", q, k) * scale
        p = _softmax(scores, axis=-1)
        o = torch.einsum("bhqk,bhkd->bhqd", p, v)
        return (lambda x, *d: x.permute(*d))(o, 0, 2, 1, 3).reshape(B, S, D) @ wo

    x = A_x
    g = _sigmoid((x * gate_w).sum(-1, keepdims=True))
    a = _A_ref(x, A_Lambda_re, A_Lambda_im, A_B_re, A_B_im, A_C_re, A_C_im, A_log_dt, A_Dskip)
    b = _B_ref(x, B_wqkv, B_wo)
    return g * a + (1 - g) * b
```

```python
import re

TRANS = ("v_exp_f32", "v_log_f32", "v_rcp_f32", "v_rsq_f32", "v_sqrt_f32", "v_sin_f32",
         "v_cos_f32", "v_exp_f16", "v_rcp_iflag_f32")
RMW = ("v_fmac_f32", "v_dot2c_f32_bf16", "v_mac_f32", "v_pk_fmac_f16", "v_writelane_b32",
       "v_dot2c_f32_f16", "v_fmaak_dummy")

_reg_re = re.compile(r"^(-|\|)?([vsa])(\d+)\|?$")
_rng_re = re.compile(r"^(-|\|)?([vsa])\[(\d+):(\d+)\]\|?$")


def regs_of(op):
    op = op.strip()
    m = _reg_re.match(op)
    if m:
        return [(m.group(2), int(m.group(3)))]
    m = _rng_re.match(op)
    if m:
        return [(m.group(2), i) for i in range(int(m.group(3)), int(m.group(4)) + 1)]
    if op == "vcc":
        return [("x", "vcc")]
    if op in ("vcc_lo", "vcc_hi"):
        return [("x", "vcc")]
    if op in ("exec", "exec_lo", "exec_hi"):
        return [("x", "exec")]
    if op == "m0":
        return [("x", "m0")]
    return []


class Ins:
    __slots__ = ("text", "mn", "ops", "mods", "cls", "dst", "src", "flags", "srcA", "srcB", "srcC",
                 "passes", "target", "nop_states", "wait", "store_data", "comment")

    def __init__(self, text):
        self.text = text
        t = text.split(";")[0].strip()
        parts = t.split(None, 1)
        self.mn = mn = parts[0]
        rest = parts[1] if len(parts) > 1 else ""
        toks = [x.strip() for x in rest.split(",")] if rest else []
        mods = ""
        if toks:
            last = toks[-1].split(None, 1)
            if len(last) == 2 and not toks[-1].startswith("hwreg") and mn != "s_waitcnt":
                toks[-1] = last[0]
                mods = last[1]
        ops = []
        for k, x in enumerate(toks):
            ops.append(x)
        mm = re.search(r"\s(op_sel|op_sel_hi|neg_lo|neg_hi|quad_perm|neg|abs):\[", t)
        if mm:
            head = t[: mm.start()]
            mods2 = t[mm.start():].strip()
            p2 = head.split(None, 1)
            toks2 = [x.strip() for x in p2[1].split(",")]
            last = toks2[-1].split(None, 1)
            extra = ""
            if len(last) == 2:
                toks2[-1] = last[0]
                extra = last[1] + " "
            ops = toks2
            mods = extra + mods2
        self.ops = ops
        self.mods = mods
        self.dst = []
        self.src = []
        self.flags = set()
        self.srcA = self.srcB = self.srcC = []
        self.passes = 0
        self.target = None
        self.nop_states = 1
        self.wait = None
        self.store_data = []
        self._classify()

    def _classify(self):
        mn, ops, mods = self.mn, self.ops, self.mods
        R = regs_of
        if mn.startswith("v_mfma"):
            self.cls = "mfma"
            self.dst = R(ops[0])
            self.srcA, self.srcB, self.srcC = R(ops[1]), R(ops[2]), R(ops[3])
            self.src = self.srcA + self.srcB + self.srcC
            self.passes = 8 if "32x32" in mn else 4
            assert ("32x32x16" in mn or "32x32x8" in mn or "16x16x32" in mn or "16x16x16" in mn), mn
        elif mn.startswith("v_"):
            self.cls = "valu"
            base = mn.replace("_e32", "").replace("_e64", "").replace("_dpp", "").replace("_sdwa", "")
            if base in TRANS:
                self.flags.add("trans")
            if mn.endswith("_dpp") or "row_" in mods or "quad_perm" in mods or "wave_" in mods:
                self.flags.add("dpp")
            if "dst_sel:" in mods and "dst_sel:DWORD" not in mods:
                self.flags.add("opsel")
            if "op_sel:" in mods and not base.startswith("v_pk_"):
                m = re.search(r"op_sel:\[([01,]+)\]", mods)
                if m and m.group(1).split(",")[-1] == "1" and len(m.group(1).split(",")) == len(ops):
                    self.flags.add("opsel")
            if base.startswith("v_dot"):
                self.flags.add("dlop")
            if base.startswith("v_permlane"):
                self.flags.add("permlane")
                self.dst = R(ops[0]) + R(ops[1])
                self.src = R(ops[0]) + R(ops[1])
            elif base in ("v_add_co_u32", "v_sub_co_u32", "v_addc_co_u32", "v_subb_co_u32"):
                self.dst = R(ops[0]) + R(ops[1])
                for o in ops[2:]:
                    self.src += R(o)
            elif base == "v_nop":
                pass
            else:
                self.dst = R(ops[0])
                for o in ops[1:]:
                    self.src += R(o)
                if base in RMW or "dpp" in self.flags or "opsel" in self.flags or mn.endswith("_sdwa"):
                    self.src += [r for r in self.dst if r[0] == "v"]
                if base == "v_cndmask_b32" and len(ops) == 3:
                    self.src.append(("x", "vcc"))
            if base in ("v_readfirstlane_b32", "v_readlane_b32"):
                self.flags.add("readlane")
            if base.startswith("v_cmpx"):
                raise ValueError("v_cmpx not modelled")
        elif mn.startswith("buffer_") or mn.startswith("global_"):
            self.cls = "vmem"
            isbuf = mn.startswith("buffer_")
            if mn in ("buffer_wbl2", "buffer_inv"):
                self.flags.add("nodata")
            elif " lds" in (" " + mods) or mods.endswith("lds") or "_lds_" in mn:
                self.flags.add("ldsdma")
                for o in ops:
                    self.src += R(o)
                self.src.append(("x", "m0"))
            elif "_load_" in mn:
                self.dst = R(ops[0])
                for o in ops[1:]:
                    self.src += R(o)
            elif "_store_" in mn:
                for o in ops:
                    self.src += R(o)
                d = R(ops[0]) if isbuf else R(ops[1])
                if len(d) >= 3:
                    self.store_data = d
                self.flags.add("store")
            elif "_atomic_" in mn:
                ret = "sc0" in mods.split()
                if isbuf:
                    if ret:
                        self.dst = R(ops[0])
                    for o in ops:
                        self.src += R(o)
                else:
                    if ret:
                        self.dst = R(ops[0])
                        for o in ops[1:]:
                            self.src += R(o)
                    else:
                        for o in ops:
                            self.src += R(o)
            else:
                raise ValueError(self.text)
        elif mn.startswith("ds_"):
            self.cls = "ds"
            if mn.startswith("ds_read") or mn.startswith("ds_bpermute") or mn.startswith("ds_permute") \
                    or mn.startswith("ds_swizzle") or "_rtn_" in mn:
                self.dst = R(ops[0])
                for o in ops[1:]:
                    self.src += R(o)
            else:
                for o in ops:
                    self.src += R(o)
        elif mn.startswith("s_"):
            if mn == "s_nop":
                self.cls = "nop"
                self.nop_states = int(ops[0], 0) + 1
            elif mn == "s_waitcnt":
                self.cls = "wait"
                txt = self.text.split(";")[0]
                vm = re.search(r"vmcnt\((\d+)\)", txt)
                lg = re.search(r"lgkmcnt\((\d+)\)", txt)
                self.wait = (int(vm.group(1)) if vm else None, int(lg.group(1)) if lg else None)
            elif mn in ("s_branch",) or mn.startswith("s_cbranch"):
                self.cls = "branch"
                self.target = ops[0]
                if "exec" in mn:
                    self.src = [("x", "exec")]
                if "vcc" in mn:
                    self.src = [("x", "vcc")]
            elif mn == "s_endpgm":
                self.cls = "end"
            elif mn in ("s_barrier", "s_setprio", "s_sleep"):
                self.cls = "misc"
            elif mn.startswith("s_load") or mn in ("s_memtime", "s_memrealtime"):
                self.cls = "smem"
                self.dst = R(ops[0])
                for o in ops[1:]:
                    self.src += R(o)
            else:
                self.cls = "salu"
                if mn.startswith("s_getreg"):
                    self.dst = R(ops[0])
                elif mn.startswith("s_cmp") or mn.startswith("s_bitcmp"):
                    for o in ops:
                        self.src += R(o)
                else:
                    self.dst = R(ops[0])
                    for o in ops[1:]:
                        self.src += R(o)
                    if mn in ("s_addk_i32", "s_mulk_i32") or mn.startswith("s_cmov") or mn.startswith("s_bitset"):
                        self.src += self.dst
                    if "saveexec" in mn:
                        self.dst = self.dst + [("x", "exec")]
                        self.src = self.src + [("x", "exec")]
        else:
            raise ValueError("unknown instruction: " + self.text)


def _overlap(a, b):
    if not a or not b:
        return False
    sb = set(b)
    for r in a:
        if r in sb:
            return True
    return False


def need_states(prev, cur):
    n = 0
    pc, cc = prev.cls, cur.cls
    if pc == "valu":
        pv = [r for r in prev.dst if r[0] in "va"]
        ps = [r for r in prev.dst if r[0] == "s" or r == ("x", "vcc")]
        if cc == "mfma" and _overlap(pv, cur.src):
            n = max(n, 2)
        if cc == "valu":
            if "dpp" in cur.flags and _overlap(pv, cur.src):
                n = max(n, 2)
            if "permlane" in cur.flags and _overlap(pv, cur.src):
                n = max(n, 2)
            if "readlane" in cur.flags and _overlap(pv, cur.src):
                n = max(n, 1)
            if "trans" in prev.flags and _overlap(pv, cur.src + cur.dst):
                n = max(n, 1)
            if "opsel" in prev.flags and _overlap(pv, cur.src + cur.dst):
                n = max(n, 1)
            if "dlop" in prev.flags and _overlap(pv, cur.src + cur.dst):
                same = prev.mn == cur.mn and not _overlap(pv, [r for o in cur.ops[1:3] for r in regs_of(o)])
                if not same:
                    n = max(n, 3)
            if ps and _overlap(ps, cur.src):
                n = max(n, 4 if "readlane" in cur.flags else 2)
        if cc == "mfma" and "dlop" in prev.flags and _overlap(pv, cur.src + cur.dst):
            n = max(n, 3)
        if cc in ("vmem", "ds") and "trans" in prev.flags and _overlap(pv, cur.src):
            n = max(n, 1)
        if cc in ("vmem", "ds") and "dlop" in prev.flags and _overlap(pv, cur.src):
            n = max(n, 3)
        if cc == "vmem" and ps and _overlap(ps, cur.src):
            n = max(n, 5)
        if cc in ("salu", "branch", "smem") and ps and _overlap(ps, cur.src):
            n = max(n, 4 if cc != "branch" else 5)
    if pc == "salu":
        if ("x", "m0") in prev.dst and cc == "vmem" and "ldsdma" in cur.flags:
            n = max(n, 1)
        if ("x", "exec") in prev.dst and cc == "valu" and "dpp" in cur.flags:
            n = max(n, 1)
    if pc == "mfma":
        P = prev.passes
        t_c = {4: 6, 8: 10}[P]
        t_ab = {4: 8, 8: 12}[P]
        t_war = {4: 3, 8: 7}[P]
        if cc == "mfma":
            if _overlap(prev.dst, cur.srcC):
                if not (prev.dst == cur.srcC and prev.passes == cur.passes):
                    n = max(n, t_c)
            if _overlap(prev.dst, cur.srcA + cur.srcB):
                n = max(n, t_ab)
            if _overlap(prev.dst, cur.dst) and not (prev.dst == cur.dst and prev.passes == cur.passes):
                n = max(n, t_c)
        elif cc == "valu":
            if _overlap(prev.dst, cur.src + cur.dst):
                n = max(n, t_ab)
            if _overlap(prev.srcC, cur.dst):
                n = max(n, t_war)
        elif cc in ("vmem", "ds"):
            if _overlap(prev.dst, cur.src + cur.dst):
                n = max(n, t_ab)
            if _overlap(prev.srcC, cur.dst):
                n = max(n, t_war)
    if pc == "vmem" and prev.store_data:
        if cc == "valu" and _overlap(prev.store_data, cur.dst):
            n = max(n, 2)
        elif cc in ("vmem", "ds", "mfma") and _overlap(prev.store_data, cur.dst):
            n = max(n, 1)
    return n


HIST = 14


class Prog:
    def __init__(self):
        self.items = []
        self.uid = 0

    def I(self, text):
        for line in text.split("\n"):
            line = line.strip()
            if not line:
                continue
            if line.endswith(":"):
                self.L(line[:-1])
            else:
                self.items.append(Ins(line))

    __call__ = I

    def L(self, name):
        self.items.append(("label", name))

    def raw(self, text):
        self.items.append(("raw", text))

    def newlabel(self, base):
        self.uid += 1
        return f"{base}_{self.uid}"

    def finalize(self, entries, verbose=False):
        items = self.items
        n = len(items)
        labels = {it[1]: i for i, it in enumerate(items) if isinstance(it, tuple) and it[0] == "label"}
        nops = [0] * n
        waits = [None] * n

        def run():
            changed = False
            seen = set()
            stack = []
            for e in entries:
                stack.append((labels[e], (), (), ()))
            while stack:
                i, hist, vmq, lgq = stack.pop()
                while True:
                    if i >= n:
                        raise RuntimeError("fell off the end of the program")
                    it = items[i]
                    if isinstance(it, tuple):
                        if it[0] == "label":
                            key = (i, hist, vmq, lgq)
                            if key in seen:
                                break
                            seen.add(key)
                        i += 1
                        continue
                    touched = set(it.src) | set(it.dst)
                    wv = wl = None
                    if touched and it.cls not in ("wait", "nop"):
                        for k in range(len(vmq) - 1, -1, -1):
                            if vmq[k] and touched.intersection(vmq[k]):
                                wv = len(vmq) - 1 - k
                                break
                        for k in range(len(lgq) - 1, -1, -1):
                            ent = lgq[k]
                            if ent[1] and touched.intersection(ent[1]):
                                if any(e[0] == "smem" for e in lgq):
                                    wl = 0
                                else:
                                    wl = len(lgq) - 1 - k
                                break
                    if wv is not None or wl is not None:
                        old = waits[i] or (None, None)
                        nv = old[0] if wv is None else (min(wv, 63) if old[0] is None else min(old[0], wv))
                        nl = old[1] if wl is None else (min(wl, 15) if old[1] is None else min(old[1], wl))
                        if (nv, nl) != old:
                            waits[i] = (nv, nl)
                            changed = True
                    w = waits[i]
                    extra_states = 0
                    if w:
                        if w[0] is not None:
                            vmq = vmq[len(vmq) - w[0]:] if w[0] < len(vmq) else vmq
                            if w[0] == 0:
                                vmq = ()
                        if w[1] is not None:
                            if w[1] == 0:
                                lgq = ()
                            elif w[1] < len(lgq):
                                lgq = lgq[len(lgq) - w[1]:]
                        extra_states += 1
                    dist = extra_states + nops[i]
                    need_extra = 0
                    for (pidx, gap) in reversed(hist):
                        need = need_states(items[pidx], it)
                        have = gap + dist
                        if need > have:
                            need_extra = max(need_extra, need - have)
                    if need_extra:
                        nops[i] += need_extra
                        changed = True
                        dist += need_extra
                    if it.cls == "wait":
                        a, b = it.wait
                        if a is not None:
                            vmq = () if a == 0 else (vmq[len(vmq) - a:] if a < len(vmq) else vmq)
                        if b is not None:
                            if b == 0:
                                lgq = ()
                            elif not any(e[0] == "smem" for e in lgq) and b < len(lgq):
                                lgq = lgq[len(lgq) - b:]
                    if it.cls == "vmem":
                        vmq = vmq + (frozenset(it.dst),)
                        if len(vmq) > 63:
                            vmq = vmq[-63:]
                    elif it.cls == "ds":
                        lgq = lgq + (("ds", frozenset(it.dst)),)
                        if len(lgq) > 15:
                            lgq = lgq[-15:]
                    elif it.cls == "smem":
                        lgq = lgq + (("smem", frozenset(it.dst)),)
                    adv = dist + it.nop_states
                    nh = tuple((p, g + adv) for (p, g) in hist if g + adv < HIST)
                    if it.cls in ("valu", "mfma", "salu", "vmem"):
                        nh = nh + ((i, 0),)
                    hist = nh
                    if it.cls == "end":
                        break
                    if it.cls == "branch":
                        stack.append((labels[it.target], hist, vmq, lgq))
                        if it.mn == "s_branch":
                            break
                    i += 1
            return changed

        rounds = 0
        while run():
            rounds += 1
            assert rounds < 50
        out = []
        nn = nw = 0
        for i, it in enumerate(items):
            if isinstance(it, tuple):
                out.append(it[1] + ":" if it[0] == "label" else it[1])
                continue
            w = waits[i]
            k = nops[i]
            if w:
                s = "s_waitcnt"
                if w[0] is not None:
                    s += f" vmcnt({w[0]})"
                if w[1] is not None:
                    s += f" lgkmcnt({w[1]})"
                out.append("  " + s)
                nw += 1
            while k > 0:
                c = min(k, 16)
                out.append(f"  s_nop {c - 1}")
                k -= c
                nn += 1
            out.append("  " + it.text)
        if verbose:
            print(f"finalize: {n} items, {nw} auto waits, {nn} auto nops, rounds {rounds}")
        return "\n".join(out) + "\n"


class Regs:
    def __init__(self, kind, start=0, limit=256):
        self.kind, self.next, self.limit, self.hi = kind, start, limit, start

    def alloc(self, n=1, align=None):
        if align is None:
            align = 1 if n == 1 else (2 if self.kind == "v" else (2 if n == 2 else 4))
        self.next = (self.next + align - 1) // align * align
        r = self.next
        self.next += n
        self.hi = max(self.hi, self.next)
        assert self.next <= self.limit, f"out of {self.kind} registers"
        return r


def vr(base, n=1):
    return f"v{base}" if n == 1 else f"v[{base}:{base + n - 1}]"


def sr(base, n=1):
    return f"s{base}" if n == 1 else f"s[{base}:{base + n - 1}]"


def kernel_header(name):
    return f""".globl {name}
.p2align 8
.type {name},@function
"""


def kernel_desc(name, nvgpr, nsgpr=102):
    nv = (nvgpr + 7) // 8 * 8
    return f""".amdhsa_kernel {name}
  .amdhsa_next_free_vgpr {nv}
  .amdhsa_next_free_sgpr {nsgpr}
  .amdhsa_accum_offset {nv}
  .amdhsa_group_segment_fixed_size 0
  .amdhsa_kernarg_size 128
  .amdhsa_user_sgpr_count 2
  .amdhsa_user_sgpr_kernarg_segment_ptr 1
  .amdhsa_system_sgpr_workgroup_id_x 1
.end_amdhsa_kernel
"""
```

```python
from asmgen import *
from layout import *
import common
import struct


def f32(x):
    return "0x%08x" % struct.unpack("<I", struct.pack("<f", x))[0]


BUF = 20480
HALF = 10240


def emit_attention(P, sWG, pfx="att", end="s_endpgm", exp=()):
    V = Regs("v", 1)
    SA = V.alloc(16); SB = V.alloc(16); OA = V.alloc(16); OB = V.alloc(16)
    PA = V.alloc(8); PB = V.alloc(8)
    QLA = V.alloc(4); QLB = V.alloc(4); QHA = V.alloc(2); QHB = V.alloc(2)
    KL = V.alloc(4); KH = V.alloc(2); V0 = V.alloc(4); V1 = V.alloc(4)
    vL16 = V.alloc(); vKL = V.alloc(); vKH = V.alloc(); vV = V.alloc()
    vT = V.alloc(); vT2 = V.alloc(); vLane = 0
    sHead, sQB, sW, sQG, sKH = 8, 9, 10, 11, 12
    sG0, sG1, sSt0, sSt1, sM, sIt, sAtt = 13, 14, 15, 16, 17, 18, 19
    sT, sT2, sG0i, sG1i = 20, 21, 22, 23
    sMask = 24
    sTile = 26
    sDuty, sSub = 36, 37
    sVm = 34
    srd = "s[4:7]"
    L = lambda n: f"{pfx}_{n}"

    P(f"""
    s_and_b32 s{sT}, s{sWG}, 7
    s_lshl_b32 s{sT}, s{sT}, 2
    s_lshr_b32 s{sT2}, s{sWG}, 3
    s_and_b32 s{sT2}, s{sT2}, 3
    s_add_u32 s{sHead}, s{sT}, s{sT2}
    s_lshr_b32 s{sQB}, s{sWG}, 5
    v_lshrrev_b32 v{vT}, 6, v0
    v_and_b32 v{vLane}, 63, v0
    v_readfirstlane_b32 s{sW}, v{vT}
    v_lshlrev_b32 v{vL16}, 4, v{vLane}
    s_and_b32 s{sQG}, s{sW}, 3
    s_lshr_b32 s{sKH}, s{sW}, 2
    s_lshr_b32 s{sT}, s{sQG}, 1
    s_cmp_eq_u32 s{sT}, s{sKH}
    s_cselect_b32 s{sDuty}, 1, 0
    s_and_b32 s{sSub}, s{sQG}, 1
    s_mul_i32 s{sT}, s{sKH}, {HALF}
    v_add_u32 v{vKL}, s{sT}, v{vL16}
    v_and_b32 v{vT}, 31, v{vLane}
    v_lshlrev_b32 v{vKH}, 2, v{vT}
    v_lshrrev_b32 v{vT2}, 5, v{vLane}
    v_mul_u32_u24 v{vT2}, 19, v{vT2}
    v_add_u32 v{vT2}, v{vT2}, v{vT}
    v_lshlrev_b32 v{vV}, 4, v{vT2}
    v_add_u32 v{vV}, s{sT}, v{vV}
    s_lshl_b32 s{sTile}, s{sQB}, 3
    s_lshl_b32 s{sT2}, s{sQG}, 1
    s_add_u32 s{sTile}, s{sTile}, s{sT2}
    """)
    P(f"""
    s_lshl_b32 s{sT}, s{sHead}, 16
    s_lshl_b32 s{sT2}, s{sTile}, 10
    s_add_u32 s{sT}, s{sT}, s{sT2}
    s_add_u32 s{sT}, s{sT}, {WS_QLO}
    buffer_load_dwordx4 {vr(QLA,4)}, v{vL16}, {srd}, s{sT} offen
    buffer_load_dwordx4 {vr(QLB,4)}, v{vL16}, {srd}, s{sT} offen offset:1024
    s_lshl_b32 s{sT}, s{sHead}, 13
    s_lshl_b32 s{sT2}, s{sTile}, 7
    s_add_u32 s{sT}, s{sT}, s{sT2}
    s_add_u32 s{sT}, s{sT}, {WS_QHI}
    buffer_load_dword v{QHA}, v{vKH}, {srd}, s{sT} offen
    buffer_load_dword v{QHB}, v{vKH}, {srd}, s{sT} offen offset:128
    """)
    P(f"""
    s_lshl_b32 s{sT}, s{sHead}, 16
    s_lshl_b32 s{sT2}, s{sKH}, 15
    s_add_u32 s{sT}, s{sT}, s{sT2}
    s_add_u32 s27, s{sT}, {WS_KLO}
    s_lshl_b32 s{sT}, s{sHead}, 13
    s_lshl_b32 s{sT2}, s{sKH}, 12
    s_add_u32 s{sT}, s{sT}, s{sT2}
    s_add_u32 s28, s{sT}, {WS_KHI}
    s_mul_i32 s{sT}, s{sHead}, {VT_HEAD}
    s_mul_i32 s{sT2}, s{sKH}, {64 * 608}
    s_add_u32 s{sT}, s{sT}, s{sT2}
    s_add_u32 s29, s{sT}, {WS_VT}
    s_add_u32 s30, s27, 1024
    s_add_u32 s31, s28, 128
    s_add_u32 s32, s29, 4096
    s_cmp_eq_u32 s{sSub}, 0
    s_cselect_b32 s{sG0i}, s30, s29
    s_cselect_b32 s{sG1i}, s31, s32
    s_movk_i32 s30, 4864
    s_cselect_b32 s{sSt0}, 4096, s30
    s_cselect_b32 s{sSt1}, 512, s30
    s_mul_i32 s{sM}, s{sKH}, {HALF}
    s_mul_i32 s{sT}, s{sSub}, 5120
    s_add_u32 s{sM}, s{sM}, s{sT}
    v_cmp_gt_u32 vcc, 32, v{vLane}
    v_mov_b32 v{QHA+1}, 0
    v_mov_b32 v{QHB+1}, 0
    v_mov_b32 v{KH+1}, 0x3f803f80
    s_mov_b32 s{sAtt}, 0
    s_mov_b32 s{sVm}, 0x7ffff
    s_mov_b32 s{sVm+1}, 0x7ffff
    """)

    def dma(par):
        skip = P.newlabel(pfx + "_nodma")
        P(f"""
        s_cmp_eq_u32 s{sDuty}, 0
        s_cbranch_scc1 {skip}
        s_add_u32 m0, s{sM}, {par * BUF}
        s_nop 0
        buffer_load_dwordx4 v{vL16}, {srd}, s{sG0} offen lds
        buffer_load_dwordx4 v{vL16}, {srd}, s{sG0} offen offset:1024 lds
        buffer_load_dwordx4 v{vL16}, {srd}, s{sG0} offen offset:2048 lds
        buffer_load_dwordx4 v{vL16}, {srd}, s{sG0} offen offset:3072 lds
        s_add_u32 m0, s{sM}, {par * BUF + 4096}
        s_add_u32 s{sG0}, s{sG0}, s{sSt0}
        buffer_load_dwordx4 v{vL16}, {srd}, s{sG1} offen lds
        s_add_u32 s{sG1}, s{sG1}, s{sSt1}
        """)
        P.L(skip)

    P.L(L("start"))
    P(f"""
    buffer_load_dwordx4 {vr(KL,4)}, v{vL16}, {srd}, s27 offen
    buffer_load_dword v{KH}, v{vKH}, {srd}, s28 offen
    s_mov_b32 s{sG0}, s{sG0i}
    s_mov_b32 s{sG1}, s{sG1i}
    """)
    dma(0)
    dma(1)
    P(f"""
    s_mul_i32 s{sT}, s{sKH}, {HALF}
    v_add_u32 v{vT2}, s{sT}, v{vKH}
    s_mov_b32 s{sIt}, 0
    v_cmp_gt_u32 vcc, 32, v{vLane}
    """)
    for r in range(8):
        P(f"v_mov_b32 v{PB + r}, 0")
    for r in range(4):
        P(f"v_mov_b32 v{V0 + r}, 0")
        P(f"v_mov_b32 v{V1 + r}, 0")
    P(f"""
    v_cndmask_b32 v{QHA}, 0, v{QHA}, vcc
    v_cndmask_b32 v{QHB}, 0, v{QHB}, vcc
    v_mfma_f32_32x32x8bf16_1k {vr(SA,16)}, {vr(KH,2)}, {vr(QHA,2)}, 0
    v_mfma_f32_32x32x16_bf16 {vr(SA,16)}, {vr(KL,4)}, {vr(QLA,4)}, {vr(SA,16)}
    """)
    for r in range(16):
        P(f"v_mov_b32 v{OA + r}, 0")
        P(f"v_mov_b32 v{OB + r}, 0")
    P(f"""
    s_waitcnt vmcnt(5)
    s_barrier
    """)
    vKHl = vT2

    def valu_seq(S, Pk):
        seq = []
        e = lambda r: f"v_exp_f32 v{S + r}, v{S + r}"
        c = lambda k: f"v_cvt_pk_bf16_f32 v{Pk + k}, v{S + 2 * k}, v{S + 2 * k + 1}"
        seq += [e(0), e(1)]
        for k in range(7):
            seq += [e(2 * k + 2), c(k), e(2 * k + 3)]
        seq += [None, c(7)]
        return seq

    def phase(S, Pk, mf, extra):
        seq = valu_seq(S, Pk)
        pos = [0, 6, 12, 18]
        k = 0
        out = []
        for idx, ins in enumerate(seq):
            if k < 4 and idx == pos[k]:
                out += mf[k] if isinstance(mf[k], list) else [mf[k]]
                out += extra.get(k, [])
                k += 1
            if ins is None:
                out.append("s_nop 0")
            else:
                out.append(ins)
        for o in out:
            P(o)

    def qk(S, QH, QL):
        return [f"v_mfma_f32_32x32x8bf16_1k {vr(S,16)}, {vr(KH,2)}, {vr(QH,2)}, 0",
                f"v_mfma_f32_32x32x16_bf16 {vr(S,16)}, {vr(KL,4)}, {vr(QL,4)}, {vr(S,16)}"]

    def pv(O, Pk):
        return [f"v_mfma_f32_32x32x16_bf16 {vr(O,16)}, {vr(V0,4)}, {vr(Pk,4)}, {vr(O,16)}",
                f"v_mfma_f32_32x32x16_bf16 {vr(O,16)}, {vr(V1,4)}, {vr(Pk+4,4)}, {vr(O,16)}"]

    def step(par, t):
        a = qk(SB, QHB, QLB); b = pv(OB, PB)
        ex = {1: [f"ds_read_b32 v{KH}, v{vKHl} offset:{par * BUF + 4096 + t * 128}",
                  f"ds_read_b128 {vr(KL,4)}, v{vKL} offset:{par * BUF + t * 1024}"],
              3: [f"ds_read_b128 {vr(V0,4)}, v{vV} offset:{par * BUF + 5120 + 2 * t * 608}",
                  f"ds_read_b128 {vr(V1,4)}, v{vV} offset:{par * BUF + 5120 + (2 * t + 1) * 608}"]}
        if "nozero" not in exp:
            ex[3] = [f"s_mov_b64 exec, s[{sVm}:{sVm+1}]"] + ex[3] + ["s_mov_b64 exec, -1"]
        if "noread" in exp:
            ex = {}
        phase(SA, PA, [a[0], a[1], b[0], b[1]], ex)
        a = qk(SA, QHA, QLA); b = pv(OA, PA)
        phase(SB, PB, [["s_waitcnt lgkmcnt(2)", a[0]], a[1], ["s_waitcnt lgkmcnt(0)", b[0]], b[1]], {})

    common.mark(P, 0)
    prio_of = lambda c, t: 3 - t
    for c in range(8):
        par = c & 1
        for t in range(4):
            if "noprio" not in exp:
                P(f"s_setprio {prio_of(c, t)}")
            step(par, t)
        P("s_waitcnt vmcnt(0) lgkmcnt(0)")
        if "nobar" not in exp:
            P("s_barrier")
        if c < 6 and "nodma" not in exp:
            dma(par)
        common.mark(P, 4 + c)
    common.mark(P, 1)
    for m in pv(OB, PB):
        P(m)

    XL = 24576
    P(f"""
    s_lshl_b32 s{sT}, s{sQG}, 9
    s_lshl_b32 s{sT2}, s{sKH}, 2
    s_add_u32 s{sT}, s{sT}, s{sT2}
    s_add_u32 s{sT}, s{sT}, {XL}
    v_and_b32 v{vT}, 31, v{vLane}
    v_lshlrev_b32 v{vT}, 3, v{vT}
    v_add_u32 v{vT}, s{sT}, v{vT}
    s_mul_i32 s{sT}, s{sW}, 3072
    v_add_u32 v{SA}, s{sT}, v{vL16}
    s_xor_b32 s{sT2}, s{sW}, 4
    s_mul_i32 s{sT2}, s{sT2}, 3072
    v_add_u32 v{SA+1}, s{sT2}, v{vL16}
    s_mov_b32 exec_hi, 0
    ds_write_b32 v{vT}, v{OA+10}
    ds_write_b32 v{vT}, v{OB+10} offset:256
    s_mov_b32 exec_hi, -1
    s_cmp_eq_u32 s{sKH}, 0
    s_cbranch_scc0 {L('send_a')}
    ds_write_b128 v{SA}, {vr(OB,4)}
    ds_write_b128 v{SA}, {vr(OB+4,4)} offset:1024
    ds_write_b128 v{SA}, {vr(OB+8,4)} offset:2048
    s_branch {L('sent')}
    """)
    P.L(L("send_a"))
    P(f"""
    ds_write_b128 v{SA}, {vr(OA,4)}
    ds_write_b128 v{SA}, {vr(OA+4,4)} offset:1024
    ds_write_b128 v{SA}, {vr(OA+8,4)} offset:2048
    s_waitcnt lgkmcnt(0)
    """)
    for r in range(12):
        P(f"v_mov_b32 v{OA + r}, v{OB + r}")
    P.L(L("sent"))
    P(f"""
    s_waitcnt lgkmcnt(0)
    s_barrier
    ds_read_b128 {vr(SB,4)}, v{SA+1}
    ds_read_b128 {vr(SB+4,4)}, v{SA+1} offset:1024
    ds_read_b128 {vr(SB+8,4)}, v{SA+1} offset:2048
    v_lshlrev_b32 v{vT}, 3, v{vLane}
    ds_read_b64 {vr(PA,2)}, v{vT} offset:{XL}
    ds_read_b64 {vr(PA+2,2)}, v{vT} offset:{XL + 512}
    ds_read_b64 {vr(PB,2)}, v{vT} offset:{XL + 1024}
    ds_read_b64 {vr(PB+2,2)}, v{vT} offset:{XL + 1536}
    """)
    for r in range(11):
        P(f"v_add_f32 v{OA + r}, v{OA + r}, v{SB + r}")
    P(f"""
    v_add_f32 v{PA}, v{PA}, v{PA+1}
    v_add_f32 v{PA+2}, v{PA+2}, v{PA+3}
    v_add_f32 v{PB}, v{PB}, v{PB+1}
    v_add_f32 v{PB+2}, v{PB+2}, v{PB+3}
    s_cmp_eq_u32 s{sAtt}, 1
    s_cbranch_scc1 {L('final')}
    v_mov_b32 v{PA+6}, {f32(2.0 ** -64)}
    v_mov_b32 v{PA+7}, {f32(2.0 ** 64)}
    s_mov_b64 s[{sMask}:{sMask+1}], exec
    """)
    for r in (PA, PA + 2, PB, PB + 2):
        P(f"""
        v_cmp_ge_f32 vcc, v{r}, v{PA+6}
        s_and_b64 s[{sMask}:{sMask+1}], s[{sMask}:{sMask+1}], vcc
        v_cmp_le_f32 vcc, v{r}, v{PA+7}
        s_and_b64 s[{sMask}:{sMask+1}], s[{sMask}:{sMask+1}], vcc
        """)
    P(f"""
    s_andn2_b64 s[{sMask}:{sMask+1}], exec, s[{sMask}:{sMask+1}]
    s_cbranch_scc1 {L('maxpass')}
    """)
    P.L(L("final"))
    common.mark(P, 2)
    P(f"""
    v_mov_b32 v{SB}, v{OA+10}
    v_mov_b32 v{SB+1}, v{OA+10}
    s_add_u32 s{sTile}, s{sTile}, s{sKH}
    s_mul_i32 s{sT}, s{sTile}, {36 * 1024}
    v_permlane32_swap_b32 v{SB}, v{SB+1}
    s_add_u32 s{sT}, s{sT}, {WS_OF}
    v_rcp_f32 v{SB}, v{SB}
    s_lshl_b32 s{sT2}, s{sHead}, 10
    s_add_u32 s{sT2}, s{sT2}, s{sT}
    """)
    for r in range(10):
        P(f"v_mul_f32 v{OA + r}, v{OA + r}, v{SB}")
    for k in range(5):
        P(f"v_cvt_pk_bf16_f32 v{PA + k}, v{OA + 2 * k}, v{OA + 2 * k + 1}")
    P(f"""
    buffer_store_dwordx4 {vr(PA,4)}, v{vL16}, {srd}, s{sT2} offen sc1
    s_lshr_b32 s{sT2}, s{sHead}, 3
    s_add_u32 s{sT2}, s{sT2}, 32
    s_lshl_b32 s{sT2}, s{sT2}, 10
    s_add_u32 s{sT}, s{sT}, s{sT2}
    s_lshr_b32 s{sT2}, s{sHead}, 2
    s_and_b32 s{sT2}, s{sT2}, 1
    s_lshl_b32 s{sT2}, s{sT2}, 9
    s_add_u32 s{sT}, s{sT}, s{sT2}
    s_and_b32 s{sT2}, s{sHead}, 3
    s_lshl_b32 s{sT2}, s{sT2}, 2
    s_add_u32 s{sT}, s{sT}, s{sT2}
    s_mov_b32 exec_hi, 0
    buffer_store_dword v{PA+4}, v{vL16}, {srd}, s{sT} offen sc1
    s_waitcnt vmcnt(0)
    s_barrier
    s_cmp_eq_u32 s{sW}, 0
    s_cbranch_scc0 {L('noflag')}
    s_lshl_b32 s{sT}, s{sQB}, 7
    s_lshl_b32 s{sT2}, s{sHead}, 2
    s_add_u32 s{sT}, s{sT}, s{sT2}
    s_add_u32 s{sT}, s{sT}, {WS_FLG + FLG_ATT}
    v_mov_b32 v{PA}, 1
    v_mov_b32 v{PA+1}, 0
    s_mov_b32 exec_lo, 1
    buffer_store_dword v{PA}, v{PA+1}, {srd}, s{sT} offen sc1
    """)
    P.L(L("noflag"))
    P(end)

    P.L(L("maxpass"))
    P(f"""
    s_barrier
    s_mov_b32 s{sAtt}, 1
    s_mov_b32 s{sIt}, 0
    s_mov_b32 s{sG0}, s27
    s_mov_b32 s{sG1}, s28
    v_mov_b32 v{QHA+1}, 0
    v_mov_b32 v{QHB+1}, 0
    v_mov_b32 v{PA}, 0xff800000
    v_mov_b32 v{PB}, 0xff800000
    """)
    P.L(L("maxloop"))
    P(f"""
    buffer_load_dwordx4 {vr(KL,4)}, v{vL16}, {srd}, s{sG0} offen
    buffer_load_dword v{KH}, v{vKH}, {srd}, s{sG1} offen
    s_add_u32 s{sG0}, s{sG0}, 1024
    s_add_u32 s{sG1}, s{sG1}, 128
    """)
    for m in qk(SA, QHA, QLA) + qk(SB, QHB, QLB):
        P(m)
    for S, M in ((SA, PA), (SB, PB)):
        for r in range(0, 16, 2):
            P(f"v_max3_f32 v{M}, v{S + r}, v{S + r + 1}, v{M}")
    P(f"""
    s_add_u32 s{sIt}, s{sIt}, 1
    s_cmp_lt_u32 s{sIt}, 32
    s_cbranch_scc1 {L('maxloop')}
    """)
    for M in (PA, PB):
        P(f"""
        v_mov_b32 v{M+1}, v{M}
        v_mov_b32 v{M+2}, v{M}
        v_permlane32_swap_b32 v{M+1}, v{M+2}
        v_max3_f32 v{M}, v{M}, v{M+1}, v{M+2}
        """)
    P(f"""
    s_lshl_b32 s{sT}, s{sW}, 9
    v_lshlrev_b32 v{vT}, 3, v{vLane}
    v_add_u32 v{SA}, s{sT}, v{vT}
    s_xor_b32 s{sT}, s{sW}, 4
    s_lshl_b32 s{sT}, s{sT}, 9
    v_add_u32 v{SA+1}, s{sT}, v{vT}
    v_mov_b32 v{PA+1}, v{PB}
    ds_write_b64 v{SA}, {vr(PA,2)}
    s_waitcnt lgkmcnt(0)
    s_barrier
    ds_read_b64 {vr(PA+2,2)}, v{SA+1}
    v_cmp_gt_u32 vcc, 32, v{vLane}
    v_max_f32 v{PA}, v{PA}, v{PA+2}
    v_max_f32 v{PB}, v{PB}, v{PA+3}
    """)
    for M, QH in ((PA, QHA), (PB, QHB)):
        P(f"""
        v_sub_f32 v{M}, 0, v{M}
        v_and_b32 v{M+1}, 0xffff0000, v{M}
        v_sub_f32 v{M+2}, v{M}, v{M+1}
        v_and_b32 v{M+3}, 0xffff0000, v{M+2}
        v_sub_f32 v{M+4}, v{M+2}, v{M+3}
        v_lshrrev_b32 v{M+5}, 16, v{M+1}
        v_or_b32 v{M+5}, v{M+5}, v{M+3}
        v_lshrrev_b32 v{M+6}, 16, v{M+4}
        v_cndmask_b32 v{QH+1}, v{M+6}, v{M+5}, vcc
        """)
    P(f"""
    s_barrier
    s_branch {L('start')}
    """)
    return V.hi
```

```python
import sys
from common import *
import common
from k1 import emit_k1, K1_LDS
from att import emit_attention
from svc import emit_service, SVC_LDS
from prepk import Prep, srd_from_kernarg

KNAME = "gated_mix__ssm_conv_s5__softmax_full_mha__prompt_kernel"

def k_prep():
    P = Prog(); name = "prep_kernel"
    P.L(name)
    ws_srd(P)
    P("s_cmp_ge_u32 s2, 256\ns_cbranch_scc1 prep_exit")
    V = Regs("v", 1)
    srd_from_kernarg(P, 16, KA_AX, 2048 * 1152)
    pr = Prep(P, V, 45, 16, 0)
    pr.srds()
    P("v_lshrrev_b32 v1, 6, v0\nv_and_b32 v0, 63, v0\nv_readfirstlane_b32 s26, v1")
    pr.loads(2, 26)
    pr.finish()
    P.L("prep_exit")
    P("s_endpgm")
    return name, P.finalize([name]), V.hi, (name, 256, 0, 256)

def k_k1(name="k1_kernel"):
    P = Prog()
    P.L(name)
    ws_srd(P)
    P("s_cmp_ge_u32 s2, 256\ns_cbranch_scc1 k1_exit")
    nv = emit_k1(P, 2)
    P.L("k1_exit")
    P("s_endpgm")
    return name, P.finalize([name]), nv, (name, 256, K1_LDS, 512)

def k_att(timing=False):
    P = Prog(); name = "att_kernel"
    P.L(name)
    if timing:
        timing_start(P); P("v_lshrrev_b32 v127, 6, v0")
    ws_srd(P)
    P("s_cmp_ge_u32 s2, 256\ns_cbranch_scc1 att_exit")
    nv = emit_attention(P, 2, end="s_branch ta_exit" if timing else "s_endpgm")
    P.L("att_exit")
    P("s_endpgm")
    if timing:
        timing_exit(P, "ta_exit", slot=0, vw=127); nv = 128
        common.TIMING = False
    return name, P.finalize([name]), nv, (name, 256, 40960, 512)

def k_svc(timing=False, exp=()):
    P = Prog(); name = "svc_kernel"
    P.L(name)
    if timing:
        timing_start(P); P("v_lshrrev_b32 v127, 6, v0")
    ws_srd(P)
    P("s_cmp_ge_u32 s2, 144\ns_cbranch_scc1 svc_exit")
    nv = emit_service(P, 2, end="s_branch ts_exit" if timing else "s_endpgm", exp=exp)
    P.L("svc_exit")
    P("s_endpgm")
    if timing:
        timing_exit(P, "ts_exit", slot=1, vw=127); nv = 128
        common.TIMING = False
    return name, P.finalize([name]), nv, (name, 144, SVC_LDS, 512)

def k_l2(timing=False, exp=()):
    P = Prog(); name = "l2_kernel"
    P.L(name)
    if timing:
        timing_start(P); P("v_lshrrev_b32 v127, 6, v0")
    ws_srd(P)
    P("""
    s_cmp_ge_u32 s2, 400
    s_cbranch_scc1 l2_exit
    s_cmp_ge_u32 s2, 256
    s_cbranch_scc1 l2_svc
    """)
    e = "s_branch tl_exit" if timing else "s_endpgm"
    nv = emit_attention(P, 2, end=e, exp=exp)
    P.L("l2_svc")
    P("s_sub_u32 s3, s2, 256")
    nv = max(nv, emit_service(P, 3, end=e, exp=exp))
    P.L("l2_exit")
    P("s_endpgm")
    if timing:
        timing_exit(P, "tl_exit", slot=0, vw=127); nv = 128
        common.TIMING = False
    return name, P.finalize([name]), nv, (name, 400, SVC_LDS, 512)

def assemble(ks):
    txt = launch_text([k[3] for k in ks])
    txt += '.amdgcn_target "amdgcn-amd-amdhsa--gfx950"\n.text\n'
    for name, body, nv, _ in ks:
        txt += kernel_header(name) + body
    txt += '.section .rodata,"a"\n.p2align 6\n'
    for name, body, nv, _ in ks:
        assert nv <= 256
        txt += kernel_desc(name, nv)
    return txt

def build(mode="sep", timing=False, exp=()):
    common.TIMING = False
    if mode == "sep":
        ks = [k_prep(), k_k1(), k_att(timing), k_svc(timing, exp)]
    elif mode == "fused":
        ks = [k_prep(), k_k1(), k_l2(timing, exp)]
    print("vgprs", [(k[0], k[2]) for k in ks])
    return assemble(ks)

if __name__ == "__main__":
    mode = sys.argv[1] if len(sys.argv) > 1 else "sep"
    t = build(mode, True)
    open("out/all.s", "w").write(t)
    print(len(t))
```

```python
from asmgen import *
from layout import *

def ws_srd(P):
    P(f"""
    s_load_dwordx2 s[4:5], s[0:1], {KA_WS}
    s_waitcnt lgkmcnt(0)
    s_mov_b32 s6, {WS_SIZE}
    s_mov_b32 s7, 0x00020000
    """)

TIMING = False
WSEL = slice(0, 4)
NMARK = 16
MK0 = 52
REC = 128

def timing_start(P):
    global TIMING
    TIMING = True
    P("""
    s_memrealtime s[96:97]
    s_memtime s[94:95]
    s_waitcnt lgkmcnt(0)
    """)
    for k in range(NMARK):
        P(f"s_mov_b32 s{MK0 + 2 * k}, s94")

def mark(P, k):
    if TIMING:
        P(f"""
        s_memtime s[{MK0 + 2 * k}:{MK0 + 1 + 2 * k}]
        s_waitcnt lgkmcnt(0)
        """)

def timing_exit(P, label, slot=0, vw=255):
    P.L(label)
    P(f"""
    s_waitcnt vmcnt(0)
    s_memrealtime s[98:99]
    s_memtime s[92:93]
    s_waitcnt lgkmcnt(0)
    s_sub_u32 s92, s92, s94
    s_mov_b64 exec, -1
    s_getreg_b32 s97, hwreg(HW_REG_HW_ID)
    s_getreg_b32 s99, hwreg(HW_REG_XCC_ID)
    s_and_b32 s99, s99, 15
    s_lshl_b32 s92, s92, 4
    s_or_b32 s99, s99, s92
    v_mov_b32 v2, s96
    v_mov_b32 v3, s97
    v_mov_b32 v4, s98
    v_mov_b32 v5, s99
    """)
    for k in range(NMARK):
        P(f"s_sub_u32 s{MK0 + 2 * k}, s{MK0 + 2 * k}, s94")
        P(f"v_mov_b32 v{6 + k}, s{MK0 + 2 * k}")
    P(f"""
    s_lshl_b32 s98, s2, 10
    s_add_u32 s98, s98, {WS_TIM + slot * 0x40000 * (1 if slot == 0 else 1)}
    v_readfirstlane_b32 s99, v{vw}
    s_lshl_b32 s99, s99, 7
    s_add_u32 s98, s98, s99
    v_mov_b32 v1, 0
    s_mov_b32 exec_hi, 0
    s_mov_b32 exec_lo, 1
    """)
    for q in range(5):
        P(f"buffer_store_dwordx4 v[{2 + 4 * q}:{5 + 4 * q}], v1, s[4:7], s98 offen offset:{16 * q}")
    P("s_endpgm")

def launch_text(kernels):
    t = ""
    for k in kernels:
        name, grid, lds = k[:3]
        blk = k[3] if len(k) > 3 else 256
        t += f"; @launch kernel={name} grid=({grid},1,1) block=({blk},1,1) lds={lds}\n"
    return t

def decode_times(res, nwg, slot=0):
    import numpy as np
    a = res[WS_TIM + slot * 0x40000 * (1 if slot == 0 else 1): WS_TIM + slot * 0x40000 * (1 if slot == 0 else 1) + nwg * 1024].view(np.uint32).reshape(nwg, 8, 32)[:, WSEL]
    st, en = a[:, :, 0].astype(np.int64), a[:, :, 2].astype(np.int64)
    t0 = st.min()
    hw = a[:, 0, 1]; xcc = a[:, 0, 3] & 0xf
    cu = [(int(xcc[i]), int((hw[i] >> 13) & 7), int((hw[i] >> 12) & 1), int((hw[i] >> 8) & 0xf)) for i in range(nwg)]
    global last_cycles, last_marks
    last_marks = a[:, :, 4:20].astype(np.int64)
    last_cycles = (a[:, :, 3] >> 4).astype(np.int64)
    return (st - t0) / 100.0, (en - t0) / 100.0, cu

def summarize_times(res, nwg, slot=0, label=""):
    import numpy as np, collections
    st, en, cu = decode_times(res, nwg, slot)
    d = collections.defaultdict(list)
    for i, k in enumerate(cu):
        d[k].append(i)
    hist = collections.Counter(len(v) for v in d.values())
    dur = (en - st).max(1)
    s = "%s start: max %.2f med %.2f | end: min %.2f med %.2f max %.2f | dur med %.2f max %.2f | WGs/CU %s" % (
        label, st.max(), np.median(st), en.min(), np.median(en), en.max(), np.median(dur), dur.max(), dict(hist))
    bycount = collections.defaultdict(list)
    for k, v in d.items():
        for i in v:
            bycount[len(v)].append(dur[i])
    s += " | GHz %.3f" % float(np.median(last_cycles / ((en - st) * 1000.0)))
    s += " | cyc total med %d marks med %s" % (np.median(last_cycles), [int(np.median(last_marks[:, :, k])) for k in range(4)])
    s += " | dur by co-residency " + str({k: round(float(np.median(v)), 2) for k, v in bycount.items()})
    return s
```

```python
from asmgen import *
from layout import *
import common
import struct


def f32(x):
    return "0x%08x" % struct.unpack("<I", struct.pack("<f", x))[0]


NST = 4
STAGE = 32768
K1_LDS = NST * STAGE


def srd_from_kernarg(P, s, ka, nbytes):
    P(f"""
    s_load_dwordx2 s[{s}:{s+1}], s[0:1], {ka}
    s_mov_b32 s{s+2}, {nbytes}
    s_mov_b32 s{s+3}, 0x00020000
    """)


def emit_k1(P, sWG, pfx="k1", end="s_endpgm"):
    V = Regs("v", 1)
    ACC = [[V.alloc(16) for _ in range(2)] for _ in range(2)]
    XF = [[V.alloc(4) for _ in range(2)] for _ in range(2)]
    WF = [[V.alloc(4) for _ in range(2)] for _ in range(2)]
    vXD = [V.alloc() for _ in range(4)]
    vWD = [V.alloc() for _ in range(4)]
    vXR = [V.alloc() for _ in range(4)]
    vWR = [V.alloc() for _ in range(2)]
    vXR2 = [V.alloc() for _ in range(4)]
    vWR2 = [V.alloc() for _ in range(2)]
    GX = V.alloc(18); GW = V.alloc(18)
    vT = [V.alloc() for _ in range(8)]
    vLane = 0
    sX, sW_, sAX, sGW = 8, 12, 16, 20
    sTB, sFG, sWv, sWM, sWN, sM, sXo, sWo, sCol = 24, 25, 26, 27, 28, 29, 30, 31, 32
    sT, sT2, sT3, sIsV, sPB = 33, 34, 35, 36, 37
    sLd = 44
    L = lambda n: f"{pfx}_{n}"
    ws = "s[4:7]"

    srd_from_kernarg(P, sX, KA_AX, 2048 * 1152)
    srd_from_kernarg(P, sW_, KA_WQKV, 576 * 3456)
    srd_from_kernarg(P, sAX, KA_AX, 2048 * 1152)
    srd_from_kernarg(P, sGW, KA_GW, 1152)
    t0, t1, t2, t3, t4, t5 = vT[:6]
    P(f"""
    v_lshrrev_b32 v{t0}, 6, v0
    v_and_b32 v{vLane}, 63, v0
    v_readfirstlane_b32 s{sWv}, v{t0}
    s_lshr_b32 s{sLd}, s{sWv}, 2
    s_and_b32 s{sWv}, s{sWv}, 3
    s_and_b32 s{sT}, s{sWG}, 7
    s_lshr_b32 s{sT2}, s{sWG}, 3
    s_and_b32 s{sTB}, s{sT}, 1
    s_lshl_b32 s{sTB}, s{sTB}, 3
    s_and_b32 s{sT3}, s{sT2}, 7
    s_add_u32 s{sTB}, s{sTB}, s{sT3}
    s_lshr_b32 s{sFG}, s{sT}, 1
    s_lshl_b32 s{sFG}, s{sFG}, 2
    s_lshr_b32 s{sT3}, s{sT2}, 3
    s_add_u32 s{sFG}, s{sFG}, s{sT3}
    s_and_b32 s{sWM}, s{sWv}, 1
    s_lshr_b32 s{sWN}, s{sWv}, 1
    s_lshl_b32 s{sM}, s{sWv}, 12
    """)
    P(f"""
    s_cmp_ge_u32 s{sFG}, 11
    s_cselect_b32 s{sIsV}, 1, 0
    s_mul_i32 s{sCol}, s{sFG}, 216
    s_and_b32 s{sCol}, s{sCol}, 0xfffffff0
    s_sub_u32 s{sT}, s{sFG}, 11
    s_lshl_b32 s{sT}, s{sT}, 2
    s_min_u32 s{sT}, s{sT}, 14
    s_lshl_b32 s{sT2}, s{sT}, 6
    s_add_u32 s{sT2}, s{sT2}, 2304
    s_cmp_eq_u32 s{sIsV}, 1
    s_cselect_b32 s{sCol}, s{sT2}, s{sCol}
    s_cselect_b32 s{sPB}, s{sT}, 0
    """)
    P(f"""
    s_cmp_eq_u32 s{sLd}, 0
    s_cbranch_scc1 {L('compute')}
    """)
    P(f"""
    v_lshrrev_b32 v{t0}, 3, v{vLane}
    v_lshrrev_b32 v{t1}, 4, v{vLane}
    v_and_b32 v{t2}, 7, v{vLane}
    s_lshl_b32 s{sT}, s{sTB}, 7
    s_lshl_b32 s{sT2}, s{sWv}, 5
    s_add_u32 s{sT}, s{sT}, s{sT2}
    s_movk_i32 s{sT3}, 1152
    """)
    for u in range(4):
        P(f"""
        v_add_u32 v{t3}, {4 * u}, v{t1}
        v_and_b32 v{t3}, 7, v{t3}
        v_xor_b32 v{t3}, v{t3}, v{t2}
        v_lshlrev_b32 v{t3}, 4, v{t3}
        v_add_u32 v{t4}, {8 * u}, v{t0}
        v_add_u32 v{t4}, s{sT}, v{t4}
        v_mul_lo_u32 v{t4}, v{t4}, s{sT3}
        v_add_u32 v{vXD[u]}, v{t3}, v{t4}
        """)
    P(f"""
    v_and_b32 v{t2}, 15, v{vLane}
    v_lshlrev_b32 v{t3}, 2, v{t1}
    v_xor_b32 v{t3}, v{t3}, v{t2}
    v_lshlrev_b32 v{t3}, 4, v{t3}
    v_add_u32 v{t3}, s{sCol}, v{t3}
    s_lshl_b32 s{sT}, s{sWv}, 4
    s_movk_i32 s{sT3}, 3456
    """)
    for u in range(4):
        P(f"""
        v_add_u32 v{t4}, {4 * u}, v{t1}
        v_add_u32 v{t4}, s{sT}, v{t4}
        v_mul_lo_u32 v{t4}, v{t4}, s{sT3}
        v_add_u32 v{vWD[u]}, v{t3}, v{t4}
        """)
    P(f"""
    s_mov_b32 s{sXo}, 0
    s_mov_b32 s{sWo}, 0
    s_waitcnt lgkmcnt(0)
    """)
    common.mark(P, 0)

    def dma(c):
        st = (c % NST) * STAGE
        for u in range(4):
            P(f"s_add_u32 m0, s{sM}, {st + u * 1024}")
            P(f"buffer_load_dwordx4 v{vXD[u]}, s[{sX}:{sX+3}], s{sXo} offen lds")
        for u in range(4):
            P(f"s_add_u32 m0, s{sM}, {st + 16384 + u * 1024}")
            P(f"buffer_load_dwordx4 v{vWD[u]}, s[{sW_}:{sW_+3}], s{sWo} offen lds")
        P(f"s_add_u32 s{sXo}, s{sXo}, 128")
        P(f"s_add_u32 s{sWo}, s{sWo}, {64 * 3456}")

    dma(0)

    P(f"""
    v_lshrrev_b32 v{t0}, 4, v{vLane}
    s_lshl_b32 s{sT}, s{sWG}, 4
    s_lshl_b32 s{sT2}, s{sWv}, 2
    s_add_u32 s{sT}, s{sT}, s{sT2}
    v_add_u32 v{t0}, s{sT}, v{t0}
    s_movk_i32 s{sT3}, 1152
    v_mul_lo_u32 v{vT[6]}, v{t0}, s{sT3}
    v_and_b32 v{t1}, 15, v{vLane}
    v_lshlrev_b32 v{t1}, 3, v{t1}
    v_add_u32 v{vT[6]}, v{vT[6]}, v{t1}
    v_lshlrev_b32 v{vT[7]}, 2, v{t0}
    s_cmp_ge_u32 s{sWG}, 128
    s_cbranch_scc1 {L('nogate_ld')}
    """)
    for q in range(9):
        P(f"buffer_load_dwordx2 {vr(GX + 2 * q, 2)}, v{vT[6]}, s[{sAX}:{sAX+3}], 0 offen offset:{128 * q}")
        P(f"buffer_load_dwordx2 {vr(GW + 2 * q, 2)}, v{t1}, s[{sGW}:{sGW+3}], 0 offen offset:{128 * q}")
    P.L(L("nogate_ld"))

    for c in range(1, NST):
        dma(c)
    common.mark(P, 1)
    P(f"s_waitcnt vmcnt({(NST - 1) * 8})")
    common.mark(P, 2)
    P("s_barrier")
    for c in range(8):
        left = min(NST - 2, 7 - c) * 8
        P(f"s_waitcnt vmcnt({left})")
        P("s_barrier")
        if c + NST < 9:
            dma(c + NST)
    common.mark(P, 3)
    P(f"""
    s_cmp_ge_u32 s{sWG}, 128
    s_cbranch_scc1 {L('end')}
    v_mov_b32 v{vT[0]}, 0
    v_mov_b32 v{vT[1]}, 0
    """)
    for q in range(9):
        P(f"v_dot2c_f32_bf16 v{vT[0]}, v{GX + 2 * q}, v{GW + 2 * q}")
        P(f"v_dot2c_f32_bf16 v{vT[1]}, v{GX + 2 * q + 1}, v{GW + 2 * q + 1}")
    P(f"""
    v_add_f32 v{vT[0]}, v{vT[0]}, v{vT[1]}
    v_add_f32_dpp v{vT[0]}, v{vT[0]}, v{vT[0]} row_ror:8 row_mask:0xf bank_mask:0xf
    v_add_f32_dpp v{vT[0]}, v{vT[0]}, v{vT[0]} row_ror:4 row_mask:0xf bank_mask:0xf
    v_add_f32_dpp v{vT[0]}, v{vT[0]}, v{vT[0]} row_ror:2 row_mask:0xf bank_mask:0xf
    v_add_f32_dpp v{vT[0]}, v{vT[0]}, v{vT[0]} row_ror:1 row_mask:0xf bank_mask:0xf
    v_mul_f32 v{vT[0]}, {f32(-LOG2E)}, v{vT[0]}
    v_exp_f32 v{vT[0]}, v{vT[0]}
    v_add_f32 v{vT[0]}, 1.0, v{vT[0]}
    v_rcp_f32 v{vT[0]}, v{vT[0]}
    v_and_b32 v{vT[1]}, 15, v{vLane}
    v_cmp_eq_u32 vcc, 0, v{vT[1]}
    s_mov_b32 s{sT}, {WS_G}
    s_and_saveexec_b64 s[42:43], vcc
    buffer_store_dword v{vT[0]}, v{vT[7]}, {ws}, s{sT} offen
    """)
    P(f"s_branch {L('end')}")

    P.L(L("compute"))
    P(f"""
    v_and_b32 v{t0}, 31, v{vLane}
    v_lshrrev_b32 v{t1}, 5, v{vLane}
    v_lshrrev_b32 v{t2}, 1, v{t0}
    v_and_b32 v{t2}, 7, v{t2}
    v_xor_b32 v{t2}, v{t2}, v{t1}
    v_lshlrev_b32 v{t2}, 4, v{t2}
    s_lshl_b32 s{sT}, s{sWM}, 6
    v_add_u32 v{t3}, s{sT}, v{t0}
    v_lshlrev_b32 v{t3}, 7, v{t3}
    v_add_u32 v{vXR[0]}, v{t2}, v{t3}
    v_xor_b32 v{vXR[1]}, 32, v{vXR[0]}
    v_xor_b32 v{vXR[2]}, 64, v{vXR[0]}
    v_xor_b32 v{vXR[3]}, 0x60, v{vXR[0]}
    """)
    P(f"""
    v_lshrrev_b32 v{t0}, 4, v{vLane}
    v_and_b32 v{t0}, 1, v{t0}
    v_lshlrev_b32 v{t0}, 2, v{t0}
    v_and_b32 v{t1}, 3, v{vLane}
    v_add_u32 v{t0}, v{t0}, v{t1}
    v_lshrrev_b32 v{t1}, 2, v{vLane}
    v_and_b32 v{t1}, 3, v{t1}
    v_lshrrev_b32 v{t2}, 5, v{vLane}
    v_lshlrev_b32 v{t3}, 3, v{t2}
    v_add_u32 v{t3}, v{t3}, v{t1}
    v_lshlrev_b32 v{t3}, 8, v{t3}
    v_add_u32 v{t3}, 16384, v{t3}
    s_cmp_eq_u32 s{sIsV}, 1
    s_cbranch_scc1 {L('vaddr')}
    """)
    P(f"""
    s_mul_i32 s{sPB}, s{sFG}, 3
    s_and_b32 s{sT}, s{sFG}, 1
    s_lshl_b32 s{sT}, s{sT}, 3
    v_lshrrev_b32 v{t4}, 2, v{t0}
    v_mul_u32_u24 v{t4}, 40, v{t4}
    v_and_b32 v{t5}, 1, v{t0}
    v_lshlrev_b32 v{t5}, 4, v{t5}
    v_add_u32 v{t4}, v{t4}, v{t5}
    v_lshrrev_b32 v{t5}, 1, v{t0}
    v_and_b32 v{t5}, 1, v{t5}
    v_lshlrev_b32 v{t5}, 3, v{t5}
    v_add_u32 v{t4}, v{t4}, v{t5}
    v_add_u32 v{t4}, s{sT}, v{t4}
    s_mul_i32 s{sT2}, s{sWN}, 144
    v_add_u32 v{vWR[0]}, s{sT2}, v{t4}
    v_add_u32 v{vWR[1]}, 72, v{vWR[0]}
    v_min_u32 v{t5}, 2, v{t0}
    v_mul_u32_u24 v{t5}, 72, v{t5}
    v_add_u32 v{t5}, 32, v{t5}
    v_add_u32 v{t5}, s{sT}, v{t5}
    s_cmp_eq_u32 s{sWN}, 1
    s_cbranch_scc0 {L('swz')}
    v_mov_b32 v{vWR[1]}, v{t5}
    s_branch {L('swz')}
    """)
    P.L(L("vaddr"))
    P(f"""
    v_lshlrev_b32 v{t4}, 3, v{t0}
    s_lshl_b32 s{sT2}, s{sWN}, 7
    v_add_u32 v{vWR[0]}, s{sT2}, v{t4}
    v_add_u32 v{vWR[1]}, 64, v{vWR[0]}
    """)
    P.L(L("swz"))
    P(f"v_lshlrev_b32 v{t1}, 6, v{t1}")
    for k in range(2):
        P(f"""
        v_xor_b32 v{vWR[k]}, v{vWR[k]}, v{t1}
        v_add_u32 v{vWR[k]}, v{vWR[k]}, v{t3}
        """)

    for k in range(4):
        P(f"v_add_u32 v{vXR2[k]}, 0x10000, v{vXR[k]}")
    for k in range(2):
        P(f"v_add_u32 v{vWR2[k]}, 0x10000, v{vWR[k]}")

    def reads(n):
        c, ks = divmod(n, 4)
        st = (c % NST) * STAGE
        xr, wr = (vXR, vWR) if st < 65536 else (vXR2, vWR2)
        st &= 65535
        b = n & 1
        out = []
        for tt in range(2):
            out.append(f"ds_read_b128 {vr(XF[b][tt],4)}, v{xr[ks]} offset:{st + tt * 4096}")
        for ft in range(2):
            for rd in range(2):
                out.append(f"ds_read_b64_tr_b16 {vr(WF[b][ft] + 2 * rd, 2)}, v{wr[ft]} offset:{st + ks * 4096 + rd * 1024}")
        return out

    def mainloop(isv):
        for n in range(36):
            c, ks = divmod(n, 4)
            b = n & 1
            mf = []
            for tt in range(2):
                for ft in range(2):
                    a_, b_ = (XF[b][tt], WF[b][ft]) if isv else (WF[b][ft], XF[b][tt])
                    cop = "0" if n == 0 else vr(ACC[tt][ft], 16)
                    mf.append(f"v_mfma_f32_32x32x16_bf16 {vr(ACC[tt][ft],16)}, {vr(a_,4)}, {vr(b_,4)}, {cop}")
            P("s_waitcnt lgkmcnt(0)")
            if ks == 3 and n + 1 < 36:
                P("s_barrier")
            rs = reads(n + 1) if n + 1 < 36 else []
            for k in range(4):
                P(mf[k])
                take = rs[:2] if k < 3 else rs
                rs = rs[len(take):]
                for r in take:
                    P(r)

    P("s_barrier")
    common.mark(P, 0)
    for r in reads(0):
        P(r)
    P(f"""
    s_cmp_eq_u32 s{sIsV}, 1
    s_cbranch_scc1 {L('vmain')}
    """)

    mainloop(False)
    common.mark(P, 1)
    PK = XF[0][0]
    vA = [vT[0], vT[1], vT[2], vT[3]]
    P(f"v_lshlrev_b32 v{vA[0]}, 4, v{vLane}")

    def lo_store(tt, ft, sPBreg):
        skip = P.newlabel(pfx + "_skip")
        P(f"""
        s_cmp_ge_u32 s{sPBreg}, 32
        s_cbranch_scc1 {skip}
        s_and_b32 s{sT}, s{sPBreg}, 15
        s_lshl_b32 s{sT}, s{sT}, 17
        s_lshl_b32 s{sT2}, s{sTB}, 2
        s_lshl_b32 s{sT3}, s{sWM}, 1
        s_add_u32 s{sT2}, s{sT2}, s{sT3}
        s_add_u32 s{sT2}, s{sT2}, {tt}
        s_lshl_b32 s{sT2}, s{sT2}, 10
        s_add_u32 s{sT}, s{sT}, s{sT2}
        s_add_u32 s{sT2}, s{sT}, {WS_QLO}
        s_add_u32 s{sT}, s{sT}, {WS_KLO}
        s_cmp_lt_u32 s{sPBreg}, 16
        s_cselect_b32 s{sT}, s{sT2}, s{sT}
        s_cselect_b32 s{sT3}, {f32(QSCALE)}, 1.0
        s_add_u32 s{sT2}, s{sT}, 65536
        """)
        A = ACC[tt][ft]
        for r in range(16):
            P(f"v_mul_f32 v{A + r}, s{sT3}, v{A + r}")
        for k in range(8):
            P(f"v_cvt_pk_bf16_f32 v{PK + k}, v{A + 2 * k}, v{A + 2 * k + 1}")
        P(f"""
        buffer_store_dwordx4 {vr(PK,4)}, v{vA[0]}, {ws}, s{sT} offen
        buffer_store_dwordx4 {vr(PK+4,4)}, v{vA[0]}, {ws}, s{sT2} offen
        """)
        P.L(skip)

    sP0, sP1 = 38, 39
    P(f"""
    s_lshl_b32 s{sP0}, s{sWN}, 1
    s_add_u32 s{sP0}, s{sP0}, s{sPB}
    s_add_u32 s{sP1}, s{sP0}, 1
    """)
    for tt in range(2):
        lo_store(tt, 0, sP0)
    P(f"""
    s_cmp_eq_u32 s{sWN}, 1
    s_cbranch_scc1 {L('hi')}
    """)
    for tt in range(2):
        lo_store(tt, 1, sP1)
    P(f"s_branch {L('end')}")
    P.L(L("hi"))
    big = 0x7ff00000
    for part in range(2):
        pb, adr, scl = vT[1], vT[2], vT[3]
        if part == 0:
            P(f"""
            v_lshrrev_b32 v{pb}, 5, v{vLane}
            v_add_u32 v{pb}, s{sPB}, v{pb}
            """)
        else:
            P(f"""
            s_add_u32 s{sT}, s{sPB}, 2
            v_mov_b32 v{pb}, s{sT}
            """)
        P(f"""
        v_and_b32 v{adr}, 15, v{pb}
        v_lshlrev_b32 v{adr}, 14, v{adr}
        v_and_b32 v{vT[4]}, 31, v{vLane}
        v_lshlrev_b32 v{vT[4]}, 2, v{vT[4]}
        v_add_u32 v{adr}, v{adr}, v{vT[4]}
        s_lshl_b32 s{sT2}, s{sTB}, 9
        s_lshl_b32 s{sT3}, s{sWM}, 8
        s_add_u32 s{sT2}, s{sT2}, s{sT3}
        v_add_u32 v{adr}, s{sT2}, v{adr}
        v_cmp_gt_u32 vcc, 16, v{pb}
        v_mov_b32 v{vT[4]}, {WS_KHI}
        v_mov_b32 v{vT[5]}, {WS_QHI}
        v_cndmask_b32 v{vT[4]}, v{vT[4]}, v{vT[5]}, vcc
        v_add_u32 v{adr}, v{adr}, v{vT[4]}
        v_mov_b32 v{vT[4]}, 1.0
        v_mov_b32 v{vT[5]}, {f32(QSCALE)}
        v_cndmask_b32 v{scl}, v{vT[4]}, v{vT[5]}, vcc
        v_cmp_le_u32 vcc, 32, v{pb}
        v_mov_b32 v{vT[4]}, {big}
        v_cndmask_b32 v{adr}, v{adr}, v{vT[4]}, vcc
        """)
        if part == 1:
            P(f"""
            v_cmp_le_u32 vcc, 32, v{vLane}
            v_cndmask_b32 v{adr}, v{adr}, v{vT[4]}, vcc
            """)
        for tt in range(2):
            A = ACC[tt][1] + 4 * part
            for r in range(4):
                P(f"v_mul_f32 v{A + r}, v{scl}, v{A + r}")
            P(f"""
            v_cvt_pk_bf16_f32 v{PK + 2 * tt}, v{A}, v{A+1}
            v_cvt_pk_bf16_f32 v{PK + 2 * tt + 1}, v{A+2}, v{A+3}
            v_add_u32 v{vT[4]}, 8192, v{adr}
            buffer_store_dword v{PK + 2 * tt}, v{adr}, {ws}, 0 offen offset:{128 * tt}
            buffer_store_dword v{PK + 2 * tt + 1}, v{vT[4]}, {ws}, 0 offen offset:{128 * tt}
            """)
    P(f"s_branch {L('end')}")

    P.L(L("vmain"))
    mainloop(True)
    common.mark(P, 1)
    for ft in range(2):
        f_, hd, dm, adr = vT[0], vT[1], vT[2], vT[3]
        P(f"""
        s_lshl_b32 s{sT}, s{sWN}, 1
        s_add_u32 s{sT}, s{sT}, s{sPB}
        s_add_u32 s{sT}, s{sT}, {ft}
        s_lshl_b32 s{sT}, s{sT}, 5
        v_and_b32 v{f_}, 31, v{vLane}
        v_add_u32 v{f_}, s{sT}, v{f_}
        v_mul_u32_u24 v{hd}, 3641, v{f_}
        v_lshrrev_b32 v{hd}, 16, v{hd}
        v_mul_u32_u24 v{dm}, 18, v{hd}
        v_sub_u32 v{dm}, v{f_}, v{dm}
        v_lshrrev_b32 v{vT[4]}, 5, v{vLane}
        v_mul_u32_u24 v{vT[4]}, 19, v{vT[4]}
        v_add_u32 v{vT[4]}, v{vT[4]}, v{dm}
        v_lshlrev_b32 v{vT[4]}, 4, v{vT[4]}
        s_mov_b32 s{sT2}, {VT_HEAD}
        v_mul_lo_u32 v{adr}, v{hd}, s{sT2}
        v_add_u32 v{adr}, v{adr}, v{vT[4]}
        s_lshl_b32 s{sT2}, s{sTB}, 3
        s_lshl_b32 s{sT3}, s{sWM}, 2
        s_add_u32 s{sT2}, s{sT2}, s{sT3}
        s_mul_i32 s{sT2}, s{sT2}, 608
        s_add_u32 s{sT2}, s{sT2}, {WS_VT}
        v_cmp_eq_u32 s[40:41], 17, v{dm}
        v_mov_b32 v{PK+8}, 0x3f803f80
        v_mov_b32 v{PK+9}, 0x3f803f80
        v_mov_b32 v{PK+10}, 0x3f803f80
        v_mov_b32 v{PK+11}, 0x3f803f80
        """)
        for tt in range(2):
            A = ACC[tt][ft]
            for k in range(8):
                P(f"v_cvt_pk_bf16_f32 v{PK + k}, v{A + 2 * k}, v{A + 2 * k + 1}")
            for sg in range(2):
                off = (2 * tt + sg) * 608
                P(f"buffer_store_dwordx4 {vr(PK + 4 * sg, 4)}, v{adr}, {ws}, s{sT2} offen offset:{off}")
        P(f"s_and_saveexec_b64 s[42:43], s[40:41]")
        sk = P.newlabel(pfx + "_noones")
        P(f"s_cbranch_execz {sk}")
        for g4 in range(4):
            P(f"buffer_store_dwordx4 {vr(PK + 8, 4)}, v{adr}, {ws}, s{sT2} offen offset:{g4 * 608 + 16}")
        P.L(sk)
        P("s_mov_b64 exec, s[42:43]")

    P.L(L("end"))
    P(end)
    return V.hi
```

```python
WS_KLO = 0x0000000
WS_KHI = 0x0200000
WS_VT = 0x0240000
WS_QLO = 0x0500000
WS_QHI = 0x0700000
WS_OF = 0x0800000
WS_HF = 0x0B00000
WS_XF = 0x1000000
WS_BF = 0x1240000
WS_CF = 0x1390000
WS_G = 0x1500000
WS_E = 0x1510000
WS_FLG = 0x1540000
WS_TIM = 0x1700000
WS_WF = 0x1600000
E_BYTES = 16 * 576 * 16
FLG_HF = 0
FLG_ATT = 1024
FLG_BYTES = 2048
TAG = 0x5A17C3E9
WS_SIZE = 0x1900000

VT_HEAD = 128 * 608
VT_HALF = 576 * 16
VT_GROUP = 2 * VT_HALF

KA_AX, KA_LRE, KA_LIM, KA_BRE, KA_BIM, KA_CRE, KA_CIM, KA_LDT, KA_DSK, KA_BX, KA_WQKV, KA_WO, KA_GW, \
    KA_OUT, KA_DBG, KA_WS = [8 * i for i in range(16)]

LOG2E = 1.4426950408889634
QSCALE = (18 ** -0.5) * LOG2E
```

```python
from asmgen import *
from layout import *
import struct


def f32(x):
    return "0x%08x" % struct.unpack("<I", struct.pack("<f", x))[0]


def srd_from_kernarg(P, s, ka, nbytes):
    P(f"""
    s_load_dwordx2 s[{s}:{s+1}], s[0:1], {ka}
    s_mov_b32 s{s+2}, {nbytes}
    s_mov_b32 s{s+3}, 0x00020000
    """)


def emit_lambda(P, lre, lim, ldt, t, lr, li, coef=None):
    P(f"""
    v_lshlrev_b32 v{lre}, 16, v{lre}
    v_lshlrev_b32 v{lim}, 16, v{lim}
    v_lshlrev_b32 v{ldt}, 16, v{ldt}
    v_mul_f32 v{ldt}, {f32(LOG2E)}, v{ldt}
    v_exp_f32 v{ldt}, v{ldt}
    v_cvt_pk_bf16_f32 v{ldt}, v{ldt}, v{ldt}
    v_lshlrev_b32 v{ldt}, 16, v{ldt}
    v_mul_f32 v{t}, v{ldt}, v{lre}
    v_mul_f32 v{t+1}, v{ldt}, v{lim}
    v_mul_f32 v{t}, {f32(LOG2E)}, v{t}
    v_mul_f32 v{t+1}, 0.15915494, v{t+1}
    v_exp_f32 v{t}, v{t}
    v_cos_f32 v{t+2}, v{t+1}
    v_sin_f32 v{t+3}, v{t+1}
    v_mul_f32 v{lr}, v{t}, v{t+2}
    v_mul_f32 v{li}, v{t}, v{t+3}
    """)
    if coef:
        kr, ki = coef
        P(f"""
        v_add_f32 v{t}, -1.0, v{lr}
        v_mul_f32 v{t+1}, v{lre}, v{lre}
        v_fmac_f32 v{t+1}, v{lim}, v{lim}
        v_rcp_f32 v{t+1}, v{t+1}
        v_mul_f32 v{kr}, v{t}, v{lre}
        v_fmac_f32 v{kr}, v{li}, v{lim}
        v_mul_f32 v{ki}, v{li}, v{lre}
        v_mul_f32 v{t+2}, v{t}, v{lim}
        v_sub_f32 v{ki}, v{ki}, v{t+2}
        v_mul_f32 v{kr}, v{kr}, v{t+1}
        v_mul_f32 v{ki}, v{ki}, v{t+1}
        """)


class Prep:
    def __init__(self, P, V, s0, sAX, vLane, pfx="prep"):
        self.P, self.pfx, self.sAX, self.vLane = P, pfx, sAX, vLane
        S = Regs("s", s0, 84)
        self.sT = S.alloc(); self.sT2 = S.alloc(); self.sT3 = S.alloc()
        self.ptr = S.alloc(16, 4)
        self.pWo = S.alloc(2)
        self.sW = S.alloc()
        self.sSel = S.alloc(4); self.sSel2 = S.alloc(4)
        self.sF = [S.alloc() for _ in range(7)]
        self.X = [V.alloc(4) for _ in range(3)]
        self.B = [V.alloc(4) for _ in range(2)]
        self.Cr = V.alloc(4); self.Ci = V.alloc(4)
        self.W = V.alloc(8, 4)
        self.L = [V.alloc() for _ in range(3)]
        self.vL16 = V.alloc(); self.vXl = V.alloc(); self.vBl = V.alloc(); self.vWl = V.alloc()
        self.T = V.alloc(24, 4)

    def srds(self):
        P = self.P
        P(f"""
        s_load_dwordx16 s[{self.ptr}:{self.ptr+15}], s[0:1], {KA_LRE}
        s_load_dwordx2 s[{self.pWo}:{self.pWo+1}], s[0:1], {KA_WO}
        """)

    def use(self, srd, p, nbytes):
        self.P(f"""
        s_mov_b32 s{srd}, s{p}
        s_mov_b32 s{srd+1}, s{p+1}
        s_mov_b32 s{srd+2}, {nbytes}
        s_mov_b32 s{srd+3}, 0x00020000
        """)

    def _br(self, cond_text, label):
        self.P(cond_text)
        self.P(f"s_cbranch_scc0 {label}")

    def loads(self, sWG, sWv):
        P, s = self.P, self
        ln = s.vLane
        T = s.T
        r4 = lambda n: f"s[{n}:{n+3}]"
        P(f"""
        s_lshl_b32 s{s.sW}, s{sWG}, 2
        s_add_u32 s{s.sW}, s{s.sW}, s{sWv}
        v_lshlrev_b32 v{s.vL16}, 4, v{ln}
        v_lshrrev_b32 v{T}, 5, v{ln}
        v_lshlrev_b32 v{T+1}, 4, v{T}
        v_and_b32 v{T+2}, 31, v{ln}
        s_movk_i32 s{s.sT}, 1152
        v_mul_lo_u32 v{s.vBl}, v{T+2}, s{s.sT}
        v_add_u32 v{s.vBl}, v{s.vBl}, v{T+1}
        v_lshrrev_b32 v{T+3}, 2, v{ln}
        v_and_b32 v{T+3}, 1, v{T+3}
        v_lshlrev_b32 v{T+3}, 5, v{T+3}
        v_lshrrev_b32 v{T+4}, 3, v{T+2}
        v_lshlrev_b32 v{T+4}, 2, v{T+4}
        v_add_u32 v{T+3}, v{T+3}, v{T+4}
        v_and_b32 v{T+4}, 3, v{ln}
        v_add_u32 v{T+3}, v{T+3}, v{T+4}
        v_mul_lo_u32 v{s.vXl}, v{T+3}, s{s.sT}
        v_add_u32 v{s.vXl}, v{s.vXl}, v{T+1}
        s_waitcnt lgkmcnt(0)
        """)

        def xload(k, add):
            f = s.sF[k]
            P(f"""
            s_add_u32 s{f}, s{s.sW}, {add}
            s_mul_i32 s{s.sT}, s{f}, 1821
            s_lshr_b32 s{s.sT}, s{s.sT}, 16
            s_mul_i32 s{s.sT2}, s{s.sT}, 36
            s_sub_u32 s{s.sT2}, s{f}, s{s.sT2}
            s_lshl_b32 s{s.sT2}, s{s.sT2}, 5
            s_lshr_b32 s{s.sT3}, s{s.sT}, 1
            s_mul_i32 s{s.sT3}, s{s.sT3}, {64 * 1152}
            s_add_u32 s{s.sT2}, s{s.sT2}, s{s.sT3}
            s_and_b32 s{s.sT}, s{s.sT}, 1
            s_mul_i32 s{s.sT}, s{s.sT}, {16 * 1152}
            s_add_u32 s{s.sT}, s{s.sT}, s{s.sT2}
            buffer_load_dwordx4 {vr(s.X[k],4)}, v{s.vXl}, {r4(s.sAX)}, s{s.sT} offen
            """)

        def bload(k):
            f = s.sF[3 + k]
            P(f"""
            s_mul_i32 s{s.sT}, s{f}, 1821
            s_lshr_b32 s{s.sT}, s{s.sT}, 16
            s_mul_i32 s{s.sT2}, s{s.sT}, 36
            s_sub_u32 s{s.sT2}, s{f}, s{s.sT2}
            s_lshl_b32 s{s.sT2}, s{s.sT2}, 5
            s_lshr_b32 s{s.sT3}, s{s.sT}, 1
            s_mul_i32 s{s.sT3}, s{s.sT3}, {32 * 1152}
            s_add_u32 s{s.sT2}, s{s.sT2}, s{s.sT3}
            s_bitcmp1_b32 s{s.sT}, 0
            s_cselect_b32 s{s.sSel}, s{s.ptr+6}, s{s.ptr+4}
            s_cselect_b32 s{s.sSel+1}, s{s.ptr+7}, s{s.ptr+5}
            s_mov_b32 s{s.sSel+2}, {576 * 1152}
            s_mov_b32 s{s.sSel+3}, 0x00020000
            buffer_load_dwordx4 {vr(s.B[k],4)}, v{s.vBl}, {r4(s.sSel)}, s{s.sT2} offen
            """)

        xload(0, 0)
        xload(1, 1024)
        l1 = P.newlabel(s.pfx + "_x2")
        self._br(f"s_cmp_lt_u32 s{s.sW}, 256", l1)
        xload(2, 2048)
        P.L(l1)
        P(f"s_mov_b32 s{s.sF[3]}, s{s.sW}")
        bload(0)
        l2 = P.newlabel(s.pfx + "_b1")
        P(f"""
        s_sub_u32 s{s.sT}, s{s.sW}, 256
        s_add_u32 s{s.sF[4]}, s{s.sT}, 1024
        """)
        self._br(f"s_cmp_lt_u32 s{s.sT}, 272", l2)
        bload(1)
        P.L(l2)
        l3 = P.newlabel(s.pfx + "_c")
        P(f"s_sub_u32 s{s.sF[5]}, s{s.sW}, 376")
        self._br(f"s_cmp_lt_u32 s{s.sF[5]}, 648", l3)
        P(f"""
        s_mul_i32 s{s.sT}, s{s.sF[5]}, 1821
        s_lshr_b32 s{s.sT}, s{s.sT}, 16
        s_mul_i32 s{s.sT2}, s{s.sT}, 36
        s_sub_u32 s{s.sT2}, s{s.sF[5]}, s{s.sT2}
        s_mul_i32 s{s.sF[6]}, s{s.sT}, 72
        s_add_u32 s{s.sF[6]}, s{s.sF[6]}, s{s.sT2}
        s_lshl_b32 s{s.sT2}, s{s.sT2}, 5
        s_mul_i32 s{s.sT3}, s{s.sT}, {32 * 1152}
        s_add_u32 s{s.sT3}, s{s.sT3}, s{s.sT2}
        """)
        self.use(s.sSel, s.ptr + 8, 576 * 1152)
        self.use(s.sSel2, s.ptr + 10, 576 * 1152)
        P(f"""
        buffer_load_dwordx4 {vr(s.Cr,4)}, v{s.vBl}, {r4(s.sSel)}, s{s.sT3} offen
        buffer_load_dwordx4 {vr(s.Ci,4)}, v{s.vBl}, {r4(s.sSel2)}, s{s.sT3} offen
        v_lshrrev_b32 v{T}, 5, v{ln}
        v_lshlrev_b32 v{T}, 3, v{T}
        v_and_b32 v{T+1}, 7, v{ln}
        v_add_u32 v{T}, v{T}, v{T+1}
        v_lshlrev_b32 v{T}, 1, v{T}
        """)
        for k, pidx in enumerate((0, 2, 12)):
            srd = (s.sSel, s.sSel2)[k & 1]
            self.use(srd, s.ptr + pidx, 1152)
            P(f"buffer_load_ushort v{s.L[k]}, v{T}, {r4(srd)}, s{s.sT2} offen")
        P.L(l3)
        l4 = P.newlabel(s.pfx + "_w")
        self._br(f"s_cmp_lt_u32 s{s.sW}, 648", l4)
        P(f"""
        s_mul_i32 s{s.sT}, s{s.sW}, 1821
        s_lshr_b32 s{s.sT}, s{s.sT}, 16
        s_mul_i32 s{s.sT2}, s{s.sT}, 36
        s_sub_u32 s{s.sT2}, s{s.sW}, s{s.sT2}
        v_and_b32 v{T}, 31, v{ln}
        v_lshlrev_b32 v{T}, 1, v{T}
        s_lshl_b32 s{s.sT}, s{s.sT}, 6
        v_add_u32 v{T}, s{s.sT}, v{T}
        v_lshrrev_b32 v{T+1}, 5, v{ln}
        s_mov_b32 s{s.sT3}, {72 * 1152}
        s_cmp_lt_u32 s{s.sT2}, 32
        s_cselect_b32 s{s.sT3}, {4 * 1152}, s{s.sT3}
        v_mul_lo_u32 v{T+1}, v{T+1}, s{s.sT3}
        v_add_u32 v{s.vWl}, v{T}, v{T+1}
        s_mul_i32 s{s.sT}, s{s.sT2}, {18 * 1152}
        s_sub_u32 s{s.sT3}, s{s.sT2}, 32
        s_mul_i32 s{s.sT3}, s{s.sT3}, {144 * 1152}
        s_add_u32 s{s.sT3}, s{s.sT3}, {16 * 1152}
        s_cmp_lt_u32 s{s.sT2}, 32
        s_cselect_b32 s{s.sT}, s{s.sT}, s{s.sT3}
        """)
        self.use(s.sSel, s.pWo, 576 * 1152)
        lhi = P.newlabel(s.pfx + "_whi")
        P(f"s_cbranch_scc0 {lhi}")
        for e in range(8):
            off = (e if e < 4 else e + 4) * 1152
            P(f"s_add_u32 s{s.sT3}, s{s.sT}, {off}")
            P(f"buffer_load_ushort v{s.W+e}, v{s.vWl}, {r4(s.sSel)}, s{s.sT3} offen")
        P(f"s_branch {l4}")
        P.L(lhi)
        for e in range(8):
            off = (18 * (e >> 1) + (e & 1)) * 1152
            P(f"s_add_u32 s{s.sT3}, s{s.sT}, {off}")
            P(f"buffer_load_ushort v{s.W+e}, v{s.vWl}, {r4(s.sSel)}, s{s.sT3} offen")
        P.L(l4)

    def finish(self):
        P, s = self.P, self
        ln = s.vLane
        T = s.T
        ws = "s[4:7]"

        def store(regs, f, base):
            P(f"""
            s_lshl_b32 s{s.sT}, s{f}, 10
            s_add_u32 s{s.sT}, s{s.sT}, {base}
            buffer_store_dwordx4 {vr(regs,4)}, v{s.vL16}, {ws}, s{s.sT} offen
            """)

        store(s.X[0], s.sF[0], WS_XF)
        store(s.X[1], s.sF[1], WS_XF)
        l1 = P.newlabel(s.pfx + "_sx2")
        self._br(f"s_cmp_lt_u32 s{s.sW}, 256", l1)
        store(s.X[2], s.sF[2], WS_XF)
        P.L(l1)
        store(s.B[0], s.sF[3], WS_BF)
        l2 = P.newlabel(s.pfx + "_sb1")
        self._br(f"s_cmp_lt_u32 s{s.sF[4]}, 1296", l2)
        P(f"s_cmp_ge_u32 s{s.sF[4]}, 1024")
        P(f"s_cbranch_scc0 {l2}")
        store(s.B[1], s.sF[4], WS_BF)
        P.L(l2)
        l5 = P.newlabel(s.pfx + "_clr")
        self._br(f"s_cmp_lt_u32 s{s.sW}, 146", l5)
        P(f"""
        v_mov_b32 v{T}, 0
        v_mov_b32 v{T+1}, 0
        v_mov_b32 v{T+2}, 0
        v_mov_b32 v{T+3}, 0
        s_lshl_b32 s{s.sT}, s{s.sW}, 10
        s_add_u32 s{s.sT2}, s{s.sT}, {WS_E}
        s_add_u32 s{s.sT}, s{s.sT}, {WS_FLG - 144 * 1024}
        s_cmp_lt_u32 s{s.sW}, 144
        s_cselect_b32 s{s.sT}, s{s.sT2}, s{s.sT}
        buffer_store_dwordx4 {vr(T,4)}, v{s.vL16}, {ws}, s{s.sT} offen
        """)
        P.L(l5)
        l4 = P.newlabel(s.pfx + "_sw")
        self._br(f"s_cmp_lt_u32 s{s.sW}, 648", l4)
        for k in range(4):
            P(f"v_lshl_or_b32 v{T+k}, v{s.W+2*k+1}, 16, v{s.W+2*k}")
        store(T, s.sW, WS_WF)
        P.L(l4)
        l3 = P.newlabel(s.pfx + "_sc")
        self._br(f"s_cmp_lt_u32 s{s.sF[5]}, 648", l3)
        lr, li, kr, ki, t4 = T + 4, T + 5, T + 6, T + 7, T + 8
        emit_lambda(P, s.L[0], s.L[1], s.L[2], t4, lr, li, coef=(kr, ki))
        P(f"""
        v_add_f32 v{kr}, v{kr}, v{kr}
        v_add_f32 v{ki}, v{ki}, v{ki}
        """)
        R, I = T + 8, T + 16
        a, b = T + 4, T + 5
        for e in range(8):
            src_r, src_i = s.Cr + (e >> 1), s.Ci + (e >> 1)
            if e & 1:
                P(f"v_and_b32 v{a}, 0xffff0000, v{src_r}")
                P(f"v_and_b32 v{b}, 0xffff0000, v{src_i}")
            else:
                P(f"v_lshlrev_b32 v{a}, 16, v{src_r}")
                P(f"v_lshlrev_b32 v{b}, 16, v{src_i}")
            dpp = f"row_newbcast:{e} row_mask:0xf bank_mask:0xf"
            P(f"""
            v_mul_f32_dpp v{I+e}, v{ki}, v{b} {dpp}
            v_mul_f32_dpp v{R+e}, v{kr}, v{a} {dpp}
            v_sub_f32 v{R+e}, v{R+e}, v{I+e}
            v_mul_f32_dpp v{I+e}, v{ki}, v{a} {dpp}
            v_fmac_f32_dpp v{I+e}, v{kr}, v{b} {dpp}
            """)
        for k in range(4):
            P(f"v_cvt_pk_bf16_f32 v{s.Cr+k}, v{R+2*k}, v{R+2*k+1}")
            P(f"v_cvt_pk_bf16_f32 v{s.Ci+k}, -v{I+2*k}, -v{I+2*k+1}")
        store(s.Cr, s.sF[6], WS_CF)
        P(f"s_add_u32 s{s.sF[6]}, s{s.sF[6]}, 36")
        store(s.Ci, s.sF[6], WS_CF)
        P.L(l3)
```

```python
from asmgen import *
from layout import *
from prepk import emit_lambda, srd_from_kernarg, f32
import common

SLOT = 16384
SVC_LDS = 81920
ELOC = 78 * 1024
HDEPTH = 16
ODEPTH = 12


def emit_service(P, sIdx, pfx="svc", end="s_endpgm", exp=()):
    L = lambda n: f"{pfx}_{n}"
    ws = "s[4:7]"
    sTB, sSB, sW, sWM, sWN, sM, sXo, sBo, sCo, sHo = 8, 9, 10, 11, 12, 13, 14, 15, 16, 17
    sT, sT2, sT3, sTag, sKH, sMT, sTile = 18, 19, 20, 21, 22, 23, 24
    sOk, sBad = 26, 28
    sE, sAX, sOut, sP = 32, 36, 40, 44
    vLane, vL16 = 0, 1
    hi = [2]

    def use(*regs):
        hi[0] = max(hi[0], max(regs) + 1)

    srd_from_kernarg(P, sAX, KA_AX, 2048 * 1152)
    srd_from_kernarg(P, sOut, KA_OUT, 2048 * 2304)
    P(f"""
    v_lshrrev_b32 v2, 6, v0
    v_and_b32 v{vLane}, 63, v0
    v_readfirstlane_b32 s{sW}, v2
    v_lshlrev_b32 v{vL16}, 4, v{vLane}
    s_and_b32 s{sTB}, s{sIdx}, 7
    s_lshl_b32 s{sTB}, s{sTB}, 1
    s_lshr_b32 s{sT}, s{sIdx}, 3
    s_and_b32 s{sT}, s{sT}, 1
    s_add_u32 s{sTB}, s{sTB}, s{sT}
    s_lshr_b32 s{sSB}, s{sIdx}, 4
    s_mov_b32 s{sTag}, {TAG}
    s_add_u32 s{sE}, s4, {WS_E}
    s_addc_u32 s{sE+1}, s5, 0
    s_mov_b32 s{sE+2}, {E_BYTES}
    s_mov_b32 s{sE+3}, 0x00020000
    s_and_b32 s{sMT}, s{sW}, 3
    s_lshr_b32 s{sKH}, s{sW}, 2
    s_lshl_b32 s{sTile}, s{sTB}, 2
    s_add_u32 s{sTile}, s{sTile}, s{sMT}
    s_setprio 3
    s_cmp_eq_u32 s{sKH}, 0
    s_cbranch_scc0 {L('loader')}
    """)

    def cf_dma(c):
        slot = (c + 2) % 5
        P(f"""
        s_add_u32 m0, s{sM}, {slot * SLOT}
        s_nop 0
        buffer_load_dwordx4 v{vL16}, {ws}, s{sCo} offen lds
        buffer_load_dwordx4 v{vL16}, {ws}, s{sCo} offen offset:1024 lds
        buffer_load_dwordx4 v{vL16}, {ws}, s{sCo} offen offset:2048 lds
        buffer_load_dwordx4 v{vL16}, {ws}, s{sCo} offen offset:3072 lds
        s_add_u32 s{sCo}, s{sCo}, 4096
        """)

    def out_phases(loader):
        tag = "h" if loader else "l"
        ACC = [2, 18]
        HF = [34 + 4 * i for i in range(HDEPTH)]
        BF = [[98, 102], [106, 110]]
        vC0, vC1 = 114, 115
        use(115)
        P(f"""
        s_mul_i32 s{sHo}, s{sTile}, {72 * 1024}
        s_mul_i32 s{sT}, s{sKH}, {36 * 1024}
        s_add_u32 s{sHo}, s{sHo}, s{sT}
        s_add_u32 s{sHo}, s{sHo}, {WS_HF}
        s_lshl_b32 s{sT}, s{sKH}, 13
        v_add_u32 v{vC0}, s{sT}, v{vL16}
        v_add_u32 v{vC1}, 0x10000, v{vC0}
        s_barrier
        """)
        common.mark(P, 1)
        vm = []

        def hload(n):
            if n % 4 == 0 and n > 0:
                P(f"s_add_u32 s{sHo}, s{sHo}, 4096")
            P(f"buffer_load_dwordx4 {vr(HF[n % HDEPTH],4)}, v{vL16}, {ws}, s{sHo} offen offset:{(n % 4) * 1024} sc1")
            vm.append(("h", n))

        if loader:
            for c in (2, 3, 4):
                vm.extend([("c", c)] * 4)
            vm.clear()
        for n in range(HDEPTH):
            hload(n)

        def creads(n):
            c, ks = divmod(n, 4)
            slot = (c + 2) % 5
            base, off = (vC1, 0) if slot == 4 else (vC0, slot * SLOT)
            return [f"ds_read_b128 {vr(BF[n & 1][ct],4)}, v{base} offset:{off + ct * 4096 + ks * 1024}" for ct in range(2)]

        for c in range(9):
            if loader and c >= 5:
                idx = max(i for i, e in enumerate(vm) if e == ("c", c))
                P(f"s_waitcnt vmcnt({len(vm) - 1 - idx})")
            P("s_barrier")
            if loader and 1 <= c <= 4:
                cf_dma(c + 4)
                vm.extend([("c", c + 4)] * 4)
            for r in creads(4 * c):
                P(r)
            for ks in range(4):
                n = 4 * c + ks
                if ks < 3:
                    for r in creads(n + 1):
                        P(r)
                for ct in range(2):
                    cop = "0" if n == 0 else vr(ACC[ct], 16)
                    P(f"v_mfma_f32_32x32x16_bf16 {vr(ACC[ct],16)}, {vr(HF[n % HDEPTH],4)}, {vr(BF[n & 1][ct],4)}, {cop}")
                if n + HDEPTH < 36:
                    hload(n + HDEPTH)
            P("s_waitcnt lgkmcnt(0)")
        common.mark(P, 2)
        keep, send = (ACC[1], ACC[0]) if loader else (ACC[0], ACC[1])
        vX, vY = 114, 115
        G = 34
        XD = 50
        vDs, vA = 66, 67
        P(f"""
        s_lshl_b32 s{sT}, s{sW}, 12
        v_add_u32 v{vX}, s{sT}, v{vL16}
        s_xor_b32 s{sT}, s{sW}, 4
        s_lshl_b32 s{sT}, s{sT}, 12
        v_add_u32 v{vY}, s{sT}, v{vL16}
        s_barrier
        """)
        for q in range(4):
            P(f"ds_write_b128 v{vX}, {vr(send + 4 * q, 4)} offset:{q * 1024}")
        P(f"""
        v_lshrrev_b32 v{vA}, 5, v{vLane}
        v_lshlrev_b32 v{vA}, 4, v{vA}
        s_lshl_b32 s{sT}, s{sTile}, 7
        s_add_u32 s{sT}, s{sT}, {WS_G}
        """)
        for q in range(4):
            P(f"buffer_load_dwordx4 {vr(G + 4 * q, 4)}, v{vA}, {ws}, s{sT} offen offset:{q * 32}")
        P(f"""
        v_and_b32 v{vDs}, 31, v{vLane}
        v_lshlrev_b32 v{vDs}, 1, v{vDs}
        s_lshl_b32 s{sT}, s{sSB}, 7
        s_lshl_b32 s{sT2}, s{sKH}, 6
        s_add_u32 s{sT}, s{sT}, s{sT2}
        v_add_u32 v{vDs}, s{sT}, v{vDs}
        v_lshrrev_b32 v{vA}, 5, v{vLane}
        v_mul_u32_u24 v{vA}, {4 * 1152}, v{vA}
        v_add_u32 v{vA}, v{vA}, v{vDs}
        s_mul_i32 s{sT}, s{sTile}, {32 * 1152}
        """)
        for q in range(4):
            for c in range(4):
                P(f"buffer_load_ushort v{XD + 4 * q + c}, v{vA}, s[{sAX}:{sAX+3}], s{sT} offen offset:{c * 1152}")
            if q < 3:
                P(f"s_add_u32 s{sT}, s{sT}, {8 * 1152}")
        srd_from_kernarg(P, sP, KA_DSK, 1152)
        P(f"""
        s_waitcnt lgkmcnt(0)
        buffer_load_ushort v{vDs}, v{vDs}, s[{sP}:{sP+3}], 0 offen
        s_barrier
        """)
        RX = 68
        for q in range(4):
            P(f"ds_read_b128 {vr(RX + 4 * q, 4)}, v{vY} offset:{q * 1024}")
        P("s_waitcnt lgkmcnt(0)")
        P("s_barrier")
        common.mark(P, 9)
        P(f"""
        s_lshl_b32 s{sT}, s{sSB}, 1
        s_mul_i32 s{sT}, s{sT}, {36 * 1024}
        s_mul_i32 s{sT2}, s{sW}, {9 * 1024}
        s_add_u32 s{sT}, s{sT}, s{sT2}
        s_add_u32 s{sT}, s{sT}, {WS_WF}
        """)
        for k in range(9):
            if k % 4 == 0:
                P(f"s_add_u32 m0, s{sT2}, {k * 1024}")
                if k:
                    P(f"s_add_u32 s{sT}, s{sT}, 4096")
                P("s_nop 0")
            P(f"buffer_load_dwordx4 v{vL16}, {ws}, s{sT} offen offset:{(k % 4) * 1024} lds")
        YG = 2 if not loader else 18
        P(f"v_lshlrev_b32 v{vDs}, 16, v{vDs}")
        for r in range(16):
            P(f"""
            v_add_f32 v{keep + r}, v{keep + r}, v{RX + r}
            v_lshlrev_b32 v{XD + r}, 16, v{XD + r}
            v_fmac_f32 v{keep + r}, v{XD + r}, v{vDs}
            v_mul_f32 v{keep + r}, v{keep + r}, v{G + r}
            """)
        BA = [18, 34] if not loader else [34, 50]
        if loader:
            OFr = [66 + 4 * i for i in range(8)] + [2 + 4 * i for i in range(4)]
            WB = [[98, 102], [106, 110]]
        else:
            OFr = [50 + 4 * i for i in range(12)]
            WB = [[98, 102], [106, 110]]
        vW0 = 114
        P(f"""
        s_mul_i32 s{sT}, s{sKH}, {18 * 1024}
        v_add_u32 v{vW0}, s{sT}, v{vL16}
        s_mul_i32 s{sHo}, s{sTile}, {36 * 1024}
        s_add_u32 s{sHo}, s{sHo}, s{sT}
        s_add_u32 s{sHo}, s{sHo}, {WS_OF}
        """)
        if not loader:
            lp, dn = P.newlabel(pfx + "_apoll"), P.newlabel(pfx + "_adone")
            P(f"""
            s_cmp_eq_u32 s{sW}, 0
            s_cbranch_scc0 {dn}
            s_lshr_b32 s{sT}, s{sTB}, 1
            s_lshl_b32 s{sT}, s{sT}, 7
            s_add_u32 s{sT}, s{sT}, {WS_FLG + FLG_ATT}
            v_lshlrev_b32 v115, 2, v{vLane}
            s_mov_b32 exec_hi, 0
            """)
            P.L(lp)
            P(f"""
            buffer_load_dword v116, v115, {ws}, s{sT} offen sc1
            s_waitcnt vmcnt(0)
            v_cmp_ne_u32 vcc, 1, v116
            s_cbranch_vccz {dn}
            s_sleep 2
            s_branch {lp}
            """)
            P.L(dn)
            P("s_mov_b64 exec, -1")
            use(116)
        P("s_waitcnt vmcnt(0)")
        P("s_barrier")
        common.mark(P, 3)

        def oload(n):
            if n % 4 == 0 and n > 0:
                P(f"s_add_u32 s{sHo}, s{sHo}, 4096")
            P(f"buffer_load_dwordx4 {vr(OFr[n % ODEPTH],4)}, v{vL16}, {ws}, s{sHo} offen offset:{(n % 4) * 1024} sc1")

        for n in range(ODEPTH):
            oload(n)

        def wreads(n):
            return [f"ds_read_b128 {vr(WB[n & 1][ct],4)}, v{vW0} offset:{ct * 36 * 1024 + n * 1024}" for ct in range(2)]

        for r in wreads(0):
            P(r)
        for n in range(18):
            if n + 1 < 18:
                for r in wreads(n + 1):
                    P(r)
            for ct in range(2):
                cop = "0" if n == 0 else vr(BA[ct], 16)
                P(f"v_mfma_f32_32x32x16_bf16 {vr(BA[ct],16)}, {vr(OFr[n % ODEPTH],4)}, {vr(WB[n & 1][ct],4)}, {cop}")
            if n + ODEPTH < 18:
                oload(n + ODEPTH)
        common.mark(P, 10)
        G2 = 66 if loader else 50
        P(f"""
        v_lshrrev_b32 v{vA if False else 116}, 5, v{vLane}
        v_lshlrev_b32 v116, 4, v116
        s_lshl_b32 s{sT}, s{sTile}, 7
        s_add_u32 s{sT}, s{sT}, {WS_G}
        """)
        use(117)
        for q in range(4):
            P(f"buffer_load_dwordx4 {vr(G2 + 4 * q, 4)}, v116, {ws}, s{sT} offen offset:{q * 32}")
        bkeep, bsend = (BA[1], BA[0]) if loader else (BA[0], BA[1])
        P(f"""
        s_lshl_b32 s{sT}, s{sW}, 12
        v_add_u32 v{vX}, s{sT}, v{vL16}
        s_xor_b32 s{sT}, s{sW}, 4
        s_lshl_b32 s{sT}, s{sT}, 12
        v_add_u32 v{vY}, s{sT}, v{vL16}
        s_waitcnt lgkmcnt(0)
        s_barrier
        """)
        for q in range(4):
            P(f"ds_write_b128 v{vX}, {vr(bsend + 4 * q, 4)} offset:{q * 1024}")
        P(f"""
        v_and_b32 v116, 31, v{vLane}
        v_lshlrev_b32 v116, 2, v116
        v_lshrrev_b32 v117, 5, v{vLane}
        v_mul_u32_u24 v117, {4 * 2304}, v117
        v_add_u32 v116, v116, v117
        s_mul_i32 s{sT}, s{sTile}, {32 * 2304}
        s_lshl_b32 s{sT2}, s{sSB}, 8
        s_add_u32 s{sT}, s{sT}, s{sT2}
        s_lshl_b32 s{sT2}, s{sKH}, 7
        s_add_u32 s{sT}, s{sT}, s{sT2}
        s_waitcnt lgkmcnt(0)
        s_barrier
        """)
        RB = 82
        for q in range(4):
            P(f"ds_read_b128 {vr(RB + 4 * q, 4)}, v{vY} offset:{q * 1024}")
        for r in range(16):
            P(f"""
            v_add_f32 v{bkeep + r}, v{bkeep + r}, v{RB + r}
            v_sub_f32 v{G2 + r}, 1.0, v{G2 + r}
            v_fmac_f32 v{keep + r}, v{G2 + r}, v{bkeep + r}
            """)
        common.mark(P, 11)
        for q in range(4):
            for c in range(4):
                if c == 2:
                    P(f"s_add_u32 s{sT}, s{sT}, {2 * 2304}")
                P(f"buffer_store_dword v{keep + 4 * q + c}, v116, s[{sOut}:{sOut+3}], s{sT} offen offset:{(c & 1) * 2304}")
            if q < 3:
                P(f"s_add_u32 s{sT}, s{sT}, {6 * 2304}")
        P(end)

    ACC = [[2, 18], [34, 50]]
    XF = [[66, 70], [74, 78]]
    WF = [[82, 86], [90, 94]]
    vA0, vA1, vB0, vB1 = 98, 99, 100, 101
    lr, li, nli, mr, mi, br, bi = 102, 103, 104, 105, 106, 107, 108
    t = 110
    use(121)
    P(f"""
    s_and_b32 s{sWM}, s{sW}, 1
    s_lshr_b32 s{sWN}, s{sW}, 1
    s_lshl_b32 s{sT}, s{sSB}, 6
    s_lshl_b32 s{sT2}, s{sWN}, 5
    s_add_u32 s{sT}, s{sT}, s{sT2}
    v_and_b32 v{t+8}, 31, v{vLane}
    v_add_u32 v{t+8}, s{sT}, v{t+8}
    v_lshlrev_b32 v{t+9}, 1, v{t+8}
    """)
    for k, ka in enumerate((KA_LRE, KA_LIM, KA_LDT)):
        srd_from_kernarg(P, sP, ka, 1152)
        P(f"""
        s_waitcnt lgkmcnt(0)
        buffer_load_ushort v{t+4+k}, v{t+9}, s[{sP}:{sP+3}], 0 offen
        """)
    P(f"""
    s_lshl_b32 s{sT}, s{sWM}, 12
    v_add_u32 v{vA0}, s{sT}, v{vL16}
    v_add_u32 v{vA1}, 0x10000, v{vA0}
    s_lshl_b32 s{sT}, s{sWN}, 12
    s_add_u32 s{sT}, s{sT}, 8192
    v_add_u32 v{vB0}, s{sT}, v{vL16}
    v_add_u32 v{vB1}, 0x10000, v{vB0}
    """)
    emit_lambda(P, t + 4, t + 5, t + 6, t, lr, li)
    P(f"v_sub_f32 v{nli}, 0, v{li}")

    def csq(dr, di, sr_, si_):
        P(f"""
        v_mul_f32 v{t}, v{si_}, v{si_}
        v_add_f32 v{t+1}, v{sr_}, v{sr_}
        v_fma_f32 v{dr}, v{sr_}, v{sr_}, -v{t}
        v_mul_f32 v{di}, v{t+1}, v{si_}
        """)

    csq(mr, mi, lr, li)
    for _ in range(4):
        csq(mr, mi, mr, mi)
    csq(br, bi, mr, mi)
    csq(br, bi, br, bi)

    def reads(n):
        s_, ks = divmod(n, 2)
        slot = s_ % 5
        a, b, off = (vA1, vB1, 0) if slot == 4 else (vA0, vB0, slot * SLOT)
        bb = n & 1
        return [f"ds_read_b128 {vr(XF[bb][0],4)}, v{a} offset:{off + ks * 1024}",
                f"ds_read_b128 {vr(WF[bb][0],4)}, v{b} offset:{off + ks * 1024}",
                f"ds_read_b128 {vr(WF[bb][1],4)}, v{b} offset:{off + 2048 + ks * 1024}",
                f"ds_read_b128 {vr(XF[bb][1],4)}, v{a} offset:{off + 2048 + ks * 1024}"]

    P("s_barrier")
    common.mark(P, 0)
    for r in reads(0):
        P(r)
    for n in range(36):
        bb = n & 1
        mf = []
        for mt in range(2):
            for cp in range(2):
                cop = "0" if n == 0 else vr(ACC[mt][cp], 16)
                mf.append(f"v_mfma_f32_32x32x16_bf16 {vr(ACC[mt][cp],16)}, {vr(XF[bb][mt],4)}, {vr(WF[bb][cp],4)}, {cop}")
        P("s_waitcnt lgkmcnt(0)")
        if bb == 1 and n + 1 < 36:
            P("s_barrier")
        rs = reads(n + 1) if n + 1 < 36 else []
        for k in range(4):
            P(mf[k])
            take = rs[:2] if k < 2 else []
            rs = rs[len(take):]
            for r in take:
                P(r)

    common.mark(P, 4)
    ea, eb = (t, t + 1), (t + 2, t + 3)
    U = lambda tau, cp: ACC[tau >> 4][cp] + (tau & 15)
    cur = (U(0, 0), U(0, 1))
    for tau in range(1, 32):
        nx = ea if tau & 1 else eb
        P(f"""
        v_fma_f32 v{nx[0]}, v{lr}, v{cur[0]}, v{U(tau,0)}
        v_fma_f32 v{nx[1]}, v{lr}, v{cur[1]}, v{U(tau,1)}
        v_fmac_f32 v{nx[0]}, v{nli}, v{cur[1]}
        v_fmac_f32 v{nx[1]}, v{li}, v{cur[0]}
        """)
        cur = nx
    assert cur == ea
    P(f"""
    v_lshrrev_b32 v{t+4}, 5, v{vLane}
    v_lshlrev_b32 v{t+4}, 9, v{t+4}
    v_and_b32 v{t+5}, 31, v{vLane}
    v_lshlrev_b32 v{t+5}, 3, v{t+5}
    s_lshl_b32 s{sT}, s{sWN}, 8
    s_add_u32 s{sT}, s{sT}, {ELOC}
    v_add_u32 v{t+5}, s{sT}, v{t+5}
    s_lshl_b32 s{sT}, s{sWM}, 10
    v_add_u32 v{t+4}, s{sT}, v{t+4}
    v_add_u32 v{t+4}, v{t+4}, v{t+5}
    ds_write_b64 v{t+4}, {vr(ea[0],2)}
    s_waitcnt lgkmcnt(0)
    s_barrier
    """)
    EL = [98, 100, 122, 124]
    for k in range(4):
        P(f"ds_read_b64 {vr(EL[k], 2)}, v{t+5} offset:{k * 512}")

    def cmuladd(dr, di, ar, ai, nai, xr, xi, yr, yi):
        P(f"""
        v_fma_f32 v{t+6}, v{ar}, v{xr}, v{yr}
        v_fma_f32 v{t+7}, v{ar}, v{xi}, v{yi}
        v_fma_f32 v{dr}, -v{ai}, v{xi}, v{t+6}
        v_fma_f32 v{di}, v{ai}, v{xr}, v{t+7}
        """) if (dr, di) != (xr, xi) else P(f"""
        v_fma_f32 v{t+6}, v{ar}, v{xr}, v{yr}
        v_fma_f32 v{t+7}, v{ar}, v{xi}, v{yi}
        v_fma_f32 v{t+7}, v{ai}, v{xr}, v{t+7}
        v_fma_f32 v{dr}, -v{ai}, v{xi}, v{t+6}
        v_mov_b32 v{di}, v{t+7}
        """)

    Eb = 66
    cmuladd(t, t + 1, mr, mi, None, EL[0], EL[0] + 1, EL[1], EL[1] + 1)
    cmuladd(t + 2, t + 3, mr, mi, None, t, t + 1, EL[2], EL[2] + 1)
    cmuladd(Eb, Eb + 2, mr, mi, None, t + 2, t + 3, EL[3], EL[3] + 1)
    nopub = P.newlabel(pfx + "_nopub")
    P(f"""
    v_mov_b32 v{Eb+1}, s{sTag}
    v_mov_b32 v{Eb+3}, s{sTag}
    s_mul_i32 s{sT}, s{sTB}, 576
    v_add_u32 v{t}, s{sT}, v{t+8}
    v_lshlrev_b32 v{t}, 4, v{t}
    s_cmp_eq_u32 s{sWM}, 0
    s_cbranch_scc0 {nopub}
    s_mov_b32 exec_hi, 0
    buffer_store_dwordx4 {vr(Eb,4)}, v{t}, s[{sE}:{sE+3}], 0 offen sc1
    s_mov_b32 exec_hi, -1
    """)
    P.L(nopub)
    EDr = [66 + 4 * i for i in range(8)]
    use(125)
    vN, vEo = t + 2, t + 3
    P(f"""
    v_lshrrev_b32 v{vN}, 5, v{vLane}
    v_lshlrev_b32 v{vN}, 3, v{vN}
    s_sub_i32 s{sT}, s{sTB}, 16
    v_add_u32 v{vN}, s{sT}, v{vN}
    s_movk_i32 s{sT}, 576
    v_mul_lo_u32 v{vEo}, v{vN}, s{sT}
    v_add_u32 v{vEo}, v{vEo}, v{t+8}
    v_lshlrev_b32 v{vEo}, 4, v{vEo}
    """)
    common.mark(P, 5)
    ep = P.newlabel(pfx + "_epoll")
    P.L(ep)
    for i in range(8):
        P(f"v_add_u32 v{t}, {i * 9216}, v{vEo}")
        P(f"buffer_load_dwordx4 {vr(EDr[i],4)}, v{t}, s[{sE}:{sE+3}], 0 offen sc1")
    P(f"s_mov_b64 s[{sBad}:{sBad+1}], 0")
    for i in range(8):
        P(f"""
        v_cmp_eq_u32 vcc, s{sTag}, v{EDr[i]+1}
        v_cmp_eq_u32 s[{sOk}:{sOk+1}], s{sTag}, v{EDr[i]+3}
        s_and_b64 s[{sOk}:{sOk+1}], s[{sOk}:{sOk+1}], vcc
        v_cmp_gt_i32 vcc, {-i}, v{vN}
        s_or_b64 s[{sOk}:{sOk+1}], s[{sOk}:{sOk+1}], vcc
        s_orn2_b64 s[{sBad}:{sBad+1}], s[{sBad}:{sBad+1}], s[{sOk}:{sOk+1}]
        """)
    edone = P.newlabel(pfx + "_edone")
    P(f"""
    s_cmp_eq_u64 s[{sBad}:{sBad+1}], 0
    s_cbranch_scc1 {edone}
    s_sleep 2
    s_branch {ep}
    """)
    P.L(edone)
    common.mark(P, 6)
    H = (t + 4, t + 5)
    cmuladd(H[0], H[1], br, bi, None, EDr[0], EDr[0] + 2, EDr[1], EDr[1] + 2)
    for i in range(2, 8):
        cmuladd(H[0], H[1], br, bi, None, H[0], H[1], EDr[i], EDr[i] + 2)
    for _ in range(3):
        csq(br, bi, br, bi)
    a0, a1, b0, b1 = 66, 67, 68, 69
    P(f"""
    v_mov_b32 v{a0}, v{H[0]}
    v_mov_b32 v{b0}, v{H[0]}
    v_mov_b32 v{a1}, v{H[1]}
    v_mov_b32 v{b1}, v{H[1]}
    v_permlane32_swap_b32 v{a0}, v{b0}
    v_permlane32_swap_b32 v{a1}, v{b1}
    """)
    C0, C1, C2, C3 = (82, 83), (84, 85), (86, 87), (88, 89)
    cmuladd(C0[0], C0[1], br, bi, None, a0, a1, b0, b1)
    cmuladd(C1[0], C1[1], mr, mi, None, C0[0], C0[1], EL[0], EL[0] + 1)
    w1, gsel = P.newlabel(pfx + "_wm1"), P.newlabel(pfx + "_gsel")
    g0 = (t, t + 1)
    P(f"""
    v_cmp_le_u32 vcc, 32, v{vLane}
    s_cmp_eq_u32 s{sWM}, 0
    s_cbranch_scc0 {w1}
    v_cndmask_b32 v{g0[0]}, v{C0[0]}, v{C1[0]}, vcc
    v_cndmask_b32 v{g0[1]}, v{C0[1]}, v{C1[1]}, vcc
    s_branch {gsel}
    """)
    P.L(w1)
    cmuladd(C2[0], C2[1], mr, mi, None, C1[0], C1[1], EL[1], EL[1] + 1)
    cmuladd(C3[0], C3[1], mr, mi, None, C2[0], C2[1], EL[2], EL[2] + 1)
    P(f"""
    v_cndmask_b32 v{g0[0]}, v{C2[0]}, v{C3[0]}, vcc
    v_cndmask_b32 v{g0[1]}, v{C2[1]}, v{C3[1]}, vcc
    """)
    P.L(gsel)
    cur = g0
    for tau in range(32):
        ur, ui = U(tau, 0), U(tau, 1)
        P(f"""
        v_fmac_f32 v{ur}, v{lr}, v{cur[0]}
        v_fmac_f32 v{ui}, v{lr}, v{cur[1]}
        v_fmac_f32 v{ur}, v{nli}, v{cur[1]}
        v_fmac_f32 v{ui}, v{li}, v{cur[0]}
        """)
        cur = (ur, ui)
    vTW, vTR, vX_ = t, t + 1, t + 2
    P(f"""
    v_and_b32 v{t+4}, 31, v{vLane}
    v_lshrrev_b32 v{t+5}, 1, v{t+4}
    v_and_b32 v{t+5}, 1, v{t+5}
    v_lshlrev_b32 v{t+5}, 2, v{t+5}
    v_lshrrev_b32 v{t+6}, 2, v{t+4}
    v_and_b32 v{t+6}, 1, v{t+6}
    v_lshlrev_b32 v{t+6}, 1, v{t+6}
    v_or_b32 v{t+5}, v{t+5}, v{t+6}
    v_and_b32 v{t+6}, 1, v{t+4}
    v_or_b32 v{t+5}, v{t+5}, v{t+6}
    v_lshrrev_b32 v{t+6}, 5, v{vLane}
    v_lshlrev_b32 v{t+6}, 2, v{t+6}
    v_xor_b32 v{t+5}, v{t+5}, v{t+6}
    v_lshlrev_b32 v{t+5}, 4, v{t+5}
    v_lshlrev_b32 v{t+4}, 7, v{t+4}
    v_add_u32 v{vTW}, v{t+4}, v{t+5}
    s_lshl_b32 s{sT}, s{sW}, 13
    v_add_u32 v{vTW}, s{sT}, v{vTW}
    """)
    PK = 66
    for cp in range(2):
        for k in range(16):
            P(f"v_cvt_pk_bf16_f32 v{PK + 16 * cp + k}, v{U(2 * k, cp)}, v{U(2 * k + 1, cp)}")
        for m in range(4):
            P(f"v_xor_b32 v{vX_}, {16 * m}, v{vTW}")
            P(f"ds_write_b128 v{vX_}, {vr(PK + 16 * cp + 4 * m, 4)} offset:{cp * 4096}")
    P(f"""
    v_lshrrev_b32 v{t+4}, 5, v{vLane}
    v_lshlrev_b32 v{t+4}, 3, v{t+4}
    v_lshrrev_b32 v{t+5}, 2, v{vLane}
    v_and_b32 v{t+5}, 3, v{t+5}
    v_add_u32 v{t+4}, v{t+4}, v{t+5}
    v_lshlrev_b32 v{t+4}, 7, v{t+4}
    v_lshrrev_b32 v{t+5}, 4, v{vLane}
    v_and_b32 v{t+5}, 1, v{t+5}
    v_lshlrev_b32 v{t+5}, 1, v{t+5}
    v_lshrrev_b32 v{t+6}, 1, v{vLane}
    v_and_b32 v{t+6}, 1, v{t+6}
    v_or_b32 v{t+5}, v{t+5}, v{t+6}
    v_lshrrev_b32 v{t+6}, 3, v{vLane}
    v_and_b32 v{t+6}, 1, v{t+6}
    v_lshlrev_b32 v{t+6}, 2, v{t+6}
    v_xor_b32 v{t+5}, v{t+5}, v{t+6}
    v_lshrrev_b32 v{t+6}, 2, v{vLane}
    v_and_b32 v{t+6}, 1, v{t+6}
    v_xor_b32 v{t+5}, v{t+5}, v{t+6}
    v_lshlrev_b32 v{t+5}, 4, v{t+5}
    v_and_b32 v{t+6}, 1, v{vLane}
    v_lshlrev_b32 v{t+6}, 3, v{t+6}
    v_add_u32 v{t+4}, v{t+4}, v{t+5}
    v_add_u32 v{t+4}, v{t+4}, v{t+6}
    v_add_u32 v{vTR}, s{sT}, v{t+4}
    s_lshl_b32 s{sT}, s{sTB}, 2
    s_lshl_b32 s{sT2}, s{sWM}, 1
    s_add_u32 s{sT}, s{sT}, s{sT2}
    s_mul_i32 s{sT}, s{sT}, 72
    s_lshl_b32 s{sT2}, s{sSB}, 2
    s_add_u32 s{sT}, s{sT}, s{sT2}
    s_lshl_b32 s{sT2}, s{sWN}, 1
    s_add_u32 s{sT}, s{sT}, s{sT2}
    s_lshl_b32 s{sT}, s{sT}, 10
    s_add_u32 s{sT}, s{sT}, {WS_HF}
    s_waitcnt lgkmcnt(0)
    """)
    TRA = [t + 4, t + 5, t + 6, t + 7]
    for tt2 in range(2):
        for rd in range(2):
            P(f"v_xor_b32 v{TRA[2 * tt2 + rd]}, {tt2 * 64 + rd * 32}, v{vTR}")
    FR = [2 + 4 * i for i in range(8)]
    k = 0
    for tt2 in range(2):
        for cp in range(2):
            for s16 in range(2):
                for rd in range(2):
                    P(f"ds_read_b64_tr_b16 {vr(FR[k] + 2 * rd, 2)}, v{TRA[2 * tt2 + rd]} offset:{cp * 4096 + s16 * 2048 + rd * 512}")
                k += 1
    k = 0
    for tt2 in range(2):
        for cp in range(2):
            P(f"s_add_u32 s{sT2}, s{sT}, {(tt2 * 72 + cp * 36) * 1024}")
            for s16 in range(2):
                P(f"buffer_store_dwordx4 {vr(FR[k],4)}, v{vL16}, {ws}, s{sT2} offen offset:{s16 * 1024} sc1")
                k += 1
    common.mark(P, 7)
    P("s_waitcnt vmcnt(0)")
    P("s_barrier")
    common.mark(P, 8)
    fl = P.newlabel(pfx + "_noflag")
    P(f"""
    s_cmp_eq_u32 s{sW}, 0
    s_cbranch_scc0 {fl}
    s_lshl_b32 s{sT}, s{sTB}, 6
    s_lshl_b32 s{sT2}, s{sSB}, 2
    s_add_u32 s{sT}, s{sT}, s{sT2}
    s_add_u32 s{sT}, s{sT}, {WS_FLG + FLG_HF}
    v_mov_b32 v2, 1
    v_mov_b32 v3, 0
    s_mov_b32 exec_hi, 0
    s_mov_b32 exec_lo, 1
    buffer_store_dword v2, v3, {ws}, s{sT} offen sc1
    s_mov_b64 exec, -1
    """)
    P.L(fl)
    out_phases(False)

    P.L(L("loader"))
    P(f"""
    s_lshl_b32 s{sT}, s{sTB}, 2
    s_add_u32 s{sT}, s{sT}, s{sMT}
    s_mul_i32 s{sXo}, s{sT}, {36 * 1024}
    s_add_u32 s{sXo}, s{sXo}, {WS_XF}
    s_lshl_b32 s{sT}, s{sSB}, 2
    s_add_u32 s{sT}, s{sT}, s{sMT}
    s_mul_i32 s{sBo}, s{sT}, {36 * 1024}
    s_add_u32 s{sBo}, s{sBo}, {WS_BF}
    s_lshl_b32 s{sM}, s{sMT}, 11
    """)

    def dmaA(s_):
        slot = s_ % 5
        P(f"""
        s_add_u32 m0, s{sM}, {slot * SLOT}
        s_nop 0
        buffer_load_dwordx4 v{vL16}, {ws}, s{sXo} offen lds
        buffer_load_dwordx4 v{vL16}, {ws}, s{sXo} offen offset:1024 lds
        s_add_u32 m0, s{sM}, {slot * SLOT + 8192}
        s_add_u32 s{sXo}, s{sXo}, 2048
        buffer_load_dwordx4 v{vL16}, {ws}, s{sBo} offen lds
        buffer_load_dwordx4 v{vL16}, {ws}, s{sBo} offen offset:1024 lds
        s_add_u32 s{sBo}, s{sBo}, 2048
        """)

    for s_ in range(5):
        dmaA(s_)
    P("s_waitcnt vmcnt(16)")
    P("s_barrier")
    for s_ in range(17):
        left = (min(s_ + 4, 17) - (s_ + 1)) * 4
        P(f"s_waitcnt vmcnt({left})")
        P("s_barrier")
        if s_ + 5 < 18:
            dmaA(s_ + 5)
    P(f"""
    s_lshl_b32 s{sT}, s{sSB}, 1
    s_and_b32 s{sT2}, s{sMT}, 1
    s_add_u32 s{sT}, s{sT}, s{sT2}
    s_mul_i32 s{sCo}, s{sT}, {72 * 1024}
    s_lshr_b32 s{sT2}, s{sMT}, 1
    s_mul_i32 s{sT2}, s{sT2}, {36 * 1024}
    s_add_u32 s{sCo}, s{sCo}, s{sT2}
    s_add_u32 s{sCo}, s{sCo}, {WS_CF}
    s_lshl_b32 s{sM}, s{sMT}, 12
    s_barrier
    """)
    cf_dma(0)
    cf_dma(1)
    P("s_barrier")
    for c in (2, 3, 4):
        cf_dma(c)
    lp, dn = P.newlabel(pfx + "_hpoll"), P.newlabel(pfx + "_hdone")
    P(f"""
    s_cmp_eq_u32 s{sW}, 4
    s_cbranch_scc0 {dn}
    s_lshl_b32 s{sT}, s{sTB}, 6
    s_add_u32 s{sT}, s{sT}, {WS_FLG + FLG_HF}
    v_lshlrev_b32 v2, 2, v{vLane}
    s_mov_b32 exec_hi, 0
    s_mov_b32 exec_lo, 0x1ff
    """)
    P.L(lp)
    P(f"""
    buffer_load_dword v3, v2, {ws}, s{sT} offen sc1
    s_waitcnt vmcnt(0)
    v_cmp_ne_u32 vcc, 1, v3
    s_cbranch_vccz {dn}
    s_sleep 2
    s_branch {lp}
    """)
    P.L(dn)
    P("s_mov_b64 exec, -1")
    P("s_waitcnt vmcnt(0)")
    out_phases(True)
    return hi[0]
```

```python
import sys
import build_all

def header():
    lines = open("stub.s").read().split("\n")
    out = []
    for l in lines:
        if l.startswith("; Override launch"):
            break
        out.append(l)
    return "\n".join(out) + "\n"

def write(path, mode, exp=()):
    t = header() + build_all.build(mode, False, exp)
    open(path, "w").write(t)
    print(path, len(t))

if __name__ == "__main__":
    mode = sys.argv[1]; path = sys.argv[2]
    write(path, mode, tuple(sys.argv[3:]))
```

```python
from asmgen import *
from layout import *
import common
import struct


def f32(x):
    return "0x%08x" % struct.unpack("<I", struct.pack("<f", x))[0]


BUF = 20480
HALF = 10240


def emit_attention(P, sWG, pfx="att", end="s_endpgm", exp=()):
    V = Regs("v", 1)
    SA = V.alloc(16); SB = V.alloc(16); OA = V.alloc(16); OB = V.alloc(16)
    PA = V.alloc(8); PB = V.alloc(8)
    QLA = V.alloc(4); QLB = V.alloc(4); QHA = V.alloc(2); QHB = V.alloc(2)
    KL = V.alloc(4); KH = V.alloc(2); V0 = V.alloc(4); V1 = V.alloc(4)
    vL16 = V.alloc(); vKL = V.alloc(); vKH = V.alloc(); vV = V.alloc()
    vT = V.alloc(); vT2 = V.alloc(); vLane = 0
    sHead, sQB, sW, sQG, sKH = 8, 9, 10, 11, 12
    sG0, sG1, sSt0, sSt1, sM, sIt, sAtt = 13, 14, 15, 16, 17, 18, 19
    sT, sT2, sG0i, sG1i = 20, 21, 22, 23
    sMask = 24
    sTile = 26
    sDuty, sSub = 36, 37
    sVm = 34
    srd = "s[4:7]"
    L = lambda n: f"{pfx}_{n}"

    if "attp3" in exp:
        P("s_setprio 3")
    P(f"""
    s_and_b32 s{sT}, s{sWG}, 7
    s_lshl_b32 s{sT}, s{sT}, 2
    s_lshr_b32 s{sT2}, s{sWG}, 3
    s_and_b32 s{sT2}, s{sT2}, 3
    s_add_u32 s{sHead}, s{sT}, s{sT2}
    s_lshr_b32 s{sQB}, s{sWG}, 5
    v_lshrrev_b32 v{vT}, 6, v0
    v_and_b32 v{vLane}, 63, v0
    v_readfirstlane_b32 s{sW}, v{vT}
    v_lshlrev_b32 v{vL16}, 4, v{vLane}
    s_and_b32 s{sQG}, s{sW}, 3
    s_lshr_b32 s{sKH}, s{sW}, 2
    s_lshr_b32 s{sT}, s{sQG}, 1
    s_cmp_eq_u32 s{sT}, s{sKH}
    s_cselect_b32 s{sDuty}, 1, 0
    s_and_b32 s{sSub}, s{sQG}, 1
    s_mul_i32 s{sT}, s{sKH}, {HALF}
    v_add_u32 v{vKL}, s{sT}, v{vL16}
    v_and_b32 v{vT}, 31, v{vLane}
    v_lshlrev_b32 v{vKH}, 2, v{vT}
    v_lshrrev_b32 v{vT2}, 5, v{vLane}
    v_mul_u32_u24 v{vT2}, 19, v{vT2}
    v_add_u32 v{vT2}, v{vT2}, v{vT}
    v_lshlrev_b32 v{vV}, 4, v{vT2}
    v_add_u32 v{vV}, s{sT}, v{vV}
    s_lshl_b32 s{sTile}, s{sQB}, 3
    s_lshl_b32 s{sT2}, s{sQG}, 1
    s_add_u32 s{sTile}, s{sTile}, s{sT2}
    """)
    P(f"""
    s_lshl_b32 s{sT}, s{sHead}, 16
    s_lshl_b32 s{sT2}, s{sTile}, 10
    s_add_u32 s{sT}, s{sT}, s{sT2}
    s_add_u32 s{sT}, s{sT}, {WS_QLO}
    buffer_load_dwordx4 {vr(QLA,4)}, v{vL16}, {srd}, s{sT} offen
    buffer_load_dwordx4 {vr(QLB,4)}, v{vL16}, {srd}, s{sT} offen offset:1024
    s_lshl_b32 s{sT}, s{sHead}, 13
    s_lshl_b32 s{sT2}, s{sTile}, 7
    s_add_u32 s{sT}, s{sT}, s{sT2}
    s_add_u32 s{sT}, s{sT}, {WS_QHI}
    buffer_load_dword v{QHA}, v{vKH}, {srd}, s{sT} offen
    buffer_load_dword v{QHB}, v{vKH}, {srd}, s{sT} offen offset:128
    """)
    P(f"""
    s_lshl_b32 s{sT}, s{sHead}, 16
    s_lshl_b32 s{sT2}, s{sKH}, 15
    s_add_u32 s{sT}, s{sT}, s{sT2}
    s_add_u32 s27, s{sT}, {WS_KLO}
    s_lshl_b32 s{sT}, s{sHead}, 13
    s_lshl_b32 s{sT2}, s{sKH}, 12
    s_add_u32 s{sT}, s{sT}, s{sT2}
    s_add_u32 s28, s{sT}, {WS_KHI}
    s_mul_i32 s{sT}, s{sHead}, {VT_HEAD}
    s_mul_i32 s{sT2}, s{sKH}, {64 * 608}
    s_add_u32 s{sT}, s{sT}, s{sT2}
    s_add_u32 s29, s{sT}, {WS_VT}
    s_add_u32 s30, s27, 1024
    s_add_u32 s31, s28, 128
    s_add_u32 s32, s29, 4096
    s_cmp_eq_u32 s{sSub}, 0
    s_cselect_b32 s{sG0i}, s30, s29
    s_cselect_b32 s{sG1i}, s31, s32
    s_movk_i32 s30, 4864
    s_cselect_b32 s{sSt0}, 4096, s30
    s_cselect_b32 s{sSt1}, 512, s30
    s_mul_i32 s{sM}, s{sKH}, {HALF}
    s_mul_i32 s{sT}, s{sSub}, 5120
    s_add_u32 s{sM}, s{sM}, s{sT}
    v_cmp_gt_u32 vcc, 32, v{vLane}
    v_mov_b32 v{QHA+1}, 0
    v_mov_b32 v{QHB+1}, 0
    v_mov_b32 v{KH+1}, 0x3f803f80
    s_mov_b32 s{sAtt}, 0
    s_mov_b32 s{sVm}, 0x7ffff
    s_mov_b32 s{sVm+1}, 0x7ffff
    """)

    def dma(par):
        skip = P.newlabel(pfx + "_nodma")
        P(f"""
        s_cmp_eq_u32 s{sDuty}, 0
        s_cbranch_scc1 {skip}
        s_add_u32 m0, s{sM}, {par * BUF}
        s_nop 0
        buffer_load_dwordx4 v{vL16}, {srd}, s{sG0} offen lds
        buffer_load_dwordx4 v{vL16}, {srd}, s{sG0} offen offset:1024 lds
        buffer_load_dwordx4 v{vL16}, {srd}, s{sG0} offen offset:2048 lds
        buffer_load_dwordx4 v{vL16}, {srd}, s{sG0} offen offset:3072 lds
        s_add_u32 m0, s{sM}, {par * BUF + 4096}
        s_add_u32 s{sG0}, s{sG0}, s{sSt0}
        buffer_load_dwordx4 v{vL16}, {srd}, s{sG1} offen lds
        s_add_u32 s{sG1}, s{sG1}, s{sSt1}
        """)
        P.L(skip)

    P.L(L("start"))
    P(f"""
    buffer_load_dwordx4 {vr(KL,4)}, v{vL16}, {srd}, s27 offen
    buffer_load_dword v{KH}, v{vKH}, {srd}, s28 offen
    s_mov_b32 s{sG0}, s{sG0i}
    s_mov_b32 s{sG1}, s{sG1i}
    """)
    dma(0)
    dma(1)
    P(f"""
    s_mul_i32 s{sT}, s{sKH}, {HALF}
    v_add_u32 v{vT2}, s{sT}, v{vKH}
    s_mov_b32 s{sIt}, 0
    v_cmp_gt_u32 vcc, 32, v{vLane}
    """)
    for r in range(8):
        P(f"v_mov_b32 v{PB + r}, 0")
    for r in range(4):
        P(f"v_mov_b32 v{V0 + r}, 0")
        P(f"v_mov_b32 v{V1 + r}, 0")
    P(f"""
    v_cndmask_b32 v{QHA}, 0, v{QHA}, vcc
    v_cndmask_b32 v{QHB}, 0, v{QHB}, vcc
    v_mfma_f32_32x32x8bf16_1k {vr(SA,16)}, {vr(KH,2)}, {vr(QHA,2)}, 0
    v_mfma_f32_32x32x16_bf16 {vr(SA,16)}, {vr(KL,4)}, {vr(QLA,4)}, {vr(SA,16)}
    """)
    for r in range(16):
        P(f"v_mov_b32 v{OA + r}, 0")
        P(f"v_mov_b32 v{OB + r}, 0")
    P(f"""
    s_waitcnt vmcnt(5)
    s_barrier
    """)
    vKHl = vT2

    def valu_seq(S, Pk):
        seq = []
        e = lambda r: f"v_exp_f32 v{S + r}, v{S + r}"
        c = lambda k: f"v_cvt_pk_bf16_f32 v{Pk + k}, v{S + 2 * k}, v{S + 2 * k + 1}"
        seq += [e(0), e(1)]
        for k in range(7):
            seq += [e(2 * k + 2), c(k), e(2 * k + 3)]
        seq += [None, c(7)]
        return seq

    def phase(S, Pk, mf, extra):
        seq = valu_seq(S, Pk)
        pos = [0, 6, 12, 18]
        k = 0
        out = []
        for idx, ins in enumerate(seq):
            if k < 4 and idx == pos[k]:
                out += mf[k] if isinstance(mf[k], list) else [mf[k]]
                out += extra.get(k, [])
                k += 1
            if ins is None:
                out.append("s_nop 0")
            else:
                out.append(ins)
        for o in out:
            P(o)

    def qk(S, QH, QL):
        return [f"v_mfma_f32_32x32x8bf16_1k {vr(S,16)}, {vr(KH,2)}, {vr(QH,2)}, 0",
                f"v_mfma_f32_32x32x16_bf16 {vr(S,16)}, {vr(KL,4)}, {vr(QL,4)}, {vr(S,16)}"]

    def pv(O, Pk):
        return [f"v_mfma_f32_32x32x16_bf16 {vr(O,16)}, {vr(V0,4)}, {vr(Pk,4)}, {vr(O,16)}",
                f"v_mfma_f32_32x32x16_bf16 {vr(O,16)}, {vr(V1,4)}, {vr(Pk+4,4)}, {vr(O,16)}"]

    def step(par, t):
        a = qk(SB, QHB, QLB); b = pv(OB, PB)
        ex = {1: [f"ds_read_b32 v{KH}, v{vKHl} offset:{par * BUF + 4096 + t * 128}",
                  f"ds_read_b128 {vr(KL,4)}, v{vKL} offset:{par * BUF + t * 1024}"],
              3: [f"ds_read_b128 {vr(V0,4)}, v{vV} offset:{par * BUF + 5120 + 2 * t * 608}",
                  f"ds_read_b128 {vr(V1,4)}, v{vV} offset:{par * BUF + 5120 + (2 * t + 1) * 608}"]}
        if "nozero" not in exp:
            ex[3] = [f"s_mov_b64 exec, s[{sVm}:{sVm+1}]"] + ex[3] + ["s_mov_b64 exec, -1"]
        if "noread" in exp:
            ex = {}
        phase(SA, PA, [a[0], a[1], b[0], b[1]], ex)
        a = qk(SA, QHA, QLA); b = pv(OA, PA)
        phase(SB, PB, [["s_waitcnt lgkmcnt(2)", a[0]], a[1], ["s_waitcnt lgkmcnt(0)", b[0]], b[1]], {})

    common.mark(P, 0)
    prio_of = lambda c, t: 3 - t
    if 'attp1' in exp:
        prio_of = lambda c, t: max(1, 3 - t)
    if 'attp2' in exp:
        prio_of = lambda c, t: (3, 2, 2, 1)[t]
    for c in range(8):
        par = c & 1
        for t in range(4):
            if "noprio" not in exp:
                P(f"s_setprio {prio_of(c, t)}")
            step(par, t)
        P("s_waitcnt vmcnt(0) lgkmcnt(0)")
        if "nobar" not in exp:
            P("s_barrier")
        if c < 6 and "nodma" not in exp:
            dma(par)
        common.mark(P, 4 + c)
    common.mark(P, 1)
    for m in pv(OB, PB):
        P(m)

    XL = 24576
    P(f"""
    s_lshl_b32 s{sT}, s{sQG}, 9
    s_lshl_b32 s{sT2}, s{sKH}, 2
    s_add_u32 s{sT}, s{sT}, s{sT2}
    s_add_u32 s{sT}, s{sT}, {XL}
    v_and_b32 v{vT}, 31, v{vLane}
    v_lshlrev_b32 v{vT}, 3, v{vT}
    v_add_u32 v{vT}, s{sT}, v{vT}
    s_mul_i32 s{sT}, s{sW}, 3072
    v_add_u32 v{SA}, s{sT}, v{vL16}
    s_xor_b32 s{sT2}, s{sW}, 4
    s_mul_i32 s{sT2}, s{sT2}, 3072
    v_add_u32 v{SA+1}, s{sT2}, v{vL16}
    s_mov_b32 exec_hi, 0
    ds_write_b32 v{vT}, v{OA+10}
    ds_write_b32 v{vT}, v{OB+10} offset:256
    s_mov_b32 exec_hi, -1
    s_cmp_eq_u32 s{sKH}, 0
    s_cbranch_scc0 {L('send_a')}
    ds_write_b128 v{SA}, {vr(OB,4)}
    ds_write_b128 v{SA}, {vr(OB+4,4)} offset:1024
    ds_write_b128 v{SA}, {vr(OB+8,4)} offset:2048
    s_branch {L('sent')}
    """)
    P.L(L("send_a"))
    P(f"""
    ds_write_b128 v{SA}, {vr(OA,4)}
    ds_write_b128 v{SA}, {vr(OA+4,4)} offset:1024
    ds_write_b128 v{SA}, {vr(OA+8,4)} offset:2048
    s_waitcnt lgkmcnt(0)
    """)
    for r in range(12):
        P(f"v_mov_b32 v{OA + r}, v{OB + r}")
    P.L(L("sent"))
    P(f"""
    s_waitcnt lgkmcnt(0)
    s_barrier
    ds_read_b128 {vr(SB,4)}, v{SA+1}
    ds_read_b128 {vr(SB+4,4)}, v{SA+1} offset:1024
    ds_read_b128 {vr(SB+8,4)}, v{SA+1} offset:2048
    v_lshlrev_b32 v{vT}, 3, v{vLane}
    ds_read_b64 {vr(PA,2)}, v{vT} offset:{XL}
    ds_read_b64 {vr(PA+2,2)}, v{vT} offset:{XL + 512}
    ds_read_b64 {vr(PB,2)}, v{vT} offset:{XL + 1024}
    ds_read_b64 {vr(PB+2,2)}, v{vT} offset:{XL + 1536}
    """)
    for r in range(11):
        P(f"v_add_f32 v{OA + r}, v{OA + r}, v{SB + r}")
    P(f"""
    v_add_f32 v{PA}, v{PA}, v{PA+1}
    v_add_f32 v{PA+2}, v{PA+2}, v{PA+3}
    v_add_f32 v{PB}, v{PB}, v{PB+1}
    v_add_f32 v{PB+2}, v{PB+2}, v{PB+3}
    s_cmp_eq_u32 s{sAtt}, 1
    s_cbranch_scc1 {L('final')}
    v_mov_b32 v{PA+6}, {f32(2.0 ** -64)}
    v_mov_b32 v{PA+7}, {f32(2.0 ** 64)}
    s_mov_b64 s[{sMask}:{sMask+1}], exec
    """)
    for r in (PA, PA + 2, PB, PB + 2):
        P(f"""
        v_cmp_ge_f32 vcc, v{r}, v{PA+6}
        s_and_b64 s[{sMask}:{sMask+1}], s[{sMask}:{sMask+1}], vcc
        v_cmp_le_f32 vcc, v{r}, v{PA+7}
        s_and_b64 s[{sMask}:{sMask+1}], s[{sMask}:{sMask+1}], vcc
        """)
    P(f"""
    s_andn2_b64 s[{sMask}:{sMask+1}], exec, s[{sMask}:{sMask+1}]
    s_cbranch_scc1 {L('maxpass')}
    """)
    P.L(L("final"))
    common.mark(P, 2)
    P(f"""
    v_mov_b32 v{SB}, v{OA+10}
    v_mov_b32 v{SB+1}, v{OA+10}
    s_add_u32 s{sTile}, s{sTile}, s{sKH}
    s_mul_i32 s{sT}, s{sTile}, {36 * 1024}
    v_permlane32_swap_b32 v{SB}, v{SB+1}
    s_add_u32 s{sT}, s{sT}, {WS_OF}
    v_rcp_f32 v{SB}, v{SB}
    s_lshl_b32 s{sT2}, s{sHead}, 10
    s_add_u32 s{sT2}, s{sT2}, s{sT}
    """)
    for r in range(10):
        P(f"v_mul_f32 v{OA + r}, v{OA + r}, v{SB}")
    for k in range(5):
        P(f"v_cvt_pk_bf16_f32 v{PA + k}, v{OA + 2 * k}, v{OA + 2 * k + 1}")
    P(f"""
    buffer_store_dwordx4 {vr(PA,4)}, v{vL16}, {srd}, s{sT2} offen sc1
    s_lshr_b32 s{sT2}, s{sHead}, 3
    s_add_u32 s{sT2}, s{sT2}, 32
    s_lshl_b32 s{sT2}, s{sT2}, 10
    s_add_u32 s{sT}, s{sT}, s{sT2}
    s_lshr_b32 s{sT2}, s{sHead}, 2
    s_and_b32 s{sT2}, s{sT2}, 1
    s_lshl_b32 s{sT2}, s{sT2}, 9
    s_add_u32 s{sT}, s{sT}, s{sT2}
    s_and_b32 s{sT2}, s{sHead}, 3
    s_lshl_b32 s{sT2}, s{sT2}, 2
    s_add_u32 s{sT}, s{sT}, s{sT2}
    s_mov_b32 exec_hi, 0
    buffer_store_dword v{PA+4}, v{vL16}, {srd}, s{sT} offen sc1
    s_waitcnt vmcnt(0)
    s_barrier
    s_cmp_eq_u32 s{sW}, 0
    s_cbranch_scc0 {L('noflag')}
    s_lshl_b32 s{sT}, s{sQB}, 7
    s_lshl_b32 s{sT2}, s{sHead}, 2
    s_add_u32 s{sT}, s{sT}, s{sT2}
    s_add_u32 s{sT}, s{sT}, {WS_FLG + FLG_ATT}
    v_mov_b32 v{PA}, 1
    v_mov_b32 v{PA+1}, 0
    s_mov_b32 exec_lo, 1
    buffer_store_dword v{PA}, v{PA+1}, {srd}, s{sT} offen sc1
    """)
    P.L(L("noflag"))
    P(end)

    P.L(L("maxpass"))
    P(f"""
    s_barrier
    s_mov_b32 s{sAtt}, 1
    s_mov_b32 s{sIt}, 0
    s_mov_b32 s{sG0}, s27
    s_mov_b32 s{sG1}, s28
    v_mov_b32 v{QHA+1}, 0
    v_mov_b32 v{QHB+1}, 0
    v_mov_b32 v{PA}, 0xff800000
    v_mov_b32 v{PB}, 0xff800000
    """)
    P.L(L("maxloop"))
    P(f"""
    buffer_load_dwordx4 {vr(KL,4)}, v{vL16}, {srd}, s{sG0} offen
    buffer_load_dword v{KH}, v{vKH}, {srd}, s{sG1} offen
    s_add_u32 s{sG0}, s{sG0}, 1024
    s_add_u32 s{sG1}, s{sG1}, 128
    """)
    for m in qk(SA, QHA, QLA) + qk(SB, QHB, QLB):
        P(m)
    for S, M in ((SA, PA), (SB, PB)):
        for r in range(0, 16, 2):
            P(f"v_max3_f32 v{M}, v{S + r}, v{S + r + 1}, v{M}")
    P(f"""
    s_add_u32 s{sIt}, s{sIt}, 1
    s_cmp_lt_u32 s{sIt}, 32
    s_cbranch_scc1 {L('maxloop')}
    """)
    for M in (PA, PB):
        P(f"""
        v_mov_b32 v{M+1}, v{M}
        v_mov_b32 v{M+2}, v{M}
        v_permlane32_swap_b32 v{M+1}, v{M+2}
        v_max3_f32 v{M}, v{M}, v{M+1}, v{M+2}
        """)
    P(f"""
    s_lshl_b32 s{sT}, s{sW}, 9
    v_lshlrev_b32 v{vT}, 3, v{vLane}
    v_add_u32 v{SA}, s{sT}, v{vT}
    s_xor_b32 s{sT}, s{sW}, 4
    s_lshl_b32 s{sT}, s{sT}, 9
    v_add_u32 v{SA+1}, s{sT}, v{vT}
    v_mov_b32 v{PA+1}, v{PB}
    ds_write_b64 v{SA}, {vr(PA,2)}
    s_waitcnt lgkmcnt(0)
    s_barrier
    ds_read_b64 {vr(PA+2,2)}, v{SA+1}
    v_cmp_gt_u32 vcc, 32, v{vLane}
    v_max_f32 v{PA}, v{PA}, v{PA+2}
    v_max_f32 v{PB}, v{PB}, v{PA+3}
    """)
    for M, QH in ((PA, QHA), (PB, QHB)):
        P(f"""
        v_sub_f32 v{M}, 0, v{M}
        v_and_b32 v{M+1}, 0xffff0000, v{M}
        v_sub_f32 v{M+2}, v{M}, v{M+1}
        v_and_b32 v{M+3}, 0xffff0000, v{M+2}
        v_sub_f32 v{M+4}, v{M+2}, v{M+3}
        v_lshrrev_b32 v{M+5}, 16, v{M+1}
        v_or_b32 v{M+5}, v{M+5}, v{M+3}
        v_lshrrev_b32 v{M+6}, 16, v{M+4}
        v_cndmask_b32 v{QH+1}, v{M+6}, v{M+5}, vcc
        """)
    P(f"""
    s_barrier
    s_branch {L('start')}
    """)
    return V.hi
```

```python
import sys
from common import *
import common
from k1 import emit_k1, K1_LDS
from att import emit_attention
from svc import emit_service, SVC_LDS
from prepk import Prep, srd_from_kernarg

KNAME = "gated_mix__ssm_conv_s5__softmax_full_mha__prompt_kernel"

def k_prep(timing=False):
    P = Prog(); name = "prep_kernel"
    P.L(name)
    if timing:
        timing_start(P, 84, 4); P("v_lshrrev_b32 v127, 6, v0"); common.TIMING = False
    ws_srd(P)
    P("s_cmp_ge_u32 s2, 256\ns_cbranch_scc1 prep_exit")
    V = Regs("v", 1)
    srd_from_kernarg(P, 16, KA_AX, 2048 * 1152)
    pr = Prep(P, V, 45, 16, 0)
    pr.srds()
    P("v_lshrrev_b32 v1, 6, v0\nv_and_b32 v0, 63, v0\nv_readfirstlane_b32 s26, v1")
    pr.loads(2, 26)
    pr.finish()
    if timing:
        P("s_branch tp_exit")
    P.L("prep_exit")
    P("s_endpgm")
    nv = V.hi
    if timing:
        timing_exit(P, "tp_exit", slot=2, vw=127); nv = 128
    return name, P.finalize([name]), nv, (name, 256, 0, 256)

def k_k1(timing=False, name="k1_kernel", prep=False):
    P = Prog()
    P.L(name)
    if timing:
        timing_start(P, 84, 4); P("v_lshrrev_b32 v200, 6, v0")
    ws_srd(P)
    P("s_cmp_ge_u32 s2, 256\ns_cbranch_scc1 k1_exit")
    nv = emit_k1(P, 2, end="s_branch tk_exit" if timing else "s_endpgm", prep=prep)
    P.L("k1_exit")
    P("s_endpgm")
    if timing:
        timing_exit(P, "tk_exit", slot=3, vw=200); nv = 204
        common.TIMING = False
    return name, P.finalize([name]), nv, (name, 256, K1_LDS, 512)

def k_att(timing=False):
    P = Prog(); name = "att_kernel"
    P.L(name)
    if timing:
        timing_start(P); P("v_lshrrev_b32 v127, 6, v0")
    ws_srd(P)
    P("s_cmp_ge_u32 s2, 256\ns_cbranch_scc1 att_exit")
    nv = emit_attention(P, 2, end="s_branch ta_exit" if timing else "s_endpgm")
    P.L("att_exit")
    P("s_endpgm")
    if timing:
        timing_exit(P, "ta_exit", slot=0, vw=127); nv = 128
        common.TIMING = False
    return name, P.finalize([name]), nv, (name, 256, 40960, 512)

def k_svc(timing=False, exp=()):
    P = Prog(); name = "svc_kernel"
    P.L(name)
    if timing:
        timing_start(P); P("v_lshrrev_b32 v127, 6, v0")
    ws_srd(P)
    P("s_cmp_ge_u32 s2, 144\ns_cbranch_scc1 svc_exit")
    nv = emit_service(P, 2, end="s_branch ts_exit" if timing else "s_endpgm", exp=exp)
    P.L("svc_exit")
    P("s_endpgm")
    if timing:
        timing_exit(P, "ts_exit", slot=1, vw=127); nv = 128
        common.TIMING = False
    return name, P.finalize([name]), nv, (name, 144, SVC_LDS, 512)

def k_l2(timing=False, exp=()):
    P = Prog(); name = "l2_kernel"
    P.L(name)
    if timing:
        timing_start(P); P("v_lshrrev_b32 v127, 6, v0")
    ws_srd(P)
    P("""
    s_cmp_ge_u32 s2, 400
    s_cbranch_scc1 l2_exit
    s_cmp_ge_u32 s2, 256
    s_cbranch_scc1 l2_svc
    """)
    e = "s_branch tl_exit" if timing else "s_endpgm"
    nv = emit_attention(P, 2, end=e, exp=exp)
    P.L("l2_svc")
    P("s_sub_u32 s3, s2, 256")
    nv = max(nv, emit_service(P, 3, end=e, exp=exp))
    P.L("l2_exit")
    P("s_endpgm")
    if timing:
        timing_exit(P, "tl_exit", slot=0, vw=127); nv = 128
        common.TIMING = False
    return name, P.finalize([name]), nv, (name, 400, SVC_LDS, 512)

def k_empty():
    P = Prog(); name = "nop_kernel"
    P.L(name)
    P("s_endpgm")
    return name, P.finalize([name]), 8, (name, 1, 0, 64)

def assemble(ks, order=None):
    txt = launch_text([ks[i][3] for i in order] if order else [k[3] for k in ks])
    txt += '.amdgcn_target "amdgcn-amd-amdhsa--gfx950"\n.text\n'
    for name, body, nv, _ in ks:
        txt += kernel_header(name) + body
    txt += '.section .rodata,"a"\n.p2align 6\n'
    for name, body, nv, _ in ks:
        assert nv <= 256
        txt += kernel_desc(name, nv)
    return txt

def build(mode="sep", timing=False, exp=()):
    common.TIMING = False
    if mode == "sep":
        ks = [k_prep(timing), k_k1(timing), k_att(timing), k_svc(timing, exp)]
    elif mode == "fused":
        ks = [k_prep(timing), k_k1(timing), k_l2(timing, exp)]
    elif mode == "m2":
        ks = [k_k1(timing, prep=True), k_l2(timing, exp)]
    order = None
    for e in exp:
        if e.startswith("order="):
            ks.append(k_empty())
            order = [int(c) if c != "e" else len(ks) - 1 for c in e[6:]]
            if "e" not in e[6:]:
                ks.pop()
    print("vgprs", [(k[0], k[2]) for k in ks])
    return assemble(ks, order)

if __name__ == "__main__":
    mode = sys.argv[1] if len(sys.argv) > 1 else "sep"
    t = build(mode, True)
    open("out/all.s", "w").write(t)
    print(len(t))
```

```python
from asmgen import *
from layout import *

def ws_srd(P):
    P(f"""
    s_load_dwordx2 s[4:5], s[0:1], {KA_WS}
    s_waitcnt lgkmcnt(0)
    s_mov_b32 s6, {WS_SIZE}
    s_mov_b32 s7, 0x00020000
    """)

TIMING = False
WSEL = slice(0, 4)
NMARK = 16
MK0 = 52
REC = 128

def timing_start(P, mk0=52, nmark=16):
    global TIMING, MK0, NMARK
    TIMING = True
    MK0, NMARK = mk0, nmark
    P("""
    s_memrealtime s[96:97]
    s_memtime s[94:95]
    s_waitcnt lgkmcnt(0)
    """)
    for k in range(NMARK):
        P(f"s_mov_b32 s{MK0 + 2 * k}, s94")

def mark(P, k):
    if TIMING and k < NMARK:
        P(f"""
        s_memtime s[{MK0 + 2 * k}:{MK0 + 1 + 2 * k}]
        s_waitcnt lgkmcnt(0)
        """)

def timing_exit(P, label, slot=0, vw=255):
    P.L(label)
    P(f"""
    s_waitcnt vmcnt(0)
    s_memrealtime s[98:99]
    s_memtime s[92:93]
    s_waitcnt lgkmcnt(0)
    s_sub_u32 s92, s92, s94
    s_mov_b64 exec, -1
    s_getreg_b32 s97, hwreg(HW_REG_HW_ID)
    s_getreg_b32 s99, hwreg(HW_REG_XCC_ID)
    s_and_b32 s99, s99, 15
    s_lshl_b32 s92, s92, 4
    s_or_b32 s99, s99, s92
    v_mov_b32 v2, s96
    v_mov_b32 v3, s97
    v_mov_b32 v4, s98
    v_mov_b32 v5, s99
    """)
    for k in range(16):
        if k < NMARK:
            P(f"s_sub_u32 s{MK0 + 2 * k}, s{MK0 + 2 * k}, s94")
            P(f"v_mov_b32 v{6 + k}, s{MK0 + 2 * k}")
        else:
            P(f"v_mov_b32 v{6 + k}, 0")
    P(f"""
    s_lshl_b32 s98, s2, 10
    s_add_u32 s98, s98, {WS_TIM + slot * 0x80000}
    v_readfirstlane_b32 s99, v{vw}
    s_lshl_b32 s99, s99, 7
    s_add_u32 s98, s98, s99
    v_mov_b32 v1, 0
    s_mov_b32 exec_hi, 0
    s_mov_b32 exec_lo, 1
    """)
    for q in range(5):
        P(f"buffer_store_dwordx4 v[{2 + 4 * q}:{5 + 4 * q}], v1, s[4:7], s98 offen offset:{16 * q}")
    P("s_endpgm")

def launch_text(kernels):
    t = ""
    for k in kernels:
        name, grid, lds = k[:3]
        blk = k[3] if len(k) > 3 else 256
        t += f"; @launch kernel={name} grid=({grid},1,1) block=({blk},1,1) lds={lds}\n"
    return t

def decode_times(res, nwg, slot=0):
    import numpy as np
    a = res[WS_TIM + slot * 0x80000: WS_TIM + slot * 0x80000 + nwg * 1024].view(np.uint32).reshape(nwg, 8, 32)[:, WSEL]
    st, en = a[:, :, 0].astype(np.int64), a[:, :, 2].astype(np.int64)
    t0 = st.min()
    hw = a[:, 0, 1]; xcc = a[:, 0, 3] & 0xf
    cu = [(int(xcc[i]), int((hw[i] >> 13) & 7), int((hw[i] >> 12) & 1), int((hw[i] >> 8) & 0xf)) for i in range(nwg)]
    global last_cycles, last_marks
    last_marks = a[:, :, 4:20].astype(np.int64)
    last_cycles = (a[:, :, 3] >> 4).astype(np.int64)
    return (st - t0) / 100.0, (en - t0) / 100.0, cu

def summarize_times(res, nwg, slot=0, label=""):
    import numpy as np, collections
    st, en, cu = decode_times(res, nwg, slot)
    d = collections.defaultdict(list)
    for i, k in enumerate(cu):
        d[k].append(i)
    hist = collections.Counter(len(v) for v in d.values())
    dur = (en - st).max(1)
    s = "%s start: max %.2f med %.2f | end: min %.2f med %.2f max %.2f | dur med %.2f max %.2f | WGs/CU %s" % (
        label, st.max(), np.median(st), en.min(), np.median(en), en.max(), np.median(dur), dur.max(), dict(hist))
    bycount = collections.defaultdict(list)
    for k, v in d.items():
        for i in v:
            bycount[len(v)].append(dur[i])
    s += " | GHz %.3f" % float(np.median(last_cycles / ((en - st) * 1000.0)))
    s += " | cyc total med %d marks med %s" % (np.median(last_cycles), [int(np.median(last_marks[:, :, k])) for k in range(4)])
    s += " | dur by co-residency " + str({k: round(float(np.median(v)), 2) for k, v in bycount.items()})
    return s
```

```python
from asmgen import *
from layout import *
import common
import struct


def f32(x):
    return "0x%08x" % struct.unpack("<I", struct.pack("<f", x))[0]


NST = 4
STAGE = 32768
K1_LDS = NST * STAGE


def srd_from_kernarg(P, s, ka, nbytes):
    P(f"""
    s_load_dwordx2 s[{s}:{s+1}], s[0:1], {ka}
    s_mov_b32 s{s+2}, {nbytes}
    s_mov_b32 s{s+3}, 0x00020000
    """)


def emit_k1(P, sWG, pfx="k1", end="s_endpgm", prep=True):
    V = Regs("v", 1)
    ACC = [[V.alloc(16) for _ in range(2)] for _ in range(2)]
    XF = [[V.alloc(4) for _ in range(2)] for _ in range(2)]
    WF = [[V.alloc(4) for _ in range(2)] for _ in range(2)]
    vXD = [V.alloc() for _ in range(4)]
    vWD = [V.alloc() for _ in range(4)]
    vXR = [V.alloc() for _ in range(4)]
    vWR = [V.alloc() for _ in range(2)]
    vXR2 = [V.alloc() for _ in range(4)]
    vWR2 = [V.alloc() for _ in range(2)]
    GX = V.alloc(18); GW = V.alloc(18)
    vT = [V.alloc() for _ in range(8)]
    vLane = 0
    sX, sW_, sAX, sGW = 8, 12, 16, 20
    sTB, sFG, sWv, sWM, sWN, sM, sXo, sWo, sCol = 24, 25, 26, 27, 28, 29, 30, 31, 32
    sT, sT2, sT3, sIsV, sPB = 33, 34, 35, 36, 37
    sLd = 44
    L = lambda n: f"{pfx}_{n}"
    ws = "s[4:7]"

    srd_from_kernarg(P, sX, KA_AX, 2048 * 1152)
    srd_from_kernarg(P, sW_, KA_WQKV, 576 * 3456)
    srd_from_kernarg(P, sAX, KA_AX, 2048 * 1152)
    srd_from_kernarg(P, sGW, KA_GW, 1152)
    if prep:
        from prepk import Prep
        pr = Prep(P, Regs("v", 1), 45, sAX, vLane)
        pr.srds()
    t0, t1, t2, t3, t4, t5 = vT[:6]
    P(f"""
    v_lshrrev_b32 v{t0}, 6, v0
    v_and_b32 v{vLane}, 63, v0
    v_readfirstlane_b32 s{sWv}, v{t0}
    s_lshr_b32 s{sLd}, s{sWv}, 2
    s_and_b32 s{sWv}, s{sWv}, 3
    s_and_b32 s{sT}, s{sWG}, 7
    s_lshr_b32 s{sT2}, s{sWG}, 3
    s_and_b32 s{sTB}, s{sT}, 1
    s_lshl_b32 s{sTB}, s{sTB}, 3
    s_and_b32 s{sT3}, s{sT2}, 7
    s_add_u32 s{sTB}, s{sTB}, s{sT3}
    s_lshr_b32 s{sFG}, s{sT}, 1
    s_lshl_b32 s{sFG}, s{sFG}, 2
    s_lshr_b32 s{sT3}, s{sT2}, 3
    s_add_u32 s{sFG}, s{sFG}, s{sT3}
    s_and_b32 s{sWM}, s{sWv}, 1
    s_lshr_b32 s{sWN}, s{sWv}, 1
    s_lshl_b32 s{sM}, s{sWv}, 12
    """)
    P(f"""
    s_cmp_ge_u32 s{sFG}, 11
    s_cselect_b32 s{sIsV}, 1, 0
    s_mul_i32 s{sCol}, s{sFG}, 216
    s_and_b32 s{sCol}, s{sCol}, 0xfffffff0
    s_sub_u32 s{sT}, s{sFG}, 11
    s_lshl_b32 s{sT}, s{sT}, 2
    s_min_u32 s{sT}, s{sT}, 14
    s_lshl_b32 s{sT2}, s{sT}, 6
    s_add_u32 s{sT2}, s{sT2}, 2304
    s_cmp_eq_u32 s{sIsV}, 1
    s_cselect_b32 s{sCol}, s{sT2}, s{sCol}
    s_cselect_b32 s{sPB}, s{sT}, 0
    """)
    P(f"""
    s_cmp_eq_u32 s{sLd}, 0
    s_cbranch_scc1 {L('compute')}
    """)
    P(f"""
    v_lshrrev_b32 v{t0}, 3, v{vLane}
    v_lshrrev_b32 v{t1}, 4, v{vLane}
    v_and_b32 v{t2}, 7, v{vLane}
    s_lshl_b32 s{sT}, s{sTB}, 7
    s_lshl_b32 s{sT2}, s{sWv}, 5
    s_add_u32 s{sT}, s{sT}, s{sT2}
    s_movk_i32 s{sT3}, 1152
    """)
    for u in range(4):
        P(f"""
        v_add_u32 v{t3}, {4 * u}, v{t1}
        v_and_b32 v{t3}, 7, v{t3}
        v_xor_b32 v{t3}, v{t3}, v{t2}
        v_lshlrev_b32 v{t3}, 4, v{t3}
        v_add_u32 v{t4}, {8 * u}, v{t0}
        v_add_u32 v{t4}, s{sT}, v{t4}
        v_mul_lo_u32 v{t4}, v{t4}, s{sT3}
        v_add_u32 v{vXD[u]}, v{t3}, v{t4}
        """)
    P(f"""
    v_and_b32 v{t2}, 15, v{vLane}
    v_lshlrev_b32 v{t3}, 2, v{t1}
    v_xor_b32 v{t3}, v{t3}, v{t2}
    v_lshlrev_b32 v{t3}, 4, v{t3}
    v_add_u32 v{t3}, s{sCol}, v{t3}
    s_lshl_b32 s{sT}, s{sWv}, 4
    s_movk_i32 s{sT3}, 3456
    """)
    for u in range(4):
        P(f"""
        v_add_u32 v{t4}, {4 * u}, v{t1}
        v_add_u32 v{t4}, s{sT}, v{t4}
        v_mul_lo_u32 v{t4}, v{t4}, s{sT3}
        v_add_u32 v{vWD[u]}, v{t3}, v{t4}
        """)
    P(f"""
    s_mov_b32 s{sXo}, 0
    s_mov_b32 s{sWo}, 0
    s_waitcnt lgkmcnt(0)
    """)
    common.mark(P, 0)

    def dma(c):
        st = (c % NST) * STAGE
        for u in range(4):
            P(f"s_add_u32 m0, s{sM}, {st + u * 1024}")
            P(f"buffer_load_dwordx4 v{vXD[u]}, s[{sX}:{sX+3}], s{sXo} offen lds")
        for u in range(4):
            P(f"s_add_u32 m0, s{sM}, {st + 16384 + u * 1024}")
            P(f"buffer_load_dwordx4 v{vWD[u]}, s[{sW_}:{sW_+3}], s{sWo} offen lds")
        P(f"s_add_u32 s{sXo}, s{sXo}, 128")
        P(f"s_add_u32 s{sWo}, s{sWo}, {64 * 3456}")

    dma(0)

    P(f"""
    v_lshrrev_b32 v{t0}, 4, v{vLane}
    s_lshl_b32 s{sT}, s{sWG}, 4
    s_lshl_b32 s{sT2}, s{sWv}, 2
    s_add_u32 s{sT}, s{sT}, s{sT2}
    v_add_u32 v{t0}, s{sT}, v{t0}
    s_movk_i32 s{sT3}, 1152
    v_mul_lo_u32 v{vT[6]}, v{t0}, s{sT3}
    v_and_b32 v{t1}, 15, v{vLane}
    v_lshlrev_b32 v{t1}, 3, v{t1}
    v_add_u32 v{vT[6]}, v{vT[6]}, v{t1}
    v_lshlrev_b32 v{vT[7]}, 2, v{t0}
    s_cmp_ge_u32 s{sWG}, 128
    s_cbranch_scc1 {L('nogate_ld')}
    """)
    for q in range(9):
        P(f"buffer_load_dwordx2 {vr(GX + 2 * q, 2)}, v{vT[6]}, s[{sAX}:{sAX+3}], 0 offen offset:{128 * q}")
        P(f"buffer_load_dwordx2 {vr(GW + 2 * q, 2)}, v{t1}, s[{sGW}:{sGW+3}], 0 offen offset:{128 * q}")
    P.L(L("nogate_ld"))

    for c in range(1, NST):
        dma(c)
    NP = 0
    if prep:
        pr.loads(sWG, sWv)
        NP = pr.NLOADS
    common.mark(P, 1)
    P(f"s_waitcnt vmcnt({(NST - 1) * 8 + NP})")
    common.mark(P, 2)
    P("s_barrier")
    for c in range(8):
        left = min(NST - 2, 7 - c) * 8
        if c + 1 < NST:
            left += NP
        P(f"s_waitcnt vmcnt({left})")
        P("s_barrier")
        if c + NST < 9:
            dma(c + NST)
    common.mark(P, 3)
    if prep:
        pr.finish()
    P(f"""
    s_cmp_ge_u32 s{sWG}, 128
    s_cbranch_scc1 {L('end')}
    v_mov_b32 v{vT[0]}, 0
    v_mov_b32 v{vT[1]}, 0
    """)
    for q in range(9):
        P(f"v_dot2c_f32_bf16 v{vT[0]}, v{GX + 2 * q}, v{GW + 2 * q}")
        P(f"v_dot2c_f32_bf16 v{vT[1]}, v{GX + 2 * q + 1}, v{GW + 2 * q + 1}")
    P(f"""
    v_add_f32 v{vT[0]}, v{vT[0]}, v{vT[1]}
    v_add_f32_dpp v{vT[0]}, v{vT[0]}, v{vT[0]} row_ror:8 row_mask:0xf bank_mask:0xf
    v_add_f32_dpp v{vT[0]}, v{vT[0]}, v{vT[0]} row_ror:4 row_mask:0xf bank_mask:0xf
    v_add_f32_dpp v{vT[0]}, v{vT[0]}, v{vT[0]} row_ror:2 row_mask:0xf bank_mask:0xf
    v_add_f32_dpp v{vT[0]}, v{vT[0]}, v{vT[0]} row_ror:1 row_mask:0xf bank_mask:0xf
    v_mul_f32 v{vT[0]}, {f32(-LOG2E)}, v{vT[0]}
    v_exp_f32 v{vT[0]}, v{vT[0]}
    v_add_f32 v{vT[0]}, 1.0, v{vT[0]}
    v_rcp_f32 v{vT[0]}, v{vT[0]}
    v_and_b32 v{vT[1]}, 15, v{vLane}
    v_cmp_eq_u32 vcc, 0, v{vT[1]}
    s_mov_b32 s{sT}, {WS_G}
    s_and_saveexec_b64 s[42:43], vcc
    buffer_store_dword v{vT[0]}, v{vT[7]}, {ws}, s{sT} offen
    """)
    P(f"s_branch {L('end')}")

    P.L(L("compute"))
    P(f"""
    v_and_b32 v{t0}, 31, v{vLane}
    v_lshrrev_b32 v{t1}, 5, v{vLane}
    v_lshrrev_b32 v{t2}, 1, v{t0}
    v_and_b32 v{t2}, 7, v{t2}
    v_xor_b32 v{t2}, v{t2}, v{t1}
    v_lshlrev_b32 v{t2}, 4, v{t2}
    s_lshl_b32 s{sT}, s{sWM}, 6
    v_add_u32 v{t3}, s{sT}, v{t0}
    v_lshlrev_b32 v{t3}, 7, v{t3}
    v_add_u32 v{vXR[0]}, v{t2}, v{t3}
    v_xor_b32 v{vXR[1]}, 32, v{vXR[0]}
    v_xor_b32 v{vXR[2]}, 64, v{vXR[0]}
    v_xor_b32 v{vXR[3]}, 0x60, v{vXR[0]}
    """)
    P(f"""
    v_lshrrev_b32 v{t0}, 4, v{vLane}
    v_and_b32 v{t0}, 1, v{t0}
    v_lshlrev_b32 v{t0}, 2, v{t0}
    v_and_b32 v{t1}, 3, v{vLane}
    v_add_u32 v{t0}, v{t0}, v{t1}
    v_lshrrev_b32 v{t1}, 2, v{vLane}
    v_and_b32 v{t1}, 3, v{t1}
    v_lshrrev_b32 v{t2}, 5, v{vLane}
    v_lshlrev_b32 v{t3}, 3, v{t2}
    v_add_u32 v{t3}, v{t3}, v{t1}
    v_lshlrev_b32 v{t3}, 8, v{t3}
    v_add_u32 v{t3}, 16384, v{t3}
    s_cmp_eq_u32 s{sIsV}, 1
    s_cbranch_scc1 {L('vaddr')}
    """)
    P(f"""
    s_mul_i32 s{sPB}, s{sFG}, 3
    s_and_b32 s{sT}, s{sFG}, 1
    s_lshl_b32 s{sT}, s{sT}, 3
    v_lshrrev_b32 v{t4}, 2, v{t0}
    v_mul_u32_u24 v{t4}, 40, v{t4}
    v_and_b32 v{t5}, 1, v{t0}
    v_lshlrev_b32 v{t5}, 4, v{t5}
    v_add_u32 v{t4}, v{t4}, v{t5}
    v_lshrrev_b32 v{t5}, 1, v{t0}
    v_and_b32 v{t5}, 1, v{t5}
    v_lshlrev_b32 v{t5}, 3, v{t5}
    v_add_u32 v{t4}, v{t4}, v{t5}
    v_add_u32 v{t4}, s{sT}, v{t4}
    s_mul_i32 s{sT2}, s{sWN}, 144
    v_add_u32 v{vWR[0]}, s{sT2}, v{t4}
    v_add_u32 v{vWR[1]}, 72, v{vWR[0]}
    v_min_u32 v{t5}, 2, v{t0}
    v_mul_u32_u24 v{t5}, 72, v{t5}
    v_add_u32 v{t5}, 32, v{t5}
    v_add_u32 v{t5}, s{sT}, v{t5}
    s_cmp_eq_u32 s{sWN}, 1
    s_cbranch_scc0 {L('swz')}
    v_mov_b32 v{vWR[1]}, v{t5}
    s_branch {L('swz')}
    """)
    P.L(L("vaddr"))
    P(f"""
    v_lshlrev_b32 v{t4}, 3, v{t0}
    s_lshl_b32 s{sT2}, s{sWN}, 7
    v_add_u32 v{vWR[0]}, s{sT2}, v{t4}
    v_add_u32 v{vWR[1]}, 64, v{vWR[0]}
    """)
    P.L(L("swz"))
    P(f"v_lshlrev_b32 v{t1}, 6, v{t1}")
    for k in range(2):
        P(f"""
        v_xor_b32 v{vWR[k]}, v{vWR[k]}, v{t1}
        v_add_u32 v{vWR[k]}, v{vWR[k]}, v{t3}
        """)

    for k in range(4):
        P(f"v_add_u32 v{vXR2[k]}, 0x10000, v{vXR[k]}")
    for k in range(2):
        P(f"v_add_u32 v{vWR2[k]}, 0x10000, v{vWR[k]}")

    def reads(n):
        c, ks = divmod(n, 4)
        st = (c % NST) * STAGE
        xr, wr = (vXR, vWR) if st < 65536 else (vXR2, vWR2)
        st &= 65535
        b = n & 1
        out = []
        for tt in range(2):
            out.append(f"ds_read_b128 {vr(XF[b][tt],4)}, v{xr[ks]} offset:{st + tt * 4096}")
        for ft in range(2):
            for rd in range(2):
                out.append(f"ds_read_b64_tr_b16 {vr(WF[b][ft] + 2 * rd, 2)}, v{wr[ft]} offset:{st + ks * 4096 + rd * 1024}")
        return out

    def mainloop(isv):
        for n in range(36):
            c, ks = divmod(n, 4)
            b = n & 1
            mf = []
            for tt in range(2):
                for ft in range(2):
                    a_, b_ = (XF[b][tt], WF[b][ft]) if isv else (WF[b][ft], XF[b][tt])
                    cop = "0" if n == 0 else vr(ACC[tt][ft], 16)
                    mf.append(f"v_mfma_f32_32x32x16_bf16 {vr(ACC[tt][ft],16)}, {vr(a_,4)}, {vr(b_,4)}, {cop}")
            P("s_waitcnt lgkmcnt(0)")
            if ks == 3 and n + 1 < 36:
                P("s_barrier")
            rs = reads(n + 1) if n + 1 < 36 else []
            for k in range(4):
                P(mf[k])
                take = rs[:2] if k < 3 else rs
                rs = rs[len(take):]
                for r in take:
                    P(r)

    P("s_barrier")
    common.mark(P, 0)
    for r in reads(0):
        P(r)
    P(f"""
    s_cmp_eq_u32 s{sIsV}, 1
    s_cbranch_scc1 {L('vmain')}
    """)

    mainloop(False)
    common.mark(P, 1)
    PK = XF[0][0]
    vA = [vT[0], vT[1], vT[2], vT[3]]
    P(f"v_lshlrev_b32 v{vA[0]}, 4, v{vLane}")

    def lo_store(tt, ft, sPBreg):
        skip = P.newlabel(pfx + "_skip")
        P(f"""
        s_cmp_ge_u32 s{sPBreg}, 32
        s_cbranch_scc1 {skip}
        s_and_b32 s{sT}, s{sPBreg}, 15
        s_lshl_b32 s{sT}, s{sT}, 17
        s_lshl_b32 s{sT2}, s{sTB}, 2
        s_lshl_b32 s{sT3}, s{sWM}, 1
        s_add_u32 s{sT2}, s{sT2}, s{sT3}
        s_add_u32 s{sT2}, s{sT2}, {tt}
        s_lshl_b32 s{sT2}, s{sT2}, 10
        s_add_u32 s{sT}, s{sT}, s{sT2}
        s_add_u32 s{sT2}, s{sT}, {WS_QLO}
        s_add_u32 s{sT}, s{sT}, {WS_KLO}
        s_cmp_lt_u32 s{sPBreg}, 16
        s_cselect_b32 s{sT}, s{sT2}, s{sT}
        s_cselect_b32 s{sT3}, {f32(QSCALE)}, 1.0
        s_add_u32 s{sT2}, s{sT}, 65536
        """)
        A = ACC[tt][ft]
        for r in range(16):
            P(f"v_mul_f32 v{A + r}, s{sT3}, v{A + r}")
        for k in range(8):
            P(f"v_cvt_pk_bf16_f32 v{PK + k}, v{A + 2 * k}, v{A + 2 * k + 1}")
        P(f"""
        buffer_store_dwordx4 {vr(PK,4)}, v{vA[0]}, {ws}, s{sT} offen
        buffer_store_dwordx4 {vr(PK+4,4)}, v{vA[0]}, {ws}, s{sT2} offen
        """)
        P.L(skip)

    sP0, sP1 = 38, 39
    P(f"""
    s_lshl_b32 s{sP0}, s{sWN}, 1
    s_add_u32 s{sP0}, s{sP0}, s{sPB}
    s_add_u32 s{sP1}, s{sP0}, 1
    """)
    for tt in range(2):
        lo_store(tt, 0, sP0)
    P(f"""
    s_cmp_eq_u32 s{sWN}, 1
    s_cbranch_scc1 {L('hi')}
    """)
    for tt in range(2):
        lo_store(tt, 1, sP1)
    P(f"s_branch {L('end')}")
    P.L(L("hi"))
    big = 0x7ff00000
    for part in range(2):
        pb, adr, scl = vT[1], vT[2], vT[3]
        if part == 0:
            P(f"""
            v_lshrrev_b32 v{pb}, 5, v{vLane}
            v_add_u32 v{pb}, s{sPB}, v{pb}
            """)
        else:
            P(f"""
            s_add_u32 s{sT}, s{sPB}, 2
            v_mov_b32 v{pb}, s{sT}
            """)
        P(f"""
        v_and_b32 v{adr}, 15, v{pb}
        v_lshlrev_b32 v{adr}, 14, v{adr}
        v_and_b32 v{vT[4]}, 31, v{vLane}
        v_lshlrev_b32 v{vT[4]}, 2, v{vT[4]}
        v_add_u32 v{adr}, v{adr}, v{vT[4]}
        s_lshl_b32 s{sT2}, s{sTB}, 9
        s_lshl_b32 s{sT3}, s{sWM}, 8
        s_add_u32 s{sT2}, s{sT2}, s{sT3}
        v_add_u32 v{adr}, s{sT2}, v{adr}
        v_cmp_gt_u32 vcc, 16, v{pb}
        v_mov_b32 v{vT[4]}, {WS_KHI}
        v_mov_b32 v{vT[5]}, {WS_QHI}
        v_cndmask_b32 v{vT[4]}, v{vT[4]}, v{vT[5]}, vcc
        v_add_u32 v{adr}, v{adr}, v{vT[4]}
        v_mov_b32 v{vT[4]}, 1.0
        v_mov_b32 v{vT[5]}, {f32(QSCALE)}
        v_cndmask_b32 v{scl}, v{vT[4]}, v{vT[5]}, vcc
        v_cmp_le_u32 vcc, 32, v{pb}
        v_mov_b32 v{vT[4]}, {big}
        v_cndmask_b32 v{adr}, v{adr}, v{vT[4]}, vcc
        """)
        if part == 1:
            P(f"""
            v_cmp_le_u32 vcc, 32, v{vLane}
            v_cndmask_b32 v{adr}, v{adr}, v{vT[4]}, vcc
            """)
        for tt in range(2):
            A = ACC[tt][1] + 4 * part
            for r in range(4):
                P(f"v_mul_f32 v{A + r}, v{scl}, v{A + r}")
            P(f"""
            v_cvt_pk_bf16_f32 v{PK + 2 * tt}, v{A}, v{A+1}
            v_cvt_pk_bf16_f32 v{PK + 2 * tt + 1}, v{A+2}, v{A+3}
            v_add_u32 v{vT[4]}, 8192, v{adr}
            buffer_store_dword v{PK + 2 * tt}, v{adr}, {ws}, 0 offen offset:{128 * tt}
            buffer_store_dword v{PK + 2 * tt + 1}, v{vT[4]}, {ws}, 0 offen offset:{128 * tt}
            """)
    P(f"s_branch {L('end')}")

    P.L(L("vmain"))
    mainloop(True)
    common.mark(P, 1)
    for ft in range(2):
        f_, hd, dm, adr = vT[0], vT[1], vT[2], vT[3]
        P(f"""
        s_lshl_b32 s{sT}, s{sWN}, 1
        s_add_u32 s{sT}, s{sT}, s{sPB}
        s_add_u32 s{sT}, s{sT}, {ft}
        s_lshl_b32 s{sT}, s{sT}, 5
        v_and_b32 v{f_}, 31, v{vLane}
        v_add_u32 v{f_}, s{sT}, v{f_}
        v_mul_u32_u24 v{hd}, 3641, v{f_}
        v_lshrrev_b32 v{hd}, 16, v{hd}
        v_mul_u32_u24 v{dm}, 18, v{hd}
        v_sub_u32 v{dm}, v{f_}, v{dm}
        v_lshrrev_b32 v{vT[4]}, 5, v{vLane}
        v_mul_u32_u24 v{vT[4]}, 19, v{vT[4]}
        v_add_u32 v{vT[4]}, v{vT[4]}, v{dm}
        v_lshlrev_b32 v{vT[4]}, 4, v{vT[4]}
        s_mov_b32 s{sT2}, {VT_HEAD}
        v_mul_lo_u32 v{adr}, v{hd}, s{sT2}
        v_add_u32 v{adr}, v{adr}, v{vT[4]}
        s_lshl_b32 s{sT2}, s{sTB}, 3
        s_lshl_b32 s{sT3}, s{sWM}, 2
        s_add_u32 s{sT2}, s{sT2}, s{sT3}
        s_mul_i32 s{sT2}, s{sT2}, 608
        s_add_u32 s{sT2}, s{sT2}, {WS_VT}
        v_cmp_eq_u32 s[40:41], 17, v{dm}
        v_mov_b32 v{PK+8}, 0x3f803f80
        v_mov_b32 v{PK+9}, 0x3f803f80
        v_mov_b32 v{PK+10}, 0x3f803f80
        v_mov_b32 v{PK+11}, 0x3f803f80
        """)
        for tt in range(2):
            A = ACC[tt][ft]
            for k in range(8):
                P(f"v_cvt_pk_bf16_f32 v{PK + k}, v{A + 2 * k}, v{A + 2 * k + 1}")
            for sg in range(2):
                off = (2 * tt + sg) * 608
                P(f"buffer_store_dwordx4 {vr(PK + 4 * sg, 4)}, v{adr}, {ws}, s{sT2} offen offset:{off}")
        P(f"s_and_saveexec_b64 s[42:43], s[40:41]")
        sk = P.newlabel(pfx + "_noones")
        P(f"s_cbranch_execz {sk}")
        for g4 in range(4):
            P(f"buffer_store_dwordx4 {vr(PK + 8, 4)}, v{adr}, {ws}, s{sT2} offen offset:{g4 * 608 + 16}")
        P.L(sk)
        P("s_mov_b64 exec, s[42:43]")

    P.L(L("end"))
    P(end)
    return V.hi
```

```python
from asmgen import *
from layout import *
import struct


def f32(x):
    return "0x%08x" % struct.unpack("<I", struct.pack("<f", x))[0]


def srd_from_kernarg(P, s, ka, nbytes):
    P(f"""
    s_load_dwordx2 s[{s}:{s+1}], s[0:1], {ka}
    s_mov_b32 s{s+2}, {nbytes}
    s_mov_b32 s{s+3}, 0x00020000
    """)


def emit_lambda(P, lre, lim, ldt, t, lr, li, coef=None):
    P(f"""
    v_lshlrev_b32 v{lre}, 16, v{lre}
    v_lshlrev_b32 v{lim}, 16, v{lim}
    v_lshlrev_b32 v{ldt}, 16, v{ldt}
    v_mul_f32 v{ldt}, {f32(LOG2E)}, v{ldt}
    v_exp_f32 v{ldt}, v{ldt}
    v_cvt_pk_bf16_f32 v{ldt}, v{ldt}, v{ldt}
    v_lshlrev_b32 v{ldt}, 16, v{ldt}
    v_mul_f32 v{t}, v{ldt}, v{lre}
    v_mul_f32 v{t+1}, v{ldt}, v{lim}
    v_mul_f32 v{t}, {f32(LOG2E)}, v{t}
    v_mul_f32 v{t+1}, 0.15915494, v{t+1}
    v_exp_f32 v{t}, v{t}
    v_cos_f32 v{t+2}, v{t+1}
    v_sin_f32 v{t+3}, v{t+1}
    v_mul_f32 v{lr}, v{t}, v{t+2}
    v_mul_f32 v{li}, v{t}, v{t+3}
    """)
    if coef:
        kr, ki = coef
        P(f"""
        v_add_f32 v{t}, -1.0, v{lr}
        v_mul_f32 v{t+1}, v{lre}, v{lre}
        v_fmac_f32 v{t+1}, v{lim}, v{lim}
        v_rcp_f32 v{t+1}, v{t+1}
        v_mul_f32 v{kr}, v{t}, v{lre}
        v_fmac_f32 v{kr}, v{li}, v{lim}
        v_mul_f32 v{ki}, v{li}, v{lre}
        v_mul_f32 v{t+2}, v{t}, v{lim}
        v_sub_f32 v{ki}, v{ki}, v{t+2}
        v_mul_f32 v{kr}, v{kr}, v{t+1}
        v_mul_f32 v{ki}, v{ki}, v{t+1}
        """)


class Prep:
    def __init__(self, P, V, s0, sAX, vLane, pfx="prep"):
        self.P, self.pfx, self.sAX, self.vLane = P, pfx, sAX, vLane
        S = Regs("s", s0, 84)
        self.sT = S.alloc(); self.sT2 = S.alloc(); self.sT3 = S.alloc()
        self.ptr = S.alloc(16, 4)
        self.pWo = S.alloc(2)
        self.sW = S.alloc()
        self.sSel = S.alloc(4); self.sSel2 = S.alloc(4)
        self.sF = [S.alloc() for _ in range(7)]
        self.sOn = S.alloc()
        self.X = [V.alloc(4) for _ in range(3)]
        self.B = [V.alloc(4) for _ in range(2)]
        self.Cr = V.alloc(4); self.Ci = V.alloc(4)
        self.W = V.alloc(8, 4)
        self.L = [V.alloc() for _ in range(3)]
        self.vL16 = V.alloc(); self.vXl = V.alloc(); self.vBl = V.alloc(); self.vWl = V.alloc()
        self.T = V.alloc(24, 4)

    def srds(self):
        P = self.P
        P(f"""
        s_load_dwordx16 s[{self.ptr}:{self.ptr+15}], s[0:1], {KA_LRE}
        s_load_dwordx2 s[{self.pWo}:{self.pWo+1}], s[0:1], {KA_WO}
        """)

    def use(self, srd, p, nbytes, on=None):
        self.P(f"""
        s_mov_b32 s{srd}, s{p}
        s_mov_b32 s{srd+1}, s{p+1}
        s_mov_b32 s{srd+3}, 0x00020000
        """)
        if on is None:
            self.P(f"s_mov_b32 s{srd+2}, {nbytes}")
        else:
            self.P(f"s_and_b32 s{srd+2}, s{on}, {nbytes}")

    NLOADS = 18

    def _br(self, cond_text, label):
        self.P(cond_text)
        self.P(f"s_cbranch_scc0 {label}")

    def loads(self, sWG, sWv):
        P, s = self.P, self
        ln = s.vLane
        T = s.T
        r4 = lambda n: f"s[{n}:{n+3}]"
        P(f"""
        s_lshl_b32 s{s.sW}, s{sWG}, 2
        s_add_u32 s{s.sW}, s{s.sW}, s{sWv}
        v_lshlrev_b32 v{s.vL16}, 4, v{ln}
        v_lshrrev_b32 v{T}, 5, v{ln}
        v_lshlrev_b32 v{T+1}, 4, v{T}
        v_and_b32 v{T+2}, 31, v{ln}
        s_movk_i32 s{s.sT}, 1152
        v_mul_lo_u32 v{s.vBl}, v{T+2}, s{s.sT}
        v_add_u32 v{s.vBl}, v{s.vBl}, v{T+1}
        v_lshrrev_b32 v{T+3}, 2, v{ln}
        v_and_b32 v{T+3}, 1, v{T+3}
        v_lshlrev_b32 v{T+3}, 5, v{T+3}
        v_lshrrev_b32 v{T+4}, 3, v{T+2}
        v_lshlrev_b32 v{T+4}, 2, v{T+4}
        v_add_u32 v{T+3}, v{T+3}, v{T+4}
        v_and_b32 v{T+4}, 3, v{ln}
        v_add_u32 v{T+3}, v{T+3}, v{T+4}
        v_mul_lo_u32 v{s.vXl}, v{T+3}, s{s.sT}
        v_add_u32 v{s.vXl}, v{s.vXl}, v{T+1}
        s_waitcnt lgkmcnt(0)
        """)

        def xload(k, add, srd=None):
            f = s.sF[k]
            srd = s.sAX if srd is None else srd
            P(f"""
            s_add_u32 s{f}, s{s.sW}, {add}
            s_mul_i32 s{s.sT}, s{f}, 1821
            s_lshr_b32 s{s.sT}, s{s.sT}, 16
            s_mul_i32 s{s.sT2}, s{s.sT}, 36
            s_sub_u32 s{s.sT2}, s{f}, s{s.sT2}
            s_lshl_b32 s{s.sT2}, s{s.sT2}, 5
            s_lshr_b32 s{s.sT3}, s{s.sT}, 1
            s_mul_i32 s{s.sT3}, s{s.sT3}, {64 * 1152}
            s_add_u32 s{s.sT2}, s{s.sT2}, s{s.sT3}
            s_and_b32 s{s.sT}, s{s.sT}, 1
            s_mul_i32 s{s.sT}, s{s.sT}, {16 * 1152}
            s_add_u32 s{s.sT}, s{s.sT}, s{s.sT2}
            """)
            if srd != s.sAX:
                P(f"s_and_b32 s{s.sT}, s{s.sT}, s{s.sOn}")
            P(f"buffer_load_dwordx4 {vr(s.X[k],4)}, v{s.vXl}, {r4(srd)}, s{s.sT} offen")

        def bload(k, masked):
            f = s.sF[3 + k]
            P(f"""
            s_mul_i32 s{s.sT}, s{f}, 1821
            s_lshr_b32 s{s.sT}, s{s.sT}, 16
            s_mul_i32 s{s.sT2}, s{s.sT}, 36
            s_sub_u32 s{s.sT2}, s{f}, s{s.sT2}
            s_lshl_b32 s{s.sT2}, s{s.sT2}, 5
            s_lshr_b32 s{s.sT3}, s{s.sT}, 1
            s_mul_i32 s{s.sT3}, s{s.sT3}, {32 * 1152}
            s_add_u32 s{s.sT2}, s{s.sT2}, s{s.sT3}
            s_bitcmp1_b32 s{s.sT}, 0
            s_cselect_b32 s{s.sSel}, s{s.ptr+6}, s{s.ptr+4}
            s_cselect_b32 s{s.sSel+1}, s{s.ptr+7}, s{s.ptr+5}
            s_mov_b32 s{s.sSel+2}, {576 * 1152}
            s_mov_b32 s{s.sSel+3}, 0x00020000
            """)
            if masked:
                P(f"""
                s_and_b32 s{s.sSel+2}, s{s.sSel+2}, s{s.sOn}
                s_and_b32 s{s.sT2}, s{s.sT2}, s{s.sOn}
                """)
            P(f"buffer_load_dwordx4 {vr(s.B[k],4)}, v{s.vBl}, {r4(s.sSel)}, s{s.sT2} offen")

        def active(cond):
            P(cond)
            P(f"s_cselect_b32 s{s.sOn}, -1, 0")

        xload(0, 0)
        xload(1, 1024)
        active(f"s_cmp_lt_u32 s{s.sW}, 256")
        s.use(s.sSel2, s.sAX, 2048 * 1152, s.sOn)
        xload(2, 2048, s.sSel2)
        P(f"s_mov_b32 s{s.sF[3]}, s{s.sW}")
        bload(0, False)
        P(f"""
        s_sub_u32 s{s.sT}, s{s.sW}, 256
        s_add_u32 s{s.sF[4]}, s{s.sT}, 1024
        """)
        active(f"s_cmp_lt_u32 s{s.sT}, 272")
        bload(1, True)
        P(f"s_sub_u32 s{s.sF[5]}, s{s.sW}, 376")
        active(f"s_cmp_lt_u32 s{s.sF[5]}, 648")
        P(f"""
        s_mul_i32 s{s.sT}, s{s.sF[5]}, 1821
        s_lshr_b32 s{s.sT}, s{s.sT}, 16
        s_mul_i32 s{s.sT2}, s{s.sT}, 36
        s_sub_u32 s{s.sT2}, s{s.sF[5]}, s{s.sT2}
        s_mul_i32 s{s.sF[6]}, s{s.sT}, 72
        s_add_u32 s{s.sF[6]}, s{s.sF[6]}, s{s.sT2}
        s_lshl_b32 s{s.sT2}, s{s.sT2}, 5
        s_mul_i32 s{s.sT3}, s{s.sT}, {32 * 1152}
        s_add_u32 s{s.sT3}, s{s.sT3}, s{s.sT2}
        s_and_b32 s{s.sT3}, s{s.sT3}, s{s.sOn}
        s_and_b32 s{s.sT2}, s{s.sT2}, s{s.sOn}
        """)
        self.use(s.sSel, s.ptr + 8, 576 * 1152, s.sOn)
        self.use(s.sSel2, s.ptr + 10, 576 * 1152, s.sOn)
        P(f"""
        buffer_load_dwordx4 {vr(s.Cr,4)}, v{s.vBl}, {r4(s.sSel)}, s{s.sT3} offen
        buffer_load_dwordx4 {vr(s.Ci,4)}, v{s.vBl}, {r4(s.sSel2)}, s{s.sT3} offen
        v_lshrrev_b32 v{T}, 5, v{ln}
        v_lshlrev_b32 v{T}, 3, v{T}
        v_and_b32 v{T+1}, 7, v{ln}
        v_add_u32 v{T}, v{T}, v{T+1}
        v_lshlrev_b32 v{T}, 1, v{T}
        """)
        for k, pidx in enumerate((0, 2, 12)):
            srd = (s.sSel, s.sSel2)[k & 1]
            self.use(srd, s.ptr + pidx, 1152, s.sOn)
            P(f"buffer_load_ushort v{s.L[k]}, v{T}, {r4(srd)}, s{s.sT2} offen")
        l4 = P.newlabel(s.pfx + "_w")
        active(f"s_cmp_lt_u32 s{s.sW}, 648")
        P(f"""
        s_mul_i32 s{s.sT}, s{s.sW}, 1821
        s_lshr_b32 s{s.sT}, s{s.sT}, 16
        s_mul_i32 s{s.sT2}, s{s.sT}, 36
        s_sub_u32 s{s.sT2}, s{s.sW}, s{s.sT2}
        v_and_b32 v{T}, 31, v{ln}
        v_lshlrev_b32 v{T}, 1, v{T}
        s_lshl_b32 s{s.sT}, s{s.sT}, 6
        v_add_u32 v{T}, s{s.sT}, v{T}
        v_lshrrev_b32 v{T+1}, 5, v{ln}
        s_mov_b32 s{s.sT3}, {72 * 1152}
        s_cmp_lt_u32 s{s.sT2}, 32
        s_cselect_b32 s{s.sT3}, {4 * 1152}, s{s.sT3}
        v_mul_lo_u32 v{T+1}, v{T+1}, s{s.sT3}
        v_add_u32 v{s.vWl}, v{T}, v{T+1}
        s_mul_i32 s{s.sT}, s{s.sT2}, {18 * 1152}
        s_sub_u32 s{s.sT3}, s{s.sT2}, 32
        s_mul_i32 s{s.sT3}, s{s.sT3}, {144 * 1152}
        s_add_u32 s{s.sT3}, s{s.sT3}, {16 * 1152}
        s_cmp_lt_u32 s{s.sT2}, 32
        s_cselect_b32 s{s.sT}, s{s.sT}, s{s.sT3}
        """)
        self.use(s.sSel, s.pWo, 576 * 1152, s.sOn)
        lhi = P.newlabel(s.pfx + "_whi")
        P(f"s_cmp_lt_u32 s{s.sT2}, 32")
        P(f"s_cbranch_scc0 {lhi}")
        for e in range(8):
            off = (e if e < 4 else e + 4) * 1152
            P(f"s_add_u32 s{s.sT3}, s{s.sT}, {off}")
            P(f"buffer_load_ushort v{s.W+e}, v{s.vWl}, {r4(s.sSel)}, s{s.sT3} offen")
        P(f"s_branch {l4}")
        P.L(lhi)
        for e in range(8):
            off = (18 * (e >> 1) + (e & 1)) * 1152
            P(f"s_add_u32 s{s.sT3}, s{s.sT}, {off}")
            P(f"buffer_load_ushort v{s.W+e}, v{s.vWl}, {r4(s.sSel)}, s{s.sT3} offen")
        P.L(l4)

    def finish(self):
        P, s = self.P, self
        ln = s.vLane
        T = s.T
        ws = "s[4:7]"

        def store(regs, f, base):
            P(f"""
            s_lshl_b32 s{s.sT}, s{f}, 10
            s_add_u32 s{s.sT}, s{s.sT}, {base}
            buffer_store_dwordx4 {vr(regs,4)}, v{s.vL16}, {ws}, s{s.sT} offen
            """)

        store(s.X[0], s.sF[0], WS_XF)
        store(s.X[1], s.sF[1], WS_XF)
        l1 = P.newlabel(s.pfx + "_sx2")
        self._br(f"s_cmp_lt_u32 s{s.sW}, 256", l1)
        store(s.X[2], s.sF[2], WS_XF)
        P.L(l1)
        store(s.B[0], s.sF[3], WS_BF)
        l2 = P.newlabel(s.pfx + "_sb1")
        self._br(f"s_cmp_lt_u32 s{s.sF[4]}, 1296", l2)
        P(f"s_cmp_ge_u32 s{s.sF[4]}, 1024")
        P(f"s_cbranch_scc0 {l2}")
        store(s.B[1], s.sF[4], WS_BF)
        P.L(l2)
        l5 = P.newlabel(s.pfx + "_clr")
        self._br(f"s_cmp_lt_u32 s{s.sW}, 146", l5)
        P(f"""
        v_mov_b32 v{T}, 0
        v_mov_b32 v{T+1}, 0
        v_mov_b32 v{T+2}, 0
        v_mov_b32 v{T+3}, 0
        s_lshl_b32 s{s.sT}, s{s.sW}, 10
        s_add_u32 s{s.sT2}, s{s.sT}, {WS_E}
        s_add_u32 s{s.sT}, s{s.sT}, {WS_FLG - 144 * 1024}
        s_cmp_lt_u32 s{s.sW}, 144
        s_cselect_b32 s{s.sT}, s{s.sT2}, s{s.sT}
        buffer_store_dwordx4 {vr(T,4)}, v{s.vL16}, {ws}, s{s.sT} offen
        """)
        P.L(l5)
        l4 = P.newlabel(s.pfx + "_sw")
        self._br(f"s_cmp_lt_u32 s{s.sW}, 648", l4)
        for k in range(4):
            P(f"v_lshl_or_b32 v{T+k}, v{s.W+2*k+1}, 16, v{s.W+2*k}")
        store(T, s.sW, WS_WF)
        P.L(l4)
        l3 = P.newlabel(s.pfx + "_sc")
        self._br(f"s_cmp_lt_u32 s{s.sF[5]}, 648", l3)
        lr, li, kr, ki, t4 = T + 4, T + 5, T + 6, T + 7, T + 8
        emit_lambda(P, s.L[0], s.L[1], s.L[2], t4, lr, li, coef=(kr, ki))
        P(f"""
        v_add_f32 v{kr}, v{kr}, v{kr}
        v_add_f32 v{ki}, v{ki}, v{ki}
        """)
        R, I = T + 8, T + 16
        a, b = T + 4, T + 5
        for e in range(8):
            src_r, src_i = s.Cr + (e >> 1), s.Ci + (e >> 1)
            if e & 1:
                P(f"v_and_b32 v{a}, 0xffff0000, v{src_r}")
                P(f"v_and_b32 v{b}, 0xffff0000, v{src_i}")
            else:
                P(f"v_lshlrev_b32 v{a}, 16, v{src_r}")
                P(f"v_lshlrev_b32 v{b}, 16, v{src_i}")
            dpp = f"row_newbcast:{e} row_mask:0xf bank_mask:0xf"
            P(f"""
            v_mul_f32_dpp v{I+e}, v{ki}, v{b} {dpp}
            v_mul_f32_dpp v{R+e}, v{kr}, v{a} {dpp}
            v_sub_f32 v{R+e}, v{R+e}, v{I+e}
            v_mul_f32_dpp v{I+e}, v{ki}, v{a} {dpp}
            v_fmac_f32_dpp v{I+e}, v{kr}, v{b} {dpp}
            """)
        for k in range(4):
            P(f"v_cvt_pk_bf16_f32 v{s.Cr+k}, v{R+2*k}, v{R+2*k+1}")
            P(f"v_cvt_pk_bf16_f32 v{s.Ci+k}, -v{I+2*k}, -v{I+2*k+1}")
        store(s.Cr, s.sF[6], WS_CF)
        P(f"s_add_u32 s{s.sF[6]}, s{s.sF[6]}, 36")
        store(s.Ci, s.sF[6], WS_CF)
        P.L(l3)
```

```python
from asmgen import *
from layout import *
from prepk import emit_lambda, srd_from_kernarg, f32
import common

SLOT = 16384
SVC_LDS = 81920
ELOC = 78 * 1024
HDEPTH = 16
ODEPTH = 12


def emit_service(P, sIdx, pfx="svc", end="s_endpgm", exp=()):
    L = lambda n: f"{pfx}_{n}"
    ws = "s[4:7]"
    prio = {"b": 3, "c": 3, "0": 3, "l": 3}
    for e in exp:
        if e.startswith("pb="): prio["b"] = int(e[3:])
        if e.startswith("pc="): prio["c"] = int(e[3:])
        if e.startswith("p0="): prio["0"] = int(e[3:])
        if e.startswith("pl="): prio["l"] = int(e[3:])
    sTB, sSB, sW, sWM, sWN, sM, sXo, sBo, sCo, sHo = 8, 9, 10, 11, 12, 13, 14, 15, 16, 17
    sT, sT2, sT3, sTag, sKH, sMT, sTile = 18, 19, 20, 21, 22, 23, 24
    sOk, sBad = 26, 28
    sE, sAX, sOut, sP = 32, 36, 40, 44
    vLane, vL16 = 0, 1
    hi = [2]

    def use(*regs):
        hi[0] = max(hi[0], max(regs) + 1)

    srd_from_kernarg(P, sAX, KA_AX, 2048 * 1152)
    srd_from_kernarg(P, sOut, KA_OUT, 2048 * 2304)
    P(f"""
    v_lshrrev_b32 v2, 6, v0
    v_and_b32 v{vLane}, 63, v0
    v_readfirstlane_b32 s{sW}, v2
    v_lshlrev_b32 v{vL16}, 4, v{vLane}
    s_and_b32 s{sTB}, s{sIdx}, 7
    s_lshl_b32 s{sTB}, s{sTB}, 1
    s_lshr_b32 s{sT}, s{sIdx}, 3
    s_and_b32 s{sT}, s{sT}, 1
    s_add_u32 s{sTB}, s{sTB}, s{sT}
    s_lshr_b32 s{sSB}, s{sIdx}, 4
    s_mov_b32 s{sTag}, {TAG}
    s_add_u32 s{sE}, s4, {WS_E}
    s_addc_u32 s{sE+1}, s5, 0
    s_mov_b32 s{sE+2}, {E_BYTES}
    s_mov_b32 s{sE+3}, 0x00020000
    s_and_b32 s{sMT}, s{sW}, 3
    s_lshr_b32 s{sKH}, s{sW}, 2
    s_lshl_b32 s{sTile}, s{sTB}, 2
    s_add_u32 s{sTile}, s{sTile}, s{sMT}
    s_setprio {prio['0']}
    s_cmp_eq_u32 s{sKH}, 0
    s_cbranch_scc0 {L('loader')}
    """)

    def cf_dma(c):
        slot = (c + 2) % 5
        P(f"""
        s_add_u32 m0, s{sM}, {slot * SLOT}
        s_nop 0
        buffer_load_dwordx4 v{vL16}, {ws}, s{sCo} offen lds
        buffer_load_dwordx4 v{vL16}, {ws}, s{sCo} offen offset:1024 lds
        buffer_load_dwordx4 v{vL16}, {ws}, s{sCo} offen offset:2048 lds
        buffer_load_dwordx4 v{vL16}, {ws}, s{sCo} offen offset:3072 lds
        s_add_u32 s{sCo}, s{sCo}, 4096
        """)

    def out_phases(loader):
        tag = "h" if loader else "l"
        ACC = [2, 18]
        HF = [34 + 4 * i for i in range(HDEPTH)]
        BF = [[98, 102], [106, 110]]
        vC0, vC1 = 114, 115
        use(115)
        P(f"""
        s_mul_i32 s{sHo}, s{sTile}, {72 * 1024}
        s_mul_i32 s{sT}, s{sKH}, {36 * 1024}
        s_add_u32 s{sHo}, s{sHo}, s{sT}
        s_add_u32 s{sHo}, s{sHo}, {WS_HF}
        s_lshl_b32 s{sT}, s{sKH}, 13
        v_add_u32 v{vC0}, s{sT}, v{vL16}
        v_add_u32 v{vC1}, 0x10000, v{vC0}
        s_barrier
        """)
        common.mark(P, 1)
        vm = []

        def hload(n):
            if n % 4 == 0 and n > 0:
                P(f"s_add_u32 s{sHo}, s{sHo}, 4096")
            P(f"buffer_load_dwordx4 {vr(HF[n % HDEPTH],4)}, v{vL16}, {ws}, s{sHo} offen offset:{(n % 4) * 1024} sc1")
            vm.append(("h", n))

        if loader:
            for c in (2, 3, 4):
                vm.extend([("c", c)] * 4)
            vm.clear()
        for n in range(HDEPTH):
            hload(n)
        P(f"s_setprio {prio['c']}")

        def creads(n):
            c, ks = divmod(n, 4)
            slot = (c + 2) % 5
            base, off = (vC1, 0) if slot == 4 else (vC0, slot * SLOT)
            return [f"ds_read_b128 {vr(BF[n & 1][ct],4)}, v{base} offset:{off + ct * 4096 + ks * 1024}" for ct in range(2)]

        for c in range(9):
            if loader and c >= 5:
                idx = max(i for i, e in enumerate(vm) if e == ("c", c))
                P(f"s_waitcnt vmcnt({len(vm) - 1 - idx})")
            P("s_barrier")
            if loader and 1 <= c <= 4:
                cf_dma(c + 4)
                vm.extend([("c", c + 4)] * 4)
            for r in creads(4 * c):
                P(r)
            for ks in range(4):
                n = 4 * c + ks
                if ks < 3:
                    for r in creads(n + 1):
                        P(r)
                for ct in range(2):
                    cop = "0" if n == 0 else vr(ACC[ct], 16)
                    P(f"v_mfma_f32_32x32x16_bf16 {vr(ACC[ct],16)}, {vr(HF[n % HDEPTH],4)}, {vr(BF[n & 1][ct],4)}, {cop}")
                if n + HDEPTH < 36:
                    hload(n + HDEPTH)
            P("s_waitcnt lgkmcnt(0)")
        P("s_setprio 3")
        common.mark(P, 2)
        keep, send = (ACC[1], ACC[0]) if loader else (ACC[0], ACC[1])
        vX, vY = 114, 115
        G = 34
        XD = 50
        vDs, vA = 66, 67
        P(f"""
        s_lshl_b32 s{sT}, s{sW}, 12
        v_add_u32 v{vX}, s{sT}, v{vL16}
        s_xor_b32 s{sT}, s{sW}, 4
        s_lshl_b32 s{sT}, s{sT}, 12
        v_add_u32 v{vY}, s{sT}, v{vL16}
        s_barrier
        """)
        for q in range(4):
            P(f"ds_write_b128 v{vX}, {vr(send + 4 * q, 4)} offset:{q * 1024}")
        P(f"""
        v_lshrrev_b32 v{vA}, 5, v{vLane}
        v_lshlrev_b32 v{vA}, 4, v{vA}
        s_lshl_b32 s{sT}, s{sTile}, 7
        s_add_u32 s{sT}, s{sT}, {WS_G}
        """)
        for q in range(4):
            P(f"buffer_load_dwordx4 {vr(G + 4 * q, 4)}, v{vA}, {ws}, s{sT} offen offset:{q * 32}")
        P(f"""
        v_and_b32 v{vDs}, 31, v{vLane}
        v_lshlrev_b32 v{vDs}, 1, v{vDs}
        s_lshl_b32 s{sT}, s{sSB}, 7
        s_lshl_b32 s{sT2}, s{sKH}, 6
        s_add_u32 s{sT}, s{sT}, s{sT2}
        v_add_u32 v{vDs}, s{sT}, v{vDs}
        v_lshrrev_b32 v{vA}, 5, v{vLane}
        v_mul_u32_u24 v{vA}, {4 * 1152}, v{vA}
        v_add_u32 v{vA}, v{vA}, v{vDs}
        s_mul_i32 s{sT}, s{sTile}, {32 * 1152}
        """)
        for q in range(4):
            for c in range(4):
                P(f"buffer_load_ushort v{XD + 4 * q + c}, v{vA}, s[{sAX}:{sAX+3}], s{sT} offen offset:{c * 1152}")
            if q < 3:
                P(f"s_add_u32 s{sT}, s{sT}, {8 * 1152}")
        srd_from_kernarg(P, sP, KA_DSK, 1152)
        P(f"""
        s_waitcnt lgkmcnt(0)
        buffer_load_ushort v{vDs}, v{vDs}, s[{sP}:{sP+3}], 0 offen
        s_barrier
        """)
        RX = 68
        for q in range(4):
            P(f"ds_read_b128 {vr(RX + 4 * q, 4)}, v{vY} offset:{q * 1024}")
        P("s_waitcnt lgkmcnt(0)")
        P("s_barrier")
        common.mark(P, 9)
        P(f"""
        s_lshl_b32 s{sT}, s{sSB}, 1
        s_mul_i32 s{sT}, s{sT}, {36 * 1024}
        s_mul_i32 s{sT2}, s{sW}, {9 * 1024}
        s_add_u32 s{sT}, s{sT}, s{sT2}
        s_add_u32 s{sT}, s{sT}, {WS_WF}
        """)
        for k in range(9):
            if k % 4 == 0:
                P(f"s_add_u32 m0, s{sT2}, {k * 1024}")
                if k:
                    P(f"s_add_u32 s{sT}, s{sT}, 4096")
                P("s_nop 0")
            P(f"buffer_load_dwordx4 v{vL16}, {ws}, s{sT} offen offset:{(k % 4) * 1024} lds")
        YG = 2 if not loader else 18
        P(f"v_lshlrev_b32 v{vDs}, 16, v{vDs}")
        for r in range(16):
            P(f"""
            v_add_f32 v{keep + r}, v{keep + r}, v{RX + r}
            v_lshlrev_b32 v{XD + r}, 16, v{XD + r}
            v_fmac_f32 v{keep + r}, v{XD + r}, v{vDs}
            v_mul_f32 v{keep + r}, v{keep + r}, v{G + r}
            """)
        BA = [18, 34] if not loader else [34, 50]
        if loader:
            OFr = [66 + 4 * i for i in range(8)] + [2 + 4 * i for i in range(4)]
            WB = [[98, 102], [106, 110]]
        else:
            OFr = [50 + 4 * i for i in range(12)]
            WB = [[98, 102], [106, 110]]
        vW0 = 114
        P(f"""
        s_mul_i32 s{sT}, s{sKH}, {18 * 1024}
        v_add_u32 v{vW0}, s{sT}, v{vL16}
        s_mul_i32 s{sHo}, s{sTile}, {36 * 1024}
        s_add_u32 s{sHo}, s{sHo}, s{sT}
        s_add_u32 s{sHo}, s{sHo}, {WS_OF}
        """)
        if not loader:
            lp, dn = P.newlabel(pfx + "_apoll"), P.newlabel(pfx + "_adone")
            P(f"""
            s_cmp_eq_u32 s{sW}, 0
            s_cbranch_scc0 {dn}
            s_lshr_b32 s{sT}, s{sTB}, 1
            s_lshl_b32 s{sT}, s{sT}, 7
            s_add_u32 s{sT}, s{sT}, {WS_FLG + FLG_ATT}
            v_lshlrev_b32 v115, 2, v{vLane}
            s_mov_b32 exec_hi, 0
            """)
            P.L(lp)
            P(f"""
            buffer_load_dword v116, v115, {ws}, s{sT} offen sc1
            s_waitcnt vmcnt(0)
            v_cmp_ne_u32 vcc, 1, v116
            s_cbranch_vccz {dn}
            s_sleep 2
            s_branch {lp}
            """)
            P.L(dn)
            P("s_mov_b64 exec, -1")
            use(116)
        P("s_waitcnt vmcnt(0)")
        P("s_barrier")
        common.mark(P, 3)

        def oload(n):
            if n % 4 == 0 and n > 0:
                P(f"s_add_u32 s{sHo}, s{sHo}, 4096")
            P(f"buffer_load_dwordx4 {vr(OFr[n % ODEPTH],4)}, v{vL16}, {ws}, s{sHo} offen offset:{(n % 4) * 1024} sc1")

        for n in range(ODEPTH):
            oload(n)

        def wreads(n):
            return [f"ds_read_b128 {vr(WB[n & 1][ct],4)}, v{vW0} offset:{ct * 36 * 1024 + n * 1024}" for ct in range(2)]

        for r in wreads(0):
            P(r)
        for n in range(18):
            if n + 1 < 18:
                for r in wreads(n + 1):
                    P(r)
            for ct in range(2):
                cop = "0" if n == 0 else vr(BA[ct], 16)
                P(f"v_mfma_f32_32x32x16_bf16 {vr(BA[ct],16)}, {vr(OFr[n % ODEPTH],4)}, {vr(WB[n & 1][ct],4)}, {cop}")
            if n + ODEPTH < 18:
                oload(n + ODEPTH)
        common.mark(P, 10)
        G2 = 66 if loader else 50
        P(f"""
        v_lshrrev_b32 v{vA if False else 116}, 5, v{vLane}
        v_lshlrev_b32 v116, 4, v116
        s_lshl_b32 s{sT}, s{sTile}, 7
        s_add_u32 s{sT}, s{sT}, {WS_G}
        """)
        use(117)
        for q in range(4):
            P(f"buffer_load_dwordx4 {vr(G2 + 4 * q, 4)}, v116, {ws}, s{sT} offen offset:{q * 32}")
        bkeep, bsend = (BA[1], BA[0]) if loader else (BA[0], BA[1])
        P(f"""
        s_lshl_b32 s{sT}, s{sW}, 12
        v_add_u32 v{vX}, s{sT}, v{vL16}
        s_xor_b32 s{sT}, s{sW}, 4
        s_lshl_b32 s{sT}, s{sT}, 12
        v_add_u32 v{vY}, s{sT}, v{vL16}
        s_waitcnt lgkmcnt(0)
        s_barrier
        """)
        for q in range(4):
            P(f"ds_write_b128 v{vX}, {vr(bsend + 4 * q, 4)} offset:{q * 1024}")
        P(f"""
        v_and_b32 v116, 31, v{vLane}
        v_lshlrev_b32 v116, 2, v116
        v_lshrrev_b32 v117, 5, v{vLane}
        v_mul_u32_u24 v117, {4 * 2304}, v117
        v_add_u32 v116, v116, v117
        s_mul_i32 s{sT}, s{sTile}, {32 * 2304}
        s_lshl_b32 s{sT2}, s{sSB}, 8
        s_add_u32 s{sT}, s{sT}, s{sT2}
        s_lshl_b32 s{sT2}, s{sKH}, 7
        s_add_u32 s{sT}, s{sT}, s{sT2}
        s_waitcnt lgkmcnt(0)
        s_barrier
        """)
        RB = 82
        for q in range(4):
            P(f"ds_read_b128 {vr(RB + 4 * q, 4)}, v{vY} offset:{q * 1024}")
        for r in range(16):
            P(f"""
            v_add_f32 v{bkeep + r}, v{bkeep + r}, v{RB + r}
            v_sub_f32 v{G2 + r}, 1.0, v{G2 + r}
            v_fmac_f32 v{keep + r}, v{G2 + r}, v{bkeep + r}
            """)
        common.mark(P, 11)
        for q in range(4):
            for c in range(4):
                if c == 2:
                    P(f"s_add_u32 s{sT}, s{sT}, {2 * 2304}")
                P(f"buffer_store_dword v{keep + 4 * q + c}, v116, s[{sOut}:{sOut+3}], s{sT} offen offset:{(c & 1) * 2304}")
            if q < 3:
                P(f"s_add_u32 s{sT}, s{sT}, {6 * 2304}")
        P(end)

    ACC = [[2, 18], [34, 50]]
    XF = [[66, 70], [74, 78]]
    WF = [[82, 86], [90, 94]]
    vA0, vA1, vB0, vB1 = 98, 99, 100, 101
    lr, li, nli, mr, mi, br, bi = 102, 103, 104, 105, 106, 107, 108
    t = 110
    use(121)
    P(f"""
    s_and_b32 s{sWM}, s{sW}, 1
    s_lshr_b32 s{sWN}, s{sW}, 1
    s_lshl_b32 s{sT}, s{sSB}, 6
    s_lshl_b32 s{sT2}, s{sWN}, 5
    s_add_u32 s{sT}, s{sT}, s{sT2}
    v_and_b32 v{t+8}, 31, v{vLane}
    v_add_u32 v{t+8}, s{sT}, v{t+8}
    v_lshlrev_b32 v{t+9}, 1, v{t+8}
    """)
    for k, ka in enumerate((KA_LRE, KA_LIM, KA_LDT)):
        srd_from_kernarg(P, sP, ka, 1152)
        P(f"""
        s_waitcnt lgkmcnt(0)
        buffer_load_ushort v{t+4+k}, v{t+9}, s[{sP}:{sP+3}], 0 offen
        """)
    P(f"""
    s_lshl_b32 s{sT}, s{sWM}, 12
    v_add_u32 v{vA0}, s{sT}, v{vL16}
    v_add_u32 v{vA1}, 0x10000, v{vA0}
    s_lshl_b32 s{sT}, s{sWN}, 12
    s_add_u32 s{sT}, s{sT}, 8192
    v_add_u32 v{vB0}, s{sT}, v{vL16}
    v_add_u32 v{vB1}, 0x10000, v{vB0}
    """)
    emit_lambda(P, t + 4, t + 5, t + 6, t, lr, li)
    P(f"v_sub_f32 v{nli}, 0, v{li}")

    def csq(dr, di, sr_, si_):
        P(f"""
        v_mul_f32 v{t}, v{si_}, v{si_}
        v_add_f32 v{t+1}, v{sr_}, v{sr_}
        v_fma_f32 v{dr}, v{sr_}, v{sr_}, -v{t}
        v_mul_f32 v{di}, v{t+1}, v{si_}
        """)

    csq(mr, mi, lr, li)
    for _ in range(4):
        csq(mr, mi, mr, mi)
    csq(br, bi, mr, mi)
    csq(br, bi, br, bi)

    def reads(n):
        s_, ks = divmod(n, 2)
        slot = s_ % 5
        a, b, off = (vA1, vB1, 0) if slot == 4 else (vA0, vB0, slot * SLOT)
        bb = n & 1
        return [f"ds_read_b128 {vr(XF[bb][0],4)}, v{a} offset:{off + ks * 1024}",
                f"ds_read_b128 {vr(WF[bb][0],4)}, v{b} offset:{off + ks * 1024}",
                f"ds_read_b128 {vr(WF[bb][1],4)}, v{b} offset:{off + 2048 + ks * 1024}",
                f"ds_read_b128 {vr(XF[bb][1],4)}, v{a} offset:{off + 2048 + ks * 1024}"]

    P("s_barrier")
    common.mark(P, 0)
    P(f"s_setprio {prio['b']}")
    for r in reads(0):
        P(r)
    for n in range(36):
        bb = n & 1
        mf = []
        for mt in range(2):
            for cp in range(2):
                cop = "0" if n == 0 else vr(ACC[mt][cp], 16)
                mf.append(f"v_mfma_f32_32x32x16_bf16 {vr(ACC[mt][cp],16)}, {vr(XF[bb][mt],4)}, {vr(WF[bb][cp],4)}, {cop}")
        P("s_waitcnt lgkmcnt(0)")
        if bb == 1 and n + 1 < 36:
            P("s_barrier")
        rs = reads(n + 1) if n + 1 < 36 else []
        for k in range(4):
            P(mf[k])
            take = rs[:2] if k < 2 else []
            rs = rs[len(take):]
            for r in take:
                P(r)

    P("s_setprio 3")
    common.mark(P, 4)
    ea, eb = (t, t + 1), (t + 2, t + 3)
    U = lambda tau, cp: ACC[tau >> 4][cp] + (tau & 15)
    cur = (U(0, 0), U(0, 1))
    for tau in range(1, 32):
        nx = ea if tau & 1 else eb
        P(f"""
        v_fma_f32 v{nx[0]}, v{lr}, v{cur[0]}, v{U(tau,0)}
        v_fma_f32 v{nx[1]}, v{lr}, v{cur[1]}, v{U(tau,1)}
        v_fmac_f32 v{nx[0]}, v{nli}, v{cur[1]}
        v_fmac_f32 v{nx[1]}, v{li}, v{cur[0]}
        """)
        cur = nx
    assert cur == ea
    P(f"""
    v_lshrrev_b32 v{t+4}, 5, v{vLane}
    v_lshlrev_b32 v{t+4}, 9, v{t+4}
    v_and_b32 v{t+5}, 31, v{vLane}
    v_lshlrev_b32 v{t+5}, 3, v{t+5}
    s_lshl_b32 s{sT}, s{sWN}, 8
    s_add_u32 s{sT}, s{sT}, {ELOC}
    v_add_u32 v{t+5}, s{sT}, v{t+5}
    s_lshl_b32 s{sT}, s{sWM}, 10
    v_add_u32 v{t+4}, s{sT}, v{t+4}
    v_add_u32 v{t+4}, v{t+4}, v{t+5}
    ds_write_b64 v{t+4}, {vr(ea[0],2)}
    s_waitcnt lgkmcnt(0)
    s_barrier
    """)
    EL = [98, 100, 122, 124]
    for k in range(4):
        P(f"ds_read_b64 {vr(EL[k], 2)}, v{t+5} offset:{k * 512}")

    def cmuladd(dr, di, ar, ai, nai, xr, xi, yr, yi):
        P(f"""
        v_fma_f32 v{t+6}, v{ar}, v{xr}, v{yr}
        v_fma_f32 v{t+7}, v{ar}, v{xi}, v{yi}
        v_fma_f32 v{dr}, -v{ai}, v{xi}, v{t+6}
        v_fma_f32 v{di}, v{ai}, v{xr}, v{t+7}
        """) if (dr, di) != (xr, xi) else P(f"""
        v_fma_f32 v{t+6}, v{ar}, v{xr}, v{yr}
        v_fma_f32 v{t+7}, v{ar}, v{xi}, v{yi}
        v_fma_f32 v{t+7}, v{ai}, v{xr}, v{t+7}
        v_fma_f32 v{dr}, -v{ai}, v{xi}, v{t+6}
        v_mov_b32 v{di}, v{t+7}
        """)

    Eb = 66
    cmuladd(t, t + 1, mr, mi, None, EL[0], EL[0] + 1, EL[1], EL[1] + 1)
    cmuladd(t + 2, t + 3, mr, mi, None, t, t + 1, EL[2], EL[2] + 1)
    cmuladd(Eb, Eb + 2, mr, mi, None, t + 2, t + 3, EL[3], EL[3] + 1)
    nopub = P.newlabel(pfx + "_nopub")
    P(f"""
    v_mov_b32 v{Eb+1}, s{sTag}
    v_mov_b32 v{Eb+3}, s{sTag}
    s_mul_i32 s{sT}, s{sTB}, 576
    v_add_u32 v{t}, s{sT}, v{t+8}
    v_lshlrev_b32 v{t}, 4, v{t}
    s_cmp_eq_u32 s{sWM}, 0
    s_cbranch_scc0 {nopub}
    s_mov_b32 exec_hi, 0
    buffer_store_dwordx4 {vr(Eb,4)}, v{t}, s[{sE}:{sE+3}], 0 offen sc1
    s_mov_b32 exec_hi, -1
    """)
    P.L(nopub)
    EDr = [66 + 4 * i for i in range(8)]
    use(125)
    vN, vEo = t + 2, t + 3
    P(f"""
    v_lshrrev_b32 v{vN}, 5, v{vLane}
    v_lshlrev_b32 v{vN}, 3, v{vN}
    s_sub_i32 s{sT}, s{sTB}, 16
    v_add_u32 v{vN}, s{sT}, v{vN}
    s_movk_i32 s{sT}, 576
    v_mul_lo_u32 v{vEo}, v{vN}, s{sT}
    v_add_u32 v{vEo}, v{vEo}, v{t+8}
    v_lshlrev_b32 v{vEo}, 4, v{vEo}
    """)
    common.mark(P, 5)
    ep = P.newlabel(pfx + "_epoll")
    P.L(ep)
    for i in range(8):
        P(f"v_add_u32 v{t}, {i * 9216}, v{vEo}")
        P(f"buffer_load_dwordx4 {vr(EDr[i],4)}, v{t}, s[{sE}:{sE+3}], 0 offen sc1")
    P(f"s_mov_b64 s[{sBad}:{sBad+1}], 0")
    for i in range(8):
        P(f"""
        v_cmp_eq_u32 vcc, s{sTag}, v{EDr[i]+1}
        v_cmp_eq_u32 s[{sOk}:{sOk+1}], s{sTag}, v{EDr[i]+3}
        s_and_b64 s[{sOk}:{sOk+1}], s[{sOk}:{sOk+1}], vcc
        v_cmp_gt_i32 vcc, {-i}, v{vN}
        s_or_b64 s[{sOk}:{sOk+1}], s[{sOk}:{sOk+1}], vcc
        s_orn2_b64 s[{sBad}:{sBad+1}], s[{sBad}:{sBad+1}], s[{sOk}:{sOk+1}]
        """)
    edone = P.newlabel(pfx + "_edone")
    P(f"""
    s_cmp_eq_u64 s[{sBad}:{sBad+1}], 0
    s_cbranch_scc1 {edone}
    s_sleep 2
    s_branch {ep}
    """)
    P.L(edone)
    common.mark(P, 6)
    H = (t + 4, t + 5)
    cmuladd(H[0], H[1], br, bi, None, EDr[0], EDr[0] + 2, EDr[1], EDr[1] + 2)
    for i in range(2, 8):
        cmuladd(H[0], H[1], br, bi, None, H[0], H[1], EDr[i], EDr[i] + 2)
    for _ in range(3):
        csq(br, bi, br, bi)
    a0, a1, b0, b1 = 66, 67, 68, 69
    P(f"""
    v_mov_b32 v{a0}, v{H[0]}
    v_mov_b32 v{b0}, v{H[0]}
    v_mov_b32 v{a1}, v{H[1]}
    v_mov_b32 v{b1}, v{H[1]}
    v_permlane32_swap_b32 v{a0}, v{b0}
    v_permlane32_swap_b32 v{a1}, v{b1}
    """)
    C0, C1, C2, C3 = (82, 83), (84, 85), (86, 87), (88, 89)
    cmuladd(C0[0], C0[1], br, bi, None, a0, a1, b0, b1)
    cmuladd(C1[0], C1[1], mr, mi, None, C0[0], C0[1], EL[0], EL[0] + 1)
    w1, gsel = P.newlabel(pfx + "_wm1"), P.newlabel(pfx + "_gsel")
    g0 = (t, t + 1)
    P(f"""
    v_cmp_le_u32 vcc, 32, v{vLane}
    s_cmp_eq_u32 s{sWM}, 0
    s_cbranch_scc0 {w1}
    v_cndmask_b32 v{g0[0]}, v{C0[0]}, v{C1[0]}, vcc
    v_cndmask_b32 v{g0[1]}, v{C0[1]}, v{C1[1]}, vcc
    s_branch {gsel}
    """)
    P.L(w1)
    cmuladd(C2[0], C2[1], mr, mi, None, C1[0], C1[1], EL[1], EL[1] + 1)
    cmuladd(C3[0], C3[1], mr, mi, None, C2[0], C2[1], EL[2], EL[2] + 1)
    P(f"""
    v_cndmask_b32 v{g0[0]}, v{C2[0]}, v{C3[0]}, vcc
    v_cndmask_b32 v{g0[1]}, v{C2[1]}, v{C3[1]}, vcc
    """)
    P.L(gsel)
    cur = g0
    for tau in range(32):
        ur, ui = U(tau, 0), U(tau, 1)
        P(f"""
        v_fmac_f32 v{ur}, v{lr}, v{cur[0]}
        v_fmac_f32 v{ui}, v{lr}, v{cur[1]}
        v_fmac_f32 v{ur}, v{nli}, v{cur[1]}
        v_fmac_f32 v{ui}, v{li}, v{cur[0]}
        """)
        cur = (ur, ui)
    vTW, vTR, vX_ = t, t + 1, t + 2
    P(f"""
    v_and_b32 v{t+4}, 31, v{vLane}
    v_lshrrev_b32 v{t+5}, 1, v{t+4}
    v_and_b32 v{t+5}, 1, v{t+5}
    v_lshlrev_b32 v{t+5}, 2, v{t+5}
    v_lshrrev_b32 v{t+6}, 2, v{t+4}
    v_and_b32 v{t+6}, 1, v{t+6}
    v_lshlrev_b32 v{t+6}, 1, v{t+6}
    v_or_b32 v{t+5}, v{t+5}, v{t+6}
    v_and_b32 v{t+6}, 1, v{t+4}
    v_or_b32 v{t+5}, v{t+5}, v{t+6}
    v_lshrrev_b32 v{t+6}, 5, v{vLane}
    v_lshlrev_b32 v{t+6}, 2, v{t+6}
    v_xor_b32 v{t+5}, v{t+5}, v{t+6}
    v_lshlrev_b32 v{t+5}, 4, v{t+5}
    v_lshlrev_b32 v{t+4}, 7, v{t+4}
    v_add_u32 v{vTW}, v{t+4}, v{t+5}
    s_lshl_b32 s{sT}, s{sW}, 13
    v_add_u32 v{vTW}, s{sT}, v{vTW}
    """)
    PK = 66
    for cp in range(2):
        for k in range(16):
            P(f"v_cvt_pk_bf16_f32 v{PK + 16 * cp + k}, v{U(2 * k, cp)}, v{U(2 * k + 1, cp)}")
        for m in range(4):
            P(f"v_xor_b32 v{vX_}, {16 * m}, v{vTW}")
            P(f"ds_write_b128 v{vX_}, {vr(PK + 16 * cp + 4 * m, 4)} offset:{cp * 4096}")
    P(f"""
    v_lshrrev_b32 v{t+4}, 5, v{vLane}
    v_lshlrev_b32 v{t+4}, 3, v{t+4}
    v_lshrrev_b32 v{t+5}, 2, v{vLane}
    v_and_b32 v{t+5}, 3, v{t+5}
    v_add_u32 v{t+4}, v{t+4}, v{t+5}
    v_lshlrev_b32 v{t+4}, 7, v{t+4}
    v_lshrrev_b32 v{t+5}, 4, v{vLane}
    v_and_b32 v{t+5}, 1, v{t+5}
    v_lshlrev_b32 v{t+5}, 1, v{t+5}
    v_lshrrev_b32 v{t+6}, 1, v{vLane}
    v_and_b32 v{t+6}, 1, v{t+6}
    v_or_b32 v{t+5}, v{t+5}, v{t+6}
    v_lshrrev_b32 v{t+6}, 3, v{vLane}
    v_and_b32 v{t+6}, 1, v{t+6}
    v_lshlrev_b32 v{t+6}, 2, v{t+6}
    v_xor_b32 v{t+5}, v{t+5}, v{t+6}
    v_lshrrev_b32 v{t+6}, 2, v{vLane}
    v_and_b32 v{t+6}, 1, v{t+6}
    v_xor_b32 v{t+5}, v{t+5}, v{t+6}
    v_lshlrev_b32 v{t+5}, 4, v{t+5}
    v_and_b32 v{t+6}, 1, v{vLane}
    v_lshlrev_b32 v{t+6}, 3, v{t+6}
    v_add_u32 v{t+4}, v{t+4}, v{t+5}
    v_add_u32 v{t+4}, v{t+4}, v{t+6}
    v_add_u32 v{vTR}, s{sT}, v{t+4}
    s_lshl_b32 s{sT}, s{sTB}, 2
    s_lshl_b32 s{sT2}, s{sWM}, 1
    s_add_u32 s{sT}, s{sT}, s{sT2}
    s_mul_i32 s{sT}, s{sT}, 72
    s_lshl_b32 s{sT2}, s{sSB}, 2
    s_add_u32 s{sT}, s{sT}, s{sT2}
    s_lshl_b32 s{sT2}, s{sWN}, 1
    s_add_u32 s{sT}, s{sT}, s{sT2}
    s_lshl_b32 s{sT}, s{sT}, 10
    s_add_u32 s{sT}, s{sT}, {WS_HF}
    s_waitcnt lgkmcnt(0)
    """)
    TRA = [t + 4, t + 5, t + 6, t + 7]
    for tt2 in range(2):
        for rd in range(2):
            P(f"v_xor_b32 v{TRA[2 * tt2 + rd]}, {tt2 * 64 + rd * 32}, v{vTR}")
    FR = [2 + 4 * i for i in range(8)]
    k = 0
    for tt2 in range(2):
        for cp in range(2):
            for s16 in range(2):
                for rd in range(2):
                    P(f"ds_read_b64_tr_b16 {vr(FR[k] + 2 * rd, 2)}, v{TRA[2 * tt2 + rd]} offset:{cp * 4096 + s16 * 2048 + rd * 512}")
                k += 1
    k = 0
    for tt2 in range(2):
        for cp in range(2):
            P(f"s_add_u32 s{sT2}, s{sT}, {(tt2 * 72 + cp * 36) * 1024}")
            for s16 in range(2):
                P(f"buffer_store_dwordx4 {vr(FR[k],4)}, v{vL16}, {ws}, s{sT2} offen offset:{s16 * 1024} sc1")
                k += 1
    common.mark(P, 7)
    P("s_waitcnt vmcnt(0)")
    P("s_barrier")
    common.mark(P, 8)
    fl = P.newlabel(pfx + "_noflag")
    P(f"""
    s_cmp_eq_u32 s{sW}, 0
    s_cbranch_scc0 {fl}
    s_lshl_b32 s{sT}, s{sTB}, 6
    s_lshl_b32 s{sT2}, s{sSB}, 2
    s_add_u32 s{sT}, s{sT}, s{sT2}
    s_add_u32 s{sT}, s{sT}, {WS_FLG + FLG_HF}
    v_mov_b32 v2, 1
    v_mov_b32 v3, 0
    s_mov_b32 exec_hi, 0
    s_mov_b32 exec_lo, 1
    buffer_store_dword v2, v3, {ws}, s{sT} offen sc1
    s_mov_b64 exec, -1
    """)
    P.L(fl)
    out_phases(False)

    P.L(L("loader"))
    P(f"""
    s_lshl_b32 s{sT}, s{sTB}, 2
    s_add_u32 s{sT}, s{sT}, s{sMT}
    s_mul_i32 s{sXo}, s{sT}, {36 * 1024}
    s_add_u32 s{sXo}, s{sXo}, {WS_XF}
    s_lshl_b32 s{sT}, s{sSB}, 2
    s_add_u32 s{sT}, s{sT}, s{sMT}
    s_mul_i32 s{sBo}, s{sT}, {36 * 1024}
    s_add_u32 s{sBo}, s{sBo}, {WS_BF}
    s_lshl_b32 s{sM}, s{sMT}, 11
    """)

    def dmaA(s_):
        slot = s_ % 5
        P(f"""
        s_add_u32 m0, s{sM}, {slot * SLOT}
        s_nop 0
        buffer_load_dwordx4 v{vL16}, {ws}, s{sXo} offen lds
        buffer_load_dwordx4 v{vL16}, {ws}, s{sXo} offen offset:1024 lds
        s_add_u32 m0, s{sM}, {slot * SLOT + 8192}
        s_add_u32 s{sXo}, s{sXo}, 2048
        buffer_load_dwordx4 v{vL16}, {ws}, s{sBo} offen lds
        buffer_load_dwordx4 v{vL16}, {ws}, s{sBo} offen offset:1024 lds
        s_add_u32 s{sBo}, s{sBo}, 2048
        """)

    for s_ in range(5):
        dmaA(s_)
    P(f"s_setprio {prio['l']}")
    P("s_waitcnt vmcnt(16)")
    P("s_barrier")
    for s_ in range(17):
        left = (min(s_ + 4, 17) - (s_ + 1)) * 4
        P(f"s_waitcnt vmcnt({left})")
        P("s_barrier")
        if s_ + 5 < 18:
            dmaA(s_ + 5)
    P(f"""
    s_lshl_b32 s{sT}, s{sSB}, 1
    s_and_b32 s{sT2}, s{sMT}, 1
    s_add_u32 s{sT}, s{sT}, s{sT2}
    s_mul_i32 s{sCo}, s{sT}, {72 * 1024}
    s_lshr_b32 s{sT2}, s{sMT}, 1
    s_mul_i32 s{sT2}, s{sT2}, {36 * 1024}
    s_add_u32 s{sCo}, s{sCo}, s{sT2}
    s_add_u32 s{sCo}, s{sCo}, {WS_CF}
    s_lshl_b32 s{sM}, s{sMT}, 12
    s_barrier
    """)
    cf_dma(0)
    cf_dma(1)
    P("s_barrier")
    for c in (2, 3, 4):
        cf_dma(c)
    lp, dn = P.newlabel(pfx + "_hpoll"), P.newlabel(pfx + "_hdone")
    P(f"""
    s_cmp_eq_u32 s{sW}, 4
    s_cbranch_scc0 {dn}
    s_lshl_b32 s{sT}, s{sTB}, 6
    s_add_u32 s{sT}, s{sT}, {WS_FLG + FLG_HF}
    v_lshlrev_b32 v2, 2, v{vLane}
    s_mov_b32 exec_hi, 0
    s_mov_b32 exec_lo, 0x1ff
    """)
    P.L(lp)
    P(f"""
    buffer_load_dword v3, v2, {ws}, s{sT} offen sc1
    s_waitcnt vmcnt(0)
    v_cmp_ne_u32 vcc, 1, v3
    s_cbranch_vccz {dn}
    s_sleep 2
    s_branch {lp}
    """)
    P.L(dn)
    P("s_mov_b64 exec, -1")
    P("s_waitcnt vmcnt(0)")
    out_phases(True)
    return hi[0]
```

```python
import sys
from common import *
import common
from k1 import emit_k1, K1_LDS
from att import emit_attention
from svc import emit_service, SVC_LDS
from prepk import Prep, srd_from_kernarg

KNAME = "gated_mix__ssm_conv_s5__softmax_full_mha__prompt_kernel"

def k_prep(timing=False):
    P = Prog(); name = "prep_kernel"
    P.L(name)
    if timing:
        timing_start(P, 84, 4); P("v_lshrrev_b32 v127, 6, v0"); common.TIMING = False
    ws_srd(P)
    P("s_cmp_ge_u32 s2, 256\ns_cbranch_scc1 prep_exit")
    V = Regs("v", 1)
    srd_from_kernarg(P, 16, KA_AX, 2048 * 1152)
    pr = Prep(P, V, 45, 16, 0)
    pr.srds()
    P("v_lshrrev_b32 v1, 6, v0\nv_and_b32 v0, 63, v0\nv_readfirstlane_b32 s26, v1")
    pr.loads(2, 26)
    pr.finish()
    if timing:
        P("s_branch tp_exit")
    P.L("prep_exit")
    P("s_endpgm")
    nv = V.hi
    if timing:
        timing_exit(P, "tp_exit", slot=2, vw=127); nv = 128
    return name, P.finalize([name]), nv, (name, 256, 0, 256)

def k_k1(timing=False, name="k1_kernel", exp=()):
    P = Prog()
    P.L(name)
    if timing:
        timing_start(P, 84, 4); P("v_lshrrev_b32 v166, 6, v0")
    ws_srd(P)
    P("s_cmp_ge_u32 s2, 256\ns_cbranch_scc1 k1_exit")
    nv = emit_k1(P, 2, end="s_branch tk_exit" if timing else "s_endpgm", exp=exp, end_c="s_branch tc_exit" if timing else None)
    P.L("k1_exit")
    P("s_endpgm")
    if timing:
        timing_exit(P, "tc_exit", slot=3, vw=166, wgshift=11)
        common.MK0, common.NMARK = 84, 4
        timing_exit(P, "tk_exit", slot=3, vw=166, wgshift=11); nv = 168
        common.TIMING = False
    return name, P.finalize([name]), nv, (name, 256, K1_LDS, 768)

def k_att(timing=False):
    P = Prog(); name = "att_kernel"
    P.L(name)
    if timing:
        timing_start(P); P("v_lshrrev_b32 v127, 6, v0")
    ws_srd(P)
    P("s_cmp_ge_u32 s2, 256\ns_cbranch_scc1 att_exit")
    nv = emit_attention(P, 2, end="s_branch ta_exit" if timing else "s_endpgm")
    P.L("att_exit")
    P("s_endpgm")
    if timing:
        timing_exit(P, "ta_exit", slot=0, vw=127); nv = 128
        common.TIMING = False
    return name, P.finalize([name]), nv, (name, 256, 40960, 512)

def k_svc(timing=False, exp=()):
    P = Prog(); name = "svc_kernel"
    P.L(name)
    if timing:
        timing_start(P); P("v_lshrrev_b32 v127, 6, v0")
    ws_srd(P)
    P("s_cmp_ge_u32 s2, 144\ns_cbranch_scc1 svc_exit")
    nv = emit_service(P, 2, end="s_branch ts_exit" if timing else "s_endpgm", exp=exp)
    P.L("svc_exit")
    P("s_endpgm")
    if timing:
        timing_exit(P, "ts_exit", slot=1, vw=127); nv = 128
        common.TIMING = False
    return name, P.finalize([name]), nv, (name, 144, SVC_LDS, 512)

def k_l2(timing=False, exp=()):
    P = Prog(); name = "l2_kernel"
    P.L(name)
    if timing:
        timing_start(P); P("v_lshrrev_b32 v127, 6, v0")
    ws_srd(P)
    P("""
    s_cmp_ge_u32 s2, 400
    s_cbranch_scc1 l2_exit
    s_cmp_ge_u32 s2, 256
    s_cbranch_scc1 l2_svc
    """)
    e = "s_branch tl_exit" if timing else "s_endpgm"
    nv = emit_attention(P, 2, end=e, exp=exp)
    P.L("l2_svc")
    P("s_sub_u32 s3, s2, 256")
    nv = max(nv, emit_service(P, 3, end=e, exp=exp))
    P.L("l2_exit")
    P("s_endpgm")
    if timing:
        timing_exit(P, "tl_exit", slot=0, vw=127); nv = 128
        common.TIMING = False
    return name, P.finalize([name]), nv, (name, 400, SVC_LDS, 512)

def k_empty():
    P = Prog(); name = "nop_kernel"
    P.L(name)
    P("s_endpgm")
    return name, P.finalize([name]), 8, (name, 1, 0, 64)

def assemble(ks, order=None):
    txt = launch_text([ks[i][3] for i in order] if order else [k[3] for k in ks])
    txt += '.amdgcn_target "amdgcn-amd-amdhsa--gfx950"\n.text\n'
    for name, body, nv, _ in ks:
        txt += kernel_header(name) + body
    txt += '.section .rodata,"a"\n.p2align 6\n'
    for name, body, nv, _ in ks:
        assert nv <= 256
        txt += kernel_desc(name, nv)
    return txt

def build(mode="sep", timing=False, exp=()):
    common.TIMING = False
    if mode == "sep":
        ks = [k_prep(timing), k_k1(timing), k_att(timing), k_svc(timing, exp)]
    elif mode == "fused":
        ks = [k_prep(timing), k_k1(timing), k_l2(timing, exp)]
    elif mode == "m2":
        ks = [k_k1(timing, exp=exp), k_l2(timing, exp)]
    elif mode == "k1":
        ks = [k_k1(timing, exp=exp)]
    for e in exp:
        if e.startswith("k1st=") or e.startswith("outst="):
            key, mods = e.split("=")
            mods = " " + mods.replace("_", " ")
            for i, (name, body, nv, l) in enumerate(ks):
                out = []
                for ln in body.split("\n"):
                    t = ln.strip()
                    if t.startswith("buffer_store") and "sc1" not in t:
                        if (key == "k1st" and name == "k1_kernel" and "s98" not in t) or (key == "outst" and name == "l2_kernel" and "s[40:43]" in t):
                            ln = ln + mods
                    out.append(ln)
                ks[i] = (name, "\n".join(out), nv, l)
    order = None
    for e in exp:
        if e.startswith("order="):
            ks.append(k_empty())
            order = [int(c) if c != "e" else len(ks) - 1 for c in e[6:]]
            if "e" not in e[6:]:
                ks.pop()
    print("vgprs", [(k[0], k[2]) for k in ks])
    return assemble(ks, order)

if __name__ == "__main__":
    mode = sys.argv[1] if len(sys.argv) > 1 else "sep"
    t = build(mode, True)
    open("out/all.s", "w").write(t)
    print(len(t))
```

```python
from asmgen import *
from layout import *

def ws_srd(P):
    P(f"""
    s_load_dwordx2 s[4:5], s[0:1], {KA_WS}
    s_mov_b32 s6, {WS_SIZE}
    s_mov_b32 s7, 0x00020000
    """)

TIMING = False
WSEL = slice(0, 4)
NMARK = 16
MK0 = 52
REC = 128

def timing_start(P, mk0=52, nmark=16):
    global TIMING, MK0, NMARK
    TIMING = True
    MK0, NMARK = mk0, nmark
    P("""
    s_memrealtime s[96:97]
    s_memtime s[94:95]
    s_waitcnt lgkmcnt(0)
    """)
    for k in range(NMARK):
        P(f"s_mov_b32 s{MK0 + 2 * k}, s94")

def mark(P, k):
    if TIMING and k < NMARK:
        P(f"""
        s_memtime s[{MK0 + 2 * k}:{MK0 + 1 + 2 * k}]
        s_waitcnt lgkmcnt(0)
        """)

def timing_exit(P, label, slot=0, vw=255, wgshift=10):
    P.L(label)
    P(f"""
    s_waitcnt vmcnt(0)
    s_memrealtime s[98:99]
    s_memtime s[92:93]
    s_waitcnt lgkmcnt(0)
    s_sub_u32 s92, s92, s94
    s_mov_b64 exec, -1
    s_getreg_b32 s97, hwreg(HW_REG_HW_ID)
    s_getreg_b32 s99, hwreg(HW_REG_XCC_ID)
    s_and_b32 s99, s99, 15
    s_lshl_b32 s92, s92, 4
    s_or_b32 s99, s99, s92
    v_mov_b32 v2, s96
    v_mov_b32 v3, s97
    v_mov_b32 v4, s98
    v_mov_b32 v5, s99
    """)
    for k in range(16):
        if k < NMARK:
            P(f"s_sub_u32 s{MK0 + 2 * k}, s{MK0 + 2 * k}, s94")
            P(f"v_mov_b32 v{6 + k}, s{MK0 + 2 * k}")
        else:
            P(f"v_mov_b32 v{6 + k}, 0")
    P(f"""
    s_lshl_b32 s98, s2, {wgshift}
    s_add_u32 s98, s98, {WS_TIM + slot * 0x80000}
    v_readfirstlane_b32 s99, v{vw}
    s_lshl_b32 s99, s99, 7
    s_add_u32 s98, s98, s99
    v_mov_b32 v1, 0
    s_mov_b32 exec_hi, 0
    s_mov_b32 exec_lo, 1
    """)
    for q in range(5):
        P(f"buffer_store_dwordx4 v[{2 + 4 * q}:{5 + 4 * q}], v1, s[4:7], s98 offen offset:{16 * q}")
    P("s_endpgm")

def launch_text(kernels):
    t = ""
    for k in kernels:
        name, grid, lds = k[:3]
        blk = k[3] if len(k) > 3 else 256
        t += f"; @launch kernel={name} grid=({grid},1,1) block=({blk},1,1) lds={lds}\n"
    return t

def decode_times(res, nwg, slot=0, nw=8):
    import numpy as np
    a = res[WS_TIM + slot * 0x80000: WS_TIM + slot * 0x80000 + nwg * nw * 128].view(np.uint32).reshape(nwg, nw, 32)[:, WSEL if nw == 8 else slice(0, 12)]
    st, en = a[:, :, 0].astype(np.int64), a[:, :, 2].astype(np.int64)
    t0 = st.min()
    hw = a[:, 0, 1]; xcc = a[:, 0, 3] & 0xf
    cu = [(int(xcc[i]), int((hw[i] >> 13) & 7), int((hw[i] >> 12) & 1), int((hw[i] >> 8) & 0xf)) for i in range(nwg)]
    global last_cycles, last_marks
    last_marks = a[:, :, 4:20].astype(np.int64)
    last_cycles = (a[:, :, 3] >> 4).astype(np.int64)
    return (st - t0) / 100.0, (en - t0) / 100.0, cu

def summarize_times(res, nwg, slot=0, label="", nw=8):
    import numpy as np, collections
    st, en, cu = decode_times(res, nwg, slot, nw)
    d = collections.defaultdict(list)
    for i, k in enumerate(cu):
        d[k].append(i)
    hist = collections.Counter(len(v) for v in d.values())
    dur = (en - st).max(1)
    s = "%s start: max %.2f med %.2f | end: min %.2f med %.2f max %.2f | dur med %.2f max %.2f | WGs/CU %s" % (
        label, st.max(), np.median(st), en.min(), np.median(en), en.max(), np.median(dur), dur.max(), dict(hist))
    bycount = collections.defaultdict(list)
    for k, v in d.items():
        for i in v:
            bycount[len(v)].append(dur[i])
    s += " | GHz %.3f" % float(np.median(last_cycles / ((en - st) * 1000.0)))
    s += " | cyc total med %d marks med %s" % (np.median(last_cycles), [int(np.median(last_marks[:, :, k])) for k in range(4)])
    s += " | dur by co-residency " + str({k: round(float(np.median(v)), 2) for k, v in bycount.items()})
    return s
```

```python
from asmgen import *
from layout import *
import common
import struct


def f32(x):
    return "0x%08x" % struct.unpack("<I", struct.pack("<f", x))[0]


NST = 5
PRE = 2
PREFETCH = False
STAGE = 32768
K1_LDS = NST * STAGE


def srd_from_kernarg(P, s, ka, nbytes):
    P(f"""
    s_load_dwordx2 s[{s}:{s+1}], s[0:1], {ka}
    s_mov_b32 s{s+2}, {nbytes}
    s_mov_b32 s{s+3}, 0x00020000
    """)


def emit_k1(P, sWG, pfx="k1", end="s_endpgm", exp=(), end_c=None):
    vT = list(range(1, 9))
    V = Regs("v", 9)
    ACC = [[V.alloc(16) for _ in range(2)] for _ in range(2)]
    XF = [[V.alloc(4) for _ in range(2)] for _ in range(2)]
    WF = [[V.alloc(4) for _ in range(2)] for _ in range(2)]
    vXR = [V.alloc() for _ in range(4)]
    vWR = [V.alloc() for _ in range(2)]
    vXR2 = [V.alloc() for _ in range(4)]
    vWR2 = [V.alloc() for _ in range(2)]
    vXR3 = [V.alloc() for _ in range(4)]
    vWR3 = [V.alloc() for _ in range(2)]
    VL = Regs("v", 9)
    vXD = [VL.alloc() for _ in range(4)]
    vWD = [VL.alloc() for _ in range(4)]
    GX = VL.alloc(18, 2); GW = VL.alloc(18, 2)
    vLane = 0
    sX, sW_, sAX, sGW = 8, 12, 16, 20
    sTB, sFG, sWv, sWM, sWN, sM, sXo, sWo, sCol = 24, 25, 26, 27, 28, 29, 30, 31, 32
    sT, sT2, sT3, sIsV, sPB = 33, 34, 35, 36, 37
    sLd = 44
    L = lambda n: f"{pfx}_{n}"
    ws = "s[4:7]"

    srd_from_kernarg(P, sX, KA_AX, 2048 * 1152)
    srd_from_kernarg(P, sW_, KA_WQKV, 576 * 3456)
    srd_from_kernarg(P, sGW, KA_GW, 1152)
    from prepk import Prep
    pr = Prep(P, VL, 45, sX, vLane)
    pr.srds()
    t0, t1, t2, t3, t4, t5 = vT[:6]
    P(f"""
    v_lshrrev_b32 v{t0}, 6, v0
    v_and_b32 v{vLane}, 63, v0
    v_readfirstlane_b32 s{sWv}, v{t0}
    s_lshr_b32 s{sLd}, s{sWv}, 2
    s_and_b32 s{sWv}, s{sWv}, 3
    s_and_b32 s{sT}, s{sWG}, 7
    s_lshr_b32 s{sT2}, s{sWG}, 3
    s_and_b32 s{sTB}, s{sT}, 1
    s_lshl_b32 s{sTB}, s{sTB}, 3
    s_and_b32 s{sT3}, s{sT2}, 7
    s_add_u32 s{sTB}, s{sTB}, s{sT3}
    s_lshr_b32 s{sFG}, s{sT}, 1
    s_lshl_b32 s{sFG}, s{sFG}, 2
    s_lshr_b32 s{sT3}, s{sT2}, 3
    s_add_u32 s{sFG}, s{sFG}, s{sT3}
    s_and_b32 s{sWM}, s{sWv}, 1
    s_lshr_b32 s{sWN}, s{sWv}, 1
    s_lshl_b32 s{sM}, s{sWv}, 12
    """)
    rot = [e for e in exp if e.startswith("k1rot")]
    sRot = 100
    if rot:
        a, b, c3, d3 = ([int(x) for x in rot[0][6:].split("_")] + [0, 0])[:4]
        P(f"""
        s_lshr_b32 s{sT}, s{sWG}, 3
        s_and_b32 s{sT}, s{sT}, 7
        s_mul_i32 s{sT}, s{sT}, {a}
        s_lshr_b32 s{sT2}, s{sWG}, 6
        s_mul_i32 s{sT2}, s{sT2}, {b}
        s_add_u32 s{sT}, s{sT}, s{sT2}
        s_bfe_u32 s{sT2}, s{sWG}, 0x20001
        s_mul_i32 s{sT2}, s{sT2}, {c3}
        s_add_u32 s{sT}, s{sT}, s{sT2}
        s_and_b32 s{sT2}, s{sWG}, 1
        s_mul_i32 s{sT2}, s{sT2}, {d3}
        s_add_u32 s{sT}, s{sT}, s{sT2}
        s_mul_i32 s{sT2}, s{sT}, 7282
        s_lshr_b32 s{sT2}, s{sT2}, 16
        s_mul_i32 s{sT2}, s{sT2}, 9
        s_sub_u32 s{sRot}, s{sT}, s{sT2}
        """)
    P(f"""
    s_cmp_ge_u32 s{sFG}, 11
    s_cselect_b32 s{sIsV}, 1, 0
    s_mul_i32 s{sCol}, s{sFG}, 216
    s_and_b32 s{sCol}, s{sCol}, 0xfffffff0
    s_sub_u32 s{sT}, s{sFG}, 11
    s_lshl_b32 s{sT}, s{sT}, 2
    s_min_u32 s{sT}, s{sT}, 14
    s_lshl_b32 s{sT2}, s{sT}, 6
    s_add_u32 s{sT2}, s{sT2}, 2304
    s_cmp_eq_u32 s{sIsV}, 1
    s_cselect_b32 s{sCol}, s{sT2}, s{sCol}
    s_cselect_b32 s{sPB}, s{sT}, 0
    """)
    if "k1alignw" in exp:
        P(f"s_and_b32 s{sCol}, s{sCol}, 0xffffff80")
    P(f"""
    s_cmp_eq_u32 s{sLd}, 0
    s_cbranch_scc1 {L('compute')}
    """)
    class Queue:
        def __init__(self):
            self.q = []
        def add(self, tag, n):
            self.q += [tag] * n
        def wait(self, tag):
            if tag not in self.q:
                return
            idx = max(i for i, e in enumerate(self.q) if e == tag)
            P(f"s_waitcnt vmcnt({len(self.q) - 1 - idx})")

    def loader(addr, srd, sOff, half, step, extras, prefetch, roll_setup, roll):
        Q = Queue()
        rpf, pre = 0, PRE
        for e in exp:
            if e.startswith("k1rpf="): rpf = int(e[6:])
            if e.startswith("k1pre="): pre = int(e[6:])
        if rpf:
            roll_setup()
        def dma(c):
            st = (c % NST) * STAGE + half
            nu = 4
            if ("k1now" in exp and half) or ("k1nox" in exp and not half):
                nu = 0
            for u in range(nu):
                P(f"s_add_u32 m0, s{sM}, {st + u * 1024}")
                P(f"buffer_load_dwordx4 v{addr[u]}, s[{srd}:{srd+3}], s{sOff} offen lds")
            P(f"s_add_u32 s{sOff}, s{sOff}, {step}")
            if rot:
                P(f"""
                s_cmp_eq_u32 s{sOff}, {9 * step}
                s_cselect_b32 s{sOff}, 0, s{sOff}
                """)
            Q.add(c, nu)
            if rpf:
                a = pre if c == 0 else c + rpf
                b = min(9, c + rpf + 1)
                if c == 0 or a < 9:
                    Q.add("p", roll(a, b))
        if rot:
            P(f"s_mul_i32 s{sOff}, s{sRot}, {step}")
        else:
            P(f"s_mov_b32 s{sOff}, 0")
        common.mark(P, 0)
        pre, la, pfpos = PRE, NST, 0
        ramp = False
        for e in exp:
            if e.startswith("k1pre="): pre = int(e[6:])
            if e.startswith("k1la="): la = int(e[5:])
            if e.startswith("k1pfpos="): pfpos = int(e[8:])
            if e == "k1ramp": ramp = True
        for c in range(pre):
            dma(c)
            if pfpos == c + 1:
                Q.add("p", prefetch())
        Q.wait(0)
        common.mark(P, 1)
        P("s_barrier")
        nxt = pre
        while nxt < (la if not ramp else pre + 1):
            dma(nxt); nxt += 1
            if pfpos == nxt:
                Q.add("p", prefetch())
        for c in range(8):
            Q.wait(c + 1)
            P("s_barrier")
            k = 0
            while nxt < min(9, c + 1 + la) and k < (2 if ramp else 9):
                dma(nxt); nxt += 1; k += 1
            if c in extras:
                Q.add("x", extras[c]())
        assert nxt == 9
        common.mark(P, 2)

    pfs, pf64 = 2, False
    for e in exp:
        if e.startswith("k1pfs="): pfs = int(e[6:])
        if e == "k1pf64": pf64 = True
    vPF = [VL.alloc() for _ in range(6)]

    def prefetch_x():
        nl = 9 - pfs
        P(f"""
        v_and_b32 v{vPF[0]}, 7, v{vLane}
        s_lshr_b32 s{sT}, s{sWG}, 6
        s_lshl_b32 s{sT}, s{sT}, 5
        s_lshl_b32 s{sT2}, s{sWv}, 3
        s_add_u32 s{sT}, s{sT}, s{sT2}
        s_lshl_b32 s{sT2}, s{sTB}, 7
        s_add_u32 s{sT}, s{sT}, s{sT2}
        v_add_u32 v{vPF[0]}, s{sT}, v{vPF[0]}
        v_mul_u32_u24 v{vPF[0]}, 1152, v{vPF[0]}
        v_lshrrev_b32 v{vPF[1]}, 3, v{vLane}
        v_lshlrev_b32 v{vPF[1]}, 7, v{vPF[1]}
        v_add_u32 v{vPF[0]}, v{vPF[0]}, v{vPF[1]}
        s_mov_b64 s[42:43], exec
        v_cmp_gt_u32 vcc, {8 * nl}, v{vLane}
        s_and_b64 exec, exec, vcc
        buffer_load_dword v{vPF[2]}, v{vPF[0]}, s[{sX}:{sX+3}], 0 offen offset:{128 * pfs}
        """)
        if pf64:
            P(f"buffer_load_dword v{vPF[3]}, v{vPF[0]}, s[{sX}:{sX+3}], 0 offen offset:{128 * pfs + 64}")
        P("s_mov_b64 exec, s[42:43]")
        return 2 if pf64 else 1

    vRP = VL.alloc(); vRD = [VL.alloc() for _ in range(9)]

    def roll_setup_x():
        P(f"""
        v_and_b32 v{vRP}, 7, v{vLane}
        s_lshr_b32 s{sT}, s{sWG}, 6
        s_lshl_b32 s{sT}, s{sT}, 5
        s_lshl_b32 s{sT2}, s{sWv}, 3
        s_add_u32 s{sT}, s{sT}, s{sT2}
        s_lshl_b32 s{sT2}, s{sTB}, 7
        s_add_u32 s{sT}, s{sT}, s{sT2}
        v_add_u32 v{vRP}, s{sT}, v{vRP}
        v_mul_u32_u24 v{vRP}, 1152, v{vRP}
        v_lshrrev_b32 v{vPF[1]}, 3, v{vLane}
        v_lshlrev_b32 v{vPF[1]}, 7, v{vPF[1]}
        v_add_u32 v{vRP}, v{vRP}, v{vPF[1]}
        """)

    def roll_x(a, b):
        P(f"""
        s_mov_b32 exec_lo, {((1 << (8 * (b - a))) - 1) & 0xffffffff}
        s_mov_b32 exec_hi, {((1 << (8 * (b - a))) - 1) >> 32}
        buffer_load_dword v{vRD[a]}, v{vRP}, s[{sX}:{sX+3}], 0 offen offset:{128 * a}
        s_mov_b64 exec, -1
        """)
        return 1

    def roll_setup_w():
        P(f"""
        v_mul_u32_u24 v{vPF[0]}, 10923, v{vLane}
        v_lshrrev_b32 v{vPF[0]}, 16, v{vPF[0]}
        v_mul_u32_u24 v{vPF[1]}, 6, v{vPF[0]}
        v_sub_u32 v{vPF[1]}, v{vLane}, v{vPF[1]}
        v_lshlrev_b32 v{vPF[0]}, 6, v{vPF[0]}
        v_cmp_le_u32 vcc, 3, v{vPF[1]}
        v_cndmask_b32 v{vPF[2]}, 0, 32, vcc
        v_add_u32 v{vPF[0]}, v{vPF[0]}, v{vPF[2]}
        v_cndmask_b32 v{vPF[2]}, 0, 3, vcc
        v_sub_u32 v{vPF[1]}, v{vPF[1]}, v{vPF[2]}
        v_lshlrev_b32 v{vPF[1]}, 7, v{vPF[1]}
        v_min_u32 v{vPF[1]}, 252, v{vPF[1]}
        s_and_b32 s{sT}, s{sTB}, 7
        s_lshl_b32 s{sT}, s{sT}, 2
        s_add_u32 s{sT}, s{sT}, s{sWv}
        v_add_u32 v{vPF[0]}, s{sT}, v{vPF[0]}
        v_mul_u32_u24 v{vPF[0]}, 3456, v{vPF[0]}
        v_add_u32 v{vPF[0]}, v{vPF[0]}, v{vPF[1]}
        v_add_u32 v{vRP}, s{sCol}, v{vPF[0]}
        """)

    def roll_w(a, b):
        m = (1 << (6 * (b - a))) - 1
        P(f"""
        s_mov_b32 exec_lo, {m & 0xffffffff}
        s_mov_b32 exec_hi, {m >> 32}
        s_mov_b32 s{sT}, {a * 64 * 3456}
        buffer_load_dword v{vRD[a]}, v{vRP}, s[{sW_}:{sW_+3}], s{sT} offen
        s_mov_b64 exec, -1
        """)
        return 1

    def prefetch_w():
        rows = (9 - pfs) * 64 // 32
        per = 5 if pf64 else 3
        n = -(-rows * per // 64)
        for k in range(n):
            P(f"""
            v_add_u32 v{vPF[0]}, {64 * k}, v{vLane}
            v_mul_u32_u24 v{vPF[1]}, {-(-65536 // per)}, v{vPF[0]}
            v_lshrrev_b32 v{vPF[1]}, 16, v{vPF[1]}
            v_mul_u32_u24 v{vPF[2]}, {per}, v{vPF[1]}
            v_sub_u32 v{vPF[2]}, v{vPF[0]}, v{vPF[2]}
            v_lshlrev_b32 v{vPF[2]}, {6 if pf64 else 7}, v{vPF[2]}
            v_min_u32 v{vPF[2]}, 252, v{vPF[2]}
            v_cmp_gt_u32 vcc, {rows}, v{vPF[1]}
            v_lshlrev_b32 v{vPF[1]}, 5, v{vPF[1]}
            s_and_b32 s{sT}, s{sTB}, 7
            s_lshl_b32 s{sT}, s{sT}, 2
            s_add_u32 s{sT}, s{sT}, s{sWv}
            s_add_u32 s{sT}, s{sT}, {64 * pfs}
            v_add_u32 v{vPF[1]}, s{sT}, v{vPF[1]}
            v_mul_u32_u24 v{vPF[1]}, 3456, v{vPF[1]}
            v_add_u32 v{vPF[1]}, v{vPF[1]}, v{vPF[2]}
            v_add_u32 v{vPF[1]}, s{sCol}, v{vPF[1]}
            s_mov_b64 s[42:43], exec
            s_and_b64 exec, exec, vcc
            buffer_load_dword v{vPF[3 + k]}, v{vPF[1]}, s[{sW_}:{sW_+3}], 0 offen
            s_mov_b64 exec, s[42:43]
            """)
        return n

    P(f"""
    v_lshrrev_b32 v{t0}, 3, v{vLane}
    v_lshrrev_b32 v{t1}, 4, v{vLane}
    v_and_b32 v{t2}, 7, v{vLane}
    s_cmp_eq_u32 s{sLd}, 2
    s_cbranch_scc1 {L('wload')}
    s_lshl_b32 s{sT}, s{sTB}, 7
    s_lshl_b32 s{sT2}, s{sWv}, 5
    s_add_u32 s{sT}, s{sT}, s{sT2}
    s_movk_i32 s{sT3}, 1152
    """)
    for u in range(4):
        P(f"""
        v_add_u32 v{t3}, {4 * u}, v{t1}
        v_and_b32 v{t3}, 7, v{t3}
        v_xor_b32 v{t3}, v{t3}, v{t2}
        v_lshlrev_b32 v{t3}, 4, v{t3}
        v_add_u32 v{t4}, {8 * u}, v{t0}
        v_add_u32 v{t4}, s{sT}, v{t4}
        v_mul_lo_u32 v{t4}, v{t4}, s{sT3}
        v_add_u32 v{vXD[u]}, v{t3}, v{t4}
        """)

    XE = 9 - NST

    def x_extra0():
        pr.index(sWG, sWv)
        n = pr.loads_xb()
        P(f"""
        v_lshrrev_b32 v{t0}, 4, v{vLane}
        s_lshl_b32 s{sT}, s{sWG}, 4
        s_lshl_b32 s{sT2}, s{sWv}, 2
        s_add_u32 s{sT}, s{sT}, s{sT2}
        v_add_u32 v{t0}, s{sT}, v{t0}
        s_movk_i32 s{sT3}, 1152
        v_mul_lo_u32 v{vT[6]}, v{t0}, s{sT3}
        v_and_b32 v{t1}, 15, v{vLane}
        v_lshlrev_b32 v{t1}, 3, v{t1}
        v_add_u32 v{vT[6]}, v{vT[6]}, v{t1}
        v_lshlrev_b32 v{vT[7]}, 2, v{t0}
        s_cmp_lt_u32 s{sWG}, 128
        s_cselect_b32 s{sGW+2}, 1152, 0
        s_cselect_b32 s{sAX+2}, {2048 * 1152}, 0
        s_mov_b32 s{sAX}, s{sX}
        s_mov_b32 s{sAX+1}, s{sX+1}
        s_mov_b32 s{sAX+3}, 0x00020000
        """)
        for q in range(9):
            P(f"buffer_load_dwordx2 {vr(GW + 2 * q, 2)}, v{t1}, s[{sGW}:{sGW+3}], 0 offen offset:{128 * q}")
        return n + 9

    def x_extra1():
        for q in range(9):
            P(f"buffer_load_dwordx2 {vr(GX + 2 * q, 2)}, v{vT[6]}, s[{sAX}:{sAX+3}], 0 offen offset:{128 * q}")
        return 9

    noprep = "k1noprep" in exp
    loader(vXD, sX, sXo, 0, 128, {} if noprep else {XE: x_extra0, XE + 1: x_extra1}, prefetch_x, roll_setup_x, roll_x)
    if noprep:
        P(f"s_branch {L('end')}")
    pr.finish_xb()
    P(f"""
    s_cmp_ge_u32 s{sWG}, 128
    s_cbranch_scc1 {L('end')}
    v_mov_b32 v{vT[0]}, 0
    v_mov_b32 v{vT[1]}, 0
    """)
    for q in range(9):
        P(f"v_dot2c_f32_bf16 v{vT[0]}, v{GX + 2 * q}, v{GW + 2 * q}")
        P(f"v_dot2c_f32_bf16 v{vT[1]}, v{GX + 2 * q + 1}, v{GW + 2 * q + 1}")
    P(f"""
    v_add_f32 v{vT[0]}, v{vT[0]}, v{vT[1]}
    v_add_f32_dpp v{vT[0]}, v{vT[0]}, v{vT[0]} row_ror:8 row_mask:0xf bank_mask:0xf
    v_add_f32_dpp v{vT[0]}, v{vT[0]}, v{vT[0]} row_ror:4 row_mask:0xf bank_mask:0xf
    v_add_f32_dpp v{vT[0]}, v{vT[0]}, v{vT[0]} row_ror:2 row_mask:0xf bank_mask:0xf
    v_add_f32_dpp v{vT[0]}, v{vT[0]}, v{vT[0]} row_ror:1 row_mask:0xf bank_mask:0xf
    v_mul_f32 v{vT[0]}, {f32(-LOG2E)}, v{vT[0]}
    v_exp_f32 v{vT[0]}, v{vT[0]}
    v_add_f32 v{vT[0]}, 1.0, v{vT[0]}
    v_rcp_f32 v{vT[0]}, v{vT[0]}
    v_and_b32 v{vT[1]}, 15, v{vLane}
    v_cmp_eq_u32 vcc, 0, v{vT[1]}
    s_mov_b32 s{sT}, {WS_G}
    s_and_saveexec_b64 s[42:43], vcc
    buffer_store_dword v{vT[0]}, v{vT[7]}, {ws}, s{sT} offen
    """)
    P(f"s_branch {L('end')}")

    P.L(L("wload"))
    P(f"""
    v_and_b32 v{t2}, 15, v{vLane}
    v_lshlrev_b32 v{t3}, 2, v{t1}
    v_xor_b32 v{t3}, v{t3}, v{t2}
    v_lshlrev_b32 v{t3}, 4, v{t3}
    v_add_u32 v{t3}, s{sCol}, v{t3}
    s_lshl_b32 s{sT}, s{sWv}, 4
    s_movk_i32 s{sT3}, 3456
    """)
    for u in range(4):
        P(f"""
        v_add_u32 v{t4}, {4 * u}, v{t1}
        v_add_u32 v{t4}, s{sT}, v{t4}
        v_mul_lo_u32 v{t4}, v{t4}, s{sT3}
        v_add_u32 v{vWD[u]}, v{t3}, v{t4}
        """)

    def w_extra0():
        pr.index(sWG, sWv)
        return pr.loads_c()

    loader(vWD, sW_, sWo, 16384, 64 * 3456, {} if noprep else {XE: w_extra0, XE + 1: pr.loads_w}, prefetch_w, roll_setup_w, roll_w)
    if not noprep:
        pr.finish_cw()
    P(f"s_branch {L('end')}")

    P.L(L("compute"))
    if common.TIMING:
        common.MK0, common.NMARK = 52, 16
    if PREFETCH or 'k1pf' in exp:
        vPF = [vT[6], vT[7]]
        P(f"""
        v_and_b32 v{t0}, 7, v{vLane}
        v_lshrrev_b32 v{t1}, 3, v{vLane}
        s_lshr_b32 s{sT}, s{sWG}, 6
        s_lshl_b32 s{sT}, s{sT}, 5
        s_lshl_b32 s{sT2}, s{sWv}, 3
        s_add_u32 s{sT}, s{sT}, s{sT2}
        s_lshl_b32 s{sT2}, s{sTB}, 7
        s_add_u32 s{sT}, s{sT}, s{sT2}
        v_add_u32 v{t0}, s{sT}, v{t0}
        v_mul_u32_u24 v{t0}, 1152, v{t0}
        v_lshlrev_b32 v{t1}, 7, v{t1}
        v_add_u32 v{t0}, v{t0}, v{t1}
        v_add_u32 v{t0}, 512, v{t0}
        v_mul_u32_u24 v{t1}, 86, v{vLane}
        v_lshrrev_b32 v{t1}, 8, v{t1}
        v_mul_u32_u24 v{t2}, 3, v{t1}
        v_sub_u32 v{t2}, v{vLane}, v{t2}
        v_lshlrev_b32 v{t2}, 7, v{t2}
        v_min_u32 v{t2}, 252, v{t2}
        s_and_b32 s{sT}, s{sTB}, 7
        s_mul_i32 s{sT}, s{sT}, 40
        s_mul_i32 s{sT2}, s{sWv}, 10
        s_add_u32 s{sT}, s{sT}, s{sT2}
        s_add_u32 s{sT}, s{sT}, 256
        v_add_u32 v{t1}, s{sT}, v{t1}
        v_mul_u32_u24 v{t1}, 3456, v{t1}
        v_add_u32 v{t1}, v{t1}, v{t2}
        v_add_u32 v{t1}, s{sCol}, v{t1}
        s_mov_b32 exec_lo, -1
        s_mov_b32 exec_hi, 0xff
        buffer_load_dword v{vPF[0]}, v{t0}, s[{sX}:{sX+3}], 0 offen
        s_mov_b32 exec_lo, 0x3fffffff
        s_mov_b32 exec_hi, 0
        buffer_load_dword v{vPF[1]}, v{t1}, s[{sW_}:{sW_+3}], 0 offen
        s_mov_b64 exec, -1
        """)
    P(f"""
    v_and_b32 v{t0}, 31, v{vLane}
    v_lshrrev_b32 v{t1}, 5, v{vLane}
    v_lshrrev_b32 v{t2}, 1, v{t0}
    v_and_b32 v{t2}, 7, v{t2}
    v_xor_b32 v{t2}, v{t2}, v{t1}
    v_lshlrev_b32 v{t2}, 4, v{t2}
    s_lshl_b32 s{sT}, s{sWM}, 6
    v_add_u32 v{t3}, s{sT}, v{t0}
    v_lshlrev_b32 v{t3}, 7, v{t3}
    v_add_u32 v{vXR[0]}, v{t2}, v{t3}
    v_xor_b32 v{vXR[1]}, 32, v{vXR[0]}
    v_xor_b32 v{vXR[2]}, 64, v{vXR[0]}
    v_xor_b32 v{vXR[3]}, 0x60, v{vXR[0]}
    """)
    P(f"""
    v_lshrrev_b32 v{t0}, 4, v{vLane}
    v_and_b32 v{t0}, 1, v{t0}
    v_lshlrev_b32 v{t0}, 2, v{t0}
    v_and_b32 v{t1}, 3, v{vLane}
    v_add_u32 v{t0}, v{t0}, v{t1}
    v_lshrrev_b32 v{t1}, 2, v{vLane}
    v_and_b32 v{t1}, 3, v{t1}
    v_lshrrev_b32 v{t2}, 5, v{vLane}
    v_lshlrev_b32 v{t3}, 3, v{t2}
    v_add_u32 v{t3}, v{t3}, v{t1}
    v_lshlrev_b32 v{t3}, 8, v{t3}
    v_add_u32 v{t3}, 16384, v{t3}
    s_cmp_eq_u32 s{sIsV}, 1
    s_cbranch_scc1 {L('vaddr')}
    """)
    P(f"""
    s_mul_i32 s{sPB}, s{sFG}, 3
    s_and_b32 s{sT}, s{sFG}, 1
    s_lshl_b32 s{sT}, s{sT}, 3
    v_lshrrev_b32 v{t4}, 2, v{t0}
    v_mul_u32_u24 v{t4}, 40, v{t4}
    v_and_b32 v{t5}, 1, v{t0}
    v_lshlrev_b32 v{t5}, 4, v{t5}
    v_add_u32 v{t4}, v{t4}, v{t5}
    v_lshrrev_b32 v{t5}, 1, v{t0}
    v_and_b32 v{t5}, 1, v{t5}
    v_lshlrev_b32 v{t5}, 3, v{t5}
    v_add_u32 v{t4}, v{t4}, v{t5}
    v_add_u32 v{t4}, s{sT}, v{t4}
    s_mul_i32 s{sT2}, s{sWN}, 144
    v_add_u32 v{vWR[0]}, s{sT2}, v{t4}
    v_add_u32 v{vWR[1]}, 72, v{vWR[0]}
    v_min_u32 v{t5}, 2, v{t0}
    v_mul_u32_u24 v{t5}, 72, v{t5}
    v_add_u32 v{t5}, 32, v{t5}
    v_add_u32 v{t5}, s{sT}, v{t5}
    s_cmp_eq_u32 s{sWN}, 1
    s_cbranch_scc0 {L('swz')}
    v_mov_b32 v{vWR[1]}, v{t5}
    s_branch {L('swz')}
    """)
    P.L(L("vaddr"))
    P(f"""
    v_lshlrev_b32 v{t4}, 3, v{t0}
    s_lshl_b32 s{sT2}, s{sWN}, 7
    v_add_u32 v{vWR[0]}, s{sT2}, v{t4}
    v_add_u32 v{vWR[1]}, 64, v{vWR[0]}
    """)
    P.L(L("swz"))
    P(f"v_lshlrev_b32 v{t1}, 6, v{t1}")
    for k in range(2):
        P(f"""
        v_xor_b32 v{vWR[k]}, v{vWR[k]}, v{t1}
        v_add_u32 v{vWR[k]}, v{vWR[k]}, v{t3}
        """)

    for k in range(4):
        P(f"v_add_u32 v{vXR2[k]}, 0x10000, v{vXR[k]}")
    for k in range(2):
        P(f"v_add_u32 v{vWR2[k]}, 0x10000, v{vWR[k]}")
    if NST > 4:
        for k in range(4):
            P(f"v_add_u32 v{vXR3[k]}, 0x20000, v{vXR[k]}")
        for k in range(2):
            P(f"v_add_u32 v{vWR3[k]}, 0x20000, v{vWR[k]}")

    def reads(n):
        c, ks = divmod(n, 4)
        st = (c % NST) * STAGE
        xr, wr = ((vXR, vWR), (vXR2, vWR2), (vXR3, vWR3))[st >> 16]
        st &= 65535
        b = n & 1
        out = []
        for tt in range(2):
            out.append(f"ds_read_b128 {vr(XF[b][tt],4)}, v{xr[ks]} offset:{st + tt * 4096}")
        for ft in range(2):
            for rd in range(2):
                out.append(f"ds_read_b64_tr_b16 {vr(WF[b][ft] + 2 * rd, 2)}, v{wr[ft]} offset:{st + ks * 4096 + rd * 1024}")
        return out

    def mainloop(isv):
        for n in range(36):
            c, ks = divmod(n, 4)
            b = n & 1
            mf = []
            for tt in range(2):
                for ft in range(2):
                    a_, b_ = (XF[b][tt], WF[b][ft]) if isv else (WF[b][ft], XF[b][tt])
                    cop = "0" if n == 0 else vr(ACC[tt][ft], 16)
                    mf.append(f"v_mfma_f32_32x32x16_bf16 {vr(ACC[tt][ft],16)}, {vr(a_,4)}, {vr(b_,4)}, {cop}")
            P("s_waitcnt lgkmcnt(0)")
            if ks == 3 and n + 1 < 36:
                P("s_barrier")
                common.mark(P, 2 + c)
            rs = reads(n + 1) if n + 1 < 36 else []
            if "k1noread" in exp:
                rs = []
            for k in range(4):
                if "k1nomfma" not in exp:
                    P(mf[k])
                take = rs[:2] if k < 3 else rs
                rs = rs[len(take):]
                for r in take:
                    P(r)

    P("s_barrier")
    common.mark(P, 0)
    for r in reads(0):
        P(r)
    P(f"""
    s_cmp_eq_u32 s{sIsV}, 1
    s_cbranch_scc1 {L('vmain')}
    """)

    mainloop(False)
    common.mark(P, 1)
    PK = XF[0][0]
    vA = [vT[0], vT[1], vT[2], vT[3]]
    P(f"v_lshlrev_b32 v{vA[0]}, 4, v{vLane}")

    def lo_store(tt, ft, sPBreg):
        skip = P.newlabel(pfx + "_skip")
        P(f"""
        s_cmp_ge_u32 s{sPBreg}, 32
        s_cbranch_scc1 {skip}
        s_and_b32 s{sT}, s{sPBreg}, 15
        s_lshl_b32 s{sT}, s{sT}, 17
        s_lshl_b32 s{sT2}, s{sTB}, 2
        s_lshl_b32 s{sT3}, s{sWM}, 1
        s_add_u32 s{sT2}, s{sT2}, s{sT3}
        s_add_u32 s{sT2}, s{sT2}, {tt}
        s_lshl_b32 s{sT2}, s{sT2}, 10
        s_add_u32 s{sT}, s{sT}, s{sT2}
        s_add_u32 s{sT2}, s{sT}, {WS_QLO}
        s_add_u32 s{sT}, s{sT}, {WS_KLO}
        s_cmp_lt_u32 s{sPBreg}, 16
        s_cselect_b32 s{sT}, s{sT2}, s{sT}
        s_cselect_b32 s{sT3}, {f32(QSCALE)}, 1.0
        s_add_u32 s{sT2}, s{sT}, 65536
        """)
        A = ACC[tt][ft]
        for r in range(16):
            P(f"v_mul_f32 v{A + r}, s{sT3}, v{A + r}")
        for k in range(8):
            P(f"v_cvt_pk_bf16_f32 v{PK + k}, v{A + 2 * k}, v{A + 2 * k + 1}")
        P(f"""
        buffer_store_dwordx4 {vr(PK,4)}, v{vA[0]}, {ws}, s{sT} offen
        buffer_store_dwordx4 {vr(PK+4,4)}, v{vA[0]}, {ws}, s{sT2} offen
        """)
        P.L(skip)

    sP0, sP1 = 38, 39
    P(f"""
    s_lshl_b32 s{sP0}, s{sWN}, 1
    s_add_u32 s{sP0}, s{sP0}, s{sPB}
    s_add_u32 s{sP1}, s{sP0}, 1
    """)
    for tt in range(2):
        lo_store(tt, 0, sP0)
    P(f"""
    s_cmp_eq_u32 s{sWN}, 1
    s_cbranch_scc1 {L('hi')}
    """)
    for tt in range(2):
        lo_store(tt, 1, sP1)
    P(f"s_branch {L('cend')}")
    P.L(L("hi"))
    big = 0x7ff00000
    for part in range(2):
        pb, adr, scl = vT[1], vT[2], vT[3]
        if part == 0:
            P(f"""
            v_lshrrev_b32 v{pb}, 5, v{vLane}
            v_add_u32 v{pb}, s{sPB}, v{pb}
            """)
        else:
            P(f"""
            s_add_u32 s{sT}, s{sPB}, 2
            v_mov_b32 v{pb}, s{sT}
            """)
        P(f"""
        v_and_b32 v{adr}, 15, v{pb}
        v_lshlrev_b32 v{adr}, 14, v{adr}
        v_and_b32 v{vT[4]}, 31, v{vLane}
        v_lshlrev_b32 v{vT[4]}, 2, v{vT[4]}
        v_add_u32 v{adr}, v{adr}, v{vT[4]}
        s_lshl_b32 s{sT2}, s{sTB}, 9
        s_lshl_b32 s{sT3}, s{sWM}, 8
        s_add_u32 s{sT2}, s{sT2}, s{sT3}
        v_add_u32 v{adr}, s{sT2}, v{adr}
        v_cmp_gt_u32 vcc, 16, v{pb}
        v_mov_b32 v{vT[4]}, {WS_KHI}
        v_mov_b32 v{vT[5]}, {WS_QHI}
        v_cndmask_b32 v{vT[4]}, v{vT[4]}, v{vT[5]}, vcc
        v_add_u32 v{adr}, v{adr}, v{vT[4]}
        v_mov_b32 v{vT[4]}, 1.0
        v_mov_b32 v{vT[5]}, {f32(QSCALE)}
        v_cndmask_b32 v{scl}, v{vT[4]}, v{vT[5]}, vcc
        v_cmp_le_u32 vcc, 32, v{pb}
        v_mov_b32 v{vT[4]}, {big}
        v_cndmask_b32 v{adr}, v{adr}, v{vT[4]}, vcc
        """)
        if part == 1:
            P(f"""
            v_cmp_le_u32 vcc, 32, v{vLane}
            v_cndmask_b32 v{adr}, v{adr}, v{vT[4]}, vcc
            """)
        for tt in range(2):
            A = ACC[tt][1] + 4 * part
            for r in range(4):
                P(f"v_mul_f32 v{A + r}, v{scl}, v{A + r}")
            P(f"""
            v_cvt_pk_bf16_f32 v{PK + 2 * tt}, v{A}, v{A+1}
            v_cvt_pk_bf16_f32 v{PK + 2 * tt + 1}, v{A+2}, v{A+3}
            v_add_u32 v{vT[4]}, 8192, v{adr}
            buffer_store_dword v{PK + 2 * tt}, v{adr}, {ws}, 0 offen offset:{128 * tt}
            buffer_store_dword v{PK + 2 * tt + 1}, v{vT[4]}, {ws}, 0 offen offset:{128 * tt}
            """)
    P(f"s_branch {L('cend')}")

    P.L(L("vmain"))
    mainloop(True)
    common.mark(P, 1)
    for ft in range(2):
        f_, hd, dm, adr = vT[0], vT[1], vT[2], vT[3]
        P(f"""
        s_lshl_b32 s{sT}, s{sWN}, 1
        s_add_u32 s{sT}, s{sT}, s{sPB}
        s_add_u32 s{sT}, s{sT}, {ft}
        s_lshl_b32 s{sT}, s{sT}, 5
        v_and_b32 v{f_}, 31, v{vLane}
        v_add_u32 v{f_}, s{sT}, v{f_}
        v_mul_u32_u24 v{hd}, 3641, v{f_}
        v_lshrrev_b32 v{hd}, 16, v{hd}
        v_mul_u32_u24 v{dm}, 18, v{hd}
        v_sub_u32 v{dm}, v{f_}, v{dm}
        v_lshrrev_b32 v{vT[4]}, 5, v{vLane}
        v_mul_u32_u24 v{vT[4]}, 19, v{vT[4]}
        v_add_u32 v{vT[4]}, v{vT[4]}, v{dm}
        v_lshlrev_b32 v{vT[4]}, 4, v{vT[4]}
        s_mov_b32 s{sT2}, {VT_HEAD}
        v_mul_lo_u32 v{adr}, v{hd}, s{sT2}
        v_add_u32 v{adr}, v{adr}, v{vT[4]}
        s_lshl_b32 s{sT2}, s{sTB}, 3
        s_lshl_b32 s{sT3}, s{sWM}, 2
        s_add_u32 s{sT2}, s{sT2}, s{sT3}
        s_mul_i32 s{sT2}, s{sT2}, 608
        s_add_u32 s{sT2}, s{sT2}, {WS_VT}
        v_cmp_eq_u32 s[40:41], 17, v{dm}
        v_mov_b32 v{PK+8}, 0x3f803f80
        v_mov_b32 v{PK+9}, 0x3f803f80
        v_mov_b32 v{PK+10}, 0x3f803f80
        v_mov_b32 v{PK+11}, 0x3f803f80
        """)
        for tt in range(2):
            A = ACC[tt][ft]
            for k in range(8):
                P(f"v_cvt_pk_bf16_f32 v{PK + k}, v{A + 2 * k}, v{A + 2 * k + 1}")
            for sg in range(2):
                off = (2 * tt + sg) * 608
                P(f"buffer_store_dwordx4 {vr(PK + 4 * sg, 4)}, v{adr}, {ws}, s{sT2} offen offset:{off}")
        P(f"s_and_saveexec_b64 s[42:43], s[40:41]")
        sk = P.newlabel(pfx + "_noones")
        P(f"s_cbranch_execz {sk}")
        for g4 in range(4):
            P(f"buffer_store_dwordx4 {vr(PK + 8, 4)}, v{adr}, {ws}, s{sT2} offen offset:{g4 * 608 + 16}")
        P.L(sk)
        P("s_mov_b64 exec, s[42:43]")

    P.L(L("cend"))
    P(end_c or end)
    P.L(L("end"))
    P(end)
    return max(V.hi, VL.hi)
```

```python
from asmgen import *
from layout import *
import struct


def f32(x):
    return "0x%08x" % struct.unpack("<I", struct.pack("<f", x))[0]


def srd_from_kernarg(P, s, ka, nbytes):
    P(f"""
    s_load_dwordx2 s[{s}:{s+1}], s[0:1], {ka}
    s_mov_b32 s{s+2}, {nbytes}
    s_mov_b32 s{s+3}, 0x00020000
    """)


def emit_lambda(P, lre, lim, ldt, t, lr, li, coef=None):
    P(f"""
    v_lshlrev_b32 v{lre}, 16, v{lre}
    v_lshlrev_b32 v{lim}, 16, v{lim}
    v_lshlrev_b32 v{ldt}, 16, v{ldt}
    v_mul_f32 v{ldt}, {f32(LOG2E)}, v{ldt}
    v_exp_f32 v{ldt}, v{ldt}
    v_cvt_pk_bf16_f32 v{ldt}, v{ldt}, v{ldt}
    v_lshlrev_b32 v{ldt}, 16, v{ldt}
    v_mul_f32 v{t}, v{ldt}, v{lre}
    v_mul_f32 v{t+1}, v{ldt}, v{lim}
    v_mul_f32 v{t}, {f32(LOG2E)}, v{t}
    v_mul_f32 v{t+1}, 0.15915494, v{t+1}
    v_exp_f32 v{t}, v{t}
    v_cos_f32 v{t+2}, v{t+1}
    v_sin_f32 v{t+3}, v{t+1}
    v_mul_f32 v{lr}, v{t}, v{t+2}
    v_mul_f32 v{li}, v{t}, v{t+3}
    """)
    if coef:
        kr, ki = coef
        P(f"""
        v_add_f32 v{t}, -1.0, v{lr}
        v_mul_f32 v{t+1}, v{lre}, v{lre}
        v_fmac_f32 v{t+1}, v{lim}, v{lim}
        v_rcp_f32 v{t+1}, v{t+1}
        v_mul_f32 v{kr}, v{t}, v{lre}
        v_fmac_f32 v{kr}, v{li}, v{lim}
        v_mul_f32 v{ki}, v{li}, v{lre}
        v_mul_f32 v{t+2}, v{t}, v{lim}
        v_sub_f32 v{ki}, v{ki}, v{t+2}
        v_mul_f32 v{kr}, v{kr}, v{t+1}
        v_mul_f32 v{ki}, v{ki}, v{t+1}
        """)


class Prep:
    def __init__(self, P, V, s0, sAX, vLane, pfx="prep"):
        self.P, self.pfx, self.sAX, self.vLane = P, pfx, sAX, vLane
        S = Regs("s", s0, 84)
        self.sT = S.alloc(); self.sT2 = S.alloc(); self.sT3 = S.alloc()
        self.ptr = S.alloc(16, 4)
        self.pWo = S.alloc(2)
        self.sW = S.alloc()
        self.sSel = S.alloc(4); self.sSel2 = S.alloc(4)
        self.sF = [S.alloc() for _ in range(7)]
        self.sOn = S.alloc()
        self.X = [V.alloc(4) for _ in range(3)]
        self.B = [V.alloc(4) for _ in range(2)]
        self.Cr = V.alloc(4); self.Ci = V.alloc(4)
        self.W = V.alloc(8, 4)
        self.L = [V.alloc() for _ in range(3)]
        self.vL16 = V.alloc(); self.vXl = V.alloc(); self.vBl = V.alloc(); self.vWl = V.alloc()
        self.T = V.alloc(24, 4)

    def srds(self):
        P = self.P
        P(f"""
        s_load_dwordx16 s[{self.ptr}:{self.ptr+15}], s[0:1], {KA_LRE}
        s_load_dwordx2 s[{self.pWo}:{self.pWo+1}], s[0:1], {KA_WO}
        """)

    def use(self, srd, p, nbytes, on=None):
        self.P(f"""
        s_mov_b32 s{srd}, s{p}
        s_mov_b32 s{srd+1}, s{p+1}
        s_mov_b32 s{srd+3}, 0x00020000
        """)
        if on is None:
            self.P(f"s_mov_b32 s{srd+2}, {nbytes}")
        else:
            self.P(f"s_and_b32 s{srd+2}, s{on}, {nbytes}")


    def _br(self, cond_text, label):
        self.P(cond_text)
        self.P(f"s_cbranch_scc0 {label}")

    def index(self, sWG, sWv):
        P, s = self.P, self
        ln, T = s.vLane, s.T
        P(f"""
        s_lshl_b32 s{s.sW}, s{sWG}, 2
        s_add_u32 s{s.sW}, s{s.sW}, s{sWv}
        v_lshlrev_b32 v{s.vL16}, 4, v{ln}
        v_lshrrev_b32 v{T}, 5, v{ln}
        v_lshlrev_b32 v{T+1}, 4, v{T}
        v_and_b32 v{T+2}, 31, v{ln}
        s_movk_i32 s{s.sT}, 1152
        v_mul_lo_u32 v{s.vBl}, v{T+2}, s{s.sT}
        v_add_u32 v{s.vBl}, v{s.vBl}, v{T+1}
        v_lshrrev_b32 v{T+3}, 2, v{ln}
        v_and_b32 v{T+3}, 1, v{T+3}
        v_lshlrev_b32 v{T+3}, 5, v{T+3}
        v_lshrrev_b32 v{T+4}, 3, v{T+2}
        v_lshlrev_b32 v{T+4}, 2, v{T+4}
        v_add_u32 v{T+3}, v{T+3}, v{T+4}
        v_and_b32 v{T+4}, 3, v{ln}
        v_add_u32 v{T+3}, v{T+3}, v{T+4}
        v_mul_lo_u32 v{s.vXl}, v{T+3}, s{s.sT}
        v_add_u32 v{s.vXl}, v{s.vXl}, v{T+1}
        """)

    def _active(self, cond):
        self.P(cond)
        self.P(f"s_cselect_b32 s{self.sOn}, -1, 0")

    def loads_xb(self):
        P, s = self.P, self
        r4 = lambda n: f"s[{n}:{n+3}]"

        def xload(k, add, srd=None):
            f = s.sF[k]
            srd = s.sAX if srd is None else srd
            P(f"""
            s_add_u32 s{f}, s{s.sW}, {add}
            s_mul_i32 s{s.sT}, s{f}, 1821
            s_lshr_b32 s{s.sT}, s{s.sT}, 16
            s_mul_i32 s{s.sT2}, s{s.sT}, 36
            s_sub_u32 s{s.sT2}, s{f}, s{s.sT2}
            s_lshl_b32 s{s.sT2}, s{s.sT2}, 5
            s_lshr_b32 s{s.sT3}, s{s.sT}, 1
            s_mul_i32 s{s.sT3}, s{s.sT3}, {64 * 1152}
            s_add_u32 s{s.sT2}, s{s.sT2}, s{s.sT3}
            s_and_b32 s{s.sT}, s{s.sT}, 1
            s_mul_i32 s{s.sT}, s{s.sT}, {16 * 1152}
            s_add_u32 s{s.sT}, s{s.sT}, s{s.sT2}
            """)
            if srd != s.sAX:
                P(f"s_and_b32 s{s.sT}, s{s.sT}, s{s.sOn}")
            P(f"buffer_load_dwordx4 {vr(s.X[k],4)}, v{s.vXl}, {r4(srd)}, s{s.sT} offen")

        def bload(k, masked):
            f = s.sF[3 + k]
            P(f"""
            s_mul_i32 s{s.sT}, s{f}, 1821
            s_lshr_b32 s{s.sT}, s{s.sT}, 16
            s_mul_i32 s{s.sT2}, s{s.sT}, 36
            s_sub_u32 s{s.sT2}, s{f}, s{s.sT2}
            s_lshl_b32 s{s.sT2}, s{s.sT2}, 5
            s_lshr_b32 s{s.sT3}, s{s.sT}, 1
            s_mul_i32 s{s.sT3}, s{s.sT3}, {32 * 1152}
            s_add_u32 s{s.sT2}, s{s.sT2}, s{s.sT3}
            s_bitcmp1_b32 s{s.sT}, 0
            s_cselect_b32 s{s.sSel}, s{s.ptr+6}, s{s.ptr+4}
            s_cselect_b32 s{s.sSel+1}, s{s.ptr+7}, s{s.ptr+5}
            s_mov_b32 s{s.sSel+2}, {576 * 1152}
            s_mov_b32 s{s.sSel+3}, 0x00020000
            """)
            if masked:
                P(f"""
                s_and_b32 s{s.sSel+2}, s{s.sSel+2}, s{s.sOn}
                s_and_b32 s{s.sT2}, s{s.sT2}, s{s.sOn}
                """)
            P(f"buffer_load_dwordx4 {vr(s.B[k],4)}, v{s.vBl}, {r4(s.sSel)}, s{s.sT2} offen")

        xload(0, 0)
        xload(1, 1024)
        s._active(f"s_cmp_lt_u32 s{s.sW}, 256")
        s.use(s.sSel2, s.sAX, 2048 * 1152, s.sOn)
        xload(2, 2048, s.sSel2)
        P(f"s_mov_b32 s{s.sF[3]}, s{s.sW}")
        bload(0, False)
        P(f"""
        s_sub_u32 s{s.sT}, s{s.sW}, 256
        s_add_u32 s{s.sF[4]}, s{s.sT}, 1024
        """)
        s._active(f"s_cmp_lt_u32 s{s.sT}, 272")
        bload(1, True)
        return 5

    def loads_c(self):
        P, s = self.P, self
        ln, T = s.vLane, s.T
        r4 = lambda n: f"s[{n}:{n+3}]"
        P(f"s_sub_u32 s{s.sF[5]}, s{s.sW}, 376")
        s._active(f"s_cmp_lt_u32 s{s.sF[5]}, 648")
        P(f"""
        s_mul_i32 s{s.sT}, s{s.sF[5]}, 1821
        s_lshr_b32 s{s.sT}, s{s.sT}, 16
        s_mul_i32 s{s.sT2}, s{s.sT}, 36
        s_sub_u32 s{s.sT2}, s{s.sF[5]}, s{s.sT2}
        s_mul_i32 s{s.sF[6]}, s{s.sT}, 72
        s_add_u32 s{s.sF[6]}, s{s.sF[6]}, s{s.sT2}
        s_lshl_b32 s{s.sT2}, s{s.sT2}, 5
        s_mul_i32 s{s.sT3}, s{s.sT}, {32 * 1152}
        s_add_u32 s{s.sT3}, s{s.sT3}, s{s.sT2}
        s_and_b32 s{s.sT3}, s{s.sT3}, s{s.sOn}
        s_and_b32 s{s.sT2}, s{s.sT2}, s{s.sOn}
        """)
        self.use(s.sSel, s.ptr + 8, 576 * 1152, s.sOn)
        self.use(s.sSel2, s.ptr + 10, 576 * 1152, s.sOn)
        P(f"""
        buffer_load_dwordx4 {vr(s.Cr,4)}, v{s.vBl}, {r4(s.sSel)}, s{s.sT3} offen
        buffer_load_dwordx4 {vr(s.Ci,4)}, v{s.vBl}, {r4(s.sSel2)}, s{s.sT3} offen
        v_lshrrev_b32 v{T}, 5, v{ln}
        v_lshlrev_b32 v{T}, 3, v{T}
        v_and_b32 v{T+1}, 7, v{ln}
        v_add_u32 v{T}, v{T}, v{T+1}
        v_lshlrev_b32 v{T}, 1, v{T}
        """)
        for k, pidx in enumerate((0, 2, 12)):
            srd = (s.sSel, s.sSel2)[k & 1]
            self.use(srd, s.ptr + pidx, 1152, s.sOn)
            P(f"buffer_load_ushort v{s.L[k]}, v{T}, {r4(srd)}, s{s.sT2} offen")
        return 5

    def loads_w(self):
        P, s = self.P, self
        ln, T = s.vLane, s.T
        r4 = lambda n: f"s[{n}:{n+3}]"
        l4 = P.newlabel(s.pfx + "_w")
        s._active(f"s_cmp_lt_u32 s{s.sW}, 648")
        P(f"""
        s_mul_i32 s{s.sT}, s{s.sW}, 1821
        s_lshr_b32 s{s.sT}, s{s.sT}, 16
        s_mul_i32 s{s.sT2}, s{s.sT}, 36
        s_sub_u32 s{s.sT2}, s{s.sW}, s{s.sT2}
        v_and_b32 v{T}, 31, v{ln}
        v_lshlrev_b32 v{T}, 1, v{T}
        s_lshl_b32 s{s.sT}, s{s.sT}, 6
        v_add_u32 v{T}, s{s.sT}, v{T}
        v_lshrrev_b32 v{T+1}, 5, v{ln}
        s_mov_b32 s{s.sT3}, {72 * 1152}
        s_cmp_lt_u32 s{s.sT2}, 32
        s_cselect_b32 s{s.sT3}, {4 * 1152}, s{s.sT3}
        v_mul_lo_u32 v{T+1}, v{T+1}, s{s.sT3}
        v_add_u32 v{s.vWl}, v{T}, v{T+1}
        s_mul_i32 s{s.sT}, s{s.sT2}, {18 * 1152}
        s_sub_u32 s{s.sT3}, s{s.sT2}, 32
        s_mul_i32 s{s.sT3}, s{s.sT3}, {144 * 1152}
        s_add_u32 s{s.sT3}, s{s.sT3}, {16 * 1152}
        s_cmp_lt_u32 s{s.sT2}, 32
        s_cselect_b32 s{s.sT}, s{s.sT}, s{s.sT3}
        """)
        self.use(s.sSel, s.pWo, 576 * 1152, s.sOn)
        lhi = P.newlabel(s.pfx + "_whi")
        P(f"s_cmp_lt_u32 s{s.sT2}, 32")
        P(f"s_cbranch_scc0 {lhi}")
        for e in range(8):
            off = (e if e < 4 else e + 4) * 1152
            P(f"s_add_u32 s{s.sT3}, s{s.sT}, {off}")
            P(f"buffer_load_ushort v{s.W+e}, v{s.vWl}, {r4(s.sSel)}, s{s.sT3} offen")
        P(f"s_branch {l4}")
        P.L(lhi)
        for e in range(8):
            off = (18 * (e >> 1) + (e & 1)) * 1152
            P(f"s_add_u32 s{s.sT3}, s{s.sT}, {off}")
            P(f"buffer_load_ushort v{s.W+e}, v{s.vWl}, {r4(s.sSel)}, s{s.sT3} offen")
        P.L(l4)
        return 8

    def loads(self, sWG, sWv):
        self.index(sWG, sWv)
        return self.loads_xb() + self.loads_c() + self.loads_w()

    def _store(self, regs, f, base):
        s = self
        self.P(f"""
        s_lshl_b32 s{s.sT}, s{f}, 10
        s_add_u32 s{s.sT}, s{s.sT}, {base}
        buffer_store_dwordx4 {vr(regs,4)}, v{s.vL16}, s[4:7], s{s.sT} offen
        """)

    def finish(self):
        self.finish_xb()
        self.finish_cw()

    def finish_xb(self):
        P, s = self.P, self
        T = s.T
        ws = "s[4:7]"
        store = self._store
        store(s.X[0], s.sF[0], WS_XF)
        store(s.X[1], s.sF[1], WS_XF)
        l1 = P.newlabel(s.pfx + "_sx2")
        self._br(f"s_cmp_lt_u32 s{s.sW}, 256", l1)
        store(s.X[2], s.sF[2], WS_XF)
        P.L(l1)
        store(s.B[0], s.sF[3], WS_BF)
        l2 = P.newlabel(s.pfx + "_sb1")
        self._br(f"s_cmp_lt_u32 s{s.sF[4]}, 1296", l2)
        P(f"s_cmp_ge_u32 s{s.sF[4]}, 1024")
        P(f"s_cbranch_scc0 {l2}")
        store(s.B[1], s.sF[4], WS_BF)
        P.L(l2)
        l5 = P.newlabel(s.pfx + "_clr")
        self._br(f"s_cmp_lt_u32 s{s.sW}, 146", l5)
        P(f"""
        v_mov_b32 v{T}, 0
        v_mov_b32 v{T+1}, 0
        v_mov_b32 v{T+2}, 0
        v_mov_b32 v{T+3}, 0
        s_lshl_b32 s{s.sT}, s{s.sW}, 10
        s_add_u32 s{s.sT2}, s{s.sT}, {WS_E}
        s_add_u32 s{s.sT}, s{s.sT}, {WS_FLG - 144 * 1024}
        s_cmp_lt_u32 s{s.sW}, 144
        s_cselect_b32 s{s.sT}, s{s.sT2}, s{s.sT}
        buffer_store_dwordx4 {vr(T,4)}, v{s.vL16}, {ws}, s{s.sT} offen
        """)
        P.L(l5)

    def finish_cw(self):
        P, s = self.P, self
        T = s.T
        store = self._store
        l4 = P.newlabel(s.pfx + "_sw")
        self._br(f"s_cmp_lt_u32 s{s.sW}, 648", l4)
        for k in range(4):
            P(f"v_lshl_or_b32 v{T+k}, v{s.W+2*k+1}, 16, v{s.W+2*k}")
        store(T, s.sW, WS_WF)
        P.L(l4)
        l3 = P.newlabel(s.pfx + "_sc")
        self._br(f"s_cmp_lt_u32 s{s.sF[5]}, 648", l3)
        lr, li, kr, ki, t4 = T + 4, T + 5, T + 6, T + 7, T + 8
        emit_lambda(P, s.L[0], s.L[1], s.L[2], t4, lr, li, coef=(kr, ki))
        P(f"""
        v_add_f32 v{kr}, v{kr}, v{kr}
        v_add_f32 v{ki}, v{ki}, v{ki}
        """)
        R, I = T + 8, T + 16
        a, b = T + 4, T + 5
        for e in range(8):
            src_r, src_i = s.Cr + (e >> 1), s.Ci + (e >> 1)
            if e & 1:
                P(f"v_and_b32 v{a}, 0xffff0000, v{src_r}")
                P(f"v_and_b32 v{b}, 0xffff0000, v{src_i}")
            else:
                P(f"v_lshlrev_b32 v{a}, 16, v{src_r}")
                P(f"v_lshlrev_b32 v{b}, 16, v{src_i}")
            dpp = f"row_newbcast:{e} row_mask:0xf bank_mask:0xf"
            P(f"""
            v_mul_f32_dpp v{I+e}, v{ki}, v{b} {dpp}
            v_mul_f32_dpp v{R+e}, v{kr}, v{a} {dpp}
            v_sub_f32 v{R+e}, v{R+e}, v{I+e}
            v_mul_f32_dpp v{I+e}, v{ki}, v{a} {dpp}
            v_fmac_f32_dpp v{I+e}, v{kr}, v{b} {dpp}
            """)
        for k in range(4):
            P(f"v_cvt_pk_bf16_f32 v{s.Cr+k}, v{R+2*k}, v{R+2*k+1}")
            P(f"v_cvt_pk_bf16_f32 v{s.Ci+k}, -v{I+2*k}, -v{I+2*k+1}")
        store(s.Cr, s.sF[6], WS_CF)
        P(f"s_add_u32 s{s.sF[6]}, s{s.sF[6]}, 36")
        store(s.Ci, s.sF[6], WS_CF)
        P.L(l3)
```

```python
from asmgen import *
from layout import *
import common
import struct


def f32(x):
    return "0x%08x" % struct.unpack("<I", struct.pack("<f", x))[0]


BUF = 20480
HALF = 10240


def emit_attention(P, sWG, pfx="att", end="s_endpgm", exp=()):
    V = Regs("v", 1)
    SA = V.alloc(16); SB = V.alloc(16); OA = V.alloc(16); OB = V.alloc(16)
    PA = V.alloc(8); PB = V.alloc(8)
    QLA = V.alloc(4); QLB = V.alloc(4); QHA = V.alloc(2); QHB = V.alloc(2)
    KL = V.alloc(4); KH = V.alloc(2); V0 = V.alloc(4); V1 = V.alloc(4)
    vL16 = V.alloc(); vKL = V.alloc(); vKH = V.alloc(); vV = V.alloc()
    vT = V.alloc(); vT2 = V.alloc(); vLane = 0
    vGq = V.alloc()
    vD = [V.alloc() for _ in range(5)]
    sHead, sQB, sW, sQG, sKH = 8, 9, 10, 11, 12
    sG0, sG1, sSt0, sSt1, sM, sIt, sAtt = 13, 14, 15, 16, 17, 18, 19
    sT, sT2, sG0i, sG1i = 20, 21, 22, 23
    sMask = 24
    sTile = 26
    sDuty, sSub = 36, 37
    sVm = 34
    srd = "s[4:7]"
    L = lambda n: f"{pfx}_{n}"

    if "attp3" in exp:
        P("s_setprio 3")
    P(f"""
    s_and_b32 s{sT}, s{sWG}, 7
    s_lshl_b32 s{sT}, s{sT}, 2
    s_lshr_b32 s{sT2}, s{sWG}, 3
    s_and_b32 s{sT2}, s{sT2}, 3
    s_add_u32 s{sHead}, s{sT}, s{sT2}
    s_lshr_b32 s{sQB}, s{sWG}, 5
    v_lshrrev_b32 v{vT}, 6, v0
    v_and_b32 v{vLane}, 63, v0
    v_readfirstlane_b32 s{sW}, v{vT}
    v_lshlrev_b32 v{vL16}, 4, v{vLane}
    s_and_b32 s{sQG}, s{sW}, 3
    s_lshr_b32 s{sKH}, s{sW}, 2
    s_lshr_b32 s{sT}, s{sQG}, 1
    s_cmp_eq_u32 s{sT}, s{sKH}
    s_cselect_b32 s{sDuty}, 1, 0
    s_and_b32 s{sSub}, s{sQG}, 1
    s_mul_i32 s{sT}, s{sKH}, {HALF}
    v_add_u32 v{vKL}, s{sT}, v{vL16}
    v_and_b32 v{vT}, 31, v{vLane}
    v_lshlrev_b32 v{vKH}, 2, v{vT}
    v_lshrrev_b32 v{vT2}, 5, v{vLane}
    v_mul_u32_u24 v{vT2}, 18, v{vT2}
    v_add_u32 v{vT2}, v{vT2}, v{vT}
    v_lshlrev_b32 v{vV}, 4, v{vT2}
    v_add_u32 v{vV}, s{sT}, v{vV}
    s_lshl_b32 s{sTile}, s{sQB}, 3
    s_lshl_b32 s{sT2}, s{sQG}, 1
    s_add_u32 s{sTile}, s{sTile}, s{sT2}
    """)
    P(f"""
    s_lshl_b32 s{sT}, s{sHead}, 16
    s_lshl_b32 s{sT2}, s{sTile}, 10
    s_add_u32 s{sT}, s{sT}, s{sT2}
    s_add_u32 s{sT}, s{sT}, {WS_QLO}
    buffer_load_dwordx4 {vr(QLA,4)}, v{vL16}, {srd}, s{sT} offen
    buffer_load_dwordx4 {vr(QLB,4)}, v{vL16}, {srd}, s{sT} offen offset:1024
    s_lshl_b32 s{sT}, s{sHead}, 13
    s_lshl_b32 s{sT2}, s{sTile}, 7
    s_add_u32 s{sT}, s{sT}, s{sT2}
    s_add_u32 s{sT}, s{sT}, {WS_QHI}
    buffer_load_dword v{QHA}, v{vKH}, {srd}, s{sT} offen
    buffer_load_dword v{QHB}, v{vKH}, {srd}, s{sT} offen offset:128
    s_add_u32 s{sT}, s{sTile}, s{sKH}
    s_lshl_b32 s{sT}, s{sT}, 7
    s_add_u32 s{sT}, s{sT}, {WS_G}
    buffer_load_dword v{vGq}, v{vKH}, {srd}, s{sT} offen
    """)
    P(f"""
    s_lshl_b32 s{sT}, s{sHead}, 16
    s_lshl_b32 s{sT2}, s{sKH}, 15
    s_add_u32 s{sT}, s{sT}, s{sT2}
    s_add_u32 s27, s{sT}, {WS_KLO}
    s_lshl_b32 s{sT}, s{sHead}, 13
    s_lshl_b32 s{sT2}, s{sKH}, 12
    s_add_u32 s{sT}, s{sT}, s{sT2}
    s_add_u32 s28, s{sT}, {WS_KHI}
    s_mul_i32 s{sT}, s{sHead}, 288
    s_mul_i32 s{sT2}, s{sKH}, {64 * VT_GROUP}
    s_add_u32 s{sT}, s{sT}, s{sT2}
    s_add_u32 s29, s{sT}, {WS_VT}
    s_add_u32 s30, s27, 1024
    s_add_u32 s31, s28, 128
    s_cmp_eq_u32 s{sSub}, 0
    s_cselect_b32 s{sG0i}, s30, s29
    s_cselect_b32 s{sG1i}, s31, s29
    s_mov_b32 s30, {8 * VT_GROUP}
    s_cselect_b32 s{sSt0}, 4096, s30
    s_cselect_b32 s{sSt1}, 512, s30
    s_cselect_b64 vcc, -1, 0
    s_mul_i32 s{sM}, s{sKH}, {HALF}
    s_mul_i32 s{sT}, s{sSub}, 5120
    s_add_u32 s{sM}, s{sM}, s{sT}
    """)
    for u in range(5):
        P(f"""
        v_add_u32 v{SA}, {64 * u}, v{vLane}
        v_min_u32 v{SA}, 287, v{SA}
        v_mul_u32_u24 v{SA+1}, 3641, v{SA}
        v_lshrrev_b32 v{SA+1}, 16, v{SA+1}
        v_mul_u32_u24 v{SA+2}, {VT_HALF - 18 * 16}, v{SA+1}
        v_lshlrev_b32 v{SA}, 4, v{SA}
        v_add_u32 v{SA}, v{SA}, v{SA+2}
        v_subrev_u32 v{SA}, {(u & 3) * 1024}, v{SA}
        v_cndmask_b32 v{vD[u]}, v{SA}, v{vL16}, vcc
        """)
    P(f"""
    v_cmp_gt_u32 vcc, 32, v{vLane}
    v_mov_b32 v{QHA+1}, 0
    v_mov_b32 v{QHB+1}, 0
    v_mov_b32 v{KH+1}, 0x3f803f80
    s_mov_b32 s{sAtt}, 0
    s_mov_b32 s{sVm}, 0x3ffff
    s_mov_b32 s{sVm+1}, 0x3ffff
    """)

    def dma(par):
        skip = P.newlabel(pfx + "_nodma")
        P(f"""
        s_cmp_eq_u32 s{sDuty}, 0
        s_cbranch_scc1 {skip}
        s_add_u32 m0, s{sM}, {par * BUF}
        s_nop 0
        buffer_load_dwordx4 v{vD[0]}, {srd}, s{sG0} offen lds
        buffer_load_dwordx4 v{vD[1]}, {srd}, s{sG0} offen offset:1024 lds
        buffer_load_dwordx4 v{vD[2]}, {srd}, s{sG0} offen offset:2048 lds
        buffer_load_dwordx4 v{vD[3]}, {srd}, s{sG0} offen offset:3072 lds
        s_add_u32 m0, s{sM}, {par * BUF + 4096}
        s_add_u32 s{sG0}, s{sG0}, s{sSt0}
        buffer_load_dwordx4 v{vD[4]}, {srd}, s{sG1} offen lds
        s_add_u32 s{sG1}, s{sG1}, s{sSt1}
        """)
        P.L(skip)

    P.L(L("start"))
    P(f"""
    buffer_load_dwordx4 {vr(KL,4)}, v{vL16}, {srd}, s27 offen
    buffer_load_dword v{KH}, v{vKH}, {srd}, s28 offen
    s_mov_b32 s{sG0}, s{sG0i}
    s_mov_b32 s{sG1}, s{sG1i}
    """)
    dma(0)
    dma(1)
    P(f"""
    s_mul_i32 s{sT}, s{sKH}, {HALF}
    v_add_u32 v{vT2}, s{sT}, v{vKH}
    s_mov_b32 s{sIt}, 0
    v_cmp_gt_u32 vcc, 32, v{vLane}
    """)
    for r in range(8):
        P(f"v_mov_b32 v{PB + r}, 0")
    P(f"v_and_b32 v{vT}, 31, v{vLane}")
    P(f"v_cmp_eq_u32 s[{sMask}:{sMask+1}], 18, v{vT}")
    P(f"v_mov_b32 v{vT}, 0x3f803f80")
    for r in range(4):
        P(f"v_cndmask_b32 v{V0 + r}, 0, v{vT}, s[{sMask}:{sMask+1}]")
        P(f"v_cndmask_b32 v{V1 + r}, 0, v{vT}, s[{sMask}:{sMask+1}]")
    P(f"""
    v_cndmask_b32 v{QHA}, 0, v{QHA}, vcc
    v_cndmask_b32 v{QHB}, 0, v{QHB}, vcc
    v_mfma_f32_32x32x8bf16_1k {vr(SA,16)}, {vr(KH,2)}, {vr(QHA,2)}, 0
    v_mfma_f32_32x32x16_bf16 {vr(SA,16)}, {vr(KL,4)}, {vr(QLA,4)}, {vr(SA,16)}
    """)
    for r in range(16):
        P(f"v_mov_b32 v{OA + r}, 0")
        P(f"v_mov_b32 v{OB + r}, 0")
    P(f"""
    s_waitcnt vmcnt(5)
    s_barrier
    """)
    vKHl = vT2

    def valu_seq(S, Pk):
        seq = []
        e = lambda r: f"v_exp_f32 v{S + r}, v{S + r}"
        c = lambda k: f"v_cvt_pk_bf16_f32 v{Pk + k}, v{S + 2 * k}, v{S + 2 * k + 1}"
        seq += [e(0), e(1)]
        for k in range(7):
            seq += [e(2 * k + 2), c(k), e(2 * k + 3)]
        seq += [None, c(7)]
        return seq

    def phase(S, Pk, mf, extra):
        seq = valu_seq(S, Pk)
        pos = [0, 6, 12, 18]
        k = 0
        out = []
        for idx, ins in enumerate(seq):
            if k < 4 and idx == pos[k]:
                out += mf[k] if isinstance(mf[k], list) else [mf[k]]
                out += extra.get(k, [])
                k += 1
            if ins is None:
                out.append("s_nop 0")
            else:
                out.append(ins)
        for o in out:
            P(o)

    def qk(S, QH, QL):
        return [f"v_mfma_f32_32x32x8bf16_1k {vr(S,16)}, {vr(KH,2)}, {vr(QH,2)}, 0",
                f"v_mfma_f32_32x32x16_bf16 {vr(S,16)}, {vr(KL,4)}, {vr(QL,4)}, {vr(S,16)}"]

    def pv(O, Pk):
        return [f"v_mfma_f32_32x32x16_bf16 {vr(O,16)}, {vr(V0,4)}, {vr(Pk,4)}, {vr(O,16)}",
                f"v_mfma_f32_32x32x16_bf16 {vr(O,16)}, {vr(V1,4)}, {vr(Pk+4,4)}, {vr(O,16)}"]

    def step(par, t):
        a = qk(SB, QHB, QLB); b = pv(OB, PB)
        ex = {1: [f"ds_read_b32 v{KH}, v{vKHl} offset:{par * BUF + 4096 + t * 128}",
                  f"ds_read_b128 {vr(KL,4)}, v{vKL} offset:{par * BUF + t * 1024}"],
              3: [f"ds_read_b128 {vr(V0,4)}, v{vV} offset:{par * BUF + 5120 + 2 * t * 576}",
                  f"ds_read_b128 {vr(V1,4)}, v{vV} offset:{par * BUF + 5120 + (2 * t + 1) * 576}"]}
        if "nozero" not in exp:
            ex[3] = [f"s_mov_b64 exec, s[{sVm}:{sVm+1}]"] + ex[3] + ["s_mov_b64 exec, -1"]
        if "noread" in exp:
            ex = {}
        phase(SA, PA, [a[0], a[1], b[0], b[1]], ex)
        a = qk(SA, QHA, QLA); b = pv(OA, PA)
        phase(SB, PB, [["s_waitcnt lgkmcnt(2)", a[0]], a[1], ["s_waitcnt lgkmcnt(0)", b[0]], b[1]], {})

    common.mark(P, 0)
    prio_of = lambda c, t: 3 - t
    if 'attp1' in exp:
        prio_of = lambda c, t: max(1, 3 - t)
    if 'attp2' in exp:
        prio_of = lambda c, t: (3, 2, 2, 1)[t]
    for c in range(8):
        par = c & 1
        for t in range(4):
            if "noprio" not in exp:
                P(f"s_setprio {prio_of(c, t)}")
            step(par, t)
        P("s_waitcnt vmcnt(0) lgkmcnt(0)")
        if "nobar" not in exp:
            P("s_barrier")
        if c < 6 and "nodma" not in exp:
            dma(par)
        common.mark(P, 4 + c)
    common.mark(P, 1)
    for m in pv(OB, PB):
        P(m)

    XL = 24576
    P(f"""
    s_lshl_b32 s{sT}, s{sQG}, 9
    s_lshl_b32 s{sT2}, s{sKH}, 2
    s_add_u32 s{sT}, s{sT}, s{sT2}
    s_add_u32 s{sT}, s{sT}, {XL}
    v_and_b32 v{vT}, 31, v{vLane}
    v_lshlrev_b32 v{vT}, 3, v{vT}
    v_add_u32 v{vT}, s{sT}, v{vT}
    s_mul_i32 s{sT}, s{sW}, 3072
    v_add_u32 v{SA}, s{sT}, v{vL16}
    s_xor_b32 s{sT2}, s{sW}, 4
    s_mul_i32 s{sT2}, s{sT2}, 3072
    v_add_u32 v{SA+1}, s{sT2}, v{vL16}
    s_mov_b32 exec_hi, 0
    ds_write_b32 v{vT}, v{OA+10}
    ds_write_b32 v{vT}, v{OB+10} offset:256
    s_mov_b32 exec_hi, -1
    s_cmp_eq_u32 s{sKH}, 0
    s_cbranch_scc0 {L('send_a')}
    ds_write_b128 v{SA}, {vr(OB,4)}
    ds_write_b128 v{SA}, {vr(OB+4,4)} offset:1024
    ds_write_b128 v{SA}, {vr(OB+8,4)} offset:2048
    s_branch {L('sent')}
    """)
    P.L(L("send_a"))
    P(f"""
    ds_write_b128 v{SA}, {vr(OA,4)}
    ds_write_b128 v{SA}, {vr(OA+4,4)} offset:1024
    ds_write_b128 v{SA}, {vr(OA+8,4)} offset:2048
    s_waitcnt lgkmcnt(0)
    """)
    for r in range(12):
        P(f"v_mov_b32 v{OA + r}, v{OB + r}")
    P.L(L("sent"))
    P(f"""
    s_waitcnt lgkmcnt(0)
    s_barrier
    ds_read_b128 {vr(SB,4)}, v{SA+1}
    ds_read_b128 {vr(SB+4,4)}, v{SA+1} offset:1024
    ds_read_b128 {vr(SB+8,4)}, v{SA+1} offset:2048
    v_lshlrev_b32 v{vT}, 3, v{vLane}
    ds_read_b64 {vr(PA,2)}, v{vT} offset:{XL}
    ds_read_b64 {vr(PA+2,2)}, v{vT} offset:{XL + 512}
    ds_read_b64 {vr(PB,2)}, v{vT} offset:{XL + 1024}
    ds_read_b64 {vr(PB+2,2)}, v{vT} offset:{XL + 1536}
    """)
    for r in range(11):
        P(f"v_add_f32 v{OA + r}, v{OA + r}, v{SB + r}")
    P(f"""
    v_add_f32 v{PA}, v{PA}, v{PA+1}
    v_add_f32 v{PA+2}, v{PA+2}, v{PA+3}
    v_add_f32 v{PB}, v{PB}, v{PB+1}
    v_add_f32 v{PB+2}, v{PB+2}, v{PB+3}
    s_cmp_eq_u32 s{sAtt}, 1
    s_cbranch_scc1 {L('final')}
    v_mov_b32 v{PA+6}, {f32(2.0 ** -64)}
    v_mov_b32 v{PA+7}, {f32(2.0 ** 64)}
    s_mov_b64 s[{sMask}:{sMask+1}], exec
    """)
    for r in (PA, PA + 2, PB, PB + 2):
        P(f"""
        v_cmp_ge_f32 vcc, v{r}, v{PA+6}
        s_and_b64 s[{sMask}:{sMask+1}], s[{sMask}:{sMask+1}], vcc
        v_cmp_le_f32 vcc, v{r}, v{PA+7}
        s_and_b64 s[{sMask}:{sMask+1}], s[{sMask}:{sMask+1}], vcc
        """)
    P(f"""
    s_andn2_b64 s[{sMask}:{sMask+1}], exec, s[{sMask}:{sMask+1}]
    s_cbranch_scc1 {L('maxpass')}
    """)
    P.L(L("final"))
    common.mark(P, 2)
    P(f"""
    v_mov_b32 v{SB}, v{OA+10}
    v_mov_b32 v{SB+1}, v{OA+10}
    s_add_u32 s{sTile}, s{sTile}, s{sKH}
    s_mul_i32 s{sT}, s{sTile}, {36 * 1024}
    v_permlane32_swap_b32 v{SB}, v{SB+1}
    s_add_u32 s{sT}, s{sT}, {WS_OF}
    v_rcp_f32 v{SB}, v{SB}
    {"v_mov_b32 v%d, 1.0" % (SB + 1) if "oldtail" in exp else "v_sub_f32 v%d, 1.0, v%d" % (SB + 1, vGq)}
    s_lshl_b32 s{sT2}, s{sHead}, 10
    s_add_u32 s{sT2}, s{sT2}, s{sT}
    v_mul_f32 v{SB}, v{SB}, v{SB+1}
    """)
    for r in range(10):
        P(f"v_mul_f32 v{OA + r}, v{OA + r}, v{SB}")
    for k in range(5):
        P(f"v_cvt_pk_bf16_f32 v{PA + k}, v{OA + 2 * k}, v{OA + 2 * k + 1}")
    P(f"""
    buffer_store_dwordx4 {vr(PA,4)}, v{vL16}, {srd}, s{sT2} offen sc1
    s_lshr_b32 s{sT2}, s{sHead}, 3
    s_add_u32 s{sT2}, s{sT2}, 32
    s_lshl_b32 s{sT2}, s{sT2}, 10
    s_add_u32 s{sT}, s{sT}, s{sT2}
    s_lshr_b32 s{sT2}, s{sHead}, 2
    s_and_b32 s{sT2}, s{sT2}, 1
    s_lshl_b32 s{sT2}, s{sT2}, 9
    s_add_u32 s{sT}, s{sT}, s{sT2}
    s_and_b32 s{sT2}, s{sHead}, 3
    s_lshl_b32 s{sT2}, s{sT2}, 2
    s_add_u32 s{sT}, s{sT}, s{sT2}
    s_mov_b32 exec_hi, 0
    buffer_store_dword v{PA+4}, v{vL16}, {srd}, s{sT} offen sc1
    s_waitcnt vmcnt(0)
    s_barrier
    s_cmp_eq_u32 s{sW}, 0
    s_cbranch_scc0 {L('noflag')}
    s_lshl_b32 s{sT}, s{sQB}, 7
    s_lshl_b32 s{sT2}, s{sHead}, 2
    s_add_u32 s{sT}, s{sT}, s{sT2}
    s_add_u32 s{sT}, s{sT}, {WS_FLG + FLG_ATT}
    v_mov_b32 v{PA}, 1
    v_mov_b32 v{PA+1}, 0
    s_mov_b32 exec_lo, 1
    buffer_store_dword v{PA}, v{PA+1}, {srd}, s{sT} offen sc1
    """)
    P.L(L("noflag"))
    P(end)

    P.L(L("maxpass"))
    P(f"""
    s_barrier
    s_mov_b32 s{sAtt}, 1
    s_mov_b32 s{sIt}, 0
    s_mov_b32 s{sG0}, s27
    s_mov_b32 s{sG1}, s28
    v_mov_b32 v{QHA+1}, 0
    v_mov_b32 v{QHB+1}, 0
    v_mov_b32 v{PA}, 0xff800000
    v_mov_b32 v{PB}, 0xff800000
    """)
    P.L(L("maxloop"))
    P(f"""
    buffer_load_dwordx4 {vr(KL,4)}, v{vL16}, {srd}, s{sG0} offen
    buffer_load_dword v{KH}, v{vKH}, {srd}, s{sG1} offen
    s_add_u32 s{sG0}, s{sG0}, 1024
    s_add_u32 s{sG1}, s{sG1}, 128
    """)
    for m in qk(SA, QHA, QLA) + qk(SB, QHB, QLB):
        P(m)
    for S, M in ((SA, PA), (SB, PB)):
        for r in range(0, 16, 2):
            P(f"v_max3_f32 v{M}, v{S + r}, v{S + r + 1}, v{M}")
    P(f"""
    s_add_u32 s{sIt}, s{sIt}, 1
    s_cmp_lt_u32 s{sIt}, 32
    s_cbranch_scc1 {L('maxloop')}
    """)
    for M in (PA, PB):
        P(f"""
        v_mov_b32 v{M+1}, v{M}
        v_mov_b32 v{M+2}, v{M}
        v_permlane32_swap_b32 v{M+1}, v{M+2}
        v_max3_f32 v{M}, v{M}, v{M+1}, v{M+2}
        """)
    P(f"""
    s_lshl_b32 s{sT}, s{sW}, 9
    v_lshlrev_b32 v{vT}, 3, v{vLane}
    v_add_u32 v{SA}, s{sT}, v{vT}
    s_xor_b32 s{sT}, s{sW}, 4
    s_lshl_b32 s{sT}, s{sT}, 9
    v_add_u32 v{SA+1}, s{sT}, v{vT}
    v_mov_b32 v{PA+1}, v{PB}
    ds_write_b64 v{SA}, {vr(PA,2)}
    s_waitcnt lgkmcnt(0)
    s_barrier
    ds_read_b64 {vr(PA+2,2)}, v{SA+1}
    v_cmp_gt_u32 vcc, 32, v{vLane}
    v_max_f32 v{PA}, v{PA}, v{PA+2}
    v_max_f32 v{PB}, v{PB}, v{PA+3}
    """)
    for M, QH in ((PA, QHA), (PB, QHB)):
        P(f"""
        v_sub_f32 v{M}, 0, v{M}
        v_and_b32 v{M+1}, 0xffff0000, v{M}
        v_sub_f32 v{M+2}, v{M}, v{M+1}
        v_and_b32 v{M+3}, 0xffff0000, v{M+2}
        v_sub_f32 v{M+4}, v{M+2}, v{M+3}
        v_lshrrev_b32 v{M+5}, 16, v{M+1}
        v_or_b32 v{M+5}, v{M+5}, v{M+3}
        v_lshrrev_b32 v{M+6}, 16, v{M+4}
        v_cndmask_b32 v{QH+1}, v{M+6}, v{M+5}, vcc
        """)
    P(f"""
    s_barrier
    s_branch {L('start')}
    """)
    return V.hi
```

```python
import sys
from common import *
import common
from k1 import emit_k1, K1_LDS
from att import emit_attention
from svc import emit_service, SVC_LDS
import svc_v1

KNAME = "gated_mix__ssm_conv_s5__softmax_full_mha__prompt_kernel"

def k_k1(timing=False, name="k1_kernel", exp=()):
    P = Prog()
    P.L(name)
    if timing:
        timing_start(P, 84, 4); P("v_lshrrev_b32 v166, 6, v0")
    ws_srd(P)
    P("s_cmp_ge_u32 s2, 256\ns_cbranch_scc1 k1_exit")
    nv = emit_k1(P, 2, end="s_branch tk_exit" if timing else "s_endpgm", exp=exp, end_c="s_branch tc_exit" if timing else None)
    P.L("k1_exit")
    P("s_endpgm")
    if timing and "dbgt" in exp:
        dbg_exit(P, "tc_exit", 0, {0: "nstart", 1: "end"}, 15, [0], 166)
        dbg_exit(P, "tk_exit", 0, {0: "nstart", 1: "end"}, 15, [4, 8], 166); nv = 168
        common.TIMING = False
    elif timing:
        timing_exit(P, "tc_exit", slot=3, vw=166, wgshift=11)
        common.MK0, common.NMARK = 84, 4
        timing_exit(P, "tk_exit", slot=3, vw=166, wgshift=11); nv = 168
        common.TIMING = False
    return name, P.finalize([name]), nv, (name, 256, K1_LDS, 768)

def k_att(timing=False):
    P = Prog(); name = "att_kernel"
    P.L(name)
    if timing:
        timing_start(P); P("v_lshrrev_b32 v127, 6, v0")
    ws_srd(P)
    P("s_cmp_ge_u32 s2, 256\ns_cbranch_scc1 att_exit")
    nv = emit_attention(P, 2, end="s_branch ta_exit" if timing else "s_endpgm")
    P.L("att_exit")
    P("s_endpgm")
    if timing:
        timing_exit(P, "ta_exit", slot=0, vw=127); nv = 128
        common.TIMING = False
    return name, P.finalize([name]), nv, (name, 256, 40960, 512)

def k_svc(timing=False, exp=()):
    P = Prog(); name = "svc_kernel"
    P.L(name)
    if timing:
        timing_start(P); P("v_lshrrev_b32 v127, 6, v0")
    ws_srd(P)
    P("s_cmp_ge_u32 s2, 144\ns_cbranch_scc1 svc_exit")
    nv = emit_service(P, 2, end="s_branch ts_exit" if timing else "s_endpgm", exp=exp)
    P.L("svc_exit")
    P("s_endpgm")
    if timing:
        timing_exit(P, "ts_exit", slot=1, vw=127); nv = 128
        common.TIMING = False
    return name, P.finalize([name]), nv, (name, 144, SVC_LDS, 512)

def k_l2(timing=False, exp=()):
    P = Prog(); name = "l2_kernel"
    P.L(name)
    if timing:
        timing_start(P); P("v_lshrrev_b32 v127, 6, v0")
    ws_srd(P)
    P("""
    s_cmp_ge_u32 s2, 400
    s_cbranch_scc1 l2_exit
    s_cmp_ge_u32 s2, 256
    s_cbranch_scc1 l2_svc
    """)
    e = "s_branch tl_exit" if timing else "s_endpgm"
    nv = emit_attention(P, 2, end=e, exp=exp)
    P.L("l2_svc")
    P("s_sub_u32 s3, s2, 256")
    nv = max(nv, (svc_v1.emit_service if "oldtail" in exp else emit_service)(P, 3, end="s_branch ts_exit" if timing and "dbgt" in exp else e, exp=exp))
    P.L("l2_exit")
    P("s_endpgm")
    if timing and "dbgt" in exp:
        dbg_exit(P, "tl_exit", 512, {2: "nstart", 3: 0, 4: 1, 5: "end"}, 14, [0, 4], 127)
        dbg_exit(P, "ts_exit", 512, {6: 4, 7: 6, 8: 1, 9: 2, 10: 3, 11: 10, 12: "end"}, 13, [0, 4], 127); nv = 128
        common.TIMING = False
    elif timing:
        timing_exit(P, "tl_exit", slot=0, vw=127); nv = 128
        common.TIMING = False
    return name, P.finalize([name]), nv, (name, 400, SVC_LDS, 512)

def k_empty():
    P = Prog(); name = "nop_kernel"
    P.L(name)
    P("s_endpgm")
    return name, P.finalize([name]), 8, (name, 1, 0, 64)

def assemble(ks, order=None):
    txt = launch_text([ks[i][3] for i in order] if order else [k[3] for k in ks])
    txt += '.amdgcn_target "amdgcn-amd-amdhsa--gfx950"\n.text\n'
    for name, body, nv, _ in ks:
        txt += kernel_header(name) + body
    txt += '.section .rodata,"a"\n.p2align 6\n'
    for name, body, nv, _ in ks:
        assert nv <= 256
        txt += kernel_desc(name, nv)
    return txt

def build(mode="sep", timing=False, exp=()):
    common.TIMING = False
    if "dbgt" in exp:
        timing = True
        common.REAL = True
    if mode == "m2":
        ks = [k_k1(timing, exp=exp), k_l2(timing, exp)]
    elif mode == "k1":
        ks = [k_k1(timing, exp=exp)]
    for e in exp:
        if e.startswith("k1st=") or e.startswith("outst="):
            key, mods = e.split("=")
            mods = " " + mods.replace("_", " ")
            for i, (name, body, nv, l) in enumerate(ks):
                out = []
                for ln in body.split("\n"):
                    t = ln.strip()
                    if t.startswith("buffer_store") and "sc1" not in t:
                        if (key == "k1st" and name == "k1_kernel" and "s98" not in t) or (key == "outst" and name == "l2_kernel" and "s[40:43]" in t):
                            ln = ln + mods
                    out.append(ln)
                ks[i] = (name, "\n".join(out), nv, l)
    order = None
    for e in exp:
        if e.startswith("order="):
            ks.append(k_empty())
            order = [int(c) if c != "e" else len(ks) - 1 for c in e[6:]]
            if "e" not in e[6:]:
                ks.pop()
    print("vgprs", [(k[0], k[2]) for k in ks])
    return assemble(ks, order)

if __name__ == "__main__":
    mode = sys.argv[1] if len(sys.argv) > 1 else "sep"
    t = build(mode, True)
    open("out/all.s", "w").write(t)
    print(len(t))
```

```python
from asmgen import *
from layout import *

def ws_srd(P):
    P(f"""
    s_load_dwordx2 s[4:5], s[0:1], {KA_WS}
    s_mov_b32 s6, {WS_SIZE}
    s_mov_b32 s7, 0x00020000
    """)

TIMING = False
REAL = False
WSEL = slice(0, 4)
NMARK = 16
MK0 = 52
REC = 128

def timing_start(P, mk0=52, nmark=16):
    global TIMING, MK0, NMARK
    TIMING = True
    MK0, NMARK = mk0, nmark
    P("""
    s_memrealtime s[96:97]
    s_memtime s[94:95]
    s_waitcnt lgkmcnt(0)
    """)
    for k in range(NMARK):
        P(f"s_mov_b32 s{MK0 + 2 * k}, " + ("0" if REAL else "s94"))

def mark(P, k):
    if TIMING and k < NMARK:
        P(f"""
        {"s_memrealtime" if REAL else "s_memtime"} s[{MK0 + 2 * k}:{MK0 + 1 + 2 * k}]
        s_waitcnt lgkmcnt(0)
        """)

def timing_exit(P, label, slot=0, vw=255, wgshift=10):
    P.L(label)
    P(f"""
    s_waitcnt vmcnt(0)
    s_memrealtime s[98:99]
    s_memtime s[92:93]
    s_waitcnt lgkmcnt(0)
    s_sub_u32 s92, s92, s94
    s_mov_b64 exec, -1
    s_getreg_b32 s97, hwreg(HW_REG_HW_ID)
    s_getreg_b32 s99, hwreg(HW_REG_XCC_ID)
    s_and_b32 s99, s99, 15
    s_lshl_b32 s92, s92, 4
    s_or_b32 s99, s99, s92
    v_mov_b32 v2, s96
    v_mov_b32 v3, s97
    v_mov_b32 v4, s98
    v_mov_b32 v5, s99
    """)
    for k in range(16):
        if k < NMARK:
            P(f"s_sub_u32 s{MK0 + 2 * k}, s{MK0 + 2 * k}, s94")
            P(f"v_mov_b32 v{6 + k}, s{MK0 + 2 * k}")
        else:
            P(f"v_mov_b32 v{6 + k}, 0")
    P(f"""
    s_lshl_b32 s98, s2, {wgshift}
    s_add_u32 s98, s98, {WS_TIM + slot * 0x80000}
    v_readfirstlane_b32 s99, v{vw}
    s_lshl_b32 s99, s99, 7
    s_add_u32 s98, s98, s99
    v_mov_b32 v1, 0
    s_mov_b32 exec_hi, 0
    s_mov_b32 exec_lo, 1
    """)
    for q in range(5):
        P(f"buffer_store_dwordx4 v[{2 + 4 * q}:{5 + 4 * q}], v1, s[4:7], s98 offen offset:{16 * q}")
    P("s_endpgm")

def launch_text(kernels):
    t = ""
    for k in kernels:
        name, grid, lds = k[:3]
        blk = k[3] if len(k) > 3 else 256
        t += f"; @launch kernel={name} grid=({grid},1,1) block=({blk},1,1) lds={lds}\n"
    return t

def decode_times(res, nwg, slot=0, nw=8):
    import numpy as np
    a = res[WS_TIM + slot * 0x80000: WS_TIM + slot * 0x80000 + nwg * nw * 128].view(np.uint32).reshape(nwg, nw, 32)[:, WSEL if nw == 8 else slice(0, 12)]
    st, en = a[:, :, 0].astype(np.int64), a[:, :, 2].astype(np.int64)
    t0 = st.min()
    hw = a[:, 0, 1]; xcc = a[:, 0, 3] & 0xf
    cu = [(int(xcc[i]), int((hw[i] >> 13) & 7), int((hw[i] >> 12) & 1), int((hw[i] >> 8) & 0xf)) for i in range(nwg)]
    global last_cycles, last_marks
    last_marks = a[:, :, 4:20].astype(np.int64)
    last_cycles = (a[:, :, 3] >> 4).astype(np.int64)
    return (st - t0) / 100.0, (en - t0) / 100.0, cu

def summarize_times(res, nwg, slot=0, label="", nw=8):
    import numpy as np, collections
    st, en, cu = decode_times(res, nwg, slot, nw)
    d = collections.defaultdict(list)
    for i, k in enumerate(cu):
        d[k].append(i)
    hist = collections.Counter(len(v) for v in d.values())
    dur = (en - st).max(1)
    s = "%s start: max %.2f med %.2f | end: min %.2f med %.2f max %.2f | dur med %.2f max %.2f | WGs/CU %s" % (
        label, st.max(), np.median(st), en.min(), np.median(en), en.max(), np.median(dur), dur.max(), dict(hist))
    bycount = collections.defaultdict(list)
    for k, v in d.items():
        for i in v:
            bycount[len(v)].append(dur[i])
    s += " | GHz %.3f" % float(np.median(last_cycles / ((en - st) * 1000.0)))
    s += " | cyc total med %d marks med %s" % (np.median(last_cycles), [int(np.median(last_marks[:, :, k])) for k in range(4)])
    s += " | dur by co-residency " + str({k: round(float(np.median(v)), 2) for k, v in bycount.items()})
    return s


def dbg_exit(P, label, back, slots, sumslot, waves, vw):
    P.L(label)
    P(f"""
    s_waitcnt vmcnt(0)
    s_memrealtime s[98:99]
    s_load_dwordx2 s[88:89], s[0:1], {KA_DBG}
    s_waitcnt lgkmcnt(0)
    s_mov_b64 exec, -1
    v_readfirstlane_b32 s92, v{vw}
    s_sub_u32 s88, s88, {back}
    s_subb_u32 s89, s89, 0
    s_mov_b32 s90, 64
    s_mov_b32 s91, 0x00020000
    s_not_b32 s97, s96
    v_and_b32 v1, 63, v0
    v_lshlrev_b32 v2, 2, v1
    v_mov_b32 v3, 0
    """)
    done = P.newlabel("dbg_done")
    ok = P.newlabel("dbg_ok")
    for w in waves:
        P(f"s_cmp_eq_u32 s92, {w}\ns_cbranch_scc1 {ok}")
    P(f"s_branch {done}")
    P.L(ok)
    for slot, src in slots.items():
        reg = {"nstart": 97, "end": 98}.get(src) or (MK0 + 2 * src)
        P(f"""
        v_mov_b32 v4, s{reg}
        v_cmp_eq_u32 vcc, {slot}, v1
        v_cndmask_b32 v3, v3, v4, vcc
        """)
    P(f"""
    s_mov_b32 exec_hi, 0
    s_mov_b32 exec_lo, 0xffff
    buffer_atomic_umax v3, v2, s[88:91], 0 offen sc1
    s_cmp_eq_u32 s92, {waves[0]}
    s_cbranch_scc0 {done}
    s_mov_b32 exec_lo, 1
    v_mov_b32 v3, s98
    v_mov_b32 v2, {4 * sumslot}
    buffer_atomic_add v3, v2, s[88:91], 0 offen sc1
    """)
    P.L(done)
    P("s_waitcnt vmcnt(0)\ns_endpgm")
```

```python
from asmgen import *
from layout import *
import common
import struct
from prepk import Prep, srd_from_kernarg


def f32(x):
    return "0x%08x" % struct.unpack("<I", struct.pack("<f", x))[0]


NST = 5
PRE = 2
LA = 3
STAGE = 32768
K1_LDS = NST * STAGE


class Queue:
    def __init__(self, P, q=()):
        self.P, self.q = P, list(q)

    def copy(self):
        return Queue(self.P, self.q)

    def add(self, tag, n):
        self.q += [tag] * n

    def wait(self, tag):
        idx = max(i for i, e in enumerate(self.q) if e == tag)
        self.P(f"s_waitcnt vmcnt({len(self.q) - 1 - idx})")


def emit_k1(P, sWG, pfx="k1", end="s_endpgm", exp=(), end_c=None):
    XE = 6
    ROT = (2, 1)
    wmask = "k1wm" in exp
    for e in exp:
        if e.startswith("k1xe="): XE = int(e[5:])
        if e.startswith("k1rot="): ROT = tuple(int(x) for x in e[6:].split("_"))
    noprep = "k1noprep" in exp
    vT = list(range(1, 9))
    V = Regs("v", 9)
    ACC = [[V.alloc(16) for _ in range(2)] for _ in range(2)]
    XF = [[V.alloc(4) for _ in range(2)] for _ in range(2)]
    WF = [[V.alloc(4) for _ in range(2)] for _ in range(2)]
    vXR = [V.alloc() for _ in range(4)]
    vWR = [V.alloc() for _ in range(2)]
    vXR2 = [V.alloc() for _ in range(4)]
    vWR2 = [V.alloc() for _ in range(2)]
    vXR3 = [V.alloc() for _ in range(4)]
    vWR3 = [V.alloc() for _ in range(2)]
    vD = [9, 10, 11, 12]
    VX = Regs("v", 13)
    vXA = VX.alloc(); vXT = VX.alloc(); XR = VX.alloc(4)
    VW = Regs("v", 13)
    vGA = VW.alloc(); vGO = VW.alloc()
    GX = [VW.alloc(4) for _ in range(9)]; GW = [VW.alloc(4) for _ in range(9)]
    vLane = 0
    sX, sW_, sD, sGW = 8, 12, 16, 20
    sTB, sFG, sWv, sWM, sWN, sM, sOff, sStep, sCol = 24, 25, 26, 27, 28, 29, 30, 31, 32
    sT, sT2, sT3, sIsV, sPB = 33, 34, 35, 36, 37
    sWrap, sRot, sEm = 38, 39, 40
    sLd = 44
    L = lambda n: f"{pfx}_{n}"
    ws = "s[4:7]"
    t0, t1, t2, t3, t4, t5 = vT[:6]

    P(f"""
    s_load_dwordx2 s[{sX}:{sX+1}], s[0:1], {KA_AX}
    s_load_dwordx2 s[{sW_}:{sW_+1}], s[0:1], {KA_WQKV}
    v_lshrrev_b32 v{t0}, 6, v0
    v_and_b32 v{vLane}, 63, v0
    v_readfirstlane_b32 s{sWv}, v{t0}
    s_and_b32 s{sT}, s{sWG}, 7
    s_lshr_b32 s{sT2}, s{sWG}, 3
    s_and_b32 s{sTB}, s{sT}, 1
    s_lshl_b32 s{sTB}, s{sTB}, 3
    s_and_b32 s{sT3}, s{sT2}, 7
    s_add_u32 s{sTB}, s{sTB}, s{sT3}
    s_lshr_b32 s{sFG}, s{sT}, 1
    s_lshl_b32 s{sFG}, s{sFG}, 2
    s_lshr_b32 s{sT}, s{sT2}, 3
    s_add_u32 s{sFG}, s{sFG}, s{sT}
    s_mul_i32 s{sT3}, s{sT3}, {ROT[0]}
    s_mul_i32 s{sT}, s{sT}, {ROT[1]}
    s_add_u32 s{sT}, s{sT}, s{sT3}
    s_mul_i32 s{sT2}, s{sT}, 7282
    s_lshr_b32 s{sT2}, s{sT2}, 16
    s_mul_i32 s{sT2}, s{sT2}, 9
    s_sub_u32 s{sRot}, s{sT}, s{sT2}
    s_lshr_b32 s{sLd}, s{sWv}, 2
    s_and_b32 s{sWv}, s{sWv}, 3
    s_lshl_b32 s{sM}, s{sWv}, 12
    """)
    P(f"""
    s_mul_i32 s{sCol}, s{sFG}, 216
    s_and_b32 s{sCol}, s{sCol}, {'0xffffff80' if 'k1al' in exp else '0xfffffff0'}
    s_sub_u32 s{sT}, s{sFG}, 11
    s_lshl_b32 s{sT}, s{sT}, 2
    s_min_u32 s{sT}, s{sT}, 14
    s_lshl_b32 s{sT2}, s{sT}, 6
    s_add_u32 s{sT2}, s{sT2}, 2304
    s_cmp_ge_u32 s{sFG}, 11
    s_cselect_b32 s{sIsV}, 1, 0
    s_cselect_b32 s{sCol}, s{sT2}, s{sCol}
    s_cselect_b32 s{sPB}, s{sT}, 0
    s_cmp_eq_u32 s{sLd}, 0
    s_cbranch_scc1 {L('compute')}
    """)
    sSh, sSw, sMk, sPitch, sRow, sDu = 45, 46, 47, 22, 23, 21
    P(f"""
    s_lshl_b32 s{sT}, s{sTB}, 7
    s_lshl_b32 s{sT2}, s{sWv}, 5
    s_add_u32 s{sT}, s{sT}, s{sT2}
    s_lshl_b32 s{sT2}, s{sWv}, 4
    s_add_u32 s{sT3}, s{sM}, 16384
    s_mov_b64 s[{sEm}:{sEm+1}], -1
    """)
    if wmask:
        P(f"""
        s_cmp_eq_u32 s{sLd}, 2
        s_cselect_b32 s{sSh}, s{sIsV}, 1
        s_cmp_eq_u32 s{sSh}, 0
        s_cmov_b32 s{sEm}, 0xf3ff3fff
        s_cmov_b32 s{sEm+1}, 0xfff3ff3f
        """)
    P(f"""
    s_cmp_eq_u32 s{sLd}, 2
    s_cselect_b32 s{sRow}, s{sT2}, s{sT}
    s_cselect_b32 s{sM}, s{sT3}, s{sM}
    s_cselect_b32 s{sSh}, 4, 3
    s_cselect_b32 s{sSw}, 2, 0
    s_cselect_b32 s{sMk}, 15, 7
    s_cselect_b32 s{sT3}, 0, 64
    s_cselect_b32 s{sT2}, s{sCol}, 0
    s_movk_i32 s{sPitch}, 1152
    s_cmov_b32 s{sPitch}, 3456
    s_movk_i32 s{sDu}, {9216 - 1024}
    s_cmov_b32 s{sDu}, {13824 - 1024}
    s_movk_i32 s{sStep}, 128
    s_cmov_b32 s{sStep}, {64 * 3456}
    s_mov_b32 s{sD+2}, {2048 * 1152}
    s_cmov_b32 s{sD+2}, {576 * 3456}
    s_mov_b32 s{sD+3}, 0x00020000
    v_lshrrev_b32 v{t0}, s{sSh}, v{vLane}
    v_add_u32 v{t0}, s{sRow}, v{t0}
    v_mul_u32_u24 v{t0}, s{sPitch}, v{t0}
    v_add_u32 v{t0}, s{sT2}, v{t0}
    v_lshrrev_b32 v{t1}, 4, v{vLane}
    v_lshlrev_b32 v{t1}, s{sSw}, v{t1}
    v_and_b32 v{t2}, s{sMk}, v{vLane}
    v_xor_b32 v{t1}, v{t1}, v{t2}
    v_lshlrev_b32 v{t1}, 4, v{t1}
    v_xor_b32 v{t2}, s{sT3}, v{t1}
    s_mul_i32 s{sT}, s{sDu}, 2
    s_mul_i32 s{sT2}, s{sDu}, 3
    v_add_u32 v{vD[0]}, v{t0}, v{t1}
    v_add3_u32 v{vD[1]}, v{t0}, v{t2}, s{sDu}
    v_add3_u32 v{vD[2]}, v{t0}, v{t1}, s{sT}
    v_add3_u32 v{vD[3]}, v{t0}, v{t2}, s{sT2}
    s_mul_i32 s{sOff}, s{sRot}, s{sStep}
    s_mul_i32 s{sWrap}, s{sStep}, 9
    s_cselect_b32 s{sD}, s{sW_}, s{sX}
    s_cselect_b32 s{sD+1}, s{sW_+1}, s{sX+1}
    """)

    def dma(Q, c):
        P(f"s_add_u32 m0, s{sM}, {(c % NST) * STAGE}")
        if wmask:
            P(f"s_mov_b64 exec, s[{sEm}:{sEm+1}]")
        for u in range(4):
            P(f"buffer_load_dwordx4 v{vD[u]}, s[{sD}:{sD+3}], s{sOff} offen offset:{u * 1024} lds")
        if wmask:
            P("s_mov_b64 exec, -1")
        P(f"""
        s_add_u32 s{sOff}, s{sOff}, s{sStep}
        s_cmp_eq_u32 s{sOff}, s{sWrap}
        s_cselect_b32 s{sOff}, 0, s{sOff}
        """)
        Q.add(c, 4)

    Q0 = Queue(P)
    common.mark(P, 0)
    for c in range(PRE):
        dma(Q0, c)
        if c == 0 and "k1b0" in exp:
            P("s_barrier")
    P(f"""
    s_cmp_eq_u32 s{sLd}, 2
    s_cbranch_scc1 {L('wload')}
    """)

    def loop(Q, c0, c1, rounds):
        for c in range(c0, c1):
            Q.wait(c + 1)
            P("s_waitcnt lgkmcnt(0)")
            P("s_barrier")
            if c + LA < 9:
                dma(Q, c + LA)
            if c % 3 == 1:
                rounds(Q, c // 3)

    def start(Q):
        Q.wait(0)
        common.mark(P, 1)
        P("s_barrier")
        for c in range(PRE, LA):
            dma(Q, c)

    def stage_of(dst, step_reg_or_const, tmp):
        P(f"""
        s_add_u32 s{dst}, s{sRot}, {step_reg_or_const}
        s_sub_u32 s{tmp}, s{dst}, 9
        s_cmp_ge_u32 s{dst}, 9
        s_cselect_b32 s{dst}, s{tmp}, s{dst}
        """)

    px = Prep(P, 48)
    px.alloc_x(VX)
    sMin, sXFo = 43, 42
    P(f"""
    v_and_b32 v{t0}, 31, v{vLane}
    v_lshrrev_b32 v{t1}, 2, v{t0}
    v_and_b32 v{t1}, 1, v{t1}
    v_lshlrev_b32 v{t1}, 5, v{t1}
    v_lshrrev_b32 v{t2}, 3, v{t0}
    v_lshlrev_b32 v{t2}, 2, v{t2}
    v_add_u32 v{t1}, v{t1}, v{t2}
    v_and_b32 v{t2}, 3, v{t0}
    v_add_u32 v{t1}, v{t1}, v{t2}
    s_lshr_b32 s{sT}, s{sFG}, 3
    s_lshl_b32 s{sT}, s{sT}, 6
    s_bfe_u32 s{sT2}, s{sFG}, 0x10002
    s_lshl_b32 s{sT2}, s{sT2}, 4
    s_add_u32 s{sT}, s{sT}, s{sT2}
    v_add_u32 v{t1}, s{sT}, v{t1}
    v_lshrrev_b32 v{t2}, 1, v{t1}
    v_and_b32 v{t2}, 7, v{t2}
    v_lshrrev_b32 v{t3}, 5, v{vLane}
    s_and_b32 s{sT}, s{sFG}, 3
    s_lshl_b32 s{sT2}, s{sT}, 1
    v_add_u32 v{t3}, s{sT2}, v{t3}
    v_xor_b32 v{t2}, v{t2}, v{t3}
    v_lshlrev_b32 v{t2}, 4, v{t2}
    v_lshlrev_b32 v{t1}, 7, v{t1}
    v_add_u32 v{vXA}, v{t1}, v{t2}
    s_lshl_b32 s{sT2}, s{sTB}, 2
    s_lshr_b32 s{sT3}, s{sFG}, 2
    s_add_u32 s{sT2}, s{sT2}, s{sT3}
    s_mul_i32 s{sT2}, s{sT2}, 36
    s_add_u32 s{sT2}, s{sT2}, s{sT}
    s_lshl_b32 s{sXFo}, s{sT2}, 10
    s_add_u32 s{sXFo}, s{sXFo}, {WS_XF}
    s_min_u32 s{sMin}, s{sWv}, 2
    v_lshlrev_b32 v{px.vL16}, 4, v{vLane}
    """)

    def x_round(Q, rd):
        P(f"""
        s_add_u32 s{sT}, s{sMin}, {3 * rd}
        s_sub_u32 s{sT2}, s{sT}, {NST}
        s_cmp_ge_u32 s{sT}, {NST}
        s_cselect_b32 s{sT2}, s{sT2}, s{sT}
        s_mul_i32 s{sT2}, s{sT2}, {STAGE}
        v_add_u32 v{vXT}, s{sT2}, v{vXA}
        ds_read_b128 {vr(XR,4)}, v{vXT}
        s_add_u32 s{sT}, s{sT}, s{sRot}
        s_sub_u32 s{sT2}, s{sT}, 9
        s_cmp_ge_u32 s{sT}, 9
        s_cselect_b32 s{sT}, s{sT2}, s{sT}
        s_lshl_b32 s{sT}, s{sT}, 12
        s_add_u32 s{sT}, s{sT}, s{sXFo}
        buffer_store_dwordx4 {vr(XR,4)}, v{px.vL16}, {ws}, s{sT} offen sc1
        """)
        Q.add("s", 1)

    Qx = Q0.copy()
    px.srds()
    start(Qx)
    loop(Qx, 0, XE + 1, x_round)
    if not noprep:
        P(f"""
        s_cmp_ge_u32 s{sWG}, 94
        s_cbranch_scc0 {L('xclr')}
        """)
        Qb = Qx.copy()
        Qb.add("x", px.loads_b(sWG, sWv))
        loop(Qb, XE + 1, 8, x_round)
        common.mark(P, 2)
        px.finish_b()
        P(f"s_branch {L('end')}")
        P.L(L("xclr"))
    loop(Qx, XE + 1, 8, x_round)
    common.mark(P, 2)
    if not noprep:
        px.clear(sWG, sWv)
    P(f"s_branch {L('end')}")

    P.L(L("wload"))
    pw = Prep(P, 48)
    pw.alloc_w(VW)
    P(f"""
    v_lshrrev_b32 v{t0}, 3, v{vLane}
    v_and_b32 v{t0}, 1, v{t0}
    s_lshl_b32 s{sT}, s{sFG}, 3
    s_lshl_b32 s{sT2}, s{sWv}, 1
    s_add_u32 s{sT}, s{sT}, s{sT2}
    v_add_u32 v{t0}, s{sT}, v{t0}
    v_lshrrev_b32 v{t1}, 1, v{t0}
    v_and_b32 v{t2}, 7, v{vLane}
    v_xor_b32 v{t1}, v{t1}, v{t2}
    v_and_b32 v{t1}, 7, v{t1}
    v_lshlrev_b32 v{t1}, 4, v{t1}
    v_lshlrev_b32 v{t3}, 7, v{t0}
    v_add_u32 v{vGA}, v{t3}, v{t1}
    v_lshlrev_b32 v{vGO}, 4, v{t2}
    """)
    vG2, vG3 = VW.alloc(), VW.alloc()
    P(f"""
    v_add_u32 v{vG2}, 0x10000, v{vGA}
    v_add_u32 v{vG3}, 0x20000, v{vGA}
    """)

    def w_round(Q, rd):
        for s_ in range(3 * rd, 3 * rd + 3):
            off = (s_ % NST) * STAGE
            reg = (vGA, vG2, vG3)[off >> 16]
            P(f"ds_read_b128 {vr(GX[s_],4)}, v{reg} offset:{off & 65535}")

    def gw_loads():
        for s_ in range(9):
            stage_of(sT, s_, sT2)
            P(f"""
            s_lshl_b32 s{sT}, s{sT}, 7
            buffer_load_dwordx4 {vr(GW[s_],4)}, v{vGO}, s[{sGW}:{sGW+3}], s{sT} offen
            """)
        return 9

    def gate():
        acc = vT[0:2]
        P(f"v_mov_b32 v{acc[0]}, 0\nv_mov_b32 v{acc[1]}, 0")
        for s_ in range(9):
            for q in range(4):
                P(f"v_dot2c_f32_bf16 v{acc[q & 1]}, v{GX[s_] + q}, v{GW[s_] + q}")
        P(f"""
        v_add_f32 v{acc[0]}, v{acc[0]}, v{acc[1]}
        v_add_f32_dpp v{acc[0]}, v{acc[0]}, v{acc[0]} quad_perm:[1,0,3,2] row_mask:0xf bank_mask:0xf
        v_add_f32_dpp v{acc[0]}, v{acc[0]}, v{acc[0]} quad_perm:[2,3,0,1] row_mask:0xf bank_mask:0xf
        v_add_f32_dpp v{acc[0]}, v{acc[0]}, v{acc[0]} row_half_mirror row_mask:0xf bank_mask:0xf
        v_mul_f32 v{acc[0]}, {f32(-LOG2E)}, v{acc[0]}
        v_exp_f32 v{acc[0]}, v{acc[0]}
        v_add_f32 v{acc[0]}, 1.0, v{acc[0]}
        v_rcp_f32 v{acc[0]}, v{acc[0]}
        v_lshrrev_b32 v{acc[1]}, 3, v{vLane}
        v_lshlrev_b32 v{acc[1]}, 2, v{acc[1]}
        s_lshl_b32 s{sT}, s{sTB}, 7
        s_lshl_b32 s{sT2}, s{sFG}, 3
        s_add_u32 s{sT}, s{sT}, s{sT2}
        s_lshl_b32 s{sT2}, s{sWv}, 1
        s_add_u32 s{sT}, s{sT}, s{sT2}
        s_lshl_b32 s{sT}, s{sT}, 2
        s_add_u32 s{sT}, s{sT}, {WS_G}
        s_mov_b32 exec_lo, 0x101
        s_mov_b32 exec_hi, 0
        buffer_store_dword v{acc[0]}, v{acc[1]}, {ws}, s{sT} offen sc1
        s_mov_b64 exec, -1
        """)

    Qw = Q0.copy()
    srd_from_kernarg(P, sGW, KA_GW, 1152)
    pw.srds()
    Qw.add("g", gw_loads())
    start(Qw)
    loop(Qw, 0, XE + 1, w_round)
    paths = [("none", None, None)] if noprep else [("cf", 162, (pw.loads_c, pw.finish_c)), ("wf", 243, (pw.loads_w, pw.finish_w)), ("none", None, None)]
    for name, lim, fn in paths:
        nxt = L("wp_" + name + "_next")
        if lim is not None:
            P(f"""
            s_cmp_lt_u32 s{sWG}, {lim}
            s_cbranch_scc0 {nxt}
            """)
        Q = Qw.copy()
        if fn:
            Q.add("x", fn[0](sWG, sWv))
        loop(Q, XE + 1, 8, w_round)
        common.mark(P, 2)
        gate()
        if fn:
            fn[1]()
        P(f"s_branch {L('end')}")
        if lim is not None:
            P.L(nxt)

    P.L(L("compute"))
    if "k1b0" in exp:
        P("s_barrier")
    P(f"""
    s_and_b32 s{sWM}, s{sWv}, 1
    s_lshr_b32 s{sWN}, s{sWv}, 1
    """)
    if common.TIMING:
        common.MK0, common.NMARK = 52, 16
    P(f"""
    v_and_b32 v{t0}, 31, v{vLane}
    v_lshrrev_b32 v{t1}, 5, v{vLane}
    v_lshrrev_b32 v{t2}, 1, v{t0}
    v_and_b32 v{t2}, 7, v{t2}
    v_xor_b32 v{t2}, v{t2}, v{t1}
    v_lshlrev_b32 v{t2}, 4, v{t2}
    s_lshl_b32 s{sT}, s{sWM}, 6
    v_add_u32 v{t3}, s{sT}, v{t0}
    v_lshlrev_b32 v{t3}, 7, v{t3}
    v_add_u32 v{vXR[0]}, v{t2}, v{t3}
    v_xor_b32 v{vXR[1]}, 32, v{vXR[0]}
    v_xor_b32 v{vXR[2]}, 64, v{vXR[0]}
    v_xor_b32 v{vXR[3]}, 0x60, v{vXR[0]}
    """)
    P(f"""
    v_lshrrev_b32 v{t0}, 4, v{vLane}
    v_and_b32 v{t0}, 1, v{t0}
    v_lshlrev_b32 v{t0}, 2, v{t0}
    v_and_b32 v{t1}, 3, v{vLane}
    v_add_u32 v{t0}, v{t0}, v{t1}
    v_lshrrev_b32 v{t1}, 2, v{vLane}
    v_and_b32 v{t1}, 3, v{t1}
    v_lshrrev_b32 v{t2}, 5, v{vLane}
    v_lshlrev_b32 v{t3}, 3, v{t2}
    v_add_u32 v{t3}, v{t3}, v{t1}
    v_lshlrev_b32 v{t3}, 8, v{t3}
    v_add_u32 v{t3}, 16384, v{t3}
    s_cmp_eq_u32 s{sIsV}, 1
    s_cbranch_scc1 {L('vaddr')}
    """)
    P(f"""
    s_mul_i32 s{sPB}, s{sFG}, 3
    s_and_b32 s{sT}, s{sFG}, 1
    s_lshl_b32 s{sT}, s{sT}, 3
    v_lshrrev_b32 v{t4}, 2, v{t0}
    v_mul_u32_u24 v{t4}, 40, v{t4}
    v_and_b32 v{t5}, 1, v{t0}
    v_lshlrev_b32 v{t5}, 4, v{t5}
    v_add_u32 v{t4}, v{t4}, v{t5}
    v_lshrrev_b32 v{t5}, 1, v{t0}
    v_and_b32 v{t5}, 1, v{t5}
    v_lshlrev_b32 v{t5}, 3, v{t5}
    v_add_u32 v{t4}, v{t4}, v{t5}
    v_add_u32 v{t4}, s{sT}, v{t4}
    s_mul_i32 s{sT2}, s{sWN}, 144
    v_add_u32 v{vWR[0]}, s{sT2}, v{t4}
    v_add_u32 v{vWR[1]}, 72, v{vWR[0]}
    v_min_u32 v{t5}, 2, v{t0}
    v_mul_u32_u24 v{t5}, 72, v{t5}
    v_add_u32 v{t5}, 32, v{t5}
    v_add_u32 v{t5}, s{sT}, v{t5}
    s_cmp_eq_u32 s{sWN}, 1
    s_cbranch_scc0 {L('swz')}
    v_mov_b32 v{vWR[1]}, v{t5}
    s_branch {L('swz')}
    """)
    P.L(L("vaddr"))
    P(f"""
    v_lshlrev_b32 v{t4}, 3, v{t0}
    s_lshl_b32 s{sT2}, s{sWN}, 7
    v_add_u32 v{vWR[0]}, s{sT2}, v{t4}
    v_add_u32 v{vWR[1]}, 64, v{vWR[0]}
    """)
    P.L(L("swz"))
    P(f"v_lshlrev_b32 v{t1}, 6, v{t1}")
    for k in range(2):
        P(f"""
        v_xor_b32 v{vWR[k]}, v{vWR[k]}, v{t1}
        v_add_u32 v{vWR[k]}, v{vWR[k]}, v{t3}
        """)

    for k in range(4):
        P(f"v_add_u32 v{vXR2[k]}, 0x10000, v{vXR[k]}")
    for k in range(2):
        P(f"v_add_u32 v{vWR2[k]}, 0x10000, v{vWR[k]}")
    if NST > 4:
        for k in range(4):
            P(f"v_add_u32 v{vXR3[k]}, 0x20000, v{vXR[k]}")
        for k in range(2):
            P(f"v_add_u32 v{vWR3[k]}, 0x20000, v{vWR[k]}")

    def reads(n):
        c, ks = divmod(n, 4)
        st = (c % NST) * STAGE
        xr, wr = ((vXR, vWR), (vXR2, vWR2), (vXR3, vWR3))[st >> 16]
        st &= 65535
        b = n & 1
        out = []
        for tt in range(2):
            out.append(f"ds_read_b128 {vr(XF[b][tt],4)}, v{xr[ks]} offset:{st + tt * 4096}")
        for ft in range(2):
            for rd in range(2):
                out.append(f"ds_read_b64_tr_b16 {vr(WF[b][ft] + 2 * rd, 2)}, v{wr[ft]} offset:{st + ks * 4096 + rd * 1024}")
        return out

    def mainloop(isv):
        for n in range(36):
            c, ks = divmod(n, 4)
            b = n & 1
            mf = []
            for tt in range(2):
                for ft in range(2):
                    a_, b_ = (XF[b][tt], WF[b][ft]) if isv else (WF[b][ft], XF[b][tt])
                    cop = "0" if n == 0 else vr(ACC[tt][ft], 16)
                    mf.append(f"v_mfma_f32_32x32x16_bf16 {vr(ACC[tt][ft],16)}, {vr(a_,4)}, {vr(b_,4)}, {cop}")
            P("s_waitcnt lgkmcnt(0)")
            if ks == 3 and n + 1 < 36:
                P("s_barrier")
                common.mark(P, 2 + c)
            rs = reads(n + 1) if n + 1 < 36 else []
            if "k1noread" in exp:
                rs = []
            for k in range(4):
                if "k1nomfma" not in exp:
                    P(mf[k])
                take = rs[:2] if k < 3 else rs
                rs = rs[len(take):]
                for r in take:
                    P(r)

    P("s_barrier")
    common.mark(P, 0)
    for r in reads(0):
        P(r)
    P(f"""
    s_cmp_eq_u32 s{sIsV}, 1
    s_cbranch_scc1 {L('vmain')}
    """)

    mainloop(False)
    common.mark(P, 1)
    PK = XF[0][0]
    vA = [vT[0], vT[1], vT[2], vT[3]]
    P(f"v_lshlrev_b32 v{vA[0]}, 4, v{vLane}")

    def lo_store(tt, ft, sPBreg):
        skip = P.newlabel(pfx + "_skip")
        P(f"""
        s_cmp_ge_u32 s{sPBreg}, 32
        s_cbranch_scc1 {skip}
        s_and_b32 s{sT}, s{sPBreg}, 15
        s_lshl_b32 s{sT}, s{sT}, 17
        s_lshl_b32 s{sT2}, s{sTB}, 2
        s_lshl_b32 s{sT3}, s{sWM}, 1
        s_add_u32 s{sT2}, s{sT2}, s{sT3}
        s_add_u32 s{sT2}, s{sT2}, {tt}
        s_lshl_b32 s{sT2}, s{sT2}, 10
        s_add_u32 s{sT}, s{sT}, s{sT2}
        s_add_u32 s{sT2}, s{sT}, {WS_QLO}
        s_add_u32 s{sT}, s{sT}, {WS_KLO}
        s_cmp_lt_u32 s{sPBreg}, 16
        s_cselect_b32 s{sT}, s{sT2}, s{sT}
        s_cselect_b32 s{sT3}, {f32(QSCALE)}, 1.0
        s_add_u32 s{sT2}, s{sT}, 65536
        """)
        A = ACC[tt][ft]
        for r in range(16):
            P(f"v_mul_f32 v{A + r}, s{sT3}, v{A + r}")
        for k in range(8):
            P(f"v_cvt_pk_bf16_f32 v{PK + k}, v{A + 2 * k}, v{A + 2 * k + 1}")
        P(f"""
        buffer_store_dwordx4 {vr(PK,4)}, v{vA[0]}, {ws}, s{sT} offen
        buffer_store_dwordx4 {vr(PK+4,4)}, v{vA[0]}, {ws}, s{sT2} offen
        """)
        P.L(skip)

    sP0, sP1 = 38, 39
    P(f"""
    s_lshl_b32 s{sP0}, s{sWN}, 1
    s_add_u32 s{sP0}, s{sP0}, s{sPB}
    s_add_u32 s{sP1}, s{sP0}, 1
    """)
    for tt in range(2):
        lo_store(tt, 0, sP0)
    P(f"""
    s_cmp_eq_u32 s{sWN}, 1
    s_cbranch_scc1 {L('hi')}
    """)
    for tt in range(2):
        lo_store(tt, 1, sP1)
    P(f"s_branch {L('cend')}")
    P.L(L("hi"))
    big = 0x7ff00000
    for part in range(2):
        pb, adr, scl = vT[1], vT[2], vT[3]
        if part == 0:
            P(f"""
            v_lshrrev_b32 v{pb}, 5, v{vLane}
            v_add_u32 v{pb}, s{sPB}, v{pb}
            """)
        else:
            P(f"""
            s_add_u32 s{sT}, s{sPB}, 2
            v_mov_b32 v{pb}, s{sT}
            """)
        P(f"""
        v_and_b32 v{adr}, 15, v{pb}
        v_lshlrev_b32 v{adr}, 14, v{adr}
        v_and_b32 v{vT[4]}, 31, v{vLane}
        v_lshlrev_b32 v{vT[4]}, 2, v{vT[4]}
        v_add_u32 v{adr}, v{adr}, v{vT[4]}
        s_lshl_b32 s{sT2}, s{sTB}, 9
        s_lshl_b32 s{sT3}, s{sWM}, 8
        s_add_u32 s{sT2}, s{sT2}, s{sT3}
        v_add_u32 v{adr}, s{sT2}, v{adr}
        v_cmp_gt_u32 vcc, 16, v{pb}
        v_mov_b32 v{vT[4]}, {WS_KHI}
        v_mov_b32 v{vT[5]}, {WS_QHI}
        v_cndmask_b32 v{vT[4]}, v{vT[4]}, v{vT[5]}, vcc
        v_add_u32 v{adr}, v{adr}, v{vT[4]}
        v_mov_b32 v{vT[4]}, 1.0
        v_mov_b32 v{vT[5]}, {f32(QSCALE)}
        v_cndmask_b32 v{scl}, v{vT[4]}, v{vT[5]}, vcc
        v_cmp_le_u32 vcc, 32, v{pb}
        v_mov_b32 v{vT[4]}, {big}
        v_cndmask_b32 v{adr}, v{adr}, v{vT[4]}, vcc
        """)
        if part == 1:
            P(f"""
            v_cmp_le_u32 vcc, 32, v{vLane}
            v_cndmask_b32 v{adr}, v{adr}, v{vT[4]}, vcc
            """)
        for tt in range(2):
            A = ACC[tt][1] + 4 * part
            for r in range(4):
                P(f"v_mul_f32 v{A + r}, v{scl}, v{A + r}")
            P(f"""
            v_cvt_pk_bf16_f32 v{PK + 2 * tt}, v{A}, v{A+1}
            v_cvt_pk_bf16_f32 v{PK + 2 * tt + 1}, v{A+2}, v{A+3}
            v_add_u32 v{vT[4]}, 8192, v{adr}
            buffer_store_dword v{PK + 2 * tt}, v{adr}, {ws}, 0 offen offset:{128 * tt}
            buffer_store_dword v{PK + 2 * tt + 1}, v{vT[4]}, {ws}, 0 offen offset:{128 * tt}
            """)
    P(f"s_branch {L('cend')}")

    P.L(L("vmain"))
    mainloop(True)
    common.mark(P, 1)
    adr = vT[0]
    P(f"""
    v_lshrrev_b32 v{vT[1]}, 5, v{vLane}
    v_mul_u32_u24 v{vT[1]}, {VT_HALF}, v{vT[1]}
    v_and_b32 v{adr}, 31, v{vLane}
    v_lshlrev_b32 v{adr}, 4, v{adr}
    v_add_u32 v{adr}, v{adr}, v{vT[1]}
    s_lshl_b32 s{sT}, s{sTB}, 3
    s_lshl_b32 s{sT2}, s{sWM}, 2
    s_add_u32 s{sT}, s{sT}, s{sT2}
    s_mul_i32 s{sT}, s{sT}, {VT_GROUP}
    s_lshl_b32 s{sT2}, s{sWN}, 1
    s_add_u32 s{sT2}, s{sT2}, s{sPB}
    s_lshl_b32 s{sT2}, s{sT2}, 9
    s_add_u32 s{sT}, s{sT}, s{sT2}
    s_add_u32 s{sT}, s{sT}, {WS_VT}
    """)
    for tt in range(2):
        for ft in range(2):
            A = ACC[tt][ft]
            R = PK + 8 * ft
            for k in range(8):
                P(f"v_cvt_pk_bf16_f32 v{R + k}, v{A + 2 * k}, v{A + 2 * k + 1}")
            for sg in range(2):
                P(f"s_add_u32 s{sT2}, s{sT}, {(2 * tt + sg) * VT_GROUP}")
                P(f"buffer_store_dwordx4 {vr(R + 4 * sg, 4)}, v{adr}, {ws}, s{sT2} offen offset:{ft * 512}" + (" ; nosc1" if "vwb" in exp else ""))

    P.L(L("cend"))
    common.mark(P, 10)
    P(end_c or end)
    P.L(L("end"))
    P(end)
    return max(V.hi, VX.hi, VW.hi)
```

```python
from asmgen import *
from layout import *
import struct


def f32(x):
    return "0x%08x" % struct.unpack("<I", struct.pack("<f", x))[0]


def srd_from_kernarg(P, s, ka, nbytes):
    P(f"""
    s_load_dwordx2 s[{s}:{s+1}], s[0:1], {ka}
    s_mov_b32 s{s+2}, {nbytes}
    s_mov_b32 s{s+3}, 0x00020000
    """)


def emit_lambda(P, lre, lim, ldt, t, lr, li, coef=None):
    P(f"""
    v_lshlrev_b32 v{lre}, 16, v{lre}
    v_lshlrev_b32 v{lim}, 16, v{lim}
    v_lshlrev_b32 v{ldt}, 16, v{ldt}
    v_mul_f32 v{ldt}, {f32(LOG2E)}, v{ldt}
    v_exp_f32 v{ldt}, v{ldt}
    v_cvt_pk_bf16_f32 v{ldt}, v{ldt}, v{ldt}
    v_lshlrev_b32 v{ldt}, 16, v{ldt}
    v_mul_f32 v{t}, v{ldt}, v{lre}
    v_mul_f32 v{t+1}, v{ldt}, v{lim}
    v_mul_f32 v{t}, {f32(LOG2E)}, v{t}
    v_mul_f32 v{t+1}, 0.15915494, v{t+1}
    v_exp_f32 v{t}, v{t}
    v_cos_f32 v{t+2}, v{t+1}
    v_sin_f32 v{t+3}, v{t+1}
    v_mul_f32 v{lr}, v{t}, v{t+2}
    v_mul_f32 v{li}, v{t}, v{t+3}
    """)
    if coef:
        kr, ki = coef
        P(f"""
        v_add_f32 v{t}, -1.0, v{lr}
        v_mul_f32 v{t+1}, v{lre}, v{lre}
        v_fmac_f32 v{t+1}, v{lim}, v{lim}
        v_rcp_f32 v{t+1}, v{t+1}
        v_mul_f32 v{kr}, v{t}, v{lre}
        v_fmac_f32 v{kr}, v{li}, v{lim}
        v_mul_f32 v{ki}, v{li}, v{lre}
        v_mul_f32 v{t+2}, v{t}, v{lim}
        v_sub_f32 v{ki}, v{ki}, v{t+2}
        v_mul_f32 v{kr}, v{kr}, v{t+1}
        v_mul_f32 v{ki}, v{ki}, v{t+1}
        """)


class Prep:
    def __init__(self, P, s0, pfx="prep"):
        self.P, self.pfx = P, pfx
        S = Regs("s", s0, 84)
        self.ptr = S.alloc(16, 4)
        self.pWo = S.alloc(2)
        self.sT = S.alloc(); self.sT2 = S.alloc(); self.sT3 = S.alloc()
        self.sW = S.alloc()
        self.sSel = S.alloc(4); self.sSel2 = S.alloc(4)
        self.sF = [S.alloc() for _ in range(2)]
        self.vLane = 0

    def alloc_x(self, V):
        self.B = [V.alloc(4) for _ in range(2)]
        self.vL16 = V.alloc(); self.vBl = V.alloc()
        self.T = V.alloc(8, 4)

    def alloc_w(self, V):
        self.Cr = V.alloc(4); self.Ci = V.alloc(4)
        self.L = [V.alloc() for _ in range(3)]
        self.vL16 = V.alloc(); self.vBl = V.alloc(); self.vWl = V.alloc()
        self.T = V.alloc(24, 4)
        self.W = self.T + 8

    def srds(self):
        self.P(f"""
        s_load_dwordx16 s[{self.ptr}:{self.ptr+15}], s[0:1], {KA_LRE}
        s_load_dwordx2 s[{self.pWo}:{self.pWo+1}], s[0:1], {KA_WO}
        """)

    def use(self, srd, p, nbytes):
        self.P(f"""
        s_mov_b32 s{srd}, s{p}
        s_mov_b32 s{srd+1}, s{p+1}
        s_mov_b32 s{srd+2}, {nbytes}
        s_mov_b32 s{srd+3}, 0x00020000
        """)

    def _rowaddr(self):
        P, s, ln, T = self.P, self, self.vLane, self.T
        P(f"""
        v_lshlrev_b32 v{s.vL16}, 4, v{ln}
        v_lshrrev_b32 v{T}, 5, v{ln}
        v_lshlrev_b32 v{T}, 4, v{T}
        v_and_b32 v{T+1}, 31, v{ln}
        v_mul_u32_u24 v{s.vBl}, 1152, v{T+1}
        v_add_u32 v{s.vBl}, v{s.vBl}, v{T}
        """)

    def _div36(self, q, r, x):
        self.P(f"""
        s_mul_i32 s{q}, s{x}, 1821
        s_lshr_b32 s{q}, s{q}, 16
        s_mul_i32 s{r}, s{q}, 36
        s_sub_u32 s{r}, s{x}, s{r}
        """)

    def _store(self, regs, f, base):
        s = self
        self.P(f"""
        s_lshl_b32 s{s.sT}, s{f}, 10
        s_add_u32 s{s.sT}, s{s.sT}, {base}
        buffer_store_dwordx4 {vr(regs,4)}, v{s.vL16}, s[4:7], s{s.sT} offen sc1
        """)

    def loads_b(self, sWG, sWv):
        P, s = self.P, self
        self._rowaddr()
        P(f"""
        s_lshl_b32 s{s.sW}, s{sWG}, 2
        s_add_u32 s{s.sW}, s{s.sW}, s{sWv}
        s_sub_u32 s{s.sW}, 1023, s{s.sW}
        s_lshl_b32 s{s.sF[0]}, s{s.sW}, 1
        """)
        self._div36(s.sT, s.sT2, s.sF[0])
        P(f"""
        s_lshl_b32 s{s.sT2}, s{s.sT2}, 5
        s_lshr_b32 s{s.sT3}, s{s.sT}, 1
        s_mul_i32 s{s.sT3}, s{s.sT3}, {32 * 1152}
        s_add_u32 s{s.sT2}, s{s.sT2}, s{s.sT3}
        s_bitcmp1_b32 s{s.sT}, 0
        s_cselect_b32 s{s.sSel}, s{s.ptr+6}, s{s.ptr+4}
        s_cselect_b32 s{s.sSel+1}, s{s.ptr+7}, s{s.ptr+5}
        s_mov_b32 s{s.sSel+2}, {576 * 1152}
        s_mov_b32 s{s.sSel+3}, 0x00020000
        buffer_load_dwordx4 {vr(s.B[0],4)}, v{s.vBl}, s[{s.sSel}:{s.sSel+3}], s{s.sT2} offen
        buffer_load_dwordx4 {vr(s.B[1],4)}, v{s.vBl}, s[{s.sSel}:{s.sSel+3}], s{s.sT2} offen offset:32
        """)
        return 2

    def finish_b(self):
        s = self
        self._store(s.B[0], s.sF[0], WS_BF)
        self._store(s.B[1], s.sF[0], WS_BF + 1024)

    def clear(self, sWG, sWv):
        P, s, T = self.P, self, self.T
        l5 = P.newlabel(s.pfx + "_clr")
        P(f"""
        s_lshl_b32 s{s.sW}, s{sWG}, 2
        s_add_u32 s{s.sW}, s{s.sW}, s{sWv}
        s_cmp_lt_u32 s{s.sW}, 146
        s_cbranch_scc0 {l5}
        v_mov_b32 v{T}, 0
        v_mov_b32 v{T+1}, 0
        v_mov_b32 v{T+2}, 0
        v_mov_b32 v{T+3}, 0
        s_lshl_b32 s{s.sT}, s{s.sW}, 10
        s_add_u32 s{s.sT2}, s{s.sT}, {WS_E}
        s_add_u32 s{s.sT}, s{s.sT}, {WS_FLG - 144 * 1024}
        s_cmp_lt_u32 s{s.sW}, 144
        s_cselect_b32 s{s.sT}, s{s.sT2}, s{s.sT}
        buffer_store_dwordx4 {vr(T,4)}, v{s.vL16}, s[4:7], s{s.sT} offen sc1
        """)
        P.L(l5)

    def loads_c(self, sWG, sWv):
        P, s = self.P, self
        ln, T = s.vLane, s.T
        r4 = lambda n: f"s[{n}:{n+3}]"
        self._rowaddr()
        P(f"""
        s_lshl_b32 s{s.sW}, s{sWG}, 2
        s_add_u32 s{s.sW}, s{s.sW}, s{sWv}
        """)
        self._div36(s.sT, s.sT2, s.sW)
        P(f"""
        s_mul_i32 s{s.sF[0]}, s{s.sT}, 72
        s_add_u32 s{s.sF[0]}, s{s.sF[0]}, s{s.sT2}
        s_lshl_b32 s{s.sT2}, s{s.sT2}, 5
        s_mul_i32 s{s.sT3}, s{s.sT}, {32 * 1152}
        s_add_u32 s{s.sT3}, s{s.sT3}, s{s.sT2}
        """)
        self.use(s.sSel, s.ptr + 8, 576 * 1152)
        self.use(s.sSel2, s.ptr + 10, 576 * 1152)
        P(f"""
        buffer_load_dwordx4 {vr(s.Cr,4)}, v{s.vBl}, {r4(s.sSel)}, s{s.sT3} offen
        buffer_load_dwordx4 {vr(s.Ci,4)}, v{s.vBl}, {r4(s.sSel2)}, s{s.sT3} offen
        v_lshrrev_b32 v{T}, 5, v{ln}
        v_lshlrev_b32 v{T}, 3, v{T}
        v_and_b32 v{T+1}, 7, v{ln}
        v_add_u32 v{T}, v{T}, v{T+1}
        v_lshlrev_b32 v{T}, 1, v{T}
        """)
        for k, pidx in enumerate((0, 2, 12)):
            srd = (s.sSel, s.sSel2)[k & 1]
            self.use(srd, s.ptr + pidx, 1152)
            P(f"buffer_load_ushort v{s.L[k]}, v{T}, {r4(srd)}, s{s.sT2} offen")
        return 5

    def finish_c(self):
        P, s = self.P, self
        T = s.T
        store = self._store
        lr, li, kr, ki, t4 = T + 4, T + 5, T + 6, T + 7, T + 8
        emit_lambda(P, s.L[0], s.L[1], s.L[2], t4, lr, li, coef=(kr, ki))
        P(f"""
        v_add_f32 v{kr}, v{kr}, v{kr}
        v_add_f32 v{ki}, v{ki}, v{ki}
        """)
        R, I = T + 8, T + 16
        a, b = T + 4, T + 5
        for e in range(8):
            src_r, src_i = s.Cr + (e >> 1), s.Ci + (e >> 1)
            if e & 1:
                P(f"v_and_b32 v{a}, 0xffff0000, v{src_r}")
                P(f"v_and_b32 v{b}, 0xffff0000, v{src_i}")
            else:
                P(f"v_lshlrev_b32 v{a}, 16, v{src_r}")
                P(f"v_lshlrev_b32 v{b}, 16, v{src_i}")
            dpp = f"row_newbcast:{e} row_mask:0xf bank_mask:0xf"
            P(f"""
            v_mul_f32_dpp v{I+e}, v{ki}, v{b} {dpp}
            v_mul_f32_dpp v{R+e}, v{kr}, v{a} {dpp}
            v_sub_f32 v{R+e}, v{R+e}, v{I+e}
            v_mul_f32_dpp v{I+e}, v{ki}, v{a} {dpp}
            v_fmac_f32_dpp v{I+e}, v{kr}, v{b} {dpp}
            """)
        for k in range(4):
            P(f"v_cvt_pk_bf16_f32 v{s.Cr+k}, v{R+2*k}, v{R+2*k+1}")
            P(f"v_cvt_pk_bf16_f32 v{s.Ci+k}, -v{I+2*k}, -v{I+2*k+1}")
        store(s.Cr, s.sF[0], WS_CF)
        store(s.Ci, s.sF[0], WS_CF + 36 * 1024)

    def loads_w(self, sWG, sWv):
        P, s = self.P, self
        ln, T = s.vLane, s.T
        r4 = lambda n: f"s[{n}:{n+3}]"
        l4 = P.newlabel(s.pfx + "_w")
        P(f"""
        v_lshlrev_b32 v{s.vL16}, 4, v{ln}
        s_lshl_b32 s{s.sW}, s{sWG}, 2
        s_add_u32 s{s.sW}, s{s.sW}, s{sWv}
        s_sub_u32 s{s.sW}, s{s.sW}, 648
        """)
        self._div36(s.sT, s.sT2, s.sW)
        P(f"""
        s_mul_i32 s{s.sF[0]}, s{s.sT}, 72
        s_add_u32 s{s.sF[0]}, s{s.sF[0]}, s{s.sT2}
        v_and_b32 v{T}, 31, v{ln}
        v_lshlrev_b32 v{T}, 1, v{T}
        s_lshl_b32 s{s.sT}, s{s.sT}, 7
        v_add_u32 v{T}, s{s.sT}, v{T}
        v_lshrrev_b32 v{T+1}, 5, v{ln}
        s_mov_b32 s{s.sT3}, {72 * 1152}
        s_cmp_lt_u32 s{s.sT2}, 32
        s_cselect_b32 s{s.sT3}, {4 * 1152}, s{s.sT3}
        v_mul_lo_u32 v{T+1}, v{T+1}, s{s.sT3}
        v_add_u32 v{s.vWl}, v{T}, v{T+1}
        s_mul_i32 s{s.sT}, s{s.sT2}, {18 * 1152}
        s_sub_u32 s{s.sT3}, s{s.sT2}, 32
        s_mul_i32 s{s.sT3}, s{s.sT3}, {144 * 1152}
        s_add_u32 s{s.sT3}, s{s.sT3}, {16 * 1152}
        s_cmp_lt_u32 s{s.sT2}, 32
        s_cselect_b32 s{s.sT}, s{s.sT}, s{s.sT3}
        """)
        self.use(s.sSel, s.pWo, 576 * 1152)
        lhi = P.newlabel(s.pfx + "_whi")
        P(f"s_cmp_lt_u32 s{s.sT2}, 32")
        P(f"s_cbranch_scc0 {lhi}")
        for offs in ([(e if e < 4 else e + 4) * 1152 for e in range(8)], [(18 * (e >> 1) + (e & 1)) * 1152 for e in range(8)]):
            for e in range(8):
                P(f"s_add_u32 s{s.sT3}, s{s.sT}, {offs[e]}")
                P(f"buffer_load_ushort v{s.W+e}, v{s.vWl}, {r4(s.sSel)}, s{s.sT3} offen")
                P(f"buffer_load_ushort v{s.W+8+e}, v{s.vWl}, {r4(s.sSel)}, s{s.sT3} offen offset:64")
            if offs[1] == 1152 and offs[2] == 2 * 1152:
                P(f"s_branch {l4}")
                P.L(lhi)
        P.L(l4)
        return 16

    def finish_w(self):
        P, s = self.P, self
        T = s.T
        for h in range(2):
            for k in range(4):
                P(f"v_lshl_or_b32 v{T+4*h+k}, v{s.W+8*h+2*k+1}, 16, v{s.W+8*h+2*k}")
            self._store(T + 4 * h, s.sF[0], WS_WF + 36 * 1024 * h)
```

```python
from asmgen import *
from layout import *
from prepk import emit_lambda, srd_from_kernarg, f32
import common

SLOT = 16384
SVC_LDS = 81920
ELOC = 78 * 1024
HDEPTH = 16
ODEPTH = 12


def emit_service(P, sIdx, pfx="svc", end="s_endpgm", exp=()):
    L = lambda n: f"{pfx}_{n}"
    ws = "s[4:7]"
    prio = {"b": 3, "c": 3, "0": 3, "l": 3}
    for e in exp:
        if e.startswith("pb="): prio["b"] = int(e[3:])
        if e.startswith("pc="): prio["c"] = int(e[3:])
        if e.startswith("p0="): prio["0"] = int(e[3:])
        if e.startswith("pl="): prio["l"] = int(e[3:])
    sTB, sSB, sW, sWM, sWN, sM, sXo, sBo, sCo, sHo = 8, 9, 10, 11, 12, 13, 14, 15, 16, 17
    sT, sT2, sT3, sTag, sKH, sMT, sTile = 18, 19, 20, 21, 22, 23, 24
    sOk, sBad = 26, 28
    sWo = 30
    crot = "crot" in exp
    sRot, sHend, sCend = 48, 25, 31
    sE, sAX, sOut, sP = 32, 36, 40, 44
    vLane, vL16 = 0, 1
    hi = [2]

    def use(*regs):
        hi[0] = max(hi[0], max(regs) + 1)

    srd_from_kernarg(P, sAX, KA_AX, 2048 * 1152)
    srd_from_kernarg(P, sOut, KA_OUT, 2048 * 2304)
    P(f"""
    v_lshrrev_b32 v2, 6, v0
    v_and_b32 v{vLane}, 63, v0
    v_readfirstlane_b32 s{sW}, v2
    v_lshlrev_b32 v{vL16}, 4, v{vLane}
    s_and_b32 s{sTB}, s{sIdx}, 7
    s_lshl_b32 s{sTB}, s{sTB}, 1
    s_lshr_b32 s{sT}, s{sIdx}, 3
    s_and_b32 s{sT}, s{sT}, 1
    s_add_u32 s{sTB}, s{sTB}, s{sT}
    s_lshr_b32 s{sSB}, s{sIdx}, 4
    s_mov_b32 s{sTag}, {TAG}
    s_add_u32 s{sE}, s4, {WS_E}
    s_addc_u32 s{sE+1}, s5, 0
    s_mov_b32 s{sE+2}, {E_BYTES}
    s_mov_b32 s{sE+3}, 0x00020000
    s_and_b32 s{sMT}, s{sW}, 3
    s_lshr_b32 s{sKH}, s{sW}, 2
    s_lshl_b32 s{sTile}, s{sTB}, 2
    s_add_u32 s{sTile}, s{sTile}, s{sMT}
    s_and_b32 s{sT}, s{sTB}, 1
    s_lshl_b32 s{sT}, s{sT}, 2
    s_add_u32 s{sRot}, s{sSB}, s{sT}
    s_sub_u32 s{sT}, s{sRot}, 9
    s_cmp_ge_u32 s{sRot}, 9
    s_cselect_b32 s{sRot}, s{sT}, s{sRot}
    s_setprio {prio['0']}
    s_cmp_eq_u32 s{sKH}, 0
    s_cbranch_scc0 {L('loader')}
    """)


    def wrap(reg, endreg):
        P(f"""
        s_sub_u32 s{sT3}, s{reg}, {9 * 4096}
        s_cmp_ge_u32 s{reg}, s{endreg}
        s_cselect_b32 s{reg}, s{sT3}, s{reg}
        """)

    def cf_dma(c):
        slot = (c + 2) % 5
        P(f"""
        s_add_u32 m0, s{sM}, {slot * SLOT}
        s_nop 0
        buffer_load_dwordx4 v{vL16}, {ws}, s{sCo} offen lds
        buffer_load_dwordx4 v{vL16}, {ws}, s{sCo} offen offset:1024 lds
        buffer_load_dwordx4 v{vL16}, {ws}, s{sCo} offen offset:2048 lds
        buffer_load_dwordx4 v{vL16}, {ws}, s{sCo} offen offset:3072 lds
        s_add_u32 s{sCo}, s{sCo}, 4096
        """)
        if crot:
            wrap(sCo, sCend)

    def wf_dma(j):
        slot = (9 + j + 2) % 5
        P(f"s_add_u32 m0, s{sM}, {slot * SLOT}")
        P("s_nop 0")
        nk = 4 if j < 4 else 2
        for k in range(nk):
            P(f"buffer_load_dwordx4 v{vL16}, {ws}, s{sWo} offen offset:{k * 1024} lds")
        P(f"s_add_u32 s{sWo}, s{sWo}, 4096")
        return nk

    def out_phases(loader):
        outA = "outA" in exp
        ACC = [2, 18]
        HF = [34 + 4 * i for i in range(HDEPTH)]
        BF = [[98, 102], [106, 110]]
        vC0, vC1 = 114, 115
        vG1, vX, vY, vO, vTm = 116, 117, 118, 119, 120
        XR, DR, GR = 50, 58, 60
        T = 34
        use(121)
        P(f"""
        s_mul_i32 s{sHo}, s{sTile}, {72 * 1024}
        s_mul_i32 s{sT}, s{sKH}, {36 * 1024}
        s_add_u32 s{sHo}, s{sHo}, s{sT}
        s_add_u32 s{sHo}, s{sHo}, {WS_HF}
        s_lshl_b32 s{sT}, s{sKH}, 13
        v_add_u32 v{vC0}, s{sT}, v{vL16}
        v_add_u32 v{vC1}, 0x10000, v{vC0}
        """)
        if crot:
            P(f"""
            s_add_u32 s{sHend}, s{sHo}, {9 * 4096}
            s_lshl_b32 s{sT}, s{sRot}, 12
            s_add_u32 s{sHo}, s{sHo}, s{sT}
            """)
        P("s_barrier")
        common.mark(P, 1)
        vm = []

        def hload(n):
            if n % 4 == 0 and n > 0:
                P(f"s_add_u32 s{sHo}, s{sHo}, 4096")
                if crot:
                    wrap(sHo, sHend)
            P(f"buffer_load_dwordx4 {vr(HF[n % HDEPTH],4)}, v{vL16}, {ws}, s{sHo} offen offset:{(n % 4) * 1024}" + ("" if "hfl2" in exp else " sc1"))
            vm.append(("h", n))

        for n in range(HDEPTH):
            hload(n)
        P(f"s_setprio {prio['c']}")
        srd_from_kernarg(P, sP, KA_DSK, 1152)

        def creads(n):
            c, ks = divmod(n, 4)
            slot = (c + 2) % 5
            base, off = (vC1, 0) if slot == 4 else (vC0, slot * SLOT)
            return [f"ds_read_b128 {vr(BF[n & 1][ct],4)}, v{base} offset:{off + ct * 4096 + ks * 1024}" for ct in range(2)]

        def mix_loads_a():
            P(f"""
            v_and_b32 v{vTm}, 31, v{vLane}
            v_lshrrev_b32 v{vY}, 5, v{vLane}
            v_mul_u32_u24 v{vX}, 1152, v{vTm}
            v_lshlrev_b32 v{vY}, 3, v{vY}
            v_add_u32 v{vX}, v{vX}, v{vY}
            s_mul_i32 s{sT}, s{sTile}, {32 * 1152}
            s_lshl_b32 s{sT2}, s{sSB}, 7
            s_lshl_b32 s{sT3}, s{sKH}, 6
            s_add_u32 s{sT2}, s{sT2}, s{sT3}
            s_add_u32 s{sT}, s{sT}, s{sT2}
            """)
            for q in range(4):
                P(f"buffer_load_dwordx2 {vr(XR + 2 * q, 2)}, v{vX}, s[{sAX}:{sAX+3}], s{sT} offen offset:{16 * q}")
            for q in range(4):
                P(f"buffer_load_dwordx2 {vr(DR + 2 * q, 2)}, v{vY}, s[{sP}:{sP+3}], s{sT2} offen offset:{16 * q}")
            P(f"""
            v_lshlrev_b32 v{vX}, 2, v{vTm}
            s_lshl_b32 s{sT}, s{sTile}, 7
            s_add_u32 s{sT}, s{sT}, {WS_G}
            buffer_load_dword v{vG1}, v{vX}, {ws}, s{sT} offen
            v_mul_u32_u24 v{vTm}, 2304, v{vTm}
            v_lshlrev_b32 v{vO}, 1, v{vY}
            v_add_u32 v{vO}, v{vO}, v{vTm}
            """)
            vm.extend([("x", 0)] * 9)

        def mix_loads():
            P(f"""
            v_lshrrev_b32 v{vTm}, 3, v{vLane}
            v_xor_b32 v{vO}, v{vTm}, v{vLane}
            v_and_b32 v{vO}, 7, v{vO}
            v_mul_u32_u24 v{vX}, 1152, v{vTm}
            v_lshlrev_b32 v{vY}, 3, v{vO}
            v_add_u32 v{vX}, v{vX}, v{vY}
            s_mul_i32 s{sT}, s{sTile}, {32 * 1152}
            s_lshl_b32 s{sT2}, s{sSB}, 7
            s_lshl_b32 s{sT3}, s{sKH}, 6
            s_add_u32 s{sT2}, s{sT2}, s{sT3}
            s_add_u32 s{sT}, s{sT}, s{sT2}
            """)
            for i in range(4):
                P(f"buffer_load_dwordx2 {vr(XR + 2 * i, 2)}, v{vX}, s[{sAX}:{sAX+3}], s{sT} offen")
                if i < 3:
                    P(f"s_add_u32 s{sT}, s{sT}, {8 * 1152}")
            P(f"""
            buffer_load_dwordx2 {vr(DR, 2)}, v{vY}, s[{sP}:{sP+3}], s{sT2} offen
            v_lshlrev_b32 v{vY}, 2, v{vTm}
            s_lshl_b32 s{sT}, s{sTile}, 7
            s_add_u32 s{sT}, s{sT}, {WS_G}
            """)
            for i in range(4):
                P(f"buffer_load_dword v{GR + i}, v{vY}, {ws}, s{sT} offen offset:{32 * i}")
            P(f"""
            v_and_b32 v{vX}, 31, v{vLane}
            v_lshlrev_b32 v{vX}, 2, v{vX}
            buffer_load_dword v{vG1}, v{vX}, {ws}, s{sT} offen
            v_mul_u32_u24 v{vTm}, 2304, v{vTm}
            v_lshlrev_b32 v{vO}, 4, v{vO}
            v_add_u32 v{vO}, v{vO}, v{vTm}
            """)
            vm.extend([("x", 0)] * 10)

        for c in range(9):
            if loader and c >= 5:
                idx = max(i for i, e in enumerate(vm) if e == ("c", c))
                P(f"s_waitcnt vmcnt({len(vm) - 1 - idx})")
            P("s_barrier")
            if loader and 1 <= c <= 4:
                cf_dma(c + 4)
                vm.extend([("c", c + 4)] * 4)
            if loader and c >= 5 and "wflate" not in exp:
                vm.extend([("w", c - 5)] * wf_dma(c - 5))
            if c == 6 and "mixlate" not in exp:
                mix_loads_a() if outA else mix_loads()
            if "cmarks" in exp:
                common.mark(P, [4, 5, 6, 7, 8, 14, 15, 12, 13][c])
            else:
                if c == 4: common.mark(P, 14)
                if c == 7: common.mark(P, 15)
            for r in creads(4 * c):
                P(r)
            for ks in range(4):
                n = 4 * c + ks
                if ks < 3:
                    for r in creads(n + 1):
                        P(r)
                for ct in range(2):
                    cop = "0" if n == 0 else vr(ACC[ct], 16)
                    P(f"v_mfma_f32_32x32x16_bf16 {vr(ACC[ct],16)}, {vr(BF[n & 1][ct],4)}, {vr(HF[n % HDEPTH],4)}, {cop}")
                if n + HDEPTH < 36:
                    hload(n + HDEPTH)
            P("s_waitcnt lgkmcnt(0)")
        P("s_setprio 3")
        P("s_barrier")
        if loader:
            if "wflate" in exp:
                for j in range(4):
                    wf_dma(j)
            wf_dma(4)
        if "mixlate" in exp:
            mix_loads_a() if outA else mix_loads()
        common.mark(P, 2)
        if outA:
            for q in range(4):
                for j in range(4):
                    sx, sd = XR + 2 * q + (j >> 1), DR + 2 * q + (j >> 1)
                    if j & 1:
                        P(f"v_and_b32 v{T + 4 * q + j}, 0xffff0000, v{sx}")
                        P(f"v_and_b32 v{98 + j}, 0xffff0000, v{sd}")
                    else:
                        P(f"v_lshlrev_b32 v{T + 4 * q + j}, 16, v{sx}")
                        P(f"v_lshlrev_b32 v{98 + j}, 16, v{sd}")
                for j in range(4):
                    P(f"v_mul_f32 v{98 + j}, v{vG1}, v{98 + j}")
                for j in range(4):
                    P(f"v_mul_f32 v{T + 4 * q + j}, v{T + 4 * q + j}, v{98 + j}")
        else:
            Df = [98, 99, 100, 101]
            P(f"""
            v_lshlrev_b32 v{Df[0]}, 16, v{DR}
            v_and_b32 v{Df[1]}, 0xffff0000, v{DR}
            v_lshlrev_b32 v{Df[2]}, 16, v{DR+1}
            v_and_b32 v{Df[3]}, 0xffff0000, v{DR+1}
            """)
            for i in range(4):
                for j in range(4):
                    src = XR + 2 * i + (j >> 1)
                    if j & 1:
                        P(f"v_and_b32 v{T + 4 * i + j}, 0xffff0000, v{src}")
                    else:
                        P(f"v_lshlrev_b32 v{T + 4 * i + j}, 16, v{src}")
                for j in range(4):
                    P(f"v_mul_f32 v{T + 4 * i + j}, v{T + 4 * i + j}, v{Df[j]}")
                for j in range(4):
                    P(f"v_mul_f32 v{T + 4 * i + j}, v{T + 4 * i + j}, v{GR + i}")
        for ct in range(2):
            for r in range(16):
                P(f"v_mul_f32 v{ACC[ct] + r}, v{vG1}, v{ACC[ct] + r}")
        common.mark(P, 9)
        if outA:
            P(f"""
            s_lshl_b32 s{sT}, s{sW}, 12
            v_add_u32 v{vX}, s{sT}, v{vL16}
            s_xor_b32 s{sT}, s{sW}, 4
            s_lshl_b32 s{sT}, s{sT}, 12
            v_add_u32 v{vY}, s{sT}, v{vL16}
            """)
        else:
            P(f"""
        v_and_b32 v{vTm}, 31, v{vLane}
        v_lshrrev_b32 v{vX}, 5, v{vLane}
        v_xor_b32 v{vX}, v{vX}, v{vTm}
        v_and_b32 v{vX}, 7, v{vX}
        v_lshlrev_b32 v{vX}, 4, v{vX}
        v_lshlrev_b32 v{vTm}, 7, v{vTm}
        v_add_u32 v{vX}, v{vX}, v{vTm}
        s_lshl_b32 s{sT}, s{sMT}, 14
        s_lshl_b32 s{sT2}, s{sKH}, 12
        s_add_u32 s{sT2}, s{sT2}, s{sT}
        v_add_u32 v{vX}, s{sT2}, v{vX}
        s_lshl_b32 s{sT2}, s{sKH}, 13
        s_add_u32 s{sT2}, s{sT2}, s{sT}
        v_add_u32 v{vY}, s{sT2}, v{vL16}
        """)
        P(f"""
        s_mul_i32 s{sT}, s{sKH}, {18 * 1024}
        s_mul_i32 s{sHo}, s{sTile}, {36 * 1024}
        s_add_u32 s{sHo}, s{sHo}, s{sT}
        s_add_u32 s{sHo}, s{sHo}, {WS_OF}
        """)
        if not loader:
            lp, dn = P.newlabel(pfx + "_apoll"), P.newlabel(pfx + "_adone")
            P(f"""
            s_cmp_eq_u32 s{sW}, 0
            s_cbranch_scc0 {dn}
            s_lshr_b32 s{sT}, s{sTB}, 1
            s_lshl_b32 s{sT}, s{sT}, 7
            s_add_u32 s{sT}, s{sT}, {WS_FLG + FLG_ATT}
            v_lshlrev_b32 v121, 2, v{vLane}
            s_mov_b32 exec_hi, 0
            """)
            P.L(lp)
            P(f"""
            buffer_load_dword v122, v121, {ws}, s{sT} offen sc1
            s_waitcnt vmcnt(0)
            v_cmp_ne_u32 vcc, 1, v122
            s_cbranch_vccz {dn}
            s_sleep 1
            s_branch {lp}
            """)
            P.L(dn)
            P("s_mov_b64 exec, -1")
            use(123)
        P("s_waitcnt vmcnt(0)")
        P("s_barrier")
        common.mark(P, 3)
        OFr = [50 + 4 * i for i in range(ODEPTH)]
        WB = BF

        def oload(n):
            if n % 4 == 0 and n > 0:
                P(f"s_add_u32 s{sHo}, s{sHo}, 4096")
            shared = loader and n >= 14
            P(f"buffer_load_dwordx4 {vr(OFr[n % ODEPTH],4)}, v{vL16}, {ws}, s{sHo} offen offset:{(n % 4) * 1024}" + ("" if "ofl2" in exp and not shared else " sc1"))

        for n in range(ODEPTH):
            oload(n)

        def wreads(n):
            j, ks = divmod(n, 4)
            slot = (9 + j + 2) % 5
            base, off = (vC1, 0) if slot == 4 else (vC0, slot * SLOT)
            return [f"ds_read_b128 {vr(WB[n & 1][ct],4)}, v{base} offset:{off + ct * 4096 + ks * 1024}" for ct in range(2)]

        for r in wreads(0):
            P(r)
        for n in range(18):
            if n + 1 < 18:
                for r in wreads(n + 1):
                    P(r)
            for ct in range(2):
                P(f"v_mfma_f32_32x32x16_bf16 {vr(ACC[ct],16)}, {vr(WB[n & 1][ct],4)}, {vr(OFr[n % ODEPTH],4)}, {vr(ACC[ct],16)}")
            if n + ODEPTH < 18:
                oload(n + ODEPTH)
        common.mark(P, 10)
        P("s_barrier")
        if "cmarks" not in exp: common.mark(P, 12)
        if outA:
            keep, send = (ACC[1], ACC[0]) if loader else (ACC[0], ACC[1])
            for q in range(4):
                P(f"ds_write_b128 v{vX}, {vr(send + 4 * q, 4)} offset:{q * 1024}")
            for r in range(16):
                P(f"v_add_f32 v{T + r}, v{T + r}, v{keep + r}")
            P(f"""
            s_mul_i32 s{sT}, s{sTile}, {32 * 2304}
            s_lshl_b32 s{sT2}, s{sSB}, 8
            s_add_u32 s{sT}, s{sT}, s{sT2}
            s_lshl_b32 s{sT2}, s{sKH}, 7
            s_add_u32 s{sT}, s{sT}, s{sT2}
            s_waitcnt lgkmcnt(0)
            s_barrier
            """)
            common.mark(P, 13)
            RB = 50
            for q in range(4):
                P(f"ds_read_b128 {vr(RB + 4 * q, 4)}, v{vY} offset:{q * 1024}")
            for q in range(4):
                for j in range(4):
                    P(f"v_add_f32 v{T + 4 * q + j}, v{T + 4 * q + j}, v{RB + 4 * q + j}")
                P(f"buffer_store_dwordx4 {vr(T + 4 * q, 4)}, v{vO}, s[{sOut}:{sOut+3}], s{sT} offen offset:{32 * q}")
        else:
            for ct in range(2):
                for q in range(4):
                    a = vX
                    if q:
                        P(f"v_xor_b32 v{vTm}, {32 * q}, v{vX}")
                        a = vTm
                    P(f"ds_write_b128 v{a}, {vr(ACC[ct] + 4 * q, 4)} offset:{ct * 8192}")
            P(f"""
            s_mul_i32 s{sT}, s{sTile}, {32 * 2304}
            s_lshl_b32 s{sT2}, s{sSB}, 8
            s_add_u32 s{sT}, s{sT}, s{sT2}
            s_lshl_b32 s{sT2}, s{sKH}, 7
            s_add_u32 s{sT}, s{sT}, s{sT2}
            s_waitcnt lgkmcnt(0)
            s_barrier
            """)
            RB = 50
            common.mark(P, 13)
            for i in range(4):
                for h in range(2):
                    P(f"ds_read_b128 {vr(RB + 8 * i + 4 * h, 4)}, v{vY} offset:{h * 4096 + i * 1024}")
            for i in range(4):
                for j in range(4):
                    P(f"v_add_f32 v{T + 4 * i + j}, v{T + 4 * i + j}, v{RB + 8 * i + j}")
                    P(f"v_add_f32 v{T + 4 * i + j}, v{T + 4 * i + j}, v{RB + 8 * i + 4 + j}")
                P(f"buffer_store_dwordx4 {vr(T + 4 * i, 4)}, v{vO}, s[{sOut}:{sOut+3}], s{sT} offen")
                if i < 3:
                    P(f"s_add_u32 s{sT}, s{sT}, {8 * 2304}")
        common.mark(P, 11)
        P(end)

    ACC = [[2, 18], [34, 50]]
    XF = [[66, 70], [74, 78]]
    WF = [[82, 86], [90, 94]]
    vA0, vA1, vB0, vB1 = 98, 99, 100, 101
    lr, li, nli, mr, mi, br, bi = 102, 103, 104, 105, 106, 107, 108
    t = 110
    use(121)
    P(f"""
    s_and_b32 s{sWM}, s{sW}, 1
    s_lshr_b32 s{sWN}, s{sW}, 1
    s_lshl_b32 s{sT}, s{sSB}, 6
    s_lshl_b32 s{sT2}, s{sWN}, 5
    s_add_u32 s{sT}, s{sT}, s{sT2}
    v_and_b32 v{t+8}, 31, v{vLane}
    v_add_u32 v{t+8}, s{sT}, v{t+8}
    v_lshlrev_b32 v{t+9}, 1, v{t+8}
    """)
    for k, ka in enumerate((KA_LRE, KA_LIM, KA_LDT)):
        srd_from_kernarg(P, sP, ka, 1152)
        P(f"""
        s_waitcnt lgkmcnt(0)
        buffer_load_ushort v{t+4+k}, v{t+9}, s[{sP}:{sP+3}], 0 offen
        """)
    P(f"""
    s_lshl_b32 s{sT}, s{sWM}, 12
    v_add_u32 v{vA0}, s{sT}, v{vL16}
    v_add_u32 v{vA1}, 0x10000, v{vA0}
    s_lshl_b32 s{sT}, s{sWN}, 12
    s_add_u32 s{sT}, s{sT}, 8192
    v_add_u32 v{vB0}, s{sT}, v{vL16}
    v_add_u32 v{vB1}, 0x10000, v{vB0}
    """)
    emit_lambda(P, t + 4, t + 5, t + 6, t, lr, li)
    P(f"v_sub_f32 v{nli}, 0, v{li}")

    def csq(dr, di, sr_, si_):
        P(f"""
        v_mul_f32 v{t}, v{si_}, v{si_}
        v_add_f32 v{t+1}, v{sr_}, v{sr_}
        v_fma_f32 v{dr}, v{sr_}, v{sr_}, -v{t}
        v_mul_f32 v{di}, v{t+1}, v{si_}
        """)

    csq(mr, mi, lr, li)
    for _ in range(4):
        csq(mr, mi, mr, mi)
    csq(br, bi, mr, mi)
    csq(br, bi, br, bi)

    def reads(n):
        s_, ks = divmod(n, 2)
        slot = s_ % 5
        a, b, off = (vA1, vB1, 0) if slot == 4 else (vA0, vB0, slot * SLOT)
        bb = n & 1
        return [f"ds_read_b128 {vr(XF[bb][0],4)}, v{a} offset:{off + ks * 1024}",
                f"ds_read_b128 {vr(WF[bb][0],4)}, v{b} offset:{off + ks * 1024}",
                f"ds_read_b128 {vr(WF[bb][1],4)}, v{b} offset:{off + 2048 + ks * 1024}",
                f"ds_read_b128 {vr(XF[bb][1],4)}, v{a} offset:{off + 2048 + ks * 1024}"]

    P("s_barrier")
    common.mark(P, 0)
    P(f"s_setprio {prio['b']}")
    for r in reads(0):
        P(r)
    for n in range(36):
        bb = n & 1
        mf = []
        for mt in range(2):
            for cp in range(2):
                cop = "0" if n == 0 else vr(ACC[mt][cp], 16)
                mf.append(f"v_mfma_f32_32x32x16_bf16 {vr(ACC[mt][cp],16)}, {vr(XF[bb][mt],4)}, {vr(WF[bb][cp],4)}, {cop}")
        P("s_waitcnt lgkmcnt(0)")
        if bb == 1 and n + 1 < 36:
            P("s_barrier")
        rs = reads(n + 1) if n + 1 < 36 else []
        for k in range(4):
            P(mf[k])
            take = rs[:2] if k < 2 else []
            rs = rs[len(take):]
            for r in take:
                P(r)

    P("s_setprio 3")
    common.mark(P, 4)
    ea, eb = (t, t + 1), (t + 2, t + 3)
    U = lambda tau, cp: ACC[tau >> 4][cp] + (tau & 15)
    cur = (U(0, 0), U(0, 1))
    for tau in range(1, 32):
        nx = ea if tau & 1 else eb
        P(f"""
        v_fma_f32 v{nx[0]}, v{lr}, v{cur[0]}, v{U(tau,0)}
        v_fma_f32 v{nx[1]}, v{lr}, v{cur[1]}, v{U(tau,1)}
        v_fmac_f32 v{nx[0]}, v{nli}, v{cur[1]}
        v_fmac_f32 v{nx[1]}, v{li}, v{cur[0]}
        """)
        cur = nx
    assert cur == ea
    P(f"""
    v_lshrrev_b32 v{t+4}, 5, v{vLane}
    v_lshlrev_b32 v{t+4}, 9, v{t+4}
    v_and_b32 v{t+5}, 31, v{vLane}
    v_lshlrev_b32 v{t+5}, 3, v{t+5}
    s_lshl_b32 s{sT}, s{sWN}, 8
    s_add_u32 s{sT}, s{sT}, {ELOC}
    v_add_u32 v{t+5}, s{sT}, v{t+5}
    s_lshl_b32 s{sT}, s{sWM}, 10
    v_add_u32 v{t+4}, s{sT}, v{t+4}
    v_add_u32 v{t+4}, v{t+4}, v{t+5}
    ds_write_b64 v{t+4}, {vr(ea[0],2)}
    s_waitcnt lgkmcnt(0)
    s_barrier
    """)
    EL = [98, 100, 122, 124]
    for k in range(4):
        P(f"ds_read_b64 {vr(EL[k], 2)}, v{t+5} offset:{k * 512}")

    def cmuladd(dr, di, ar, ai, nai, xr, xi, yr, yi):
        P(f"""
        v_fma_f32 v{t+6}, v{ar}, v{xr}, v{yr}
        v_fma_f32 v{t+7}, v{ar}, v{xi}, v{yi}
        v_fma_f32 v{dr}, -v{ai}, v{xi}, v{t+6}
        v_fma_f32 v{di}, v{ai}, v{xr}, v{t+7}
        """) if (dr, di) != (xr, xi) else P(f"""
        v_fma_f32 v{t+6}, v{ar}, v{xr}, v{yr}
        v_fma_f32 v{t+7}, v{ar}, v{xi}, v{yi}
        v_fma_f32 v{t+7}, v{ai}, v{xr}, v{t+7}
        v_fma_f32 v{dr}, -v{ai}, v{xi}, v{t+6}
        v_mov_b32 v{di}, v{t+7}
        """)

    Eb = 66
    cmuladd(t, t + 1, mr, mi, None, EL[0], EL[0] + 1, EL[1], EL[1] + 1)
    cmuladd(t + 2, t + 3, mr, mi, None, t, t + 1, EL[2], EL[2] + 1)
    cmuladd(Eb, Eb + 2, mr, mi, None, t + 2, t + 3, EL[3], EL[3] + 1)
    nopub = P.newlabel(pfx + "_nopub")
    P(f"""
    v_mov_b32 v{Eb+1}, s{sTag}
    v_mov_b32 v{Eb+3}, s{sTag}
    s_mul_i32 s{sT}, s{sTB}, 576
    v_add_u32 v{t}, s{sT}, v{t+8}
    v_lshlrev_b32 v{t}, 4, v{t}
    s_cmp_eq_u32 s{sWM}, 0
    s_cbranch_scc0 {nopub}
    s_mov_b32 exec_hi, 0
    buffer_store_dwordx4 {vr(Eb,4)}, v{t}, s[{sE}:{sE+3}], 0 offen sc1
    s_mov_b32 exec_hi, -1
    """)
    P.L(nopub)
    EDr = [66 + 4 * i for i in range(8)]
    use(125)
    vN, vEo = t + 2, t + 3
    P(f"""
    v_lshrrev_b32 v{vN}, 5, v{vLane}
    v_lshlrev_b32 v{vN}, 3, v{vN}
    s_sub_i32 s{sT}, s{sTB}, 16
    v_add_u32 v{vN}, s{sT}, v{vN}
    s_movk_i32 s{sT}, 576
    v_mul_lo_u32 v{vEo}, v{vN}, s{sT}
    v_add_u32 v{vEo}, v{vEo}, v{t+8}
    v_lshlrev_b32 v{vEo}, 4, v{vEo}
    """)
    common.mark(P, 5)
    ep = P.newlabel(pfx + "_epoll")
    P.L(ep)
    for i in range(8):
        P(f"v_add_u32 v{t}, {i * 9216}, v{vEo}")
        P(f"buffer_load_dwordx4 {vr(EDr[i],4)}, v{t}, s[{sE}:{sE+3}], 0 offen sc1")
    P(f"s_mov_b64 s[{sBad}:{sBad+1}], 0")
    for i in range(8):
        P(f"""
        v_cmp_eq_u32 vcc, s{sTag}, v{EDr[i]+1}
        v_cmp_eq_u32 s[{sOk}:{sOk+1}], s{sTag}, v{EDr[i]+3}
        s_and_b64 s[{sOk}:{sOk+1}], s[{sOk}:{sOk+1}], vcc
        v_cmp_gt_i32 vcc, {-i}, v{vN}
        s_or_b64 s[{sOk}:{sOk+1}], s[{sOk}:{sOk+1}], vcc
        s_orn2_b64 s[{sBad}:{sBad+1}], s[{sBad}:{sBad+1}], s[{sOk}:{sOk+1}]
        """)
    edone = P.newlabel(pfx + "_edone")
    P(f"""
    s_cmp_eq_u64 s[{sBad}:{sBad+1}], 0
    s_cbranch_scc1 {edone}
    s_sleep 2
    s_branch {ep}
    """)
    P.L(edone)
    common.mark(P, 6)
    H = (t + 4, t + 5)
    cmuladd(H[0], H[1], br, bi, None, EDr[0], EDr[0] + 2, EDr[1], EDr[1] + 2)
    for i in range(2, 8):
        cmuladd(H[0], H[1], br, bi, None, H[0], H[1], EDr[i], EDr[i] + 2)
    for _ in range(3):
        csq(br, bi, br, bi)
    a0, a1, b0, b1 = 66, 67, 68, 69
    P(f"""
    v_mov_b32 v{a0}, v{H[0]}
    v_mov_b32 v{b0}, v{H[0]}
    v_mov_b32 v{a1}, v{H[1]}
    v_mov_b32 v{b1}, v{H[1]}
    v_permlane32_swap_b32 v{a0}, v{b0}
    v_permlane32_swap_b32 v{a1}, v{b1}
    """)
    C0, C1, C2, C3 = (82, 83), (84, 85), (86, 87), (88, 89)
    cmuladd(C0[0], C0[1], br, bi, None, a0, a1, b0, b1)
    cmuladd(C1[0], C1[1], mr, mi, None, C0[0], C0[1], EL[0], EL[0] + 1)
    w1, gsel = P.newlabel(pfx + "_wm1"), P.newlabel(pfx + "_gsel")
    g0 = (t, t + 1)
    P(f"""
    v_cmp_le_u32 vcc, 32, v{vLane}
    s_cmp_eq_u32 s{sWM}, 0
    s_cbranch_scc0 {w1}
    v_cndmask_b32 v{g0[0]}, v{C0[0]}, v{C1[0]}, vcc
    v_cndmask_b32 v{g0[1]}, v{C0[1]}, v{C1[1]}, vcc
    s_branch {gsel}
    """)
    P.L(w1)
    cmuladd(C2[0], C2[1], mr, mi, None, C1[0], C1[1], EL[1], EL[1] + 1)
    cmuladd(C3[0], C3[1], mr, mi, None, C2[0], C2[1], EL[2], EL[2] + 1)
    P(f"""
    v_cndmask_b32 v{g0[0]}, v{C2[0]}, v{C3[0]}, vcc
    v_cndmask_b32 v{g0[1]}, v{C2[1]}, v{C3[1]}, vcc
    """)
    P.L(gsel)
    cur = g0
    for tau in range(32):
        ur, ui = U(tau, 0), U(tau, 1)
        P(f"""
        v_fmac_f32 v{ur}, v{lr}, v{cur[0]}
        v_fmac_f32 v{ui}, v{lr}, v{cur[1]}
        v_fmac_f32 v{ur}, v{nli}, v{cur[1]}
        v_fmac_f32 v{ui}, v{li}, v{cur[0]}
        """)
        cur = (ur, ui)
    vTW, vTR, vX_ = t, t + 1, t + 2
    P(f"""
    v_and_b32 v{t+4}, 31, v{vLane}
    v_lshrrev_b32 v{t+5}, 1, v{t+4}
    v_and_b32 v{t+5}, 1, v{t+5}
    v_lshlrev_b32 v{t+5}, 2, v{t+5}
    v_lshrrev_b32 v{t+6}, 2, v{t+4}
    v_and_b32 v{t+6}, 1, v{t+6}
    v_lshlrev_b32 v{t+6}, 1, v{t+6}
    v_or_b32 v{t+5}, v{t+5}, v{t+6}
    v_and_b32 v{t+6}, 1, v{t+4}
    v_or_b32 v{t+5}, v{t+5}, v{t+6}
    v_lshrrev_b32 v{t+6}, 5, v{vLane}
    v_lshlrev_b32 v{t+6}, 2, v{t+6}
    v_xor_b32 v{t+5}, v{t+5}, v{t+6}
    v_lshlrev_b32 v{t+5}, 4, v{t+5}
    v_lshlrev_b32 v{t+4}, 7, v{t+4}
    v_add_u32 v{vTW}, v{t+4}, v{t+5}
    s_lshl_b32 s{sT}, s{sW}, 13
    v_add_u32 v{vTW}, s{sT}, v{vTW}
    """)
    PK = 66
    for cp in range(2):
        for k in range(16):
            P(f"v_cvt_pk_bf16_f32 v{PK + 16 * cp + k}, v{U(2 * k, cp)}, v{U(2 * k + 1, cp)}")
        for m in range(4):
            P(f"v_xor_b32 v{vX_}, {16 * m}, v{vTW}")
            P(f"ds_write_b128 v{vX_}, {vr(PK + 16 * cp + 4 * m, 4)} offset:{cp * 4096}")
    P(f"""
    v_lshrrev_b32 v{t+4}, 5, v{vLane}
    v_lshlrev_b32 v{t+4}, 3, v{t+4}
    v_lshrrev_b32 v{t+5}, 2, v{vLane}
    v_and_b32 v{t+5}, 3, v{t+5}
    v_add_u32 v{t+4}, v{t+4}, v{t+5}
    v_lshlrev_b32 v{t+4}, 7, v{t+4}
    v_lshrrev_b32 v{t+5}, 4, v{vLane}
    v_and_b32 v{t+5}, 1, v{t+5}
    v_lshlrev_b32 v{t+5}, 1, v{t+5}
    v_lshrrev_b32 v{t+6}, 1, v{vLane}
    v_and_b32 v{t+6}, 1, v{t+6}
    v_or_b32 v{t+5}, v{t+5}, v{t+6}
    v_lshrrev_b32 v{t+6}, 3, v{vLane}
    v_and_b32 v{t+6}, 1, v{t+6}
    v_lshlrev_b32 v{t+6}, 2, v{t+6}
    v_xor_b32 v{t+5}, v{t+5}, v{t+6}
    v_lshrrev_b32 v{t+6}, 2, v{vLane}
    v_and_b32 v{t+6}, 1, v{t+6}
    v_xor_b32 v{t+5}, v{t+5}, v{t+6}
    v_lshlrev_b32 v{t+5}, 4, v{t+5}
    v_and_b32 v{t+6}, 1, v{vLane}
    v_lshlrev_b32 v{t+6}, 3, v{t+6}
    v_add_u32 v{t+4}, v{t+4}, v{t+5}
    v_add_u32 v{t+4}, v{t+4}, v{t+6}
    v_add_u32 v{vTR}, s{sT}, v{t+4}
    s_lshl_b32 s{sT}, s{sTB}, 2
    s_lshl_b32 s{sT2}, s{sWM}, 1
    s_add_u32 s{sT}, s{sT}, s{sT2}
    s_mul_i32 s{sT}, s{sT}, 72
    s_lshl_b32 s{sT2}, s{sSB}, 2
    s_add_u32 s{sT}, s{sT}, s{sT2}
    s_lshl_b32 s{sT2}, s{sWN}, 1
    s_add_u32 s{sT}, s{sT}, s{sT2}
    s_lshl_b32 s{sT}, s{sT}, 10
    s_add_u32 s{sT}, s{sT}, {WS_HF}
    s_waitcnt lgkmcnt(0)
    """)
    TRA = [t + 4, t + 5, t + 6, t + 7]
    for tt2 in range(2):
        for rd in range(2):
            P(f"v_xor_b32 v{TRA[2 * tt2 + rd]}, {tt2 * 64 + rd * 32}, v{vTR}")
    FR = [2 + 4 * i for i in range(8)]
    k = 0
    for tt2 in range(2):
        for cp in range(2):
            for s16 in range(2):
                for rd in range(2):
                    P(f"ds_read_b64_tr_b16 {vr(FR[k] + 2 * rd, 2)}, v{TRA[2 * tt2 + rd]} offset:{cp * 4096 + s16 * 2048 + rd * 512}")
                k += 1
    k = 0
    for tt2 in range(2):
        for cp in range(2):
            P(f"s_add_u32 s{sT2}, s{sT}, {(tt2 * 72 + cp * 36) * 1024}")
            for s16 in range(2):
                P(f"buffer_store_dwordx4 {vr(FR[k],4)}, v{vL16}, {ws}, s{sT2} offen offset:{s16 * 1024} sc1")
                k += 1
    common.mark(P, 7)
    P("s_waitcnt vmcnt(0)")
    P("s_barrier")
    common.mark(P, 8)
    fl = P.newlabel(pfx + "_noflag")
    P(f"""
    s_cmp_eq_u32 s{sW}, 0
    s_cbranch_scc0 {fl}
    s_lshl_b32 s{sT}, s{sTB}, 6
    s_lshl_b32 s{sT2}, s{sSB}, 2
    s_add_u32 s{sT}, s{sT}, s{sT2}
    s_add_u32 s{sT}, s{sT}, {WS_FLG + FLG_HF}
    v_mov_b32 v2, 1
    v_mov_b32 v3, 0
    s_mov_b32 exec_hi, 0
    s_mov_b32 exec_lo, 1
    buffer_store_dword v2, v3, {ws}, s{sT} offen sc1
    s_mov_b64 exec, -1
    """)
    P.L(fl)
    out_phases(False)

    P.L(L("loader"))
    P(f"""
    s_lshl_b32 s{sT}, s{sTB}, 2
    s_add_u32 s{sT}, s{sT}, s{sMT}
    s_mul_i32 s{sXo}, s{sT}, {36 * 1024}
    s_add_u32 s{sXo}, s{sXo}, {WS_XF}
    s_lshl_b32 s{sT}, s{sSB}, 2
    s_add_u32 s{sT}, s{sT}, s{sMT}
    s_mul_i32 s{sBo}, s{sT}, {36 * 1024}
    s_add_u32 s{sBo}, s{sBo}, {WS_BF}
    s_lshl_b32 s{sM}, s{sMT}, 11
    """)

    def dmaA(s_):
        slot = s_ % 5
        P(f"""
        s_add_u32 m0, s{sM}, {slot * SLOT}
        s_nop 0
        buffer_load_dwordx4 v{vL16}, {ws}, s{sXo} offen lds
        buffer_load_dwordx4 v{vL16}, {ws}, s{sXo} offen offset:1024 lds
        s_add_u32 m0, s{sM}, {slot * SLOT + 8192}
        s_add_u32 s{sXo}, s{sXo}, 2048
        buffer_load_dwordx4 v{vL16}, {ws}, s{sBo} offen lds
        buffer_load_dwordx4 v{vL16}, {ws}, s{sBo} offen offset:1024 lds
        s_add_u32 s{sBo}, s{sBo}, 2048
        """)

    for s_ in range(5):
        dmaA(s_)
    P(f"s_setprio {prio['l']}")
    P("s_waitcnt vmcnt(16)")
    P("s_barrier")
    for s_ in range(17):
        left = (min(s_ + 4, 17) - (s_ + 1)) * 4
        P(f"s_waitcnt vmcnt({left})")
        P("s_barrier")
        if s_ + 5 < 18:
            dmaA(s_ + 5)
    P(f"""
    s_lshl_b32 s{sT}, s{sSB}, 1
    s_and_b32 s{sT2}, s{sMT}, 1
    s_add_u32 s{sT}, s{sT}, s{sT2}
    s_mul_i32 s{sCo}, s{sT}, {72 * 1024}
    s_lshr_b32 s{sT2}, s{sMT}, 1
    s_mul_i32 s{sT2}, s{sT2}, {36 * 1024}
    s_add_u32 s{sCo}, s{sCo}, s{sT2}
    s_add_u32 s{sCo}, s{sCo}, {WS_CF}
    s_mul_i32 s{sWo}, s{sT}, {36 * 1024}
    s_lshr_b32 s{sT2}, s{sMT}, 1
    s_mul_i32 s{sT2}, s{sT2}, {18 * 1024}
    s_add_u32 s{sWo}, s{sWo}, s{sT2}
    s_add_u32 s{sWo}, s{sWo}, {WS_WF}
    s_lshl_b32 s{sM}, s{sMT}, 12
    """)
    if crot:
        P(f"""
        s_add_u32 s{sCend}, s{sCo}, {9 * 4096}
        s_lshl_b32 s{sT3}, s{sRot}, 12
        s_add_u32 s{sCo}, s{sCo}, s{sT3}
        """)
    P("s_barrier")
    cf_dma(0)
    cf_dma(1)
    P("s_barrier")
    for c in (2, 3, 4):
        cf_dma(c)
    lp, dn = P.newlabel(pfx + "_hpoll"), P.newlabel(pfx + "_hdone")
    P(f"""
    s_cmp_eq_u32 s{sW}, 4
    s_cbranch_scc0 {dn}
    s_lshl_b32 s{sT}, s{sTB}, 6
    s_add_u32 s{sT}, s{sT}, {WS_FLG + FLG_HF}
    v_lshlrev_b32 v2, 2, v{vLane}
    s_mov_b32 exec_hi, 0
    s_mov_b32 exec_lo, 0x1ff
    """)
    P.L(lp)
    P(f"""
    buffer_load_dword v3, v2, {ws}, s{sT} offen sc1
    s_waitcnt vmcnt(0)
    v_cmp_ne_u32 vcc, 1, v3
    s_cbranch_vccz {dn}
    s_sleep 2
    s_branch {lp}
    """)
    P.L(dn)
    P("s_mov_b64 exec, -1")
    P("s_waitcnt vmcnt(0)")
    out_phases(True)
    return hi[0]
```

```python
from asmgen import *
from layout import *
import common
import struct


def f32(x):
    return "0x%08x" % struct.unpack("<I", struct.pack("<f", x))[0]


BUF = 20480
HALF = 10240


def emit_attention(P, sWG, pfx="att", end="s_endpgm", exp=(), sWave=None, sync=None, flag="1", flag_wave=0):
    V = Regs("v", 1)
    SA = V.alloc(16); SB = V.alloc(16); OA = V.alloc(16); OB = V.alloc(16)
    PA = V.alloc(8); PB = V.alloc(8)
    QLA = V.alloc(4); QLB = V.alloc(4); QHA = V.alloc(2); QHB = V.alloc(2)
    KL = V.alloc(4); KH = V.alloc(2); V0 = V.alloc(4); V1 = V.alloc(4)
    vL16 = V.alloc(); vKL = V.alloc(); vKH = V.alloc(); vV = V.alloc()
    vT = V.alloc(); vT2 = V.alloc(); vLane = 0
    vGq = V.alloc()
    vD = [V.alloc() for _ in range(5)]
    sHead, sQB, sW, sQG, sKH = 8, 9, 10, 11, 12
    sG0, sG1, sSt0, sSt1, sM, sIt, sAtt = 13, 14, 15, 16, 17, 18, 19
    sT, sT2, sG0i, sG1i = 20, 21, 22, 23
    sMask = 24
    sTile = 26
    sDuty, sSub = 36, 37
    sVm = 34
    srd = "s[4:7]"
    L = lambda n: f"{pfx}_{n}"

    if "attp3" in exp:
        P("s_setprio 3")
    P(f"""
    s_and_b32 s{sT}, s{sWG}, 7
    s_lshl_b32 s{sT}, s{sT}, 2
    s_lshr_b32 s{sT2}, s{sWG}, 3
    s_and_b32 s{sT2}, s{sT2}, 3
    s_add_u32 s{sHead}, s{sT}, s{sT2}
    s_lshr_b32 s{sQB}, s{sWG}, 5
    {"v_lshrrev_b32 v%d, 6, v0" % vT if sWave is None else ""}
    {"v_and_b32 v%d, 63, v0" % vLane if sWave is None else ""}
    {"v_readfirstlane_b32 s%d, v%d" % (sW, vT) if sWave is None else "s_mov_b32 s%d, s%d" % (sW, sWave)}
    v_lshlrev_b32 v{vL16}, 4, v{vLane}
    s_and_b32 s{sQG}, s{sW}, 3
    s_lshr_b32 s{sKH}, s{sW}, 2
    s_lshr_b32 s{sT}, s{sQG}, 1
    s_cmp_eq_u32 s{sT}, s{sKH}
    s_cselect_b32 s{sDuty}, 1, 0
    s_and_b32 s{sSub}, s{sQG}, 1
    s_mul_i32 s{sT}, s{sKH}, {HALF}
    v_add_u32 v{vKL}, s{sT}, v{vL16}
    v_and_b32 v{vT}, 31, v{vLane}
    v_lshlrev_b32 v{vKH}, 2, v{vT}
    v_lshrrev_b32 v{vT2}, 5, v{vLane}
    v_mul_u32_u24 v{vT2}, 18, v{vT2}
    v_add_u32 v{vT2}, v{vT2}, v{vT}
    v_lshlrev_b32 v{vV}, 4, v{vT2}
    v_add_u32 v{vV}, s{sT}, v{vV}
    s_lshl_b32 s{sTile}, s{sQB}, 3
    s_lshl_b32 s{sT2}, s{sQG}, 1
    s_add_u32 s{sTile}, s{sTile}, s{sT2}
    """)
    P(f"""
    s_lshl_b32 s{sT}, s{sHead}, 16
    s_lshl_b32 s{sT2}, s{sKH}, 15
    s_add_u32 s{sT}, s{sT}, s{sT2}
    s_add_u32 s27, s{sT}, {WS_KLO}
    s_lshl_b32 s{sT}, s{sHead}, 13
    s_lshl_b32 s{sT2}, s{sKH}, 12
    s_add_u32 s{sT}, s{sT}, s{sT2}
    s_add_u32 s28, s{sT}, {WS_KHI}
    s_mul_i32 s{sT}, s{sHead}, 288
    s_mul_i32 s{sT2}, s{sKH}, {64 * VT_GROUP}
    s_add_u32 s{sT}, s{sT}, s{sT2}
    s_add_u32 s29, s{sT}, {WS_VT}
    s_add_u32 s30, s27, 1024
    s_add_u32 s31, s28, 128
    s_cmp_eq_u32 s{sSub}, 0
    s_cselect_b32 s{sG0i}, s30, s29
    s_cselect_b32 s{sG1i}, s31, s29
    s_mov_b32 s30, {8 * VT_GROUP}
    s_cselect_b32 s{sSt0}, 4096, s30
    s_cselect_b32 s{sSt1}, 512, s30
    s_cselect_b64 vcc, -1, 0
    s_mul_i32 s{sM}, s{sKH}, {HALF}
    s_mul_i32 s{sT}, s{sSub}, 5120
    s_add_u32 s{sM}, s{sM}, s{sT}
    """)
    for u in range(5):
        P(f"""
        v_add_u32 v{SA}, {64 * u}, v{vLane}
        v_min_u32 v{SA}, 287, v{SA}
        v_mul_u32_u24 v{SA+1}, 3641, v{SA}
        v_lshrrev_b32 v{SA+1}, 16, v{SA+1}
        v_mul_u32_u24 v{SA+2}, {VT_HALF - 18 * 16}, v{SA+1}
        v_lshlrev_b32 v{SA}, 4, v{SA}
        v_add_u32 v{SA}, v{SA}, v{SA+2}
        v_subrev_u32 v{SA}, {(u & 3) * 1024}, v{SA}
        v_cndmask_b32 v{vD[u]}, v{SA}, v{vL16}, vcc
        """)
    P(f"""
    v_cmp_gt_u32 vcc, 32, v{vLane}
    v_mov_b32 v{QHA+1}, 0
    v_mov_b32 v{QHB+1}, 0
    v_mov_b32 v{KH+1}, 0x3f803f80
    s_mov_b32 s{sAtt}, 0
    s_mov_b32 s{sVm}, 0x3ffff
    s_mov_b32 s{sVm+1}, 0x3ffff
    """)

    if sync:
        sync(dict(sHead=sHead, sQB=sQB, sW=sW, sT=sT, sT2=sT2, vLane=vLane, vA=SB, vB=SB + 1, vC=SB + 2))
    P(f"""
    s_lshl_b32 s{sT}, s{sHead}, 16
    s_lshl_b32 s{sT2}, s{sTile}, 10
    s_add_u32 s{sT}, s{sT}, s{sT2}
    s_add_u32 s{sT}, s{sT}, {WS_QLO}
    buffer_load_dwordx4 {vr(QLA,4)}, v{vL16}, {srd}, s{sT} offen
    buffer_load_dwordx4 {vr(QLB,4)}, v{vL16}, {srd}, s{sT} offen offset:1024
    s_lshl_b32 s{sT}, s{sHead}, 13
    s_lshl_b32 s{sT2}, s{sTile}, 7
    s_add_u32 s{sT}, s{sT}, s{sT2}
    s_add_u32 s{sT}, s{sT}, {WS_QHI}
    buffer_load_dword v{QHA}, v{vKH}, {srd}, s{sT} offen
    buffer_load_dword v{QHB}, v{vKH}, {srd}, s{sT} offen offset:128
    s_add_u32 s{sT}, s{sTile}, s{sKH}
    s_lshl_b32 s{sT}, s{sT}, 7
    s_add_u32 s{sT}, s{sT}, {WS_G}
    buffer_load_dword v{vGq}, v{vKH}, {srd}, s{sT} offen
    """)

    def dma(par):
        skip = P.newlabel(pfx + "_nodma")
        P(f"""
        s_cmp_eq_u32 s{sDuty}, 0
        s_cbranch_scc1 {skip}
        s_add_u32 m0, s{sM}, {par * BUF}
        s_nop 0
        buffer_load_dwordx4 v{vD[0]}, {srd}, s{sG0} offen lds
        buffer_load_dwordx4 v{vD[1]}, {srd}, s{sG0} offen offset:1024 lds
        buffer_load_dwordx4 v{vD[2]}, {srd}, s{sG0} offen offset:2048 lds
        buffer_load_dwordx4 v{vD[3]}, {srd}, s{sG0} offen offset:3072 lds
        s_add_u32 m0, s{sM}, {par * BUF + 4096}
        s_add_u32 s{sG0}, s{sG0}, s{sSt0}
        buffer_load_dwordx4 v{vD[4]}, {srd}, s{sG1} offen lds
        s_add_u32 s{sG1}, s{sG1}, s{sSt1}
        """)
        P.L(skip)

    P.L(L("start"))
    P(f"""
    buffer_load_dwordx4 {vr(KL,4)}, v{vL16}, {srd}, s27 offen
    buffer_load_dword v{KH}, v{vKH}, {srd}, s28 offen
    s_mov_b32 s{sG0}, s{sG0i}
    s_mov_b32 s{sG1}, s{sG1i}
    """)
    dma(0)
    dma(1)
    P(f"""
    s_mul_i32 s{sT}, s{sKH}, {HALF}
    v_add_u32 v{vT2}, s{sT}, v{vKH}
    s_mov_b32 s{sIt}, 0
    v_cmp_gt_u32 vcc, 32, v{vLane}
    """)
    for r in range(8):
        P(f"v_mov_b32 v{PB + r}, 0")
    P(f"v_and_b32 v{vT}, 31, v{vLane}")
    P(f"v_cmp_eq_u32 s[{sMask}:{sMask+1}], 18, v{vT}")
    P(f"v_mov_b32 v{vT}, 0x3f803f80")
    for r in range(4):
        P(f"v_cndmask_b32 v{V0 + r}, 0, v{vT}, s[{sMask}:{sMask+1}]")
        P(f"v_cndmask_b32 v{V1 + r}, 0, v{vT}, s[{sMask}:{sMask+1}]")
    P(f"""
    v_cndmask_b32 v{QHA}, 0, v{QHA}, vcc
    v_cndmask_b32 v{QHB}, 0, v{QHB}, vcc
    v_mfma_f32_32x32x8bf16_1k {vr(SA,16)}, {vr(KH,2)}, {vr(QHA,2)}, 0
    v_mfma_f32_32x32x16_bf16 {vr(SA,16)}, {vr(KL,4)}, {vr(QLA,4)}, {vr(SA,16)}
    """)
    for r in range(16):
        P(f"v_mov_b32 v{OA + r}, 0")
        P(f"v_mov_b32 v{OB + r}, 0")
    P(f"""
    s_waitcnt vmcnt(5)
    s_barrier
    """)
    vKHl = vT2

    def valu_seq(S, Pk):
        seq = []
        e = lambda r: f"v_exp_f32 v{S + r}, v{S + r}"
        c = lambda k: f"v_cvt_pk_bf16_f32 v{Pk + k}, v{S + 2 * k}, v{S + 2 * k + 1}"
        seq += [e(0), e(1)]
        for k in range(7):
            seq += [e(2 * k + 2), c(k), e(2 * k + 3)]
        seq += [None, c(7)]
        return seq

    def phase(S, Pk, mf, extra):
        seq = valu_seq(S, Pk)
        pos = [0, 6, 12, 18]
        k = 0
        out = []
        for idx, ins in enumerate(seq):
            if k < 4 and idx == pos[k]:
                out += mf[k] if isinstance(mf[k], list) else [mf[k]]
                out += extra.get(k, [])
                k += 1
            if ins is None:
                out.append("s_nop 0")
            else:
                out.append(ins)
        for o in out:
            P(o)

    def qk(S, QH, QL):
        return [f"v_mfma_f32_32x32x8bf16_1k {vr(S,16)}, {vr(KH,2)}, {vr(QH,2)}, 0",
                f"v_mfma_f32_32x32x16_bf16 {vr(S,16)}, {vr(KL,4)}, {vr(QL,4)}, {vr(S,16)}"]

    def pv(O, Pk):
        return [f"v_mfma_f32_32x32x16_bf16 {vr(O,16)}, {vr(V0,4)}, {vr(Pk,4)}, {vr(O,16)}",
                f"v_mfma_f32_32x32x16_bf16 {vr(O,16)}, {vr(V1,4)}, {vr(Pk+4,4)}, {vr(O,16)}"]

    def step(par, t):
        a = qk(SB, QHB, QLB); b = pv(OB, PB)
        ex = {1: [f"ds_read_b32 v{KH}, v{vKHl} offset:{par * BUF + 4096 + t * 128}",
                  f"ds_read_b128 {vr(KL,4)}, v{vKL} offset:{par * BUF + t * 1024}"],
              3: [f"ds_read_b128 {vr(V0,4)}, v{vV} offset:{par * BUF + 5120 + 2 * t * 576}",
                  f"ds_read_b128 {vr(V1,4)}, v{vV} offset:{par * BUF + 5120 + (2 * t + 1) * 576}"]}
        if "nozero" not in exp:
            ex[3] = [f"s_mov_b64 exec, s[{sVm}:{sVm+1}]"] + ex[3] + ["s_mov_b64 exec, -1"]
        if "noread" in exp:
            ex = {}
        phase(SA, PA, [a[0], a[1], b[0], b[1]], ex)
        a = qk(SA, QHA, QLA); b = pv(OA, PA)
        phase(SB, PB, [["s_waitcnt lgkmcnt(2)", a[0]], a[1], ["s_waitcnt lgkmcnt(0)", b[0]], b[1]], {})

    common.mark(P, 0)
    prio_of = lambda c, t: 3 - t
    if 'attp1' in exp:
        prio_of = lambda c, t: max(1, 3 - t)
    if 'attp2' in exp:
        prio_of = lambda c, t: (3, 2, 2, 1)[t]
    for c in range(8):
        par = c & 1
        for t in range(4):
            if "noprio" not in exp:
                P(f"s_setprio {prio_of(c, t)}")
            step(par, t)
        P("s_waitcnt vmcnt(0) lgkmcnt(0)")
        if "nobar" not in exp:
            P("s_barrier")
        if c < 6 and "nodma" not in exp:
            dma(par)
        common.mark(P, 4 + c)
    common.mark(P, 1)
    for m in pv(OB, PB):
        P(m)

    XL = 24576
    P(f"""
    s_lshl_b32 s{sT}, s{sQG}, 9
    s_lshl_b32 s{sT2}, s{sKH}, 2
    s_add_u32 s{sT}, s{sT}, s{sT2}
    s_add_u32 s{sT}, s{sT}, {XL}
    v_and_b32 v{vT}, 31, v{vLane}
    v_lshlrev_b32 v{vT}, 3, v{vT}
    v_add_u32 v{vT}, s{sT}, v{vT}
    s_mul_i32 s{sT}, s{sW}, 3072
    v_add_u32 v{SA}, s{sT}, v{vL16}
    s_xor_b32 s{sT2}, s{sW}, 4
    s_mul_i32 s{sT2}, s{sT2}, 3072
    v_add_u32 v{SA+1}, s{sT2}, v{vL16}
    s_mov_b32 exec_hi, 0
    ds_write_b32 v{vT}, v{OA+10}
    ds_write_b32 v{vT}, v{OB+10} offset:256
    s_mov_b32 exec_hi, -1
    s_cmp_eq_u32 s{sKH}, 0
    s_cbranch_scc0 {L('send_a')}
    ds_write_b128 v{SA}, {vr(OB,4)}
    ds_write_b128 v{SA}, {vr(OB+4,4)} offset:1024
    ds_write_b128 v{SA}, {vr(OB+8,4)} offset:2048
    s_branch {L('sent')}
    """)
    P.L(L("send_a"))
    P(f"""
    ds_write_b128 v{SA}, {vr(OA,4)}
    ds_write_b128 v{SA}, {vr(OA+4,4)} offset:1024
    ds_write_b128 v{SA}, {vr(OA+8,4)} offset:2048
    s_waitcnt lgkmcnt(0)
    """)
    for r in range(12):
        P(f"v_mov_b32 v{OA + r}, v{OB + r}")
    P.L(L("sent"))
    P(f"""
    s_waitcnt lgkmcnt(0)
    s_barrier
    ds_read_b128 {vr(SB,4)}, v{SA+1}
    ds_read_b128 {vr(SB+4,4)}, v{SA+1} offset:1024
    ds_read_b128 {vr(SB+8,4)}, v{SA+1} offset:2048
    v_lshlrev_b32 v{vT}, 3, v{vLane}
    ds_read_b64 {vr(PA,2)}, v{vT} offset:{XL}
    ds_read_b64 {vr(PA+2,2)}, v{vT} offset:{XL + 512}
    ds_read_b64 {vr(PB,2)}, v{vT} offset:{XL + 1024}
    ds_read_b64 {vr(PB+2,2)}, v{vT} offset:{XL + 1536}
    """)
    for r in range(11):
        P(f"v_add_f32 v{OA + r}, v{OA + r}, v{SB + r}")
    P(f"""
    v_add_f32 v{PA}, v{PA}, v{PA+1}
    v_add_f32 v{PA+2}, v{PA+2}, v{PA+3}
    v_add_f32 v{PB}, v{PB}, v{PB+1}
    v_add_f32 v{PB+2}, v{PB+2}, v{PB+3}
    s_cmp_eq_u32 s{sAtt}, 1
    s_cbranch_scc1 {L('final')}
    v_mov_b32 v{PA+6}, {f32(2.0 ** -64)}
    v_mov_b32 v{PA+7}, {f32(2.0 ** 64)}
    s_mov_b64 s[{sMask}:{sMask+1}], exec
    """)
    for r in (PA, PA + 2, PB, PB + 2):
        P(f"""
        v_cmp_ge_f32 vcc, v{r}, v{PA+6}
        s_and_b64 s[{sMask}:{sMask+1}], s[{sMask}:{sMask+1}], vcc
        v_cmp_le_f32 vcc, v{r}, v{PA+7}
        s_and_b64 s[{sMask}:{sMask+1}], s[{sMask}:{sMask+1}], vcc
        """)
    P(f"""
    s_andn2_b64 s[{sMask}:{sMask+1}], exec, s[{sMask}:{sMask+1}]
    s_cbranch_scc1 {L('maxpass')}
    """)
    P.L(L("final"))
    common.mark(P, 2)
    P(f"""
    v_mov_b32 v{SB}, v{OA+10}
    v_mov_b32 v{SB+1}, v{OA+10}
    s_add_u32 s{sTile}, s{sTile}, s{sKH}
    s_mul_i32 s{sT}, s{sTile}, {36 * 1024}
    v_permlane32_swap_b32 v{SB}, v{SB+1}
    s_add_u32 s{sT}, s{sT}, {WS_OF}
    v_rcp_f32 v{SB}, v{SB}
    {"v_mov_b32 v%d, 1.0" % (SB + 1) if "oldtail" in exp else "v_sub_f32 v%d, 1.0, v%d" % (SB + 1, vGq)}
    s_lshl_b32 s{sT2}, s{sHead}, 10
    s_add_u32 s{sT2}, s{sT2}, s{sT}
    v_mul_f32 v{SB}, v{SB}, v{SB+1}
    """)
    for r in range(10):
        P(f"v_mul_f32 v{OA + r}, v{OA + r}, v{SB}")
    for k in range(5):
        P(f"v_cvt_pk_bf16_f32 v{PA + k}, v{OA + 2 * k}, v{OA + 2 * k + 1}")
    P(f"""
    buffer_store_dwordx4 {vr(PA,4)}, v{vL16}, {srd}, s{sT2} offen sc1
    s_lshr_b32 s{sT2}, s{sHead}, 3
    s_add_u32 s{sT2}, s{sT2}, 32
    s_lshl_b32 s{sT2}, s{sT2}, 10
    s_add_u32 s{sT}, s{sT}, s{sT2}
    s_lshr_b32 s{sT2}, s{sHead}, 2
    s_and_b32 s{sT2}, s{sT2}, 1
    s_lshl_b32 s{sT2}, s{sT2}, 9
    s_add_u32 s{sT}, s{sT}, s{sT2}
    s_and_b32 s{sT2}, s{sHead}, 3
    s_lshl_b32 s{sT2}, s{sT2}, 2
    s_add_u32 s{sT}, s{sT}, s{sT2}
    s_mov_b32 exec_hi, 0
    buffer_store_dword v{PA+4}, v{vL16}, {srd}, s{sT} offen sc1
    s_waitcnt vmcnt(0)
    s_barrier
    s_cmp_eq_u32 s{sW}, {flag_wave}
    s_cbranch_scc0 {L('noflag')}
    s_lshl_b32 s{sT}, s{sQB}, 7
    s_lshl_b32 s{sT2}, s{sHead}, 2
    s_add_u32 s{sT}, s{sT}, s{sT2}
    s_add_u32 s{sT}, s{sT}, {WS_FLG + FLG_ATT}
    v_mov_b32 v{PA}, {flag}
    v_mov_b32 v{PA+1}, 0
    s_mov_b32 exec_lo, 1
    buffer_store_dword v{PA}, v{PA+1}, {srd}, s{sT} offen sc1
    """)
    P.L(L("noflag"))
    P(end)

    P.L(L("maxpass"))
    P(f"""
    s_barrier
    s_mov_b32 s{sAtt}, 1
    s_mov_b32 s{sIt}, 0
    s_mov_b32 s{sG0}, s27
    s_mov_b32 s{sG1}, s28
    v_mov_b32 v{QHA+1}, 0
    v_mov_b32 v{QHB+1}, 0
    v_mov_b32 v{PA}, 0xff800000
    v_mov_b32 v{PB}, 0xff800000
    """)
    P.L(L("maxloop"))
    P(f"""
    buffer_load_dwordx4 {vr(KL,4)}, v{vL16}, {srd}, s{sG0} offen
    buffer_load_dword v{KH}, v{vKH}, {srd}, s{sG1} offen
    s_add_u32 s{sG0}, s{sG0}, 1024
    s_add_u32 s{sG1}, s{sG1}, 128
    """)
    for m in qk(SA, QHA, QLA) + qk(SB, QHB, QLB):
        P(m)
    for S, M in ((SA, PA), (SB, PB)):
        for r in range(0, 16, 2):
            P(f"v_max3_f32 v{M}, v{S + r}, v{S + r + 1}, v{M}")
    P(f"""
    s_add_u32 s{sIt}, s{sIt}, 1
    s_cmp_lt_u32 s{sIt}, 32
    s_cbranch_scc1 {L('maxloop')}
    """)
    for M in (PA, PB):
        P(f"""
        v_mov_b32 v{M+1}, v{M}
        v_mov_b32 v{M+2}, v{M}
        v_permlane32_swap_b32 v{M+1}, v{M+2}
        v_max3_f32 v{M}, v{M}, v{M+1}, v{M+2}
        """)
    P(f"""
    s_lshl_b32 s{sT}, s{sW}, 9
    v_lshlrev_b32 v{vT}, 3, v{vLane}
    v_add_u32 v{SA}, s{sT}, v{vT}
    s_xor_b32 s{sT}, s{sW}, 4
    s_lshl_b32 s{sT}, s{sT}, 9
    v_add_u32 v{SA+1}, s{sT}, v{vT}
    v_mov_b32 v{PA+1}, v{PB}
    ds_write_b64 v{SA}, {vr(PA,2)}
    s_waitcnt lgkmcnt(0)
    s_barrier
    ds_read_b64 {vr(PA+2,2)}, v{SA+1}
    v_cmp_gt_u32 vcc, 32, v{vLane}
    v_max_f32 v{PA}, v{PA}, v{PA+2}
    v_max_f32 v{PB}, v{PB}, v{PA+3}
    """)
    for M, QH in ((PA, QHA), (PB, QHB)):
        P(f"""
        v_sub_f32 v{M}, 0, v{M}
        v_and_b32 v{M+1}, 0xffff0000, v{M}
        v_sub_f32 v{M+2}, v{M}, v{M+1}
        v_and_b32 v{M+3}, 0xffff0000, v{M+2}
        v_sub_f32 v{M+4}, v{M+2}, v{M+3}
        v_lshrrev_b32 v{M+5}, 16, v{M+1}
        v_or_b32 v{M+5}, v{M+5}, v{M+3}
        v_lshrrev_b32 v{M+6}, 16, v{M+4}
        v_cndmask_b32 v{QH+1}, v{M+6}, v{M+5}, vcc
        """)
    P(f"""
    s_barrier
    s_branch {L('start')}
    """)
    return V.hi
```

```python
import sys
from common import *
import common
from k1 import emit_k1, K1_LDS
from att import emit_attention
from svc import emit_service, SVC_LDS
import svc_v1

KNAME = "gated_mix__ssm_conv_s5__softmax_full_mha__prompt_kernel"

def k_k1(timing=False, name="k1_kernel", exp=()):
    P = Prog()
    P.L(name)
    if timing:
        timing_start(P, 84, 4); P("v_lshrrev_b32 v166, 6, v0")
    ws_srd(P)
    P("s_cmp_ge_u32 s2, 256\ns_cbranch_scc1 k1_exit")
    nv = emit_k1(P, 2, end="s_branch tk_exit" if timing else "s_endpgm", exp=exp, end_c="s_branch tc_exit" if timing else None)
    P.L("k1_exit")
    P("s_endpgm")
    if timing and "dbgt" in exp:
        dbg_exit(P, "tc_exit", -512, [(0, 0, {0: "start", 1: "end"}), (200, 0, {2: "end"})], 166)
        dbg_exit(P, "tk_exit", -512, [], 166); nv = 168
        common.TIMING = False
    elif timing:
        timing_exit(P, "tc_exit", slot=3, vw=166, wgshift=11)
        common.MK0, common.NMARK = 84, 4
        timing_exit(P, "tk_exit", slot=3, vw=166, wgshift=11); nv = 168
        common.TIMING = False
    return name, P.finalize([name]), nv, (name, 256, K1_LDS, 768)

def k_att(timing=False):
    P = Prog(); name = "att_kernel"
    P.L(name)
    if timing:
        timing_start(P); P("v_lshrrev_b32 v127, 6, v0")
    ws_srd(P)
    P("s_cmp_ge_u32 s2, 256\ns_cbranch_scc1 att_exit")
    nv = emit_attention(P, 2, end="s_branch ta_exit" if timing else "s_endpgm")
    P.L("att_exit")
    P("s_endpgm")
    if timing:
        timing_exit(P, "ta_exit", slot=0, vw=127); nv = 128
        common.TIMING = False
    return name, P.finalize([name]), nv, (name, 256, 40960, 512)

def k_svc(timing=False, exp=()):
    P = Prog(); name = "svc_kernel"
    P.L(name)
    if timing:
        timing_start(P); P("v_lshrrev_b32 v127, 6, v0")
    ws_srd(P)
    P("s_cmp_ge_u32 s2, 144\ns_cbranch_scc1 svc_exit")
    nv = emit_service(P, 2, end="s_branch ts_exit" if timing else "s_endpgm", exp=exp)
    P.L("svc_exit")
    P("s_endpgm")
    if timing:
        timing_exit(P, "ts_exit", slot=1, vw=127); nv = 128
        common.TIMING = False
    return name, P.finalize([name]), nv, (name, 144, SVC_LDS, 512)

def k_l2(timing=False, exp=()):
    P = Prog(); name = "l2_kernel"
    P.L(name)
    if timing:
        timing_start(P); P("v_lshrrev_b32 v127, 6, v0")
    ws_srd(P)
    P("""
    s_cmp_ge_u32 s2, 400
    s_cbranch_scc1 l2_exit
    s_cmp_ge_u32 s2, 256
    s_cbranch_scc1 l2_svc
    """)
    e = "s_branch tl_exit" if timing else "s_endpgm"
    nv = emit_attention(P, 2, end=e, exp=exp)
    P.L("l2_svc")
    P("s_sub_u32 s3, s2, 256")
    nv = max(nv, (svc_v1.emit_service if "oldtail" in exp else emit_service)(P, 3, end="s_branch ts_exit" if timing and "dbgt" in exp else e, exp=exp))
    P.L("l2_exit")
    P("s_endpgm")
    if timing and "dbgt" in exp:
        dbg_exit(P, "tl_exit", 0, [(0, 0, {3: "start", 4: 0, 5: 1, 6: "end"}), (200, 0, {7: "end"})], 127)
        dbg_exit(P, "ts_exit", 0, [(256 + 70, 0, {8: 0, 9: 4, 10: 6, 11: 1, 12: 2, 13: 3, 14: 10, 15: "end"})], 127); nv = 128
        common.TIMING = False
    elif timing:
        timing_exit(P, "tl_exit", slot=0, vw=127); nv = 128
        common.TIMING = False
    return name, P.finalize([name]), nv, (name, 400, SVC_LDS, 512)

def nonce_fetch(P, srd, vN, create):
    P(f"""
    s_load_dwordx2 s[{srd}:{srd+1}], s[0:1], {KA_DBG}
    s_mov_b32 s{srd+2}, 256
    s_mov_b32 s{srd+3}, 0x00020000
    """)
    if create:
        rd, dn = P.newlabel("tag_rd"), P.newlabel("tag_dn")
        P(f"""
        s_cmp_eq_u32 s2, 0
        s_cbranch_scc0 {rd}
        s_memrealtime s[48:49]
        s_waitcnt lgkmcnt(0)
        s_or_b32 s48, s48, 1
        v_mov_b32 v{vN}, s48
        s_mov_b64 exec, 1
        buffer_store_dword v{vN}, off, s[{srd}:{srd+3}], 0 sc1
        s_mov_b64 exec, -1
        s_branch {dn}
        """)
        P.L(rd)
        P(f"buffer_load_dword v{vN}, off, s[{srd}:{srd+3}], 0 sc1")
        P.L(dn)
    else:
        P(f"buffer_load_dword v{vN}, off, s[{srd}:{srd+3}], 0 sc1")


def nonce_wait(P, srd, vN, sN):
    lp, ok = P.newlabel("tag_lp"), P.newlabel("tag_ok")
    P.L(lp)
    P(f"""
    s_waitcnt vmcnt(0)
    v_readfirstlane_b32 s{sN}, v{vN}
    s_cmp_lg_u32 s{sN}, 0
    s_cbranch_scc1 {ok}
    s_sleep 2
    buffer_load_dword v{vN}, off, s[{srd}:{srd+3}], 0 sc1
    s_branch {lp}
    """)
    P.L(ok)


def k_m1(timing=False, exp=()):
    from k1m import emit_k1_phase
    from prepm import emit_prep
    P = Prog(); name = KNAME
    sNonce, sWave, sFlag, vN = 50, 51, 49, 126
    P.L(name)
    if timing:
        timing_start(P); P("v_lshrrev_b32 v127, 6, v0")
    ws_srd(P)
    P(f"""
    v_lshrrev_b32 v1, 6, v0
    v_and_b32 v0, 63, v0
    v_readfirstlane_b32 s{sWave}, v1
    s_cmp_ge_u32 s2, 400
    s_cbranch_scc1 m1_exit
    s_cmp_ge_u32 s2, 256
    s_cbranch_scc1 m1_svc
    s_setprio 3
    s_cmp_eq_u32 s{sWave}, 4
    s_cbranch_scc0 m1_notag
    """)
    nonce_fetch(P, 44, vN, True)
    P.L("m1_notag")
    e = "s_branch tl_exit" if timing else "s_endpgm"
    GO, ksleep = 9, 4
    for x in exp:
        if x.startswith("ksleep="): ksleep = int(x[7:])
    for x in exp:
        if x.startswith("go="): GO = int(x[3:])

    def hook(b):
        if b == -1:
            sk, lp = P.newlabel("m1_tag"), P.newlabel("m1_taglp")
            P(f"""
            s_cmp_eq_u32 s{sWave}, 4
            s_cbranch_scc0 {sk}
            v_readfirstlane_b32 s{sNonce}, v{vN}
            s_cmp_lg_u32 s{sNonce}, 0
            s_cbranch_scc1 {sk}
            s_load_dwordx2 s[44:45], s[0:1], {KA_DBG}
            s_mov_b32 s46, 256
            s_mov_b32 s47, 0x00020000
            """)
            P.L(lp)
            P(f"""
            s_sleep 2
            buffer_load_dword v{vN}, off, s[44:47], 0 sc1
            s_waitcnt vmcnt(0)
            v_readfirstlane_b32 s{sNonce}, v{vN}
            s_cmp_eq_u32 s{sNonce}, 0
            s_cbranch_scc1 {lp}
            """)
            P.L(sk)
        if b == GO:
            sk = P.newlabel("m1_go")
            P(f"""
            s_cmp_eq_u32 s{sWave}, 4
            s_cbranch_scc0 {sk}
            s_cmp_lt_u32 s2, 144
            s_cbranch_scc0 {sk}
            v_mov_b32 v92, s{sNonce}
            v_mov_b32 v93, s{sNonce}
            v_mov_b32 v94, s{sNonce}
            v_mov_b32 v95, s{sNonce}
            s_lshl_b32 s42, s2, 6
            s_add_u32 s42, s42, {WS_FLG + FLG_GO}
            s_mov_b64 exec, 1
            buffer_store_dwordx4 v[92:95], off, s[4:7], s42 sc1
            s_mov_b64 exec, -1
            """)
            P.L(sk)

    nk = emit_k1_phase(P, 2, sWave, "m1_k1done", exp=exp, hook=hook)
    P.L("m1_k1done")
    P(f"""
    s_lshl_b32 s{sFlag}, s25, 6
    s_lshl_b32 s33, s24, 2
    s_add_u32 s{sFlag}, s{sFlag}, s33
    s_lshl_b32 s48, s24, 6
    s_lshl_b32 s33, s25, 2
    s_add_u32 s48, s48, s33
    s_add_u32 s48, s48, {FLG_K1T - FLG_K1}
    """)

    def sync(r):
        sHead, sQB, sW, sT, sT2, ln, vA, vB, vC = (r[k] for k in ("sHead", "sQB", "sW", "sT", "sT2", "vLane", "vA", "vB", "vC"))
        sK, sQ, sV1, sV2 = 38, 39, 40, 41
        vD = vC + 1 + ((vC + 1) & 1)
        w0a, w0b = P.newlabel("m1_w0a"), P.newlabel("m1_w0b")
        P(f"""
        s_lshr_b32 s{sT}, s{sHead}, 1
        s_add_u32 s{sT}, s{sT}, 16
        s_mul_i32 s{sK}, s{sT}, 21846
        s_lshr_b32 s{sK}, s{sK}, 16
        s_mul_i32 s{sT}, s{sHead}, 18
        s_lshr_b32 s{sV1}, s{sT}, 7
        s_add_u32 s{sV1}, s{sV1}, 11
        s_add_u32 s{sT}, s{sT}, 17
        s_lshr_b32 s{sV2}, s{sT}, 7
        s_add_u32 s{sV2}, s{sV2}, 11
        s_lshl_b32 s{sK}, s{sK}, 6
        s_lshl_b32 s{sV1}, s{sV1}, 6
        s_lshl_b32 s{sV2}, s{sV2}, 6
        s_lshl_b32 s{sQ}, s{sQB}, 7
        s_add_u32 s{sQ}, s{sQ}, {FLG_K1T - FLG_K1 - 24 * 8}
        v_and_b32 v{vA}, 7, v{ln}
        v_lshlrev_b32 v{vA}, 3, v{vA}
        v_mov_b32 v{vB}, s{sK}
        v_mov_b32 v{vC}, s{sV1}
        v_cmp_le_u32 vcc, 8, v{ln}
        v_cndmask_b32 v{vB}, v{vB}, v{vC}, vcc
        v_mov_b32 v{vC}, s{sV2}
        v_cmp_le_u32 vcc, 16, v{ln}
        v_cndmask_b32 v{vB}, v{vB}, v{vC}, vcc
        v_add_u32 v{vA}, v{vA}, v{vB}
        v_lshlrev_b32 v{vB}, 3, v{ln}
        v_add_u32 v{vB}, s{sQ}, v{vB}
        v_cmp_le_u32 vcc, 24, v{ln}
        v_cndmask_b32 v{vA}, v{vA}, v{vB}, vcc
        v_and_b32 v{vB}, 15, v{ln}
        v_lshlrev_b32 v{vB}, 12, v{vB}
        v_mov_b32 v{vC}, s{sFlag}
        v_mov_b32 v{vD}, s48
        v_cmp_le_u32 vcc, 16, v{ln}
        v_cndmask_b32 v{vC}, v{vC}, v{vD}, vcc
        v_add_u32 v{vB}, v{vB}, v{vC}
        s_waitcnt vmcnt(0)
        s_barrier
        """)
        common.mark(P, 14)
        lp = P.newlabel("m1_poll")
        P(f"""
        s_cmp_eq_u32 s{sW}, 4
        s_cbranch_scc0 {w0b}
        v_mov_b32 v{vC}, s{sNonce}
        s_mov_b32 s{sT}, {WS_FLG + FLG_K1}
        s_mov_b32 exec_hi, 0
        buffer_store_dword v{vC}, v{vB}, s[4:7], s{sT} offen sc1
        s_and_b32 s{sT2}, s2, {NREP - 1}
        s_lshl_b32 s{sT2}, s{sT2}, 12
        s_add_u32 s{sT}, s{sT}, s{sT2}
        s_mov_b32 exec_hi, 0xff
        """)
        depth = 1
        for x in exp:
            if x.startswith("kpipe="): depth = int(x[6:])
        if depth == 1:
            P.L(lp)
            P(f"""
            buffer_load_dwordx2 v[{vD}:{vD+1}], v{vA}, s[4:7], s{sT} offen sc1
            s_waitcnt vmcnt(0)
            v_cmp_ne_u32 vcc, s{sNonce}, v{vD}
            v_cmp_ne_u32 s[{sK}:{sK+1}], s{sNonce}, v{vD+1}
            s_or_b64 vcc, vcc, s[{sK}:{sK+1}]
            s_cbranch_scc0 {w0b}
            s_sleep {ksleep}
            s_branch {lp}
            """)
        else:
            for k in range(depth - 1):
                P(f"buffer_load_dwordx2 v[{vD+2*k}:{vD+2*k+1}], v{vA}, s[4:7], s{sT} offen sc1")
                P(f"s_sleep {ksleep}")
            P.L(lp)
            for k in range(depth):
                n = (k + depth - 1) % depth
                P(f"""
                buffer_load_dwordx2 v[{vD+2*n}:{vD+2*n+1}], v{vA}, s[4:7], s{sT} offen sc1
                s_waitcnt vmcnt({depth - 1})
                v_cmp_ne_u32 vcc, s{sNonce}, v{vD+2*k}
                v_cmp_ne_u32 s[{sK}:{sK+1}], s{sNonce}, v{vD+2*k+1}
                s_or_b64 vcc, vcc, s[{sK}:{sK+1}]
                s_cbranch_scc0 {w0b}
                s_sleep {ksleep}
                """)
            P(f"s_branch {lp}")
        P.L(w0b)
        P("s_mov_b64 exec, -1")
        P("s_barrier")
        common.mark(P, 15)

    nv = emit_attention(P, 2, end=e, exp=[x for x in exp if x != "attp3"], sWave=sWave, sync=sync, flag=f"s{sNonce}", flag_wave=4)
    P.L("m1_svc")
    P("s_sub_u32 s3, s2, 256")
    if "nosvc" in exp: P("s_branch m1_exit")
    if "prepp" in exp: P("s_setprio 3")
    rawb = "rawb" in exp
    npv = emit_prep(P, 3, sWave, exp=exp) if not rawb else 80
    if "pmarks" in exp: common.mark(P, 6)
    t0, t1 = P.newlabel("m1_s0"), P.newlabel("m1_s1")
    P(f"""
    s_cmp_eq_u32 s{sWave}, 7
    s_cbranch_scc0 {t0}
    """)
    nonce_fetch(P, 84, 1, False)
    nonce_wait(P, 84, 1, sNonce)
    P(f"""
    v_mov_b32 v2, 65536
    ds_write_b32 v2, v1
    """)
    P.L(t0)
    P(f"""
    s_waitcnt vmcnt(0) lgkmcnt(0)
    s_barrier
    v_mov_b32 v2, 65536
    ds_read_b32 v1, v2
    s_waitcnt lgkmcnt(0)
    v_readfirstlane_b32 s{sNonce}, v1
    s_cmp_eq_u32 s{sWave}, {7 if not rawb else 99}
    s_cbranch_scc0 {t1}
    s_lshl_b32 s8, s3, 2
    s_add_u32 s8, s8, {WS_FLG + FLG_PREP}
    v_lshlrev_b32 v2, 12, v0
    s_mov_b64 exec, 0xffff
    buffer_store_dword v1, v2, s[4:7], s8 offen sc1
    s_mov_b64 exec, -1
    """)
    P.L(t1)
    if "pmarks" in exp: common.mark(P, 5)
    nv = max(nv, nk, npv, vN + 1, emit_service(P, 3, end=e, exp=exp, sWave=sWave, sNonce=sNonce))
    P.L("m1_exit")
    P("s_endpgm")
    if timing and "dbgt" in exp:
        dbg_exit(P, "tl_exit", 0, [(1, 0, {1: "start", 2: 12, 3: 13, 4: 14, 5: 15, 6: 0, 7: 1, 8: "end"}), (200, 0, {9: "start", 10: "end"}),
                                   (256 + 70, 0, {11: 0, 12: 8, 13: 2, 14: 3, 15: "end"})], 127); nv = 128
        common.TIMING = False
    elif timing:
        timing_exit(P, "tl_exit", slot=0, vw=127); nv = 128
        common.TIMING = False
    return name, P.finalize([name]), nv, (name, 400, SVC_LDS, 512)


def k_empty():
    P = Prog(); name = "nop_kernel"
    P.L(name)
    P("s_endpgm")
    return name, P.finalize([name]), 8, (name, 1, 0, 64)

def assemble(ks, order=None):
    txt = launch_text([ks[i][3] for i in order] if order else [k[3] for k in ks])
    if len(ks) == 1 and ks[0][0] == KNAME:
        txt = "; @launch grid=(%d,1,1) block=(%d,1,1) lds=%d\n" % (ks[0][3][1], ks[0][3][3], ks[0][3][2])
    txt += '.amdgcn_target "amdgcn-amd-amdhsa--gfx950"\n.text\n'
    for name, body, nv, _ in ks:
        txt += kernel_header(name) + body
    txt += '.section .rodata,"a"\n.p2align 6\n'
    for name, body, nv, _ in ks:
        assert nv <= 256
        txt += kernel_desc(name, nv)
    return txt

def build(mode="sep", timing=False, exp=()):
    common.TIMING = False
    if "dbgt" in exp:
        timing = True
        common.REAL = True
    if mode == "m2":
        ks = [k_k1(timing, exp=exp), k_l2(timing, exp)]
    elif mode == "m1":
        ks = [k_m1(timing, exp)]
    elif mode == "k1":
        ks = [k_k1(timing, exp=exp)]
    for e in exp:
        if e.startswith("k1st=") or e.startswith("outst="):
            key, mods = e.split("=")
            mods = " " + mods.replace("_", " ")
            for i, (name, body, nv, l) in enumerate(ks):
                out = []
                for ln in body.split("\n"):
                    t = ln.strip()
                    if t.startswith("buffer_store") and "sc1" not in t:
                        if (key == "k1st" and name == "k1_kernel" and "s98" not in t) or (key == "outst" and name in ("l2_kernel", KNAME) and "s[40:43]" in t):
                            ln = ln + mods
                    out.append(ln)
                ks[i] = (name, "\n".join(out), nv, l)
    order = None
    for e in exp:
        if e.startswith("order="):
            ks.append(k_empty())
            order = [int(c) if c != "e" else len(ks) - 1 for c in e[6:]]
            if "e" not in e[6:]:
                ks.pop()
    print("vgprs", [(k[0], k[2]) for k in ks])
    return assemble(ks, order)

if __name__ == "__main__":
    mode = sys.argv[1] if len(sys.argv) > 1 else "sep"
    t = build(mode, True)
    open("out/all.s", "w").write(t)
    print(len(t))
```

```python
from asmgen import *
from layout import *

def ws_srd(P):
    P(f"""
    s_load_dwordx2 s[4:5], s[0:1], {KA_WS}
    s_mov_b32 s6, {WS_SIZE}
    s_mov_b32 s7, 0x00020000
    """)

TIMING = False
REAL = False
WSEL = slice(0, 4)
NMARK = 16
MK0 = 52
REC = 128

def timing_start(P, mk0=52, nmark=16):
    global TIMING, MK0, NMARK
    TIMING = True
    MK0, NMARK = mk0, nmark
    P("""
    s_memrealtime s[96:97]
    s_memtime s[94:95]
    s_waitcnt lgkmcnt(0)
    """)
    for k in range(NMARK):
        P(f"s_mov_b32 s{MK0 + 2 * k}, " + ("0" if REAL else "s94"))

def mark(P, k):
    if TIMING and k < NMARK:
        P(f"""
        {"s_memrealtime" if REAL else "s_memtime"} s[{MK0 + 2 * k}:{MK0 + 1 + 2 * k}]
        s_waitcnt lgkmcnt(0)
        """)

def timing_exit(P, label, slot=0, vw=255, wgshift=10):
    P.L(label)
    P(f"""
    s_waitcnt vmcnt(0)
    s_memrealtime s[98:99]
    s_memtime s[92:93]
    s_waitcnt lgkmcnt(0)
    s_sub_u32 s92, s92, s94
    s_mov_b64 exec, -1
    s_getreg_b32 s97, hwreg(HW_REG_HW_ID)
    s_getreg_b32 s99, hwreg(HW_REG_XCC_ID)
    s_and_b32 s99, s99, 15
    s_lshl_b32 s92, s92, 4
    s_or_b32 s99, s99, s92
    v_mov_b32 v2, s96
    v_mov_b32 v3, s97
    v_mov_b32 v4, s98
    v_mov_b32 v5, s99
    """)
    for k in range(16):
        if k < NMARK:
            P(f"s_sub_u32 s{MK0 + 2 * k}, s{MK0 + 2 * k}, s94")
            P(f"v_mov_b32 v{6 + k}, s{MK0 + 2 * k}")
        else:
            P(f"v_mov_b32 v{6 + k}, 0")
    P(f"""
    s_lshl_b32 s98, s2, {wgshift}
    s_add_u32 s98, s98, {WS_TIM + slot * 0x80000}
    v_readfirstlane_b32 s99, v{vw}
    s_lshl_b32 s99, s99, 7
    s_add_u32 s98, s98, s99
    v_mov_b32 v1, 0
    s_mov_b32 exec_hi, 0
    s_mov_b32 exec_lo, 1
    """)
    for q in range(5):
        P(f"buffer_store_dwordx4 v[{2 + 4 * q}:{5 + 4 * q}], v1, s[4:7], s98 offen offset:{16 * q}")
    P("s_endpgm")

def launch_text(kernels):
    t = ""
    for k in kernels:
        name, grid, lds = k[:3]
        blk = k[3] if len(k) > 3 else 256
        t += f"; @launch kernel={name} grid=({grid},1,1) block=({blk},1,1) lds={lds}\n"
    return t

def decode_times(res, nwg, slot=0, nw=8):
    import numpy as np
    a = res[WS_TIM + slot * 0x80000: WS_TIM + slot * 0x80000 + nwg * nw * 128].view(np.uint32).reshape(nwg, nw, 32)[:, WSEL if nw == 8 else slice(0, 12)]
    st, en = a[:, :, 0].astype(np.int64), a[:, :, 2].astype(np.int64)
    t0 = st.min()
    hw = a[:, 0, 1]; xcc = a[:, 0, 3] & 0xf
    cu = [(int(xcc[i]), int((hw[i] >> 13) & 7), int((hw[i] >> 12) & 1), int((hw[i] >> 8) & 0xf)) for i in range(nwg)]
    global last_cycles, last_marks
    last_marks = a[:, :, 4:20].astype(np.int64)
    last_cycles = (a[:, :, 3] >> 4).astype(np.int64)
    return (st - t0) / 100.0, (en - t0) / 100.0, cu

def summarize_times(res, nwg, slot=0, label="", nw=8):
    import numpy as np, collections
    st, en, cu = decode_times(res, nwg, slot, nw)
    d = collections.defaultdict(list)
    for i, k in enumerate(cu):
        d[k].append(i)
    hist = collections.Counter(len(v) for v in d.values())
    dur = (en - st).max(1)
    s = "%s start: max %.2f med %.2f | end: min %.2f med %.2f max %.2f | dur med %.2f max %.2f | WGs/CU %s" % (
        label, st.max(), np.median(st), en.min(), np.median(en), en.max(), np.median(dur), dur.max(), dict(hist))
    bycount = collections.defaultdict(list)
    for k, v in d.items():
        for i in v:
            bycount[len(v)].append(dur[i])
    s += " | GHz %.3f" % float(np.median(last_cycles / ((en - st) * 1000.0)))
    s += " | cyc total med %d marks med %s" % (np.median(last_cycles), [int(np.median(last_marks[:, :, k])) for k in range(4)])
    s += " | dur by co-residency " + str({k: round(float(np.median(v)), 2) for k, v in bycount.items()})
    return s


def dbg_exit(P, label, back, reports, vw):
    P.L(label)
    P(f"""
    s_waitcnt vmcnt(0)
    s_memrealtime s[98:99]
    s_load_dwordx2 s[88:89], s[0:1], {KA_DBG}
    s_waitcnt lgkmcnt(0)
    s_mov_b64 exec, -1
    v_readfirstlane_b32 s92, v{vw}
    s_add_u32 s88, s88, {-back}
    s_addc_u32 s89, s89, 0
    s_mov_b32 s90, 64
    s_mov_b32 s91, 0x00020000
    v_mov_b32 v2, 0
    s_mov_b32 exec_hi, 0
    s_mov_b32 exec_lo, 1
    """)
    for wg, w, slots in reports:
        nxt = P.newlabel("dbg_next")
        P(f"s_cmp_eq_u32 s2, {wg}\ns_cbranch_scc0 {nxt}\ns_cmp_eq_u32 s92, {w}\ns_cbranch_scc0 {nxt}")
        for slot, src in slots.items():
            reg = {"start": 96, "end": 98}.get(src) or (MK0 + 2 * src)
            P(f"v_mov_b32 v3, s{reg}\nbuffer_store_dword v3, v2, s[88:91], 0 offen offset:{4 * slot} sc1")
        P.L(nxt)
    P("s_waitcnt vmcnt(0)\ns_endpgm")
```

```python
from asmgen import *
from layout import *
import common
import struct
from k1 import Queue, f32
from prepk import srd_from_kernarg

XSLOT, NX = 16384, 3
WSLOT, NW, WBASE = 8192, 4, 49152


def emit_k1_phase(P, sWG, sWave, done, pfx="k1", exp=(), hook=None):
    ROT = (2, 1)
    for e in exp:
        if e.startswith("k1rot="): ROT = tuple(int(x) for x in e[6:].split("_"))
    PRE = ["x0", "w0", "w1", "x1", "w2", "w3"]
    POST = ["x2"]
    if "k1pre4" in exp: PRE, POST = ["x0", "w0", "w1", "x1"], ["w2", "w3", "x2"]
    if "k1pre7" in exp: PRE, POST = PRE + POST, []
    vT = list(range(1, 9))
    V = Regs("v", 9)
    ACC = [[V.alloc(16) for _ in range(2)] for _ in range(2)]
    XF = [[V.alloc(4) for _ in range(2)] for _ in range(2)]
    WF = [[V.alloc(4) for _ in range(2)] for _ in range(2)]
    vXR = [V.alloc() for _ in range(4)]
    vWR = [V.alloc() for _ in range(2)]
    vDX = [9, 10, 11, 12]
    vDW = [13, 14]
    vLane = 0
    sX, sW_, sDX, sDW = 8, 10, 12, 16
    sTB, sFG, sWv, sWM, sWN, sMX, sOffX, sOffW, sCol = 24, 25, 26, 27, 28, 29, 30, 31, 32
    sT, sT2, sT3, sIsV, sPB = 33, 34, 35, 36, 37
    sMW, sRot, sEm = 38, 39, 40
    L = lambda n: f"{pfx}_{n}"
    ws = "s[4:7]"
    t0, t1, t2, t3, t4, t5 = vT[:6]

    P(f"""
    s_load_dwordx2 s[{sX}:{sX+1}], s[0:1], {KA_AX}
    s_load_dwordx2 s[{sW_}:{sW_+1}], s[0:1], {KA_WQKV}
    s_and_b32 s{sT}, s{sWG}, 7
    s_lshr_b32 s{sT2}, s{sWG}, 3
    s_and_b32 s{sTB}, s{sT}, 1
    s_lshl_b32 s{sTB}, s{sTB}, 3
    s_and_b32 s{sT3}, s{sT2}, 7
    s_add_u32 s{sTB}, s{sTB}, s{sT3}
    s_lshr_b32 s{sFG}, s{sT}, 1
    s_lshl_b32 s{sFG}, s{sFG}, 2
    s_lshr_b32 s{sT}, s{sT2}, 3
    s_add_u32 s{sFG}, s{sFG}, s{sT}
    s_mul_i32 s{sT3}, s{sT3}, {ROT[0]}
    s_mul_i32 s{sT}, s{sT}, {ROT[1]}
    s_add_u32 s{sT}, s{sT}, s{sT3}
    s_mul_i32 s{sT2}, s{sT}, 7282
    s_lshr_b32 s{sT2}, s{sT2}, 16
    s_mul_i32 s{sT2}, s{sT2}, 9
    s_sub_u32 s{sRot}, s{sT}, s{sT2}
    s_and_b32 s{sWv}, s{sWave}, 3
    """)
    P(f"""
    s_mul_i32 s{sCol}, s{sFG}, 216
    s_and_b32 s{sCol}, s{sCol}, 0xfffffff0
    s_sub_u32 s{sT}, s{sFG}, 11
    s_lshl_b32 s{sT}, s{sT}, 2
    s_min_u32 s{sT}, s{sT}, 14
    s_lshl_b32 s{sT2}, s{sT}, 6
    s_add_u32 s{sT2}, s{sT2}, 2304
    s_cmp_ge_u32 s{sFG}, 11
    s_cselect_b32 s{sIsV}, 1, 0
    s_cselect_b32 s{sCol}, s{sT2}, s{sCol}
    s_cselect_b32 s{sPB}, s{sT}, 0
    s_cmp_lt_u32 s{sWave}, 4
    s_cbranch_scc1 {L('compute')}
    """)
    DUX, DUW = 8 * 1152 - 1024, 4 * 3456 - 1024
    P(f"""
    s_lshl_b32 s{sT}, s{sTB}, 7
    s_lshl_b32 s{sT2}, s{sWv}, 5
    s_add_u32 s{sT}, s{sT}, s{sT2}
    v_lshrrev_b32 v{t0}, 3, v{vLane}
    v_add_u32 v{t0}, s{sT}, v{t0}
    v_mul_u32_u24 v{t0}, 1152, v{t0}
    v_lshrrev_b32 v{t3}, 4, v{vLane}
    v_and_b32 v{t2}, 7, v{vLane}
    v_xor_b32 v{t1}, v{t3}, v{t2}
    v_lshlrev_b32 v{t1}, 4, v{t1}
    v_xor_b32 v{t2}, 64, v{t1}
    v_add_u32 v{vDX[0]}, v{t0}, v{t1}
    v_add_u32 v{t2}, v{t0}, v{t2}
    v_add_u32 v{vDX[1]}, {DUX}, v{t2}
    v_add_u32 v{vDX[2]}, {2 * DUX}, v{vDX[0]}
    v_add_u32 v{vDX[3]}, {3 * DUX}, v{t2}
    s_lshl_b32 s{sT}, s{sWv}, 3
    v_add_u32 v{t0}, s{sT}, v{t3}
    v_mul_u32_u24 v{t0}, 3456, v{t0}
    v_add_u32 v{t0}, s{sCol}, v{t0}
    v_lshlrev_b32 v{t1}, 2, v{t3}
    v_and_b32 v{t2}, 15, v{vLane}
    v_xor_b32 v{t1}, v{t1}, v{t2}
    v_lshlrev_b32 v{t1}, 4, v{t1}
    v_add_u32 v{vDW[0]}, v{t0}, v{t1}
    v_add_u32 v{vDW[1]}, {DUW}, v{vDW[0]}
    s_lshl_b32 s{sMX}, s{sWv}, 12
    s_lshl_b32 s{sMW}, s{sWv}, 11
    s_add_u32 s{sMW}, s{sMW}, {WBASE}
    s_lshl_b32 s{sOffX}, s{sRot}, 7
    s_mul_i32 s{sOffW}, s{sRot}, {64 * 3456}
    s_mov_b64 s[{sEm}:{sEm+1}], -1
    s_cmp_eq_u32 s{sIsV}, 0
    s_cmov_b32 s{sEm}, 0xf3ff3fff
    s_cmov_b32 s{sEm+1}, 0xfff3ff3f
    s_mov_b32 s{sDX+2}, {2048 * 1152}
    s_mov_b32 s{sDX+3}, 0x00020000
    s_mov_b32 s{sDW+2}, {576 * 3456}
    s_mov_b32 s{sDW+3}, 0x00020000
    s_waitcnt lgkmcnt(0)
    s_mov_b32 s{sDX}, s{sX}
    s_mov_b32 s{sDX+1}, s{sX+1}
    s_mov_b32 s{sDW}, s{sW_}
    s_mov_b32 s{sDW+1}, s{sW_+1}
    """)

    def dmax(Q, c):
        P(f"s_add_u32 m0, s{sMX}, {(c % NX) * XSLOT}")
        P("s_nop 0")
        for u in range(4):
            P(f"buffer_load_dwordx4 v{vDX[u]}, s[{sDX}:{sDX+3}], s{sOffX} offen offset:{u * 1024} lds")
        P(f"""
        s_add_u32 s{sOffX}, s{sOffX}, 128
        s_cmp_eq_u32 s{sOffX}, 1152
        s_cselect_b32 s{sOffX}, 0, s{sOffX}
        """)
        Q.add(f"x{c}", 4)

    def dmaw(Q, b):
        P(f"s_add_u32 m0, s{sMW}, {(b % NW) * WSLOT}")
        P(f"s_mov_b64 exec, s[{sEm}:{sEm+1}]")
        for u in range(2):
            P(f"buffer_load_dwordx4 v{vDW[u]}, s[{sDW}:{sDW+3}], s{sOffW} offen offset:{u * 1024} lds")
        P(f"""
        s_mov_b64 exec, -1
        s_add_u32 s{sOffW}, s{sOffW}, {32 * 3456}
        s_cmp_eq_u32 s{sOffW}, {576 * 3456}
        s_cselect_b32 s{sOffW}, 0, s{sOffW}
        """)
        Q.add(f"w{b}", 2)

    def wait(Q, tags):
        last = max(tags, key=lambda g: max(i for i, e in enumerate(Q.q) if e == g))
        Q.wait(last)

    GX = [16 + 4 * i for i in range(9)]; GW = [52 + 4 * i for i in range(9)]
    vGA, vGO = 15, 88
    sGW = 20
    P(f"""
    v_lshrrev_b32 v{t0}, 3, v{vLane}
    v_and_b32 v{t0}, 1, v{t0}
    s_lshl_b32 s{sT}, s{sFG}, 3
    s_lshl_b32 s{sT2}, s{sWv}, 1
    s_add_u32 s{sT}, s{sT}, s{sT2}
    v_add_u32 v{t0}, s{sT}, v{t0}
    v_lshrrev_b32 v{t1}, 1, v{t0}
    v_and_b32 v{t2}, 7, v{vLane}
    v_xor_b32 v{t1}, v{t1}, v{t2}
    v_and_b32 v{t1}, 7, v{t1}
    v_lshlrev_b32 v{t1}, 4, v{t1}
    v_lshlrev_b32 v{t3}, 7, v{t0}
    v_add_u32 v{vGA}, v{t3}, v{t1}
    v_lshlrev_b32 v{vGO}, 4, v{t2}
    """)

    def gx_read(c):
        P(f"ds_read_b128 {vr(GX[c],4)}, v{vGA} offset:{(c % NX) * XSLOT}")

    def gw_loads(Q):
        P("s_mov_b32 exec_hi, 0\ns_mov_b32 exec_lo, 0xffff")
        for s_ in range(9):
            P(f"""
            s_add_u32 s{sT}, s{sRot}, {s_}
            s_sub_u32 s{sT2}, s{sT}, 9
            s_cmp_ge_u32 s{sT}, 9
            s_cselect_b32 s{sT}, s{sT2}, s{sT}
            s_lshl_b32 s{sT}, s{sT}, 7
            buffer_load_dwordx4 {vr(GW[s_],4)}, v{vGO}, s[{sGW}:{sGW+3}], s{sT} offen
            """)
        P("s_mov_b64 exec, -1")
        Q.add("g", 9)

    def gate():
        acc = vT[0:2]
        P(f"v_mov_b32 v{acc[0]}, 0\nv_mov_b32 v{acc[1]}, 0")
        for s_ in range(9):
            for q in range(4):
                P(f"v_dot2c_f32_bf16 v{acc[q & 1]}, v{GX[s_] + q}, v{GW[s_] + q}")
        P(f"""
        v_add_f32 v{acc[0]}, v{acc[0]}, v{acc[1]}
        v_add_f32_dpp v{acc[0]}, v{acc[0]}, v{acc[0]} quad_perm:[1,0,3,2] row_mask:0xf bank_mask:0xf
        v_add_f32_dpp v{acc[0]}, v{acc[0]}, v{acc[0]} quad_perm:[2,3,0,1] row_mask:0xf bank_mask:0xf
        v_add_f32_dpp v{acc[0]}, v{acc[0]}, v{acc[0]} row_half_mirror row_mask:0xf bank_mask:0xf
        v_mul_f32 v{acc[0]}, {f32(-LOG2E)}, v{acc[0]}
        v_exp_f32 v{acc[0]}, v{acc[0]}
        v_add_f32 v{acc[0]}, 1.0, v{acc[0]}
        v_rcp_f32 v{acc[0]}, v{acc[0]}
        v_lshrrev_b32 v{acc[1]}, 3, v{vLane}
        v_lshlrev_b32 v{acc[1]}, 2, v{acc[1]}
        s_lshl_b32 s{sT}, s{sTB}, 7
        s_lshl_b32 s{sT2}, s{sFG}, 3
        s_add_u32 s{sT}, s{sT}, s{sT2}
        s_lshl_b32 s{sT2}, s{sWv}, 1
        s_add_u32 s{sT}, s{sT}, s{sT2}
        s_lshl_b32 s{sT}, s{sT}, 2
        s_add_u32 s{sT}, s{sT}, {WS_G}
        s_mov_b32 exec_lo, 0x101
        s_mov_b32 exec_hi, 0
        buffer_store_dword v{acc[0]}, v{acc[1]}, {ws}, s{sT} offen sc1
        s_mov_b64 exec, -1
        """)

    Q = Queue(P)
    req = lambda g: (dmax if g[0] == "x" else dmaw)(Q, int(g[1:]))
    for g in PRE:
        req(g)
    srd_from_kernarg(P, sGW, KA_GW, 1152)
    wait(Q, ["x0", "w0"])
    P("s_barrier")
    for g in POST:
        req(g)
    if hook: hook(-1)
    gx_read(0)
    for b in range(17):
        wait(Q, [f"w{b + 1}"] + ([f"x{(b + 1) // 2}"] if b & 1 else []))
        P("s_waitcnt lgkmcnt(0)")
        P("s_barrier")
        if b + 4 < 18:
            dmaw(Q, b + 4)
        if b & 1 and (b - 1) // 2 + 3 < 9:
            dmax(Q, (b - 1) // 2 + 3)
        if b & 1:
            gx_read((b + 1) // 2)
        if b == 11:
            gw_loads(Q)
        if hook: hook(b)
    gate()
    P(f"s_branch {done}")

    P.L(L("compute"))
    P(f"""
    s_and_b32 s{sWM}, s{sWv}, 1
    s_lshr_b32 s{sWN}, s{sWv}, 1
    """)
    P(f"""
    v_and_b32 v{t0}, 31, v{vLane}
    v_lshrrev_b32 v{t1}, 5, v{vLane}
    v_lshrrev_b32 v{t2}, 1, v{t0}
    v_and_b32 v{t2}, 7, v{t2}
    v_xor_b32 v{t2}, v{t2}, v{t1}
    v_lshlrev_b32 v{t2}, 4, v{t2}
    s_lshl_b32 s{sT}, s{sWM}, 6
    v_add_u32 v{t3}, s{sT}, v{t0}
    v_lshlrev_b32 v{t3}, 7, v{t3}
    v_add_u32 v{vXR[0]}, v{t2}, v{t3}
    v_xor_b32 v{vXR[1]}, 32, v{vXR[0]}
    v_xor_b32 v{vXR[2]}, 64, v{vXR[0]}
    v_xor_b32 v{vXR[3]}, 0x60, v{vXR[0]}
    """)
    P(f"""
    v_lshrrev_b32 v{t0}, 4, v{vLane}
    v_and_b32 v{t0}, 1, v{t0}
    v_lshlrev_b32 v{t0}, 2, v{t0}
    v_and_b32 v{t1}, 3, v{vLane}
    v_add_u32 v{t0}, v{t0}, v{t1}
    v_lshrrev_b32 v{t1}, 2, v{vLane}
    v_and_b32 v{t1}, 3, v{t1}
    v_lshrrev_b32 v{t2}, 5, v{vLane}
    v_lshlrev_b32 v{t3}, 3, v{t2}
    v_add_u32 v{t3}, v{t3}, v{t1}
    v_lshlrev_b32 v{t3}, 8, v{t3}
    v_add_u32 v{t3}, {WBASE}, v{t3}
    s_cmp_eq_u32 s{sIsV}, 1
    s_cbranch_scc1 {L('vaddr')}
    """)
    P(f"""
    s_mul_i32 s{sPB}, s{sFG}, 3
    s_and_b32 s{sT}, s{sFG}, 1
    s_lshl_b32 s{sT}, s{sT}, 3
    v_lshrrev_b32 v{t4}, 2, v{t0}
    v_mul_u32_u24 v{t4}, 40, v{t4}
    v_and_b32 v{t5}, 1, v{t0}
    v_lshlrev_b32 v{t5}, 4, v{t5}
    v_add_u32 v{t4}, v{t4}, v{t5}
    v_lshrrev_b32 v{t5}, 1, v{t0}
    v_and_b32 v{t5}, 1, v{t5}
    v_lshlrev_b32 v{t5}, 3, v{t5}
    v_add_u32 v{t4}, v{t4}, v{t5}
    v_add_u32 v{t4}, s{sT}, v{t4}
    s_mul_i32 s{sT2}, s{sWN}, 144
    v_add_u32 v{vWR[0]}, s{sT2}, v{t4}
    v_add_u32 v{vWR[1]}, 72, v{vWR[0]}
    v_min_u32 v{t5}, 2, v{t0}
    v_mul_u32_u24 v{t5}, 72, v{t5}
    v_add_u32 v{t5}, 32, v{t5}
    v_add_u32 v{t5}, s{sT}, v{t5}
    s_cmp_eq_u32 s{sWN}, 1
    s_cbranch_scc0 {L('swz')}
    v_mov_b32 v{vWR[1]}, v{t5}
    s_branch {L('swz')}
    """)
    P.L(L("vaddr"))
    P(f"""
    v_lshlrev_b32 v{t4}, 3, v{t0}
    s_lshl_b32 s{sT2}, s{sWN}, 7
    v_add_u32 v{vWR[0]}, s{sT2}, v{t4}
    v_add_u32 v{vWR[1]}, 64, v{vWR[0]}
    """)
    P.L(L("swz"))
    P(f"v_lshlrev_b32 v{t1}, 6, v{t1}")
    for k in range(2):
        P(f"""
        v_xor_b32 v{vWR[k]}, v{vWR[k]}, v{t1}
        v_add_u32 v{vWR[k]}, v{vWR[k]}, v{t3}
        """)

    def reads(n):
        c, ks = divmod(n, 4)
        b = n & 1
        out = []
        for tt in range(2):
            out.append(f"ds_read_b128 {vr(XF[b][tt],4)}, v{vXR[ks]} offset:{(c % NX) * XSLOT + tt * 4096}")
        for ft in range(2):
            for rd in range(2):
                out.append(f"ds_read_b64_tr_b16 {vr(WF[b][ft] + 2 * rd, 2)}, v{vWR[ft]} offset:{((n >> 1) % NW) * WSLOT + (n & 1) * 4096 + rd * 1024}")
        return out

    def mainloop(isv):
        for n in range(36):
            c, ks = divmod(n, 4)
            b = n & 1
            mf = []
            for tt in range(2):
                for ft in range(2):
                    a_, b_ = (XF[b][tt], WF[b][ft]) if isv else (WF[b][ft], XF[b][tt])
                    cop = "0" if n == 0 else vr(ACC[tt][ft], 16)
                    mf.append(f"v_mfma_f32_32x32x16_bf16 {vr(ACC[tt][ft],16)}, {vr(a_,4)}, {vr(b_,4)}, {cop}")
            P("s_waitcnt lgkmcnt(0)")
            if n & 1 and n + 1 < 36:
                P("s_barrier")
            rs = reads(n + 1) if n + 1 < 36 else []
            if "k1noread" in exp:
                rs = []
            for k in range(4):
                if "k1nomfma" not in exp:
                    P(mf[k])
                take = rs[:2] if k < 3 else rs
                rs = rs[len(take):]
                for r in take:
                    P(r)

    P("s_barrier")
    common.mark(P, 12)
    for r in reads(0):
        P(r)
    P(f"""
    s_cmp_eq_u32 s{sIsV}, 1
    s_cbranch_scc1 {L('vmain')}
    """)

    mainloop(False)
    common.mark(P, 13)
    PK = XF[0][0]
    vA = [vT[0], vT[1], vT[2], vT[3]]
    P(f"v_lshlrev_b32 v{vA[0]}, 4, v{vLane}")

    def lo_store(tt, ft, sPBreg):
        skip = P.newlabel(pfx + "_skip")
        P(f"""
        s_cmp_ge_u32 s{sPBreg}, 32
        s_cbranch_scc1 {skip}
        s_and_b32 s{sT}, s{sPBreg}, 15
        s_lshl_b32 s{sT}, s{sT}, 17
        s_lshl_b32 s{sT2}, s{sTB}, 2
        s_lshl_b32 s{sT3}, s{sWM}, 1
        s_add_u32 s{sT2}, s{sT2}, s{sT3}
        s_add_u32 s{sT2}, s{sT2}, {tt}
        s_lshl_b32 s{sT2}, s{sT2}, 10
        s_add_u32 s{sT}, s{sT}, s{sT2}
        s_add_u32 s{sT2}, s{sT}, {WS_QLO}
        s_add_u32 s{sT}, s{sT}, {WS_KLO}
        s_cmp_lt_u32 s{sPBreg}, 16
        s_cselect_b32 s{sT}, s{sT2}, s{sT}
        s_cselect_b32 s{sT3}, {f32(QSCALE)}, 1.0
        s_add_u32 s{sT2}, s{sT}, 65536
        """)
        A = ACC[tt][ft]
        for r in range(16):
            P(f"v_mul_f32 v{A + r}, s{sT3}, v{A + r}")
        for k in range(8):
            P(f"v_cvt_pk_bf16_f32 v{PK + k}, v{A + 2 * k}, v{A + 2 * k + 1}")
        P(f"""
        buffer_store_dwordx4 {vr(PK,4)}, v{vA[0]}, {ws}, s{sT} offen sc1
        buffer_store_dwordx4 {vr(PK+4,4)}, v{vA[0]}, {ws}, s{sT2} offen sc1
        """)
        P.L(skip)

    sP0, sP1 = 38, 39
    P(f"""
    s_lshl_b32 s{sP0}, s{sWN}, 1
    s_add_u32 s{sP0}, s{sP0}, s{sPB}
    s_add_u32 s{sP1}, s{sP0}, 1
    """)
    for tt in range(2):
        lo_store(tt, 0, sP0)
    P(f"""
    s_cmp_eq_u32 s{sWN}, 1
    s_cbranch_scc1 {L('hi')}
    """)
    for tt in range(2):
        lo_store(tt, 1, sP1)
    P(f"s_branch {done}")
    P.L(L("hi"))
    big = 0x7ff00000
    for part in range(2):
        pb, adr, scl = vT[1], vT[2], vT[3]
        if part == 0:
            P(f"""
            v_lshrrev_b32 v{pb}, 5, v{vLane}
            v_add_u32 v{pb}, s{sPB}, v{pb}
            """)
        else:
            P(f"""
            s_add_u32 s{sT}, s{sPB}, 2
            v_mov_b32 v{pb}, s{sT}
            """)
        P(f"""
        v_and_b32 v{adr}, 15, v{pb}
        v_lshlrev_b32 v{adr}, 14, v{adr}
        v_and_b32 v{vT[4]}, 31, v{vLane}
        v_lshlrev_b32 v{vT[4]}, 2, v{vT[4]}
        v_add_u32 v{adr}, v{adr}, v{vT[4]}
        s_lshl_b32 s{sT2}, s{sTB}, 9
        s_lshl_b32 s{sT3}, s{sWM}, 8
        s_add_u32 s{sT2}, s{sT2}, s{sT3}
        v_add_u32 v{adr}, s{sT2}, v{adr}
        v_cmp_gt_u32 vcc, 16, v{pb}
        v_mov_b32 v{vT[4]}, {WS_KHI}
        v_mov_b32 v{vT[5]}, {WS_QHI}
        v_cndmask_b32 v{vT[4]}, v{vT[4]}, v{vT[5]}, vcc
        v_add_u32 v{adr}, v{adr}, v{vT[4]}
        v_mov_b32 v{vT[4]}, 1.0
        v_mov_b32 v{vT[5]}, {f32(QSCALE)}
        v_cndmask_b32 v{scl}, v{vT[4]}, v{vT[5]}, vcc
        v_cmp_le_u32 vcc, 32, v{pb}
        v_mov_b32 v{vT[4]}, {big}
        v_cndmask_b32 v{adr}, v{adr}, v{vT[4]}, vcc
        """)
        if part == 1:
            P(f"""
            v_cmp_le_u32 vcc, 32, v{vLane}
            v_cndmask_b32 v{adr}, v{adr}, v{vT[4]}, vcc
            """)
        for tt in range(2):
            A = ACC[tt][1] + 4 * part
            for r in range(4):
                P(f"v_mul_f32 v{A + r}, v{scl}, v{A + r}")
            P(f"""
            v_cvt_pk_bf16_f32 v{PK + 2 * tt}, v{A}, v{A+1}
            v_cvt_pk_bf16_f32 v{PK + 2 * tt + 1}, v{A+2}, v{A+3}
            v_add_u32 v{vT[4]}, 8192, v{adr}
            buffer_store_dword v{PK + 2 * tt}, v{adr}, {ws}, 0 offen offset:{128 * tt} sc1
            buffer_store_dword v{PK + 2 * tt + 1}, v{vT[4]}, {ws}, 0 offen offset:{128 * tt} sc1
            """)
    P(f"s_branch {done}")

    P.L(L("vmain"))
    mainloop(True)
    common.mark(P, 13)
    adr = vT[0]
    P(f"""
    v_lshrrev_b32 v{vT[1]}, 5, v{vLane}
    v_mul_u32_u24 v{vT[1]}, {VT_HALF}, v{vT[1]}
    v_and_b32 v{adr}, 31, v{vLane}
    v_lshlrev_b32 v{adr}, 4, v{adr}
    v_add_u32 v{adr}, v{adr}, v{vT[1]}
    s_lshl_b32 s{sT}, s{sTB}, 3
    s_lshl_b32 s{sT2}, s{sWM}, 2
    s_add_u32 s{sT}, s{sT}, s{sT2}
    s_mul_i32 s{sT}, s{sT}, {VT_GROUP}
    s_lshl_b32 s{sT2}, s{sWN}, 1
    s_add_u32 s{sT2}, s{sT2}, s{sPB}
    s_lshl_b32 s{sT2}, s{sT2}, 9
    s_add_u32 s{sT}, s{sT}, s{sT2}
    s_add_u32 s{sT}, s{sT}, {WS_VT}
    """)
    for tt in range(2):
        for ft in range(2):
            A = ACC[tt][ft]
            R = PK + 8 * ft
            for k in range(8):
                P(f"v_cvt_pk_bf16_f32 v{R + k}, v{A + 2 * k}, v{A + 2 * k + 1}")
            for sg in range(2):
                P(f"s_add_u32 s{sT2}, s{sT}, {(2 * tt + sg) * VT_GROUP}")
                P(f"buffer_store_dwordx4 {vr(R + 4 * sg, 4)}, v{adr}, {ws}, s{sT2} offen offset:{ft * 512} sc1")

    P(f"s_branch {done}")
    return V.hi
```

```python
WS_KLO = 0x0000000
WS_KHI = 0x0200000
WS_VT = 0x0240000
WS_QLO = 0x0500000
WS_QHI = 0x0700000
WS_OF = 0x0800000
WS_HF = 0x0B00000
WS_XF = 0x1000000
WS_BF = 0x1240000
WS_CF = 0x1390000
WS_G = 0x1500000
WS_LAM = 0x1504000
WS_E = 0x1510000
WS_FLG = 0x1540000
WS_TIM = 0x1700000
WS_WF = 0x1600000
E_BYTES = 16 * 576 * 16
FLG_HF = 0
FLG_ATT = 1024
FLG_ATT2 = 2048
NREP = 16
REP = 4096
FLG_K1 = 4096
FLG_K1T = FLG_K1 + 1024
FLG_PREP = FLG_K1 + 2048
FLG_GO = FLG_K1 + NREP * REP
FLG_BYTES = FLG_GO + 144 * 64
TAG = 0x5A17C3E9
WS_UF = 0x1900000
WS_SIZE = 0x1E00000

VT_HEAD = 128 * 608
VT_HALF = 576 * 16
VT_GROUP = 2 * VT_HALF

KA_AX, KA_LRE, KA_LIM, KA_BRE, KA_BIM, KA_CRE, KA_CIM, KA_LDT, KA_DSK, KA_BX, KA_WQKV, KA_WO, KA_GW, \
    KA_OUT, KA_DBG, KA_WS = [8 * i for i in range(16)]

LOG2E = 1.4426950408889634
QSCALE = (18 ** -0.5) * LOG2E
```

```python
from asmgen import *
from layout import *
from prepk import Prep, srd_from_kernarg, f32


def emit_prep(P, sIdx, sWave, pfx="pm", exp=(), late=False, mid=None):
    vLane = 0
    ws = "s[4:7]"
    L = lambda n: f"{pfx}_{n}"
    pr = Prep(P, 8)
    V = Regs("v", 12)
    pr.alloc_w(V)
    LL = [[V.alloc() for _ in range(3)] for _ in range(4)]
    F = V.alloc(16, 4)
    vD = [1, 2, 3, 4]
    vR, vL16 = 5, 6
    t0, t1, t2, t3 = 7, 8, 9, 10
    sTask, sM, sT, sT2, sT3, sJ = 42, 43, 44, 45, 46, 47
    sDst = 30
    sS = 84
    r4 = lambda n: f"s[{n}:{n+3}]"
    pr.srds()
    if late:
        P(f"""
        s_add_u32 s{sM}, s{sWave}, 3
        s_and_b32 s{sM}, s{sM}, 3
        s_mul_i32 s{sTask}, s{sM}, 144
        s_add_u32 s{sTask}, s{sTask}, s{sIdx}
        s_cmp_ge_u32 s{sTask}, 162
        s_cselect_b32 s{sT}, 324, 0
        s_add_u32 s{sTask}, s{sTask}, s{sT}
        s_lshl_b32 s{sM}, s{sM}, 3
        s_lshr_b32 s{sM}, {(64 | 48 << 8 | 72 << 16 | 74 << 24)}, s{sM}
        s_and_b32 s{sM}, s{sM}, 0xff
        s_lshl_b32 s{sM}, s{sM}, 10
        """)
    else:
        P(f"""
        s_mul_i32 s{sTask}, s{sWave}, 144
        s_add_u32 s{sTask}, s{sTask}, s{sIdx}
        s_lshl_b32 s{sM}, s{sWave}, 13
        """)
    mids = []

    def midpoint():
        if mid: mid()
    P(f"""
    v_lshlrev_b32 v{vL16}, 4, v{vLane}
    v_lshlrev_b32 v{pr.vL16}, 4, v{vLane}
    s_cmp_ge_u32 s{sTask}, {0 if 'noprep' in exp else 810}
    s_cbranch_scc1 {L('skip')}
    s_mov_b32 s{sS+2}, {576 * 1152}
    s_mov_b32 s{sS+3}, 0x00020000
    s_cmp_ge_u32 s{sTask}, 486
    s_cbranch_scc1 {L('w')}
    """)
    DU = 8 * 1152 - 1024
    P(f"""
    v_lshrrev_b32 v{t0}, 3, v{vLane}
    v_mul_u32_u24 v{t0}, 1152, v{t0}
    v_lshrrev_b32 v{t1}, 4, v{vLane}
    v_and_b32 v{t2}, 7, v{vLane}
    v_xor_b32 v{t1}, v{t1}, v{t2}
    v_lshlrev_b32 v{t1}, 4, v{t1}
    v_xor_b32 v{t2}, 64, v{t1}
    v_add_u32 v{vD[0]}, v{t0}, v{t1}
    v_add_u32 v{t2}, v{t0}, v{t2}
    v_add_u32 v{vD[1]}, {DU}, v{t2}
    v_add_u32 v{vD[2]}, {2 * DU}, v{vD[0]}
    v_add_u32 v{vD[3]}, {3 * DU}, v{t2}
    v_and_b32 v{t0}, 31, v{vLane}
    v_lshrrev_b32 v{t1}, 5, v{vLane}
    v_lshrrev_b32 v{t2}, 1, v{t0}
    v_and_b32 v{t2}, 7, v{t2}
    v_xor_b32 v{t2}, v{t2}, v{t1}
    v_lshlrev_b32 v{t2}, 4, v{t2}
    v_lshlrev_b32 v{t3}, 7, v{t0}
    v_add_u32 v{vR}, v{t2}, v{t3}
    v_add_u32 v{vR}, s{sM}, v{vR}
    s_cmp_lt_u32 s{sTask}, 162
    s_cselect_b32 s{sT3}, 0, 162
    s_sub_u32 s{sT3}, s{sTask}, s{sT3}
    s_mul_i32 s{sT}, s{sT3}, 7282
    s_lshr_b32 s{sT}, s{sT}, 16
    s_mul_i32 s{sT2}, s{sT}, 9
    s_sub_u32 s{sJ}, s{sT3}, s{sT2}
    s_cmp_lt_u32 s{sTask}, 162
    s_cbranch_scc1 {L('c')}
    """)

    def block(srd, soff, m):
        P(f"s_add_u32 m0, s{sM}, {m}")
        P("s_nop 0")
        for u in range(4):
            P(f"buffer_load_dwordx4 v{vD[u]}, {r4(srd)}, s{soff} offen offset:{u * 1024} lds")

    def frag_reads(dst, q, m):
        a = vR
        if q:
            P(f"v_xor_b32 v{t3}, {32 * q}, v{vR}")
            a = t3
        P(f"ds_read_b128 {vr(dst,4)}, v{a} offset:{m}")

    if late:
        P(f"s_branch {L('c')}")
    else:
      P(f"""
    s_lshl_b32 s{sDst}, s{sT3}, 12
    s_add_u32 s{sDst}, s{sDst}, {WS_BF}
    s_bitcmp1_b32 s{sT}, 0
    s_waitcnt lgkmcnt(0)
    s_cselect_b32 s{sS}, s{pr.ptr+6}, s{pr.ptr+4}
    s_cselect_b32 s{sS+1}, s{pr.ptr+7}, s{pr.ptr+5}
    s_lshr_b32 s{sT}, s{sT}, 1
    s_mul_i32 s{sT}, s{sT}, {32 * 1152}
    s_lshl_b32 s{sT2}, s{sJ}, 7
    s_add_u32 s{sT}, s{sT}, s{sT2}
    """)
    if not late:
        block(sS, sT, 0)
        P("s_waitcnt vmcnt(0)")
        for q in range(4):
            frag_reads(F + 4 * q, q, 0)
        for q in range(4):
            P(f"buffer_store_dwordx4 {vr(F + 4 * q, 4)}, v{vL16}, {ws}, s{sDst} offen offset:{1024 * q} sc1")
        P(f"s_branch {L('end')}")

    P.L(L("c"))
    P(f"""
    s_mul_i32 s{pr.sF[0]}, s{sT}, 72
    s_lshl_b32 s{sT2}, s{sJ}, 2
    s_add_u32 s{pr.sF[0]}, s{pr.sF[0]}, s{sT2}
    s_mul_i32 s{sT}, s{sT}, {32 * 1152}
    s_lshl_b32 s{sJ}, s{sJ}, 7
    s_add_u32 s{sT}, s{sT}, s{sJ}
    s_waitcnt lgkmcnt(0)
    """)
    pr.use(pr.sSel, pr.ptr + 8, 576 * 1152)
    pr.use(pr.sSel2, pr.ptr + 10, 576 * 1152)
    block(pr.sSel, sT, 0)
    block(pr.sSel2, sT, 4096)
    P(f"""
    v_lshrrev_b32 v{t0}, 5, v{vLane}
    v_lshlrev_b32 v{t0}, 3, v{t0}
    v_and_b32 v{t1}, 7, v{vLane}
    v_add_u32 v{t0}, v{t0}, v{t1}
    v_lshlrev_b32 v{t0}, 1, v{t0}
    """)
    for k, pidx in enumerate((0, 2, 12)):
        pr.use(sS, pr.ptr + pidx, 1152)
        for q in range(4):
            P(f"buffer_load_ushort v{LL[q][k]}, v{t0}, {r4(sS)}, s{sJ} offen offset:{32 * q}")
    midpoint()
    P("s_waitcnt vmcnt(0)")
    for q in range(4):
        frag_reads(pr.Cr, q, 0)
        frag_reads(pr.Ci, q, 4096)
        pr.L = LL[q]
        pr.finish_c()
        if q < 3:
            P(f"s_add_u32 s{pr.sF[0]}, s{pr.sF[0]}, 1")
    P(f"s_branch {L('end')}")

    P.L(L("w"))
    P(f"""
    s_sub_u32 s{sT3}, s{sTask}, 486
    s_mul_i32 s{sT}, s{sT3}, 1821
    s_lshr_b32 s{sT}, s{sT}, 16
    s_mul_i32 s{sT2}, s{sT}, 36
    s_sub_u32 s{sJ}, s{sT3}, s{sT2}
    s_mul_i32 s{sDst}, s{sT}, 72
    s_add_u32 s{sDst}, s{sDst}, s{sJ}
    s_lshl_b32 s{sDst}, s{sDst}, 10
    s_add_u32 s{sDst}, s{sDst}, {WS_WF}
    v_lshrrev_b32 v{t0}, 3, v{vLane}
    v_lshrrev_b32 v{t1}, 2, v{t0}
    v_lshlrev_b32 v{t1}, 2, v{t1}
    v_add_u32 v{t1}, v{t1}, v{t0}
    v_lshrrev_b32 v{t2}, 1, v{t0}
    v_mul_u32_u24 v{t2}, 18, v{t2}
    v_and_b32 v{t3}, 1, v{t0}
    v_add_u32 v{t2}, v{t2}, v{t3}
    s_cmp_lt_u32 s{sJ}, 32
    s_cselect_b64 vcc, -1, 0
    v_cndmask_b32 v{t1}, v{t2}, v{t1}, vcc
    v_mul_u32_u24 v{t1}, 1152, v{t1}
    v_and_b32 v{t2}, 7, v{vLane}
    v_lshlrev_b32 v{t2}, 4, v{t2}
    v_add_u32 v{vD[0]}, v{t1}, v{t2}
    s_mov_b32 s{sT3}, {72 * 1152 - 1024}
    s_cmov_b32 s{sT3}, {4 * 1152 - 1024}
    v_add_u32 v{vD[1]}, s{sT3}, v{vD[0]}
    s_mul_i32 s{sT2}, s{sJ}, {18 * 1152}
    s_sub_u32 s{sT3}, s{sJ}, 32
    s_mul_i32 s{sT3}, s{sT3}, {144 * 1152}
    s_add_u32 s{sT3}, s{sT3}, {16 * 1152}
    s_cmp_lt_u32 s{sJ}, 32
    s_cselect_b32 s{sT2}, s{sT2}, s{sT3}
    s_lshl_b32 s{sT}, s{sT}, 7
    s_add_u32 s{sT}, s{sT}, s{sT2}
    s_waitcnt lgkmcnt(0)
    s_mov_b32 s{sS}, s{pr.pWo}
    s_mov_b32 s{sS+1}, s{pr.pWo+1}
    s_mov_b32 m0, s{sM}
    s_nop 0
    buffer_load_dwordx4 v{vD[0]}, {r4(sS)}, s{sT} offen lds
    buffer_load_dwordx4 v{vD[1]}, {r4(sS)}, s{sT} offen offset:1024 lds
    v_lshrrev_b32 v{t0}, 4, v{vLane}
    v_and_b32 v{t0}, 1, v{t0}
    v_lshlrev_b32 v{t0}, 2, v{t0}
    v_and_b32 v{t1}, 3, v{vLane}
    v_add_u32 v{t0}, v{t0}, v{t1}
    v_lshlrev_b32 v{t0}, 3, v{t0}
    v_lshrrev_b32 v{t1}, 2, v{vLane}
    v_and_b32 v{t1}, 3, v{t1}
    v_lshrrev_b32 v{t2}, 5, v{vLane}
    v_lshlrev_b32 v{t2}, 3, v{t2}
    v_add_u32 v{t1}, v{t1}, v{t2}
    v_lshlrev_b32 v{t1}, 7, v{t1}
    v_add_u32 v{t0}, v{t0}, v{t1}
    v_add_u32 v{vR}, s{sM}, v{t0}
    """)
    midpoint()
    P("s_waitcnt vmcnt(0)")
    for tl in range(2):
        for rd in range(2):
            P(f"ds_read_b64_tr_b16 {vr(F + 4 * tl + 2 * rd, 2)}, v{vR} offset:{tl * 64 + rd * 512}")
    P(f"""
    buffer_store_dwordx4 {vr(F,4)}, v{vL16}, {ws}, s{sDst} offen sc1
    s_add_u32 s{sDst}, s{sDst}, {36 * 1024}
    buffer_store_dwordx4 {vr(F+4,4)}, v{vL16}, {ws}, s{sDst} offen sc1
    s_branch {L('end')}
    """)
    P.L(L("skip"))
    midpoint()
    P.L(L("end"))
    return V.hi
```

```python
from asmgen import *
from layout import *
from prepk import emit_lambda, srd_from_kernarg, f32
import common

SLOT = 16384
SVC_LDS = 81920
ELOC = 78 * 1024
HDEPTH = 16
ODEPTH = 12


def emit_service(P, sIdx, pfx="svc", end="s_endpgm", exp=(), sWave=None, sNonce=None):
    L = lambda n: f"{pfx}_{n}"
    ws = "s[4:7]"
    prio = {"b": 3, "c": 3, "0": 3, "l": 3}
    psleep = 2
    for e in exp:
        if e.startswith("psleep="): psleep = int(e[7:])
        if e.startswith("pb="): prio["b"] = int(e[3:])
        if e.startswith("pc="): prio["c"] = int(e[3:])
        if e.startswith("p0="): prio["0"] = int(e[3:])
        if e.startswith("pl="): prio["l"] = int(e[3:])
    sTB, sSB, sW, sWM, sWN, sM, sXo, sBo, sCo, sHo = 8, 9, 10, 11, 12, 13, 14, 15, 16, 17
    sT, sT2, sT3, sTag, sKH, sMT, sTile = 18, 19, 20, 21, 22, 23, 24
    sOk, sBad = 26, 28
    sWo = 30
    crot = "crot" in exp
    sRot, sHend, sCend = 48, 25, 31
    sE, sAX, sOut, sP = 32, 36, 40, 44
    vLane, vL16 = 0, 1
    hi = [2]

    def use(*regs):
        hi[0] = max(hi[0], max(regs) + 1)

    merged = sWave is not None
    rawb = merged and "rawb" in exp
    flag = f"s{sTag}" if merged else "1"

    def block_map(scan):
        if scan and rawb and "nomapa" not in exp:
            P(f"""
            s_lshr_b32 s{sT}, s{sIdx}, 3
            s_lshr_b32 s{sT2}, s{sIdx}, 1
            s_and_b32 s{sT2}, s{sT2}, 3
            s_lshl_b32 s{sT2}, s{sT2}, 1
            s_lshr_b32 s{sSB}, s{sT}, 3
            s_add_u32 s{sSB}, s{sSB}, s{sT2}
            s_and_b32 s{sTB}, s{sIdx}, 1
            s_lshl_b32 s{sTB}, s{sTB}, 3
            s_and_b32 s{sT3}, s{sT}, 7
            s_add_u32 s{sTB}, s{sTB}, s{sT3}
            s_cmp_ge_u32 s{sT}, 16
            s_cselect_b32 s{sSB}, 8, s{sSB}
            s_cselect_b32 s{sT2}, s{sT2}, 0
            s_add_u32 s{sTB}, s{sTB}, s{sT2}
            """)
        else:
            P(f"""
            s_and_b32 s{sTB}, s{sIdx}, 7
            s_lshl_b32 s{sTB}, s{sTB}, 1
            s_lshr_b32 s{sT}, s{sIdx}, 3
            s_and_b32 s{sT}, s{sT}, 1
            s_add_u32 s{sTB}, s{sTB}, s{sT}
            s_lshr_b32 s{sSB}, s{sIdx}, 4
            """)

    def base_regs(scan=True):
        srd_from_kernarg(P, sAX, KA_AX, 2048 * 1152)
        srd_from_kernarg(P, sOut, KA_OUT, 2048 * 2304)
        P(f"""
        {"v_lshrrev_b32 v2, 6, v0" if not merged else ""}
        {"v_and_b32 v%d, 63, v0" % vLane if not merged else ""}
        {"v_readfirstlane_b32 s%d, v2" % sW if not merged else "s_mov_b32 s%d, s%d" % (sW, sWave)}
        v_lshlrev_b32 v{vL16}, 4, v{vLane}
        """)
        block_map(scan)
        P(f"""
        s_mov_b32 s{sTag}, {TAG if not merged else 's%d' % sNonce}
        s_add_u32 s{sE}, s4, {WS_E}
        s_addc_u32 s{sE+1}, s5, 0
        s_mov_b32 s{sE+2}, {E_BYTES}
        s_mov_b32 s{sE+3}, 0x00020000
        s_and_b32 s{sMT}, s{sW}, 3
        s_lshr_b32 s{sKH}, s{sW}, 2
        s_lshl_b32 s{sTile}, s{sTB}, 2
        s_add_u32 s{sTile}, s{sTile}, s{sMT}
        s_and_b32 s{sT}, s{sTB}, 1
        s_lshl_b32 s{sT}, s{sT}, 2
        s_add_u32 s{sRot}, s{sSB}, s{sT}
        s_sub_u32 s{sT}, s{sRot}, 9
        s_cmp_ge_u32 s{sRot}, 9
        s_cselect_b32 s{sRot}, s{sT}, s{sRot}
        """)

    base_regs()
    P(f"""
    s_setprio {prio['0']}
    s_cmp_eq_u32 s{sKH}, 0
    s_cbranch_scc0 {L('loader')}
    """)


    def wrap(reg, endreg):
        P(f"""
        s_sub_u32 s{sT3}, s{reg}, {9 * 4096}
        s_cmp_ge_u32 s{reg}, s{endreg}
        s_cselect_b32 s{reg}, s{sT3}, s{reg}
        """)

    def cf_dma(c):
        slot = (c + 2) % 5
        P(f"""
        s_add_u32 m0, s{sM}, {slot * SLOT}
        s_nop 0
        buffer_load_dwordx4 v{vL16}, {ws}, s{sCo} offen lds
        buffer_load_dwordx4 v{vL16}, {ws}, s{sCo} offen offset:1024 lds
        buffer_load_dwordx4 v{vL16}, {ws}, s{sCo} offen offset:2048 lds
        buffer_load_dwordx4 v{vL16}, {ws}, s{sCo} offen offset:3072 lds
        s_add_u32 s{sCo}, s{sCo}, 4096
        """)
        if crot:
            wrap(sCo, sCend)

    def wf_dma(j):
        slot = (9 + j + 2) % 5
        P(f"s_add_u32 m0, s{sM}, {slot * SLOT}")
        P("s_nop 0")
        nk = 4 if j < 4 else 2
        for k in range(nk):
            P(f"buffer_load_dwordx4 v{vL16}, {ws}, s{sWo} offen offset:{k * 1024} lds")
        P(f"s_add_u32 s{sWo}, s{sWo}, 4096")
        return nk

    def out_phases(loader):
        outA = "outA" in exp
        ACC = [2, 18]
        HF = [34 + 4 * i for i in range(HDEPTH)]
        BF = [[98, 102], [106, 110]]
        vC0, vC1 = 114, 115
        vG1, vX, vY, vO, vTm = 116, 117, 118, 119, 120
        XR, DR, GR = 50, 58, 60
        T = 34
        use(121)
        P(f"""
        s_mul_i32 s{sHo}, s{sTile}, {72 * 1024}
        s_mul_i32 s{sT}, s{sKH}, {36 * 1024}
        s_add_u32 s{sHo}, s{sHo}, s{sT}
        s_add_u32 s{sHo}, s{sHo}, {WS_HF}
        s_lshl_b32 s{sT}, s{sKH}, 13
        v_add_u32 v{vC0}, s{sT}, v{vL16}
        v_add_u32 v{vC1}, 0x10000, v{vC0}
        """)
        if crot:
            P(f"""
            s_add_u32 s{sHend}, s{sHo}, {9 * 4096}
            s_lshl_b32 s{sT}, s{sRot}, 12
            s_add_u32 s{sHo}, s{sHo}, s{sT}
            """)
        P("s_barrier")
        common.mark(P, 1)
        vm = []
        if loader and rawb:
            for c in range(5):
                cf_dma(c)
                vm.extend([("c", c)] * 4)

        def hload(n):
            if n % 4 == 0 and n > 0:
                P(f"s_add_u32 s{sHo}, s{sHo}, 4096")
                if crot:
                    wrap(sHo, sHend)
            P(f"buffer_load_dwordx4 {vr(HF[n % HDEPTH],4)}, v{vL16}, {ws}, s{sHo} offen offset:{(n % 4) * 1024}" + ("" if "hfl2" in exp else " sc1"))
            vm.append(("h", n))

        for n in range(HDEPTH):
            hload(n)
        P(f"s_setprio {prio['c']}")
        srd_from_kernarg(P, sP, KA_DSK, 1152)

        def creads(n):
            c, ks = divmod(n, 4)
            slot = (c + 2) % 5
            base, off = (vC1, 0) if slot == 4 else (vC0, slot * SLOT)
            return [f"ds_read_b128 {vr(BF[n & 1][ct],4)}, v{base} offset:{off + ct * 4096 + ks * 1024}" for ct in range(2)]

        def mix_loads_a():
            P(f"""
            v_and_b32 v{vTm}, 31, v{vLane}
            v_lshrrev_b32 v{vY}, 5, v{vLane}
            v_mul_u32_u24 v{vX}, 1152, v{vTm}
            v_lshlrev_b32 v{vY}, 3, v{vY}
            v_add_u32 v{vX}, v{vX}, v{vY}
            s_mul_i32 s{sT}, s{sTile}, {32 * 1152}
            s_lshl_b32 s{sT2}, s{sSB}, 7
            s_lshl_b32 s{sT3}, s{sKH}, 6
            s_add_u32 s{sT2}, s{sT2}, s{sT3}
            s_add_u32 s{sT}, s{sT}, s{sT2}
            """)
            for q in range(4):
                P(f"buffer_load_dwordx2 {vr(XR + 2 * q, 2)}, v{vX}, s[{sAX}:{sAX+3}], s{sT} offen offset:{16 * q}")
            for q in range(4):
                P(f"buffer_load_dwordx2 {vr(DR + 2 * q, 2)}, v{vY}, s[{sP}:{sP+3}], s{sT2} offen offset:{16 * q}")
            P(f"""
            v_lshlrev_b32 v{vX}, 2, v{vTm}
            s_lshl_b32 s{sT}, s{sTile}, 7
            s_add_u32 s{sT}, s{sT}, {WS_G}
            buffer_load_dword v{vG1}, v{vX}, {ws}, s{sT} offen
            v_mul_u32_u24 v{vTm}, 2304, v{vTm}
            v_lshlrev_b32 v{vO}, 1, v{vY}
            v_add_u32 v{vO}, v{vO}, v{vTm}
            """)
            vm.extend([("x", 0)] * 9)

        def mix_loads():
            P(f"""
            v_lshrrev_b32 v{vTm}, 3, v{vLane}
            v_xor_b32 v{vO}, v{vTm}, v{vLane}
            v_and_b32 v{vO}, 7, v{vO}
            v_mul_u32_u24 v{vX}, 1152, v{vTm}
            v_lshlrev_b32 v{vY}, 3, v{vO}
            v_add_u32 v{vX}, v{vX}, v{vY}
            s_mul_i32 s{sT}, s{sTile}, {32 * 1152}
            s_lshl_b32 s{sT2}, s{sSB}, 7
            s_lshl_b32 s{sT3}, s{sKH}, 6
            s_add_u32 s{sT2}, s{sT2}, s{sT3}
            s_add_u32 s{sT}, s{sT}, s{sT2}
            """)
            for i in range(4):
                P(f"buffer_load_dwordx2 {vr(XR + 2 * i, 2)}, v{vX}, s[{sAX}:{sAX+3}], s{sT} offen")
                if i < 3:
                    P(f"s_add_u32 s{sT}, s{sT}, {8 * 1152}")
            P(f"""
            buffer_load_dwordx2 {vr(DR, 2)}, v{vY}, s[{sP}:{sP+3}], s{sT2} offen
            v_lshlrev_b32 v{vY}, 2, v{vTm}
            s_lshl_b32 s{sT}, s{sTile}, 7
            s_add_u32 s{sT}, s{sT}, {WS_G}
            """)
            for i in range(4):
                P(f"buffer_load_dword v{GR + i}, v{vY}, {ws}, s{sT} offen offset:{32 * i}")
            P(f"""
            v_and_b32 v{vX}, 31, v{vLane}
            v_lshlrev_b32 v{vX}, 2, v{vX}
            buffer_load_dword v{vG1}, v{vX}, {ws}, s{sT} offen
            v_mul_u32_u24 v{vTm}, 2304, v{vTm}
            v_lshlrev_b32 v{vO}, 4, v{vO}
            v_add_u32 v{vO}, v{vO}, v{vTm}
            """)
            vm.extend([("x", 0)] * 10)

        for c in range(9):
            if loader and (c >= 5 or rawb):
                idx = max(i for i, e in enumerate(vm) if e == ("c", c))
                P(f"s_waitcnt vmcnt({len(vm) - 1 - idx})")
            P("s_barrier")
            if loader and 1 <= c <= 4:
                cf_dma(c + 4)
                vm.extend([("c", c + 4)] * 4)
            if loader and c >= 5 and "wflate" not in exp:
                vm.extend([("w", c - 5)] * wf_dma(c - 5))
            if c == 6 and "mixlate" not in exp:
                mix_loads_a() if outA else mix_loads()
            if "cmarks" in exp:
                common.mark(P, [4, 5, 6, 7, 8, 14, 15, 12, 13][c])
            else:
                if c == 4: common.mark(P, 14)
                if c == 7: common.mark(P, 15)
            for r in creads(4 * c):
                P(r)
            for ks in range(4):
                n = 4 * c + ks
                if ks < 3:
                    for r in creads(n + 1):
                        P(r)
                for ct in range(2):
                    cop = "0" if n == 0 else vr(ACC[ct], 16)
                    P(f"v_mfma_f32_32x32x16_bf16 {vr(ACC[ct],16)}, {vr(BF[n & 1][ct],4)}, {vr(HF[n % HDEPTH],4)}, {cop}")
                if n + HDEPTH < 36:
                    hload(n + HDEPTH)
            P("s_waitcnt lgkmcnt(0)")
        P("s_setprio 3")
        P("s_barrier")
        if loader:
            if "wflate" in exp:
                for j in range(4):
                    wf_dma(j)
            wf_dma(4)
        if "mixlate" in exp:
            mix_loads_a() if outA else mix_loads()
        common.mark(P, 2)
        if outA:
            for q in range(4):
                for j in range(4):
                    sx, sd = XR + 2 * q + (j >> 1), DR + 2 * q + (j >> 1)
                    if j & 1:
                        P(f"v_and_b32 v{T + 4 * q + j}, 0xffff0000, v{sx}")
                        P(f"v_and_b32 v{98 + j}, 0xffff0000, v{sd}")
                    else:
                        P(f"v_lshlrev_b32 v{T + 4 * q + j}, 16, v{sx}")
                        P(f"v_lshlrev_b32 v{98 + j}, 16, v{sd}")
                for j in range(4):
                    P(f"v_mul_f32 v{98 + j}, v{vG1}, v{98 + j}")
                for j in range(4):
                    P(f"v_mul_f32 v{T + 4 * q + j}, v{T + 4 * q + j}, v{98 + j}")
        else:
            Df = [98, 99, 100, 101]
            P(f"""
            v_lshlrev_b32 v{Df[0]}, 16, v{DR}
            v_and_b32 v{Df[1]}, 0xffff0000, v{DR}
            v_lshlrev_b32 v{Df[2]}, 16, v{DR+1}
            v_and_b32 v{Df[3]}, 0xffff0000, v{DR+1}
            """)
            for i in range(4):
                for j in range(4):
                    src = XR + 2 * i + (j >> 1)
                    if j & 1:
                        P(f"v_and_b32 v{T + 4 * i + j}, 0xffff0000, v{src}")
                    else:
                        P(f"v_lshlrev_b32 v{T + 4 * i + j}, 16, v{src}")
                for j in range(4):
                    P(f"v_mul_f32 v{T + 4 * i + j}, v{T + 4 * i + j}, v{Df[j]}")
                for j in range(4):
                    P(f"v_mul_f32 v{T + 4 * i + j}, v{T + 4 * i + j}, v{GR + i}")
        for ct in range(2):
            for r in range(16):
                P(f"v_mul_f32 v{ACC[ct] + r}, v{vG1}, v{ACC[ct] + r}")
        common.mark(P, 9)
        if outA:
            P(f"""
            s_lshl_b32 s{sT}, s{sW}, 12
            v_add_u32 v{vX}, s{sT}, v{vL16}
            s_xor_b32 s{sT}, s{sW}, 4
            s_lshl_b32 s{sT}, s{sT}, 12
            v_add_u32 v{vY}, s{sT}, v{vL16}
            """)
        else:
            P(f"""
        v_and_b32 v{vTm}, 31, v{vLane}
        v_lshrrev_b32 v{vX}, 5, v{vLane}
        v_xor_b32 v{vX}, v{vX}, v{vTm}
        v_and_b32 v{vX}, 7, v{vX}
        v_lshlrev_b32 v{vX}, 4, v{vX}
        v_lshlrev_b32 v{vTm}, 7, v{vTm}
        v_add_u32 v{vX}, v{vX}, v{vTm}
        s_lshl_b32 s{sT}, s{sMT}, 14
        s_lshl_b32 s{sT2}, s{sKH}, 12
        s_add_u32 s{sT2}, s{sT2}, s{sT}
        v_add_u32 v{vX}, s{sT2}, v{vX}
        s_lshl_b32 s{sT2}, s{sKH}, 13
        s_add_u32 s{sT2}, s{sT2}, s{sT}
        v_add_u32 v{vY}, s{sT2}, v{vL16}
        """)
        P(f"""
        s_mul_i32 s{sT}, s{sKH}, {18 * 1024}
        s_mul_i32 s{sHo}, s{sTile}, {36 * 1024}
        s_add_u32 s{sHo}, s{sHo}, s{sT}
        s_add_u32 s{sHo}, s{sHo}, {WS_OF}
        """)
        if not loader:
            lp, dn = P.newlabel(pfx + "_apoll"), P.newlabel(pfx + "_adone")
            P(f"""
            s_cmp_eq_u32 s{sW}, 0
            s_cbranch_scc0 {dn}
            s_lshr_b32 s{sT}, s{sTB}, 1
            s_lshl_b32 s{sT}, s{sT}, 7
            s_add_u32 s{sT}, s{sT}, {WS_FLG + FLG_ATT}
            v_lshlrev_b32 v121, 2, v{vLane}
            s_mov_b32 exec_hi, 0
            """)
            P.L(lp)
            P(f"""
            buffer_load_dword v122, v121, {ws}, s{sT} offen sc1
            s_waitcnt vmcnt(0)
            v_cmp_ne_u32 vcc, {flag}, v122
            s_cbranch_vccz {dn}
            s_sleep 1
            s_branch {lp}
            """)
            P.L(dn)
            P("s_mov_b64 exec, -1")
            use(123)
        P("s_waitcnt vmcnt(0)")
        P("s_barrier")
        common.mark(P, 3)
        OFr = [50 + 4 * i for i in range(ODEPTH)]
        WB = BF

        def oload(n):
            if n % 4 == 0 and n > 0:
                P(f"s_add_u32 s{sHo}, s{sHo}, 4096")
            shared = loader and n >= 14
            P(f"buffer_load_dwordx4 {vr(OFr[n % ODEPTH],4)}, v{vL16}, {ws}, s{sHo} offen offset:{(n % 4) * 1024}" + ("" if "ofl2" in exp and not shared else " sc1"))

        for n in range(ODEPTH):
            oload(n)

        def wreads(n):
            j, ks = divmod(n, 4)
            slot = (9 + j + 2) % 5
            base, off = (vC1, 0) if slot == 4 else (vC0, slot * SLOT)
            return [f"ds_read_b128 {vr(WB[n & 1][ct],4)}, v{base} offset:{off + ct * 4096 + ks * 1024}" for ct in range(2)]

        for r in wreads(0):
            P(r)
        for n in range(18):
            if n + 1 < 18:
                for r in wreads(n + 1):
                    P(r)
            for ct in range(2):
                P(f"v_mfma_f32_32x32x16_bf16 {vr(ACC[ct],16)}, {vr(WB[n & 1][ct],4)}, {vr(OFr[n % ODEPTH],4)}, {vr(ACC[ct],16)}")
            if n + ODEPTH < 18:
                oload(n + ODEPTH)
        common.mark(P, 10)
        P("s_barrier")
        if "cmarks" not in exp: common.mark(P, 12)
        if outA:
            keep, send = (ACC[1], ACC[0]) if loader else (ACC[0], ACC[1])
            for q in range(4):
                P(f"ds_write_b128 v{vX}, {vr(send + 4 * q, 4)} offset:{q * 1024}")
            for r in range(16):
                P(f"v_add_f32 v{T + r}, v{T + r}, v{keep + r}")
            P(f"""
            s_mul_i32 s{sT}, s{sTile}, {32 * 2304}
            s_lshl_b32 s{sT2}, s{sSB}, 8
            s_add_u32 s{sT}, s{sT}, s{sT2}
            s_lshl_b32 s{sT2}, s{sKH}, 7
            s_add_u32 s{sT}, s{sT}, s{sT2}
            s_waitcnt lgkmcnt(0)
            s_barrier
            """)
            common.mark(P, 13)
            RB = 50
            for q in range(4):
                P(f"ds_read_b128 {vr(RB + 4 * q, 4)}, v{vY} offset:{q * 1024}")
            for q in range(4):
                for j in range(4):
                    P(f"v_add_f32 v{T + 4 * q + j}, v{T + 4 * q + j}, v{RB + 4 * q + j}")
                P(f"buffer_store_dwordx4 {vr(T + 4 * q, 4)}, v{vO}, s[{sOut}:{sOut+3}], s{sT} offen offset:{32 * q}")
        else:
            for ct in range(2):
                for q in range(4):
                    a = vX
                    if q:
                        P(f"v_xor_b32 v{vTm}, {32 * q}, v{vX}")
                        a = vTm
                    P(f"ds_write_b128 v{a}, {vr(ACC[ct] + 4 * q, 4)} offset:{ct * 8192}")
            P(f"""
            s_mul_i32 s{sT}, s{sTile}, {32 * 2304}
            s_lshl_b32 s{sT2}, s{sSB}, 8
            s_add_u32 s{sT}, s{sT}, s{sT2}
            s_lshl_b32 s{sT2}, s{sKH}, 7
            s_add_u32 s{sT}, s{sT}, s{sT2}
            s_waitcnt lgkmcnt(0)
            s_barrier
            """)
            RB = 50
            common.mark(P, 13)
            for i in range(4):
                for h in range(2):
                    P(f"ds_read_b128 {vr(RB + 8 * i + 4 * h, 4)}, v{vY} offset:{h * 4096 + i * 1024}")
            for i in range(4):
                for j in range(4):
                    P(f"v_add_f32 v{T + 4 * i + j}, v{T + 4 * i + j}, v{RB + 8 * i + j}")
                    P(f"v_add_f32 v{T + 4 * i + j}, v{T + 4 * i + j}, v{RB + 8 * i + 4 + j}")
                P(f"buffer_store_dwordx4 {vr(T + 4 * i, 4)}, v{vO}, s[{sOut}:{sOut+3}], s{sT} offen")
                if i < 3:
                    P(f"s_add_u32 s{sT}, s{sT}, {8 * 2304}")
        common.mark(P, 11)
        P(end)

    ACC = [[2, 18], [34, 50]]
    XF = [[66, 70], [74, 78]]
    WF = [[82, 86], [90, 94]]
    vA0, vA1, vB0, vB1 = 98, 99, 100, 101
    lr, li, nli, mr, mi, br, bi = 102, 103, 104, 105, 106, 107, 108
    t = 110
    use(121)
    P(f"""
    s_and_b32 s{sWM}, s{sW}, 1
    s_lshr_b32 s{sWN}, s{sW}, 1
    s_lshl_b32 s{sT}, s{sSB}, 6
    s_lshl_b32 s{sT2}, s{sWN}, 5
    s_add_u32 s{sT}, s{sT}, s{sT2}
    v_and_b32 v{t+8}, 31, v{vLane}
    v_add_u32 v{t+8}, s{sT}, v{t+8}
    v_lshlrev_b32 v{t+9}, 1, v{t+8}
    """)
    for k, ka in enumerate((KA_LRE, KA_LIM, KA_LDT)):
        srd_from_kernarg(P, sP, ka, 1152)
        P(f"""
        s_waitcnt lgkmcnt(0)
        buffer_load_ushort v{t+4+k}, v{t+9}, s[{sP}:{sP+3}], 0 offen
        """)
    vXR = [98, 99, 101, 122]
    vB2 = 123
    XSLOT, NX, WSLOT, NWS, WBASE = 16384, 3, 8192, 4, 49152
    if merged:
        P(f"""
        v_and_b32 v{t}, 31, v{vLane}
        v_lshrrev_b32 v{t+1}, 5, v{vLane}
        v_lshrrev_b32 v{t+2}, 1, v{t}
        v_and_b32 v{t+2}, 7, v{t+2}
        v_xor_b32 v{t+2}, v{t+2}, v{t+1}
        v_lshlrev_b32 v{t+2}, 4, v{t+2}
        s_lshl_b32 s{sT}, s{sWM}, 6
        v_add_u32 v{t+3}, s{sT}, v{t}
        v_lshlrev_b32 v{t+3}, 7, v{t+3}
        v_add_u32 v{vXR[0]}, v{t+2}, v{t+3}
        v_xor_b32 v{vXR[1]}, 32, v{vXR[0]}
        v_xor_b32 v{vXR[2]}, 64, v{vXR[0]}
        v_xor_b32 v{vXR[3]}, 0x60, v{vXR[0]}
        """)
        if rawb:
            P(f"""
            v_lshrrev_b32 v{t+2}, 2, v{t}
            v_and_b32 v{t+2}, 3, v{t+2}
            v_xor_b32 v{t+2}, v{t+2}, v{t+1}
            v_lshlrev_b32 v{t+2}, 4, v{t+2}
            v_lshlrev_b32 v{t+3}, 6, v{t}
            s_lshl_b32 s{sT}, s{sWN}, 11
            s_add_u32 s{sT}, s{sT}, {WBASE}
            v_add_u32 v{t+3}, s{sT}, v{t+3}
            v_add_u32 v{vB0}, v{t+2}, v{t+3}
            v_xor_b32 v{vB2}, 32, v{vB0}
            """)
        else:
            P(f"""
            s_lshl_b32 s{sT}, s{sWN}, 12
            s_add_u32 s{sT}, s{sT}, {WBASE}
            v_add_u32 v{vB0}, s{sT}, v{vL16}
            """)
    else:
      P(f"""
    s_lshl_b32 s{sT}, s{sWM}, 12
    v_add_u32 v{vA0}, s{sT}, v{vL16}
    v_add_u32 v{vA1}, 0x10000, v{vA0}
    s_lshl_b32 s{sT}, s{sWN}, 12
    s_add_u32 s{sT}, s{sT}, 8192
    v_add_u32 v{vB0}, s{sT}, v{vL16}
    v_add_u32 v{vB1}, 0x10000, v{vB0}
    """)
    emit_lambda(P, t + 4, t + 5, t + 6, t, lr, li)
    P(f"v_sub_f32 v{nli}, 0, v{li}")

    def csq(dr, di, sr_, si_):
        P(f"""
        v_mul_f32 v{t}, v{si_}, v{si_}
        v_add_f32 v{t+1}, v{sr_}, v{sr_}
        v_fma_f32 v{dr}, v{sr_}, v{sr_}, -v{t}
        v_mul_f32 v{di}, v{t+1}, v{si_}
        """)

    csq(mr, mi, lr, li)
    for _ in range(4):
        csq(mr, mi, mr, mi)
    csq(br, bi, mr, mi)
    csq(br, bi, br, bi)

    def reads(n):
        if rawb:
            bb = n & 1
            xo, wo_ = ((n >> 2) % NX) * XSLOT, ((n >> 1) % NWS) * WSLOT
            vb = vB2 if n & 1 else vB0
            return [f"ds_read_b128 {vr(XF[bb][0],4)}, v{vXR[n & 3]} offset:{xo}",
                    f"ds_read_b128 {vr(WF[bb][0],4)}, v{vb} offset:{wo_}",
                    f"ds_read_b128 {vr(WF[bb][1],4)}, v{vb} offset:{wo_ + 4096}",
                    f"ds_read_b128 {vr(XF[bb][1],4)}, v{vXR[n & 3]} offset:{xo + 4096}"]
        if merged:
            bb = n & 1
            xo, wo_ = ((n >> 2) % NX) * XSLOT, ((n >> 1) % NWS) * WSLOT + (n & 1) * 1024
            return [f"ds_read_b128 {vr(XF[bb][0],4)}, v{vXR[n & 3]} offset:{xo}",
                    f"ds_read_b128 {vr(WF[bb][0],4)}, v{vB0} offset:{wo_}",
                    f"ds_read_b128 {vr(WF[bb][1],4)}, v{vB0} offset:{wo_ + 2048}",
                    f"ds_read_b128 {vr(XF[bb][1],4)}, v{vXR[n & 3]} offset:{xo + 4096}"]
        s_, ks = divmod(n, 2)
        slot = s_ % 5
        a, b, off = (vA1, vB1, 0) if slot == 4 else (vA0, vB0, slot * SLOT)
        bb = n & 1
        return [f"ds_read_b128 {vr(XF[bb][0],4)}, v{a} offset:{off + ks * 1024}",
                f"ds_read_b128 {vr(WF[bb][0],4)}, v{b} offset:{off + ks * 1024}",
                f"ds_read_b128 {vr(WF[bb][1],4)}, v{b} offset:{off + 2048 + ks * 1024}",
                f"ds_read_b128 {vr(XF[bb][1],4)}, v{a} offset:{off + 2048 + ks * 1024}"]

    if merged:
        P("s_barrier")
    P("s_barrier")
    common.mark(P, 0)
    P(f"s_setprio {prio['b']}")
    for r in reads(0):
        P(r)
    for n in range(36):
        bb = n & 1
        mf = []
        for mt in range(2):
            for cp in range(2):
                cop = "0" if n == 0 else vr(ACC[mt][cp], 16)
                mf.append(f"v_mfma_f32_32x32x16_bf16 {vr(ACC[mt][cp],16)}, {vr(XF[bb][mt],4)}, {vr(WF[bb][cp],4)}, {cop}")
        P("s_waitcnt lgkmcnt(0)")
        if "bmarks" in exp and n in (3, 11, 19): common.mark(P, {3: 5, 11: 6, 19: 7}[n])
        if bb == 1 and n + 1 < 36:
            P("s_barrier")
        rs = reads(n + 1) if n + 1 < 36 else []
        for k in range(4):
            P(mf[k])
            take = rs[:2] if k < 2 else []
            rs = rs[len(take):]
            for r in take:
                P(r)

    P("s_setprio 3")
    common.mark(P, 4)
    ea, eb = (t, t + 1), (t + 2, t + 3)
    U = lambda tau, cp: ACC[tau >> 4][cp] + (tau & 15)
    cur = (U(0, 0), U(0, 1))
    for tau in range(1, 32):
        nx = ea if tau & 1 else eb
        P(f"""
        v_fma_f32 v{nx[0]}, v{lr}, v{cur[0]}, v{U(tau,0)}
        v_fma_f32 v{nx[1]}, v{lr}, v{cur[1]}, v{U(tau,1)}
        v_fmac_f32 v{nx[0]}, v{nli}, v{cur[1]}
        v_fmac_f32 v{nx[1]}, v{li}, v{cur[0]}
        """)
        cur = nx
    assert cur == ea
    P(f"""
    v_lshrrev_b32 v{t+4}, 5, v{vLane}
    v_lshlrev_b32 v{t+4}, 9, v{t+4}
    v_and_b32 v{t+5}, 31, v{vLane}
    v_lshlrev_b32 v{t+5}, 3, v{t+5}
    s_lshl_b32 s{sT}, s{sWN}, 8
    s_add_u32 s{sT}, s{sT}, {ELOC}
    v_add_u32 v{t+5}, s{sT}, v{t+5}
    s_lshl_b32 s{sT}, s{sWM}, 10
    v_add_u32 v{t+4}, s{sT}, v{t+4}
    v_add_u32 v{t+4}, v{t+4}, v{t+5}
    ds_write_b64 v{t+4}, {vr(ea[0],2)}
    s_waitcnt lgkmcnt(0)
    s_barrier
    """)
    EL = [98, 100, 122, 124]
    for k in range(4):
        P(f"ds_read_b64 {vr(EL[k], 2)}, v{t+5} offset:{k * 512}")

    def cmuladd(dr, di, ar, ai, nai, xr, xi, yr, yi):
        P(f"""
        v_fma_f32 v{t+6}, v{ar}, v{xr}, v{yr}
        v_fma_f32 v{t+7}, v{ar}, v{xi}, v{yi}
        v_fma_f32 v{dr}, -v{ai}, v{xi}, v{t+6}
        v_fma_f32 v{di}, v{ai}, v{xr}, v{t+7}
        """) if (dr, di) != (xr, xi) else P(f"""
        v_fma_f32 v{t+6}, v{ar}, v{xr}, v{yr}
        v_fma_f32 v{t+7}, v{ar}, v{xi}, v{yi}
        v_fma_f32 v{t+7}, v{ai}, v{xr}, v{t+7}
        v_fma_f32 v{dr}, -v{ai}, v{xi}, v{t+6}
        v_mov_b32 v{di}, v{t+7}
        """)

    Eb = 66
    cmuladd(t, t + 1, mr, mi, None, EL[0], EL[0] + 1, EL[1], EL[1] + 1)
    cmuladd(t + 2, t + 3, mr, mi, None, t, t + 1, EL[2], EL[2] + 1)
    cmuladd(Eb, Eb + 2, mr, mi, None, t + 2, t + 3, EL[3], EL[3] + 1)
    nopub = P.newlabel(pfx + "_nopub")
    P(f"""
    v_mov_b32 v{Eb+1}, s{sTag}
    v_mov_b32 v{Eb+3}, s{sTag}
    s_mul_i32 s{sT}, s{sTB}, 576
    v_add_u32 v{t}, s{sT}, v{t+8}
    v_lshlrev_b32 v{t}, 4, v{t}
    s_cmp_eq_u32 s{sWM}, 0
    s_cbranch_scc0 {nopub}
    s_mov_b32 exec_hi, 0
    buffer_store_dwordx4 {vr(Eb,4)}, v{t}, s[{sE}:{sE+3}], 0 offen sc1
    s_mov_b32 exec_hi, -1
    """)
    P.L(nopub)
    EDr = [66 + 4 * i for i in range(8)]
    use(125)
    vN, vEo = t + 2, t + 3
    P(f"""
    v_lshrrev_b32 v{vN}, 5, v{vLane}
    v_lshlrev_b32 v{vN}, 3, v{vN}
    s_sub_i32 s{sT}, s{sTB}, 16
    v_add_u32 v{vN}, s{sT}, v{vN}
    s_movk_i32 s{sT}, 576
    v_mul_lo_u32 v{vEo}, v{vN}, s{sT}
    v_add_u32 v{vEo}, v{vEo}, v{t+8}
    v_lshlrev_b32 v{vEo}, 4, v{vEo}
    """)
    if "pmarks" not in exp and "bmarks" not in exp: common.mark(P, 5)
    ep = P.newlabel(pfx + "_epoll")
    P.L(ep)
    for i in range(8):
        P(f"v_add_u32 v{t}, {i * 9216}, v{vEo}")
        P(f"buffer_load_dwordx4 {vr(EDr[i],4)}, v{t}, s[{sE}:{sE+3}], 0 offen sc1")
    P(f"s_mov_b64 s[{sBad}:{sBad+1}], 0")
    for i in range(8):
        P(f"""
        v_cmp_eq_u32 vcc, s{sTag}, v{EDr[i]+1}
        v_cmp_eq_u32 s[{sOk}:{sOk+1}], s{sTag}, v{EDr[i]+3}
        s_and_b64 s[{sOk}:{sOk+1}], s[{sOk}:{sOk+1}], vcc
        v_cmp_gt_i32 vcc, {-i}, v{vN}
        s_or_b64 s[{sOk}:{sOk+1}], s[{sOk}:{sOk+1}], vcc
        s_orn2_b64 s[{sBad}:{sBad+1}], s[{sBad}:{sBad+1}], s[{sOk}:{sOk+1}]
        """)
    edone = P.newlabel(pfx + "_edone")
    P(f"""
    s_cmp_eq_u64 s[{sBad}:{sBad+1}], 0
    s_cbranch_scc1 {edone}
    s_sleep 2
    s_branch {ep}
    """)
    P.L(edone)
    if "pmarks" not in exp and "bmarks" not in exp: common.mark(P, 6)
    H = (t + 4, t + 5)
    cmuladd(H[0], H[1], br, bi, None, EDr[0], EDr[0] + 2, EDr[1], EDr[1] + 2)
    for i in range(2, 8):
        cmuladd(H[0], H[1], br, bi, None, H[0], H[1], EDr[i], EDr[i] + 2)
    for _ in range(3):
        csq(br, bi, br, bi)
    a0, a1, b0, b1 = 66, 67, 68, 69
    P(f"""
    v_mov_b32 v{a0}, v{H[0]}
    v_mov_b32 v{b0}, v{H[0]}
    v_mov_b32 v{a1}, v{H[1]}
    v_mov_b32 v{b1}, v{H[1]}
    v_permlane32_swap_b32 v{a0}, v{b0}
    v_permlane32_swap_b32 v{a1}, v{b1}
    """)
    C0, C1, C2, C3 = (82, 83), (84, 85), (86, 87), (88, 89)
    cmuladd(C0[0], C0[1], br, bi, None, a0, a1, b0, b1)
    cmuladd(C1[0], C1[1], mr, mi, None, C0[0], C0[1], EL[0], EL[0] + 1)
    w1, gsel = P.newlabel(pfx + "_wm1"), P.newlabel(pfx + "_gsel")
    g0 = (t, t + 1)
    P(f"""
    v_cmp_le_u32 vcc, 32, v{vLane}
    s_cmp_eq_u32 s{sWM}, 0
    s_cbranch_scc0 {w1}
    v_cndmask_b32 v{g0[0]}, v{C0[0]}, v{C1[0]}, vcc
    v_cndmask_b32 v{g0[1]}, v{C0[1]}, v{C1[1]}, vcc
    s_branch {gsel}
    """)
    P.L(w1)
    cmuladd(C2[0], C2[1], mr, mi, None, C1[0], C1[1], EL[1], EL[1] + 1)
    cmuladd(C3[0], C3[1], mr, mi, None, C2[0], C2[1], EL[2], EL[2] + 1)
    P(f"""
    v_cndmask_b32 v{g0[0]}, v{C2[0]}, v{C3[0]}, vcc
    v_cndmask_b32 v{g0[1]}, v{C2[1]}, v{C3[1]}, vcc
    """)
    P.L(gsel)
    cur = g0
    for tau in range(32):
        ur, ui = U(tau, 0), U(tau, 1)
        P(f"""
        v_fmac_f32 v{ur}, v{lr}, v{cur[0]}
        v_fmac_f32 v{ui}, v{lr}, v{cur[1]}
        v_fmac_f32 v{ur}, v{nli}, v{cur[1]}
        v_fmac_f32 v{ui}, v{li}, v{cur[0]}
        """)
        cur = (ur, ui)
    vTW, vTR, vX_ = t, t + 1, t + 2
    P(f"""
    v_and_b32 v{t+4}, 31, v{vLane}
    v_lshrrev_b32 v{t+5}, 1, v{t+4}
    v_and_b32 v{t+5}, 1, v{t+5}
    v_lshlrev_b32 v{t+5}, 2, v{t+5}
    v_lshrrev_b32 v{t+6}, 2, v{t+4}
    v_and_b32 v{t+6}, 1, v{t+6}
    v_lshlrev_b32 v{t+6}, 1, v{t+6}
    v_or_b32 v{t+5}, v{t+5}, v{t+6}
    v_and_b32 v{t+6}, 1, v{t+4}
    v_or_b32 v{t+5}, v{t+5}, v{t+6}
    v_lshrrev_b32 v{t+6}, 5, v{vLane}
    v_lshlrev_b32 v{t+6}, 2, v{t+6}
    v_xor_b32 v{t+5}, v{t+5}, v{t+6}
    v_lshlrev_b32 v{t+5}, 4, v{t+5}
    v_lshlrev_b32 v{t+4}, 7, v{t+4}
    v_add_u32 v{vTW}, v{t+4}, v{t+5}
    s_lshl_b32 s{sT}, s{sW}, 13
    v_add_u32 v{vTW}, s{sT}, v{vTW}
    """)
    PK = 66
    for cp in range(2):
        for k in range(16):
            P(f"v_cvt_pk_bf16_f32 v{PK + 16 * cp + k}, v{U(2 * k, cp)}, v{U(2 * k + 1, cp)}")
        for m in range(4):
            P(f"v_xor_b32 v{vX_}, {16 * m}, v{vTW}")
            P(f"ds_write_b128 v{vX_}, {vr(PK + 16 * cp + 4 * m, 4)} offset:{cp * 4096}")
    P(f"""
    v_lshrrev_b32 v{t+4}, 5, v{vLane}
    v_lshlrev_b32 v{t+4}, 3, v{t+4}
    v_lshrrev_b32 v{t+5}, 2, v{vLane}
    v_and_b32 v{t+5}, 3, v{t+5}
    v_add_u32 v{t+4}, v{t+4}, v{t+5}
    v_lshlrev_b32 v{t+4}, 7, v{t+4}
    v_lshrrev_b32 v{t+5}, 4, v{vLane}
    v_and_b32 v{t+5}, 1, v{t+5}
    v_lshlrev_b32 v{t+5}, 1, v{t+5}
    v_lshrrev_b32 v{t+6}, 1, v{vLane}
    v_and_b32 v{t+6}, 1, v{t+6}
    v_or_b32 v{t+5}, v{t+5}, v{t+6}
    v_lshrrev_b32 v{t+6}, 3, v{vLane}
    v_and_b32 v{t+6}, 1, v{t+6}
    v_lshlrev_b32 v{t+6}, 2, v{t+6}
    v_xor_b32 v{t+5}, v{t+5}, v{t+6}
    v_lshrrev_b32 v{t+6}, 2, v{vLane}
    v_and_b32 v{t+6}, 1, v{t+6}
    v_xor_b32 v{t+5}, v{t+5}, v{t+6}
    v_lshlrev_b32 v{t+5}, 4, v{t+5}
    v_and_b32 v{t+6}, 1, v{vLane}
    v_lshlrev_b32 v{t+6}, 3, v{t+6}
    v_add_u32 v{t+4}, v{t+4}, v{t+5}
    v_add_u32 v{t+4}, v{t+4}, v{t+6}
    v_add_u32 v{vTR}, s{sT}, v{t+4}
    s_lshl_b32 s{sT}, s{sTB}, 2
    s_lshl_b32 s{sT2}, s{sWM}, 1
    s_add_u32 s{sT}, s{sT}, s{sT2}
    s_mul_i32 s{sT}, s{sT}, 72
    s_lshl_b32 s{sT2}, s{sSB}, 2
    s_add_u32 s{sT}, s{sT}, s{sT2}
    s_lshl_b32 s{sT2}, s{sWN}, 1
    s_add_u32 s{sT}, s{sT}, s{sT2}
    s_lshl_b32 s{sT}, s{sT}, 10
    s_add_u32 s{sT}, s{sT}, {WS_HF}
    s_waitcnt lgkmcnt(0)
    """)
    TRA = [t + 4, t + 5, t + 6, t + 7]
    for tt2 in range(2):
        for rd in range(2):
            P(f"v_xor_b32 v{TRA[2 * tt2 + rd]}, {tt2 * 64 + rd * 32}, v{vTR}")
    FR = [2 + 4 * i for i in range(8)]
    k = 0
    for tt2 in range(2):
        for cp in range(2):
            for s16 in range(2):
                for rd in range(2):
                    P(f"ds_read_b64_tr_b16 {vr(FR[k] + 2 * rd, 2)}, v{TRA[2 * tt2 + rd]} offset:{cp * 4096 + s16 * 2048 + rd * 512}")
                k += 1
    k = 0
    for tt2 in range(2):
        for cp in range(2):
            P(f"s_add_u32 s{sT2}, s{sT}, {(tt2 * 72 + cp * 36) * 1024}")
            for s16 in range(2):
                P(f"buffer_store_dwordx4 {vr(FR[k],4)}, v{vL16}, {ws}, s{sT2} offen offset:{s16 * 1024} sc1")
                k += 1
    if "pmarks" not in exp and "bmarks" not in exp: common.mark(P, 7)
    P("s_waitcnt vmcnt(0)")
    P("s_barrier")
    common.mark(P, 8)
    fl = P.newlabel(pfx + "_noflag")
    if rawb:
        P(f"""
        s_cmp_eq_u32 s{sW}, 0
        s_cbranch_scc0 {fl}
        s_lshl_b32 s{sT}, s{sIdx}, 2
        s_add_u32 s{sT}, s{sT}, {WS_FLG + FLG_PREP}
        v_mov_b32 v2, {flag}
        v_lshlrev_b32 v3, 12, v{vLane}
        s_mov_b32 exec_hi, 0
        s_mov_b32 exec_lo, 0xffff
        buffer_store_dword v2, v3, {ws}, s{sT} offen sc1
        s_mov_b64 exec, -1
        """)
    else:
      P(f"""
    s_cmp_eq_u32 s{sW}, 0
    s_cbranch_scc0 {fl}
    s_lshl_b32 s{sT}, s{sTB}, 6
    s_lshl_b32 s{sT2}, s{sSB}, 2
    s_add_u32 s{sT}, s{sT}, s{sT2}
    s_add_u32 s{sT}, s{sT}, {WS_FLG + FLG_HF}
    v_mov_b32 v2, {flag}
    v_mov_b32 v3, 0
    s_mov_b32 exec_hi, 0
    s_mov_b32 exec_lo, 1
    buffer_store_dword v2, v3, {ws}, s{sT} offen sc1
    s_mov_b64 exec, -1
    """)
    P.L(fl)
    if rawb:
        block_map(False)
        P(f"""
        s_lshl_b32 s{sTile}, s{sTB}, 2
        s_add_u32 s{sTile}, s{sTile}, s{sMT}
        """)
    out_phases(False)

    P.L(L("loader"))
    P(f"""
    s_lshl_b32 s{sT}, s{sTB}, 2
    s_add_u32 s{sT}, s{sT}, s{sMT}
    s_mul_i32 s{sXo}, s{sT}, {36 * 1024}
    s_add_u32 s{sXo}, s{sXo}, {WS_XF}
    s_lshl_b32 s{sT}, s{sSB}, 2
    s_add_u32 s{sT}, s{sT}, s{sMT}
    s_mul_i32 s{sBo}, s{sT}, {36 * 1024}
    s_add_u32 s{sBo}, s{sBo}, {WS_BF}
    s_lshl_b32 s{sM}, s{sMT}, 11
    """)

    def dmaA(s_):
        slot = s_ % 5
        P(f"""
        s_add_u32 m0, s{sM}, {slot * SLOT}
        s_nop 0
        buffer_load_dwordx4 v{vL16}, {ws}, s{sXo} offen lds
        buffer_load_dwordx4 v{vL16}, {ws}, s{sXo} offen offset:1024 lds
        s_add_u32 m0, s{sM}, {slot * SLOT + 8192}
        s_add_u32 s{sXo}, s{sXo}, 2048
        buffer_load_dwordx4 v{vL16}, {ws}, s{sBo} offen lds
        buffer_load_dwordx4 v{vL16}, {ws}, s{sBo} offen offset:1024 lds
        s_add_u32 s{sBo}, s{sBo}, 2048
        """)

    if merged:
        vDX = [4, 5, 6, 7]
        sMX, sMW, sOffX = sM, 25, 31
        DUX = 4 * 1152 - 1024
        P(f"""
        v_lshrrev_b32 v8, 5, v{vLane}
        v_lshlrev_b32 v8, 5, v8
        v_lshrrev_b32 v9, 3, v{vLane}
        v_and_b32 v9, 3, v9
        v_add_u32 v8, v8, v9
        v_mul_u32_u24 v8, 1152, v8
        v_lshrrev_b32 v9, 4, v{vLane}
        v_and_b32 v10, 7, v{vLane}
        v_xor_b32 v9, v9, v10
        v_lshlrev_b32 v9, 4, v9
        v_xor_b32 v10, 64, v9
        v_add_u32 v{vDX[0]}, v8, v9
        v_add_u32 v10, v8, v10
        v_add_u32 v{vDX[1]}, {DUX}, v10
        v_add_u32 v{vDX[2]}, {2 * DUX}, v{vDX[0]}
        v_add_u32 v{vDX[3]}, {3 * DUX}, v10
        s_lshl_b32 s{sOffX}, s{sTB}, 7
        s_lshr_b32 s{sT}, s{sMT}, 1
        s_lshl_b32 s{sT}, s{sT}, 6
        s_add_u32 s{sOffX}, s{sOffX}, s{sT}
        s_and_b32 s{sT}, s{sMT}, 1
        s_lshl_b32 s{sT}, s{sT}, 4
        s_add_u32 s{sOffX}, s{sOffX}, s{sT}
        s_mul_i32 s{sOffX}, s{sOffX}, 1152
        s_lshl_b32 s{sMX}, s{sMT}, 12
        s_lshl_b32 s{sMW}, s{sMT}, 11
        s_add_u32 s{sMW}, s{sMW}, {WBASE}
        """)
        lp, dn = P.newlabel(pfx + "_ppoll"), P.newlabel(pfx + "_pdone")
        if rawb:
            sB4 = 44
            P(f"""
            s_load_dwordx4 s[52:55], s[0:1], {KA_BRE}
            """.replace("s[52:55]", "s[84:87]"))
            P(f"""
            v_lshrrev_b32 v8, 2, v{vLane}
            s_lshl_b32 s{sT}, s{sSB}, 6
            s_and_b32 s{sT2}, s{sMT}, 1
            s_lshl_b32 s{sT2}, s{sT2}, 5
            s_add_u32 s{sT}, s{sT}, s{sT2}
            v_add_u32 v8, s{sT}, v8
            v_mul_u32_u24 v8, 1152, v8
            v_lshrrev_b32 v9, 4, v{vLane}
            v_xor_b32 v9, v9, v{vLane}
            v_and_b32 v9, 3, v9
            v_lshlrev_b32 v9, 4, v9
            v_add_u32 v2, v8, v9
            v_add_u32 v3, {16 * 1152 - 1024}, v2
            s_mov_b32 s{sB4+2}, {576 * 1152}
            s_mov_b32 s{sB4+3}, 0x00020000
            s_mov_b32 s{sBo}, 0
            s_cmp_ge_u32 s{sMT}, 2
            s_waitcnt lgkmcnt(0)
            s_cselect_b32 s{sB4}, s86, s84
            s_cselect_b32 s{sB4+1}, s87, s85
            """)
            P(f"""
            s_cmp_eq_u32 s{sW}, 4
            s_cbranch_scc0 {dn}
            s_lshl_b32 s{sT}, s{sIdx}, 6
            s_add_u32 s{sT}, s{sT}, {WS_FLG + FLG_GO}
            s_mov_b64 exec, 1
            """)
            if "nogo" in exp:
                P(f"s_branch {dn}")
            P.L(lp)
            P(f"""
            buffer_load_dword v12, off, {ws}, s{sT} sc1
            s_waitcnt vmcnt(0)
            v_cmp_ne_u32 vcc, {flag}, v12
            s_cbranch_vccz {dn}
            s_sleep {psleep}
            s_branch {lp}
            """)
        else:
          P(f"""
        s_cmp_eq_u32 s{sW}, 4
        s_cbranch_scc0 {dn}
        s_and_b32 s{sT2}, s{sIdx}, {NREP - 1}
        s_lshl_b32 s{sT2}, s{sT2}, 12
        s_lshl_b32 s{sT}, s{sIdx}, 6
        s_add_u32 s{sT}, s{sT}, {FLG_GO - FLG_PREP}
        s_sub_u32 s{sT}, s{sT}, s{sT2}
        v_mov_b32 v9, s{sT}
        v_cmp_eq_u32 vcc, 36, v{vLane}
        v_cndmask_b32 v8, v{vL16}, v9, vcc
        s_add_u32 s{sT}, s{sT2}, {WS_FLG + FLG_PREP}
        s_mov_b32 exec_hi, {"0xf" if "nogo" in exp else "0x1f"}
        """)
        if not rawb:
          P.L(lp)
          P(f"""
        buffer_load_dwordx4 v[12:15], v8, {ws}, s{sT} offen sc1
        s_waitcnt vmcnt(0)
        v_cmp_ne_u32 vcc, {flag}, v12
        v_cmp_ne_u32 s[{sOk}:{sOk+1}], {flag}, v13
        s_or_b64 s[{sBad}:{sBad+1}], vcc, s[{sOk}:{sOk+1}]
        v_cmp_ne_u32 vcc, {flag}, v14
        v_cmp_ne_u32 s[{sOk}:{sOk+1}], {flag}, v15
        s_or_b64 s[{sBad}:{sBad+1}], s[{sBad}:{sBad+1}], vcc
        s_or_b64 s[{sBad}:{sBad+1}], s[{sBad}:{sBad+1}], s[{sOk}:{sOk+1}]
        s_cbranch_scc0 {dn}
        s_sleep {psleep}
        s_branch {lp}
        """)
        P.L(dn)
        P("s_mov_b64 exec, -1")
        if "bmarks" in exp: common.mark(P, 5)
        P("s_barrier")
        if "pmarks" in exp: common.mark(P, 7)
        q = []

        def dmax(c):
            P(f"s_add_u32 m0, s{sMX}, {(c % NX) * XSLOT}")
            P("s_nop 0")
            for u in range(4):
                P(f"buffer_load_dwordx4 v{vDX[u]}, s[{sAX}:{sAX+3}], s{sOffX} offen offset:{u * 1024} lds")
            P(f"s_add_u32 s{sOffX}, s{sOffX}, 128")
            q.extend([f"x{c}"] * 4)

        def dmab(b):
            if rawb:
                P(f"""
                s_add_u32 m0, s{sMW}, {(b % NWS) * WSLOT}
                s_nop 0
                buffer_load_dwordx4 v2, s[{sB4}:{sB4+3}], s{sBo} offen lds
                buffer_load_dwordx4 v3, s[{sB4}:{sB4+3}], s{sBo} offen offset:1024 lds
                s_add_u32 s{sBo}, s{sBo}, 64
                """)
                q.extend([f"w{b}"] * 2)
                return
            P(f"""
            s_add_u32 m0, s{sMW}, {(b % NWS) * WSLOT}
            s_nop 0
            buffer_load_dwordx4 v{vL16}, {ws}, s{sBo} offen lds
            buffer_load_dwordx4 v{vL16}, {ws}, s{sBo} offen offset:1024 lds
            s_add_u32 s{sBo}, s{sBo}, 2048
            """)
            q.extend([f"w{b}"] * 2)

        def wait(tags):
            idx = max(i for i, e in enumerate(q) if e in tags)
            P(f"s_waitcnt vmcnt({len(q) - 1 - idx})")

        dmax(0); dmab(0); dmab(1); dmax(1); dmab(2); dmab(3); dmax(2)
        P(f"s_setprio {prio['l']}")
        wait(["x0", "w0"])
        P("s_barrier")
        for b in range(17):
            wait([f"w{b + 1}"] + ([f"x{(b + 1) // 2}"] if b & 1 else []))
            P("s_barrier")
            if b + 4 < 18:
                dmab(b + 4)
            if b & 1 and (b - 1) // 2 + 3 < 9:
                dmax((b - 1) // 2 + 3)
        if rawb:
            from prepm import emit_prep
            emit_prep(P, sIdx, sWave, exp=exp, late=True, mid=lambda: P("s_barrier"))
            base_regs(False)
    else:
        for s_ in range(5):
            dmaA(s_)
        P(f"s_setprio {prio['l']}")
        P("s_waitcnt vmcnt(16)")
        P("s_barrier")
        for s_ in range(17):
            left = (min(s_ + 4, 17) - (s_ + 1)) * 4
            P(f"s_waitcnt vmcnt({left})")
            P("s_barrier")
            if s_ + 5 < 18:
                dmaA(s_ + 5)
    P(f"""
    s_lshl_b32 s{sT}, s{sSB}, 1
    s_and_b32 s{sT2}, s{sMT}, 1
    s_add_u32 s{sT}, s{sT}, s{sT2}
    s_mul_i32 s{sCo}, s{sT}, {72 * 1024}
    s_lshr_b32 s{sT2}, s{sMT}, 1
    s_mul_i32 s{sT2}, s{sT2}, {36 * 1024}
    s_add_u32 s{sCo}, s{sCo}, s{sT2}
    s_add_u32 s{sCo}, s{sCo}, {WS_CF}
    s_mul_i32 s{sWo}, s{sT}, {36 * 1024}
    s_lshr_b32 s{sT2}, s{sMT}, 1
    s_mul_i32 s{sT2}, s{sT2}, {18 * 1024}
    s_add_u32 s{sWo}, s{sWo}, s{sT2}
    s_add_u32 s{sWo}, s{sWo}, {WS_WF}
    s_lshl_b32 s{sM}, s{sMT}, 12
    """)
    if crot:
        P(f"""
        s_add_u32 s{sCend}, s{sCo}, {9 * 4096}
        s_lshl_b32 s{sT3}, s{sRot}, 12
        s_add_u32 s{sCo}, s{sCo}, s{sT3}
        """)
    lp, dn = P.newlabel(pfx + "_hpoll"), P.newlabel(pfx + "_hdone")
    if rawb:
        P(f"""
        s_waitcnt vmcnt(0)
        s_barrier
        s_cmp_eq_u32 s{sW}, 4
        s_cbranch_scc0 {dn}
        s_and_b32 s{sT2}, s{sIdx}, {NREP - 1}
        s_lshl_b32 s{sT2}, s{sT2}, 12
        s_add_u32 s{sT}, s{sT2}, {WS_FLG + FLG_K1}
        s_lshl_b32 s{sT2}, s{sTB}, 6
        s_add_u32 s{sT2}, s{sT2}, {FLG_K1T - FLG_K1 - 36 * 16}
        v_add_u32 v9, s{sT2}, v{vL16}
        v_add_u32 v8, {FLG_PREP - FLG_K1}, v{vL16}
        v_cmp_le_u32 vcc, 36, v{vLane}
        v_cndmask_b32 v8, v8, v9, vcc
        s_mov_b32 exec_hi, 0xff
        """)
        P.L(lp)
        P(f"""
        buffer_load_dwordx4 v[12:15], v8, {ws}, s{sT} offen sc1
        s_waitcnt vmcnt(0)
        v_cmp_ne_u32 vcc, {flag}, v12
        v_cmp_ne_u32 s[{sOk}:{sOk+1}], {flag}, v13
        s_or_b64 s[{sBad}:{sBad+1}], vcc, s[{sOk}:{sOk+1}]
        v_cmp_ne_u32 vcc, {flag}, v14
        v_cmp_ne_u32 s[{sOk}:{sOk+1}], {flag}, v15
        s_or_b64 s[{sBad}:{sBad+1}], s[{sBad}:{sBad+1}], vcc
        s_or_b64 s[{sBad}:{sBad+1}], s[{sBad}:{sBad+1}], s[{sOk}:{sOk+1}]
        s_cbranch_scc0 {dn}
        s_sleep 4
        s_branch {lp}
        """)
        P.L(dn)
        P("s_mov_b64 exec, -1")
        out_phases(True)
        return hi[0]
    P("s_barrier")
    cf_dma(0)
    cf_dma(1)
    P("s_barrier")
    for c in (2, 3, 4):
        cf_dma(c)
    P(f"""
    s_cmp_eq_u32 s{sW}, 4
    s_cbranch_scc0 {dn}
    s_lshl_b32 s{sT}, s{sTB}, 6
    s_add_u32 s{sT}, s{sT}, {WS_FLG + FLG_HF}
    v_lshlrev_b32 v2, 2, v{vLane}
    """)
    if merged:
        P(f"""
        s_and_b32 s{sT2}, s{sIdx}, {NREP - 1}
        s_lshl_b32 s{sT2}, s{sT2}, 12
        s_add_u32 s{sT2}, s{sT2}, {FLG_K1T - FLG_HF - 64}
        v_add_u32 v3, s{sT2}, v2
        v_cmp_le_u32 vcc, 16, v{vLane}
        v_cndmask_b32 v2, v2, v3, vcc
        """)
    P(f"""
    s_mov_b32 exec_hi, 0
    s_mov_b32 exec_lo, {"0xffff01ff" if merged else "0x1ff"}
    """)
    P.L(lp)
    P(f"""
    buffer_load_dword v3, v2, {ws}, s{sT} offen sc1
    s_waitcnt vmcnt(0)
    v_cmp_ne_u32 vcc, {flag}, v3
    s_cbranch_vccz {dn}
    s_sleep 2
    s_branch {lp}
    """)
    P.L(dn)
    P("s_mov_b64 exec, -1")
    P("s_waitcnt vmcnt(0)")
    out_phases(True)
    return hi[0]
```

```python
from asmgen import *
from layout import *
import common
import struct


def f32(x):
    return "0x%08x" % struct.unpack("<I", struct.pack("<f", x))[0]


BUF = 20480
HALF = 10240


def emit_attention(P, sWG, pfx="att", end="s_endpgm", exp=(), sWave=None, sync=None, flag="1", flag_wave=0):
    V = Regs("v", 1)
    SA = V.alloc(16); SB = V.alloc(16); OA = V.alloc(16); OB = V.alloc(16)
    PA = V.alloc(8); PB = V.alloc(8)
    QLA = V.alloc(4); QLB = V.alloc(4); QHA = V.alloc(2); QHB = V.alloc(2)
    KL = V.alloc(4); KH = V.alloc(2); V0 = V.alloc(4); V1 = V.alloc(4)
    vL16 = V.alloc(); vKL = V.alloc(); vKH = V.alloc(); vV = V.alloc()
    vT = V.alloc(); vT2 = V.alloc(); vLane = 0
    vGq = V.alloc()
    vD = [V.alloc() for _ in range(5)]
    sHead, sQB, sW, sQG, sKH = 8, 9, 10, 11, 12
    sG0, sG1, sSt0, sSt1, sM, sIt, sAtt = 13, 14, 15, 16, 17, 18, 19
    sT, sT2, sG0i, sG1i = 20, 21, 22, 23
    sMask = 24
    sTile = 26
    sDuty, sSub = 36, 37
    sVm = 34
    srd = "s[4:7]"
    L = lambda n: f"{pfx}_{n}"

    if "attp3" in exp:
        P("s_setprio 3")
    P(f"""
    s_and_b32 s{sT}, s{sWG}, 7
    s_lshl_b32 s{sT}, s{sT}, 2
    s_lshr_b32 s{sT2}, s{sWG}, 3
    s_and_b32 s{sT2}, s{sT2}, 3
    s_add_u32 s{sHead}, s{sT}, s{sT2}
    s_lshr_b32 s{sQB}, s{sWG}, 5
    {"v_lshrrev_b32 v%d, 6, v0" % vT if sWave is None else ""}
    {"v_and_b32 v%d, 63, v0" % vLane if sWave is None else ""}
    {"v_readfirstlane_b32 s%d, v%d" % (sW, vT) if sWave is None else "s_mov_b32 s%d, s%d" % (sW, sWave)}
    v_lshlrev_b32 v{vL16}, 4, v{vLane}
    s_and_b32 s{sQG}, s{sW}, 3
    s_lshr_b32 s{sKH}, s{sW}, 2
    s_lshr_b32 s{sT}, s{sQG}, 1
    s_cmp_eq_u32 s{sT}, s{sKH}
    s_cselect_b32 s{sDuty}, 1, 0
    s_and_b32 s{sSub}, s{sQG}, 1
    s_mul_i32 s{sT}, s{sKH}, {HALF}
    v_add_u32 v{vKL}, s{sT}, v{vL16}
    v_and_b32 v{vT}, 31, v{vLane}
    v_lshlrev_b32 v{vKH}, 2, v{vT}
    v_lshrrev_b32 v{vT2}, 5, v{vLane}
    v_mul_u32_u24 v{vT2}, 18, v{vT2}
    v_add_u32 v{vT2}, v{vT2}, v{vT}
    v_lshlrev_b32 v{vV}, 4, v{vT2}
    v_add_u32 v{vV}, s{sT}, v{vV}
    s_lshl_b32 s{sTile}, s{sQB}, 3
    s_lshl_b32 s{sT2}, s{sQG}, 1
    s_add_u32 s{sTile}, s{sTile}, s{sT2}
    """)
    def qloads():
        P(f"""
        s_lshl_b32 s{sT}, s{sHead}, 16
        s_lshl_b32 s{sT2}, s{sTile}, 10
        s_add_u32 s{sT}, s{sT}, s{sT2}
        s_add_u32 s{sT}, s{sT}, {WS_QLO}
        buffer_load_dwordx4 {vr(QLA,4)}, v{vL16}, {srd}, s{sT} offen
        buffer_load_dwordx4 {vr(QLB,4)}, v{vL16}, {srd}, s{sT} offen offset:1024
        s_lshl_b32 s{sT}, s{sHead}, 13
        s_lshl_b32 s{sT2}, s{sTile}, 7
        s_add_u32 s{sT}, s{sT}, s{sT2}
        s_add_u32 s{sT}, s{sT}, {WS_QHI}
        buffer_load_dword v{QHA}, v{vKH}, {srd}, s{sT} offen
        buffer_load_dword v{QHB}, v{vKH}, {srd}, s{sT} offen offset:128
        s_add_u32 s{sT}, s{sTile}, s{sKH}
        s_lshl_b32 s{sT}, s{sT}, 7
        s_add_u32 s{sT}, s{sT}, {WS_G}
        buffer_load_dword v{vGq}, v{vKH}, {srd}, s{sT} offen
        """)

    if not sync:
        qloads()
    P(f"""
    s_lshl_b32 s{sT}, s{sHead}, 16
    s_lshl_b32 s{sT2}, s{sKH}, 15
    s_add_u32 s{sT}, s{sT}, s{sT2}
    s_add_u32 s27, s{sT}, {WS_KLO}
    s_lshl_b32 s{sT}, s{sHead}, 13
    s_lshl_b32 s{sT2}, s{sKH}, 12
    s_add_u32 s{sT}, s{sT}, s{sT2}
    s_add_u32 s28, s{sT}, {WS_KHI}
    s_mul_i32 s{sT}, s{sHead}, 288
    s_mul_i32 s{sT2}, s{sKH}, {64 * VT_GROUP}
    s_add_u32 s{sT}, s{sT}, s{sT2}
    s_add_u32 s29, s{sT}, {WS_VT}
    s_add_u32 s30, s27, 1024
    s_add_u32 s31, s28, 128
    s_cmp_eq_u32 s{sSub}, 0
    s_cselect_b32 s{sG0i}, s30, s29
    s_cselect_b32 s{sG1i}, s31, s29
    s_mov_b32 s30, {8 * VT_GROUP}
    s_cselect_b32 s{sSt0}, 4096, s30
    s_cselect_b32 s{sSt1}, 512, s30
    s_cselect_b64 vcc, -1, 0
    s_mul_i32 s{sM}, s{sKH}, {HALF}
    s_mul_i32 s{sT}, s{sSub}, 5120
    s_add_u32 s{sM}, s{sM}, s{sT}
    """)
    for u in range(5):
        P(f"""
        v_add_u32 v{SA}, {64 * u}, v{vLane}
        v_min_u32 v{SA}, 287, v{SA}
        v_mul_u32_u24 v{SA+1}, 3641, v{SA}
        v_lshrrev_b32 v{SA+1}, 16, v{SA+1}
        v_mul_u32_u24 v{SA+2}, {VT_HALF - 18 * 16}, v{SA+1}
        v_lshlrev_b32 v{SA}, 4, v{SA}
        v_add_u32 v{SA}, v{SA}, v{SA+2}
        v_subrev_u32 v{SA}, {(u & 3) * 1024}, v{SA}
        v_cndmask_b32 v{vD[u]}, v{SA}, v{vL16}, vcc
        """)
    P(f"""
    v_cmp_gt_u32 vcc, 32, v{vLane}
    v_mov_b32 v{QHA+1}, 0
    v_mov_b32 v{QHB+1}, 0
    v_mov_b32 v{KH+1}, 0x3f803f80
    s_mov_b32 s{sAtt}, 0
    s_mov_b32 s{sVm}, 0x3ffff
    s_mov_b32 s{sVm+1}, 0x3ffff
    """)

    if sync:
        sync(dict(sHead=sHead, sQB=sQB, sW=sW, sT=sT, sT2=sT2, vLane=vLane, vA=SB, vB=SB + 1, vC=SB + 2))
    if sync:
        qloads()

    def dma(par):
        skip = P.newlabel(pfx + "_nodma")
        P(f"""
        s_cmp_eq_u32 s{sDuty}, 0
        s_cbranch_scc1 {skip}
        s_add_u32 m0, s{sM}, {par * BUF}
        s_nop 0
        buffer_load_dwordx4 v{vD[0]}, {srd}, s{sG0} offen lds
        buffer_load_dwordx4 v{vD[1]}, {srd}, s{sG0} offen offset:1024 lds
        buffer_load_dwordx4 v{vD[2]}, {srd}, s{sG0} offen offset:2048 lds
        buffer_load_dwordx4 v{vD[3]}, {srd}, s{sG0} offen offset:3072 lds
        s_add_u32 m0, s{sM}, {par * BUF + 4096}
        s_add_u32 s{sG0}, s{sG0}, s{sSt0}
        buffer_load_dwordx4 v{vD[4]}, {srd}, s{sG1} offen lds
        s_add_u32 s{sG1}, s{sG1}, s{sSt1}
        """)
        P.L(skip)

    P.L(L("start"))
    P(f"""
    buffer_load_dwordx4 {vr(KL,4)}, v{vL16}, {srd}, s27 offen
    buffer_load_dword v{KH}, v{vKH}, {srd}, s28 offen
    s_mov_b32 s{sG0}, s{sG0i}
    s_mov_b32 s{sG1}, s{sG1i}
    """)
    dma(0)
    dma(1)
    P(f"""
    s_mul_i32 s{sT}, s{sKH}, {HALF}
    v_add_u32 v{vT2}, s{sT}, v{vKH}
    s_mov_b32 s{sIt}, 0
    v_cmp_gt_u32 vcc, 32, v{vLane}
    """)
    for r in range(8):
        P(f"v_mov_b32 v{PB + r}, 0")
    P(f"v_and_b32 v{vT}, 31, v{vLane}")
    P(f"v_cmp_eq_u32 s[{sMask}:{sMask+1}], 18, v{vT}")
    P(f"v_mov_b32 v{vT}, 0x3f803f80")
    for r in range(4):
        P(f"v_cndmask_b32 v{V0 + r}, 0, v{vT}, s[{sMask}:{sMask+1}]")
        P(f"v_cndmask_b32 v{V1 + r}, 0, v{vT}, s[{sMask}:{sMask+1}]")
    P(f"""
    v_cndmask_b32 v{QHA}, 0, v{QHA}, vcc
    v_cndmask_b32 v{QHB}, 0, v{QHB}, vcc
    v_mfma_f32_32x32x8bf16_1k {vr(SA,16)}, {vr(KH,2)}, {vr(QHA,2)}, 0
    v_mfma_f32_32x32x16_bf16 {vr(SA,16)}, {vr(KL,4)}, {vr(QLA,4)}, {vr(SA,16)}
    """)
    for r in range(16):
        P(f"v_mov_b32 v{OA + r}, 0")
        P(f"v_mov_b32 v{OB + r}, 0")
    P(f"""
    s_waitcnt vmcnt(5)
    s_barrier
    """)
    vKHl = vT2

    def valu_seq(S, Pk):
        seq = []
        e = lambda r: f"v_exp_f32 v{S + r}, v{S + r}"
        c = lambda k: f"v_cvt_pk_bf16_f32 v{Pk + k}, v{S + 2 * k}, v{S + 2 * k + 1}"
        seq += [e(0), e(1)]
        for k in range(7):
            seq += [e(2 * k + 2), c(k), e(2 * k + 3)]
        seq += [None, c(7)]
        return seq

    def phase(S, Pk, mf, extra):
        seq = valu_seq(S, Pk)
        pos = [0, 6, 12, 18]
        k = 0
        out = []
        for idx, ins in enumerate(seq):
            if k < 4 and idx == pos[k]:
                out += mf[k] if isinstance(mf[k], list) else [mf[k]]
                out += extra.get(k, [])
                k += 1
            if ins is None:
                out.append("s_nop 0")
            else:
                out.append(ins)
        for o in out:
            P(o)

    def qk(S, QH, QL):
        return [f"v_mfma_f32_32x32x8bf16_1k {vr(S,16)}, {vr(KH,2)}, {vr(QH,2)}, 0",
                f"v_mfma_f32_32x32x16_bf16 {vr(S,16)}, {vr(KL,4)}, {vr(QL,4)}, {vr(S,16)}"]

    def pv(O, Pk):
        return [f"v_mfma_f32_32x32x16_bf16 {vr(O,16)}, {vr(V0,4)}, {vr(Pk,4)}, {vr(O,16)}",
                f"v_mfma_f32_32x32x16_bf16 {vr(O,16)}, {vr(V1,4)}, {vr(Pk+4,4)}, {vr(O,16)}"]

    def step(par, t):
        a = qk(SB, QHB, QLB); b = pv(OB, PB)
        ex = {1: [f"ds_read_b32 v{KH}, v{vKHl} offset:{par * BUF + 4096 + t * 128}",
                  f"ds_read_b128 {vr(KL,4)}, v{vKL} offset:{par * BUF + t * 1024}"],
              3: [f"ds_read_b128 {vr(V0,4)}, v{vV} offset:{par * BUF + 5120 + 2 * t * 576}",
                  f"ds_read_b128 {vr(V1,4)}, v{vV} offset:{par * BUF + 5120 + (2 * t + 1) * 576}"]}
        if "nozero" not in exp:
            ex[3] = [f"s_mov_b64 exec, s[{sVm}:{sVm+1}]"] + ex[3] + ["s_mov_b64 exec, -1"]
        if "noread" in exp:
            ex = {}
        phase(SA, PA, [a[0], a[1], b[0], b[1]], ex)
        a = qk(SA, QHA, QLA); b = pv(OA, PA)
        phase(SB, PB, [["s_waitcnt lgkmcnt(2)", a[0]], a[1], ["s_waitcnt lgkmcnt(0)", b[0]], b[1]], {})

    common.mark(P, 0)
    prio_of = lambda c, t: 3 - t
    if 'attp1' in exp:
        prio_of = lambda c, t: max(1, 3 - t)
    if 'attp2' in exp:
        prio_of = lambda c, t: (3, 2, 2, 1)[t]
    for c in range(8):
        par = c & 1
        for t in range(4):
            if "noprio" not in exp:
                P(f"s_setprio {prio_of(c, t)}")
            step(par, t)
        P("s_waitcnt vmcnt(0) lgkmcnt(0)")
        if "nobar" not in exp:
            P("s_barrier")
        if c < 6 and "nodma" not in exp:
            dma(par)
        common.mark(P, 4 + c)
    common.mark(P, 1)
    for m in pv(OB, PB):
        P(m)

    XL = 24576
    P(f"""
    s_lshl_b32 s{sT}, s{sQG}, 9
    s_lshl_b32 s{sT2}, s{sKH}, 2
    s_add_u32 s{sT}, s{sT}, s{sT2}
    s_add_u32 s{sT}, s{sT}, {XL}
    v_and_b32 v{vT}, 31, v{vLane}
    v_lshlrev_b32 v{vT}, 3, v{vT}
    v_add_u32 v{vT}, s{sT}, v{vT}
    s_mul_i32 s{sT}, s{sW}, 3072
    v_add_u32 v{SA}, s{sT}, v{vL16}
    s_xor_b32 s{sT2}, s{sW}, 4
    s_mul_i32 s{sT2}, s{sT2}, 3072
    v_add_u32 v{SA+1}, s{sT2}, v{vL16}
    s_mov_b32 exec_hi, 0
    ds_write_b32 v{vT}, v{OA+10}
    ds_write_b32 v{vT}, v{OB+10} offset:256
    s_mov_b32 exec_hi, -1
    s_cmp_eq_u32 s{sKH}, 0
    s_cbranch_scc0 {L('send_a')}
    ds_write_b128 v{SA}, {vr(OB,4)}
    ds_write_b128 v{SA}, {vr(OB+4,4)} offset:1024
    ds_write_b128 v{SA}, {vr(OB+8,4)} offset:2048
    s_branch {L('sent')}
    """)
    P.L(L("send_a"))
    P(f"""
    ds_write_b128 v{SA}, {vr(OA,4)}
    ds_write_b128 v{SA}, {vr(OA+4,4)} offset:1024
    ds_write_b128 v{SA}, {vr(OA+8,4)} offset:2048
    s_waitcnt lgkmcnt(0)
    """)
    for r in range(12):
        P(f"v_mov_b32 v{OA + r}, v{OB + r}")
    P.L(L("sent"))
    P(f"""
    s_waitcnt lgkmcnt(0)
    s_barrier
    ds_read_b128 {vr(SB,4)}, v{SA+1}
    ds_read_b128 {vr(SB+4,4)}, v{SA+1} offset:1024
    ds_read_b128 {vr(SB+8,4)}, v{SA+1} offset:2048
    v_lshlrev_b32 v{vT}, 3, v{vLane}
    ds_read_b64 {vr(PA,2)}, v{vT} offset:{XL}
    ds_read_b64 {vr(PA+2,2)}, v{vT} offset:{XL + 512}
    ds_read_b64 {vr(PB,2)}, v{vT} offset:{XL + 1024}
    ds_read_b64 {vr(PB+2,2)}, v{vT} offset:{XL + 1536}
    """)
    for r in range(11):
        P(f"v_add_f32 v{OA + r}, v{OA + r}, v{SB + r}")
    P(f"""
    v_add_f32 v{PA}, v{PA}, v{PA+1}
    v_add_f32 v{PA+2}, v{PA+2}, v{PA+3}
    v_add_f32 v{PB}, v{PB}, v{PB+1}
    v_add_f32 v{PB+2}, v{PB+2}, v{PB+3}
    s_cmp_eq_u32 s{sAtt}, 1
    s_cbranch_scc1 {L('final')}
    v_mov_b32 v{PA+6}, {f32(2.0 ** -64)}
    v_mov_b32 v{PA+7}, {f32(2.0 ** 64)}
    s_mov_b64 s[{sMask}:{sMask+1}], exec
    """)
    for r in (PA, PA + 2, PB, PB + 2):
        P(f"""
        v_cmp_ge_f32 vcc, v{r}, v{PA+6}
        s_and_b64 s[{sMask}:{sMask+1}], s[{sMask}:{sMask+1}], vcc
        v_cmp_le_f32 vcc, v{r}, v{PA+7}
        s_and_b64 s[{sMask}:{sMask+1}], s[{sMask}:{sMask+1}], vcc
        """)
    P(f"""
    s_andn2_b64 s[{sMask}:{sMask+1}], exec, s[{sMask}:{sMask+1}]
    s_cbranch_scc1 {L('maxpass')}
    """)
    P.L(L("final"))
    common.mark(P, 2)
    P(f"""
    v_mov_b32 v{SB}, v{OA+10}
    v_mov_b32 v{SB+1}, v{OA+10}
    s_add_u32 s{sTile}, s{sTile}, s{sKH}
    s_mul_i32 s{sT}, s{sTile}, {36 * 1024}
    v_permlane32_swap_b32 v{SB}, v{SB+1}
    s_add_u32 s{sT}, s{sT}, {WS_OF}
    v_rcp_f32 v{SB}, v{SB}
    {"v_mov_b32 v%d, 1.0" % (SB + 1) if "oldtail" in exp else "v_sub_f32 v%d, 1.0, v%d" % (SB + 1, vGq)}
    s_lshl_b32 s{sT2}, s{sHead}, 10
    s_add_u32 s{sT2}, s{sT2}, s{sT}
    v_mul_f32 v{SB}, v{SB}, v{SB+1}
    """)
    for r in range(10):
        P(f"v_mul_f32 v{OA + r}, v{OA + r}, v{SB}")
    for k in range(5):
        P(f"v_cvt_pk_bf16_f32 v{PA + k}, v{OA + 2 * k}, v{OA + 2 * k + 1}")
    P(f"""
    buffer_store_dwordx4 {vr(PA,4)}, v{vL16}, {srd}, s{sT2} offen sc1
    s_lshr_b32 s{sT2}, s{sHead}, 3
    s_add_u32 s{sT2}, s{sT2}, 32
    s_lshl_b32 s{sT2}, s{sT2}, 10
    s_add_u32 s{sT}, s{sT}, s{sT2}
    s_lshr_b32 s{sT2}, s{sHead}, 2
    s_and_b32 s{sT2}, s{sT2}, 1
    s_lshl_b32 s{sT2}, s{sT2}, 9
    s_add_u32 s{sT}, s{sT}, s{sT2}
    s_and_b32 s{sT2}, s{sHead}, 3
    s_lshl_b32 s{sT2}, s{sT2}, 2
    s_add_u32 s{sT}, s{sT}, s{sT2}
    s_mov_b32 exec_hi, 0
    buffer_store_dword v{PA+4}, v{vL16}, {srd}, s{sT} offen sc1
    s_waitcnt vmcnt(0)
    s_barrier
    s_cmp_eq_u32 s{sW}, {flag_wave}
    s_cbranch_scc0 {L('noflag')}
    s_lshl_b32 s{sT}, s{sQB}, 7
    s_lshl_b32 s{sT2}, s{sHead}, 2
    s_add_u32 s{sT}, s{sT}, s{sT2}
    s_add_u32 s{sT}, s{sT}, {WS_FLG + FLG_ATT}
    v_mov_b32 v{PA}, {flag}
    v_mov_b32 v{PA+1}, 0
    s_mov_b32 exec_lo, 1
    buffer_store_dword v{PA}, v{PA+1}, {srd}, s{sT} offen sc1
    """)
    P.L(L("noflag"))
    P(end)

    P.L(L("maxpass"))
    P(f"""
    s_barrier
    s_mov_b32 s{sAtt}, 1
    s_mov_b32 s{sIt}, 0
    s_mov_b32 s{sG0}, s27
    s_mov_b32 s{sG1}, s28
    v_mov_b32 v{QHA+1}, 0
    v_mov_b32 v{QHB+1}, 0
    v_mov_b32 v{PA}, 0xff800000
    v_mov_b32 v{PB}, 0xff800000
    """)
    P.L(L("maxloop"))
    P(f"""
    buffer_load_dwordx4 {vr(KL,4)}, v{vL16}, {srd}, s{sG0} offen
    buffer_load_dword v{KH}, v{vKH}, {srd}, s{sG1} offen
    s_add_u32 s{sG0}, s{sG0}, 1024
    s_add_u32 s{sG1}, s{sG1}, 128
    """)
    for m in qk(SA, QHA, QLA) + qk(SB, QHB, QLB):
        P(m)
    for S, M in ((SA, PA), (SB, PB)):
        for r in range(0, 16, 2):
            P(f"v_max3_f32 v{M}, v{S + r}, v{S + r + 1}, v{M}")
    P(f"""
    s_add_u32 s{sIt}, s{sIt}, 1
    s_cmp_lt_u32 s{sIt}, 32
    s_cbranch_scc1 {L('maxloop')}
    """)
    for M in (PA, PB):
        P(f"""
        v_mov_b32 v{M+1}, v{M}
        v_mov_b32 v{M+2}, v{M}
        v_permlane32_swap_b32 v{M+1}, v{M+2}
        v_max3_f32 v{M}, v{M}, v{M+1}, v{M+2}
        """)
    P(f"""
    s_lshl_b32 s{sT}, s{sW}, 9
    v_lshlrev_b32 v{vT}, 3, v{vLane}
    v_add_u32 v{SA}, s{sT}, v{vT}
    s_xor_b32 s{sT}, s{sW}, 4
    s_lshl_b32 s{sT}, s{sT}, 9
    v_add_u32 v{SA+1}, s{sT}, v{vT}
    v_mov_b32 v{PA+1}, v{PB}
    ds_write_b64 v{SA}, {vr(PA,2)}
    s_waitcnt lgkmcnt(0)
    s_barrier
    ds_read_b64 {vr(PA+2,2)}, v{SA+1}
    v_cmp_gt_u32 vcc, 32, v{vLane}
    v_max_f32 v{PA}, v{PA}, v{PA+2}
    v_max_f32 v{PB}, v{PB}, v{PA+3}
    """)
    for M, QH in ((PA, QHA), (PB, QHB)):
        P(f"""
        v_sub_f32 v{M}, 0, v{M}
        v_and_b32 v{M+1}, 0xffff0000, v{M}
        v_sub_f32 v{M+2}, v{M}, v{M+1}
        v_and_b32 v{M+3}, 0xffff0000, v{M+2}
        v_sub_f32 v{M+4}, v{M+2}, v{M+3}
        v_lshrrev_b32 v{M+5}, 16, v{M+1}
        v_or_b32 v{M+5}, v{M+5}, v{M+3}
        v_lshrrev_b32 v{M+6}, 16, v{M+4}
        v_cndmask_b32 v{QH+1}, v{M+6}, v{M+5}, vcc
        """)
    P(f"""
    s_barrier
    s_branch {L('start')}
    """)
    return V.hi
```

```python
import os
import sys
from common import *
import common
from k1 import emit_k1, K1_LDS
from att import emit_attention
from svc import emit_service, SVC_LDS
import svc_v1

KNAME = "gated_mix__ssm_conv_s5__softmax_full_mha__prompt_kernel"

def k_k1(timing=False, name="k1_kernel", exp=()):
    P = Prog()
    P.L(name)
    if timing:
        timing_start(P, 84, 4); P("v_lshrrev_b32 v166, 6, v0")
    ws_srd(P)
    P("s_cmp_ge_u32 s2, 256\ns_cbranch_scc1 k1_exit")
    nv = emit_k1(P, 2, end="s_branch tk_exit" if timing else "s_endpgm", exp=exp, end_c="s_branch tc_exit" if timing else None)
    P.L("k1_exit")
    P("s_endpgm")
    if timing and "dbgt" in exp:
        dbg_exit(P, "tc_exit", -512, [(0, 0, {0: "start", 1: "end"}), (200, 0, {2: "end"})], 166)
        dbg_exit(P, "tk_exit", -512, [], 166); nv = 168
        common.TIMING = False
    elif timing:
        timing_exit(P, "tc_exit", slot=3, vw=166, wgshift=11)
        common.MK0, common.NMARK = 84, 4
        timing_exit(P, "tk_exit", slot=3, vw=166, wgshift=11); nv = 168
        common.TIMING = False
    return name, P.finalize([name]), nv, (name, 256, K1_LDS, 768)

def k_att(timing=False):
    P = Prog(); name = "att_kernel"
    P.L(name)
    if timing:
        timing_start(P); P("v_lshrrev_b32 v127, 6, v0")
    ws_srd(P)
    P("s_cmp_ge_u32 s2, 256\ns_cbranch_scc1 att_exit")
    nv = emit_attention(P, 2, end="s_branch ta_exit" if timing else "s_endpgm")
    P.L("att_exit")
    P("s_endpgm")
    if timing:
        timing_exit(P, "ta_exit", slot=0, vw=127); nv = 128
        common.TIMING = False
    return name, P.finalize([name]), nv, (name, 256, 40960, 512)

def k_svc(timing=False, exp=()):
    P = Prog(); name = "svc_kernel"
    P.L(name)
    if timing:
        timing_start(P); P("v_lshrrev_b32 v127, 6, v0")
    ws_srd(P)
    P("s_cmp_ge_u32 s2, 144\ns_cbranch_scc1 svc_exit")
    nv = emit_service(P, 2, end="s_branch ts_exit" if timing else "s_endpgm", exp=exp)
    P.L("svc_exit")
    P("s_endpgm")
    if timing:
        timing_exit(P, "ts_exit", slot=1, vw=127); nv = 128
        common.TIMING = False
    return name, P.finalize([name]), nv, (name, 144, SVC_LDS, 512)

def k_l2(timing=False, exp=()):
    P = Prog(); name = "l2_kernel"
    P.L(name)
    if timing:
        timing_start(P); P("v_lshrrev_b32 v127, 6, v0")
    ws_srd(P)
    e = "s_branch tl_exit" if timing else "s_endpgm"
    if "lfirst" in exp:
        P("""
        s_cmp_ge_u32 s2, 400
        s_cbranch_scc1 l2_exit
        s_cmp_lt_u32 s2, 256
        s_cbranch_scc1 l2_att
        s_sub_u32 s3, s2, 256
        """)
        nv = emit_service(P, 3, end=e, exp=exp)
        P.L("l2_att")
        nv = max(nv, emit_attention(P, 2, end=e, exp=exp))
    else:
        P("""
        s_cmp_ge_u32 s2, 400
        s_cbranch_scc1 l2_exit
        s_cmp_ge_u32 s2, 256
        s_cbranch_scc1 l2_svc
        """)
        nv = emit_attention(P, 2, end=e, exp=exp)
        P.L("l2_svc")
        P("s_sub_u32 s3, s2, 256")
        nv = max(nv, (svc_v1.emit_service if "oldtail" in exp else emit_service)(P, 3, end="s_branch ts_exit" if timing and "dbgt" in exp else e, exp=exp))
    P.L("l2_exit")
    P("s_endpgm")
    if timing and "dbgt" in exp:
        dbg_exit(P, "tl_exit", 0, [(int(w), 0, {3 + i: "end"}) for i, w in enumerate(os.environ["DWG"].split(","))] if "DWG" in os.environ else [(0, 0, {3: "start", 4: 0, 5: 1, 6: "end"}), (200, 0, {7: "end"})], 127)
        dbg_exit(P, "ts_exit", 0, [(256 + 70, 0, {8: 0, 9: 4, 10: 6, 11: 1, 12: 2, 13: 3, 14: 10, 15: "end"})], 127); nv = 128
        common.TIMING = False
    elif timing:
        timing_exit(P, "tl_exit", slot=0, vw=127); nv = 128
        common.TIMING = False
    return name, P.finalize([name]), nv, (name, 400, SVC_LDS, 512)

def nonce_fetch(P, srd, vN, create):
    P(f"""
    s_load_dwordx2 s[{srd}:{srd+1}], s[0:1], {KA_DBG}
    s_mov_b32 s{srd+2}, 256
    s_mov_b32 s{srd+3}, 0x00020000
    """)
    if create:
        rd, dn = P.newlabel("tag_rd"), P.newlabel("tag_dn")
        P(f"""
        s_cmp_eq_u32 s2, 0
        s_cbranch_scc0 {rd}
        s_memrealtime s[48:49]
        s_waitcnt lgkmcnt(0)
        s_or_b32 s48, s48, 1
        v_mov_b32 v{vN}, s48
        s_mov_b64 exec, 1
        buffer_store_dword v{vN}, off, s[{srd}:{srd+3}], 0 sc1
        s_mov_b64 exec, -1
        s_branch {dn}
        """)
        P.L(rd)
        P(f"buffer_load_dword v{vN}, off, s[{srd}:{srd+3}], 0 sc1")
        P.L(dn)
    else:
        P(f"buffer_load_dword v{vN}, off, s[{srd}:{srd+3}], 0 sc1")


def nonce_wait(P, srd, vN, sN):
    lp, ok = P.newlabel("tag_lp"), P.newlabel("tag_ok")
    P.L(lp)
    P(f"""
    s_waitcnt vmcnt(0)
    v_readfirstlane_b32 s{sN}, v{vN}
    s_cmp_lg_u32 s{sN}, 0
    s_cbranch_scc1 {ok}
    s_sleep 2
    buffer_load_dword v{vN}, off, s[{srd}:{srd+3}], 0 sc1
    s_branch {lp}
    """)
    P.L(ok)


def k_m1(timing=False, exp=()):
    from k1m import emit_k1_phase
    from prepm import emit_prep
    P = Prog(); name = KNAME
    sNonce, sWave, sFlag, vN = 50, 51, 49, 126
    P.L(name)
    if timing:
        timing_start(P); P("v_lshrrev_b32 v127, 6, v0")
    ws_srd(P)
    P(f"""
    v_lshrrev_b32 v1, 6, v0
    v_and_b32 v0, 63, v0
    v_readfirstlane_b32 s{sWave}, v1
    s_cmp_ge_u32 s2, 400
    s_cbranch_scc1 m1_exit
    s_cmp_ge_u32 s2, 256
    s_cbranch_scc1 m1_svc
    s_setprio 3
    s_cmp_eq_u32 s{sWave}, 4
    s_cbranch_scc0 m1_notag
    """)
    nonce_fetch(P, 44, vN, True)
    P.L("m1_notag")
    e = "s_branch tl_exit" if timing else "s_endpgm"
    GO, ksleep = 9, 4
    for x in exp:
        if x.startswith("ksleep="): ksleep = int(x[7:])
    for x in exp:
        if x.startswith("go="): GO = int(x[3:])

    def hook(b):
        if b == -1:
            sk, lp = P.newlabel("m1_tag"), P.newlabel("m1_taglp")
            P(f"""
            s_cmp_eq_u32 s{sWave}, 4
            s_cbranch_scc0 {sk}
            v_readfirstlane_b32 s{sNonce}, v{vN}
            s_cmp_lg_u32 s{sNonce}, 0
            s_cbranch_scc1 {sk}
            s_load_dwordx2 s[44:45], s[0:1], {KA_DBG}
            s_mov_b32 s46, 256
            s_mov_b32 s47, 0x00020000
            """)
            P.L(lp)
            P(f"""
            s_sleep 2
            buffer_load_dword v{vN}, off, s[44:47], 0 sc1
            s_waitcnt vmcnt(0)
            v_readfirstlane_b32 s{sNonce}, v{vN}
            s_cmp_eq_u32 s{sNonce}, 0
            s_cbranch_scc1 {lp}
            """)
            P.L(sk)
        if b == GO:
            sk = P.newlabel("m1_go")
            P(f"""
            s_cmp_eq_u32 s{sWave}, 4
            s_cbranch_scc0 {sk}
            s_cmp_lt_u32 s2, 144
            s_cbranch_scc0 {sk}
            v_mov_b32 v92, s{sNonce}
            v_mov_b32 v93, s{sNonce}
            v_mov_b32 v94, s{sNonce}
            v_mov_b32 v95, s{sNonce}
            s_lshl_b32 s42, s2, 6
            s_add_u32 s42, s42, {WS_FLG + FLG_GO}
            s_mov_b64 exec, 1
            buffer_store_dwordx4 v[92:95], off, s[4:7], s42 sc1
            s_mov_b64 exec, -1
            """)
            P.L(sk)

    nk = emit_k1_phase(P, 2, sWave, "m1_k1done", exp=exp, hook=hook)
    P.L("m1_k1done")
    P(f"""
    s_lshl_b32 s{sFlag}, s25, 6
    s_lshl_b32 s33, s24, 2
    s_add_u32 s{sFlag}, s{sFlag}, s33
    s_lshl_b32 s48, s24, 6
    s_lshl_b32 s33, s25, 2
    s_add_u32 s48, s48, s33
    s_add_u32 s48, s48, {FLG_K1T - FLG_K1}
    """)

    def sync(r):
        sHead, sQB, sW, sT, sT2, ln, vA, vB, vC = (r[k] for k in ("sHead", "sQB", "sW", "sT", "sT2", "vLane", "vA", "vB", "vC"))
        sK, sQ, sV1, sV2 = 38, 39, 40, 41
        vD = vC + 1 + ((vC + 1) & 1)
        w0a, w0b = P.newlabel("m1_w0a"), P.newlabel("m1_w0b")
        P(f"""
        s_lshr_b32 s{sT}, s{sHead}, 1
        s_add_u32 s{sT}, s{sT}, 16
        s_mul_i32 s{sK}, s{sT}, 21846
        s_lshr_b32 s{sK}, s{sK}, 16
        s_mul_i32 s{sT}, s{sHead}, 18
        s_lshr_b32 s{sV1}, s{sT}, 7
        s_add_u32 s{sV1}, s{sV1}, 11
        s_add_u32 s{sT}, s{sT}, 17
        s_lshr_b32 s{sV2}, s{sT}, 7
        s_add_u32 s{sV2}, s{sV2}, 11
        s_lshl_b32 s{sK}, s{sK}, 6
        s_lshl_b32 s{sV1}, s{sV1}, 6
        s_lshl_b32 s{sV2}, s{sV2}, 6
        s_lshl_b32 s{sQ}, s{sQB}, 7
        s_add_u32 s{sQ}, s{sQ}, {FLG_K1T - FLG_K1 - 24 * 8}
        v_and_b32 v{vA}, 7, v{ln}
        v_lshlrev_b32 v{vA}, 3, v{vA}
        v_mov_b32 v{vB}, s{sK}
        v_mov_b32 v{vC}, s{sV1}
        v_cmp_le_u32 vcc, 8, v{ln}
        v_cndmask_b32 v{vB}, v{vB}, v{vC}, vcc
        v_mov_b32 v{vC}, s{sV2}
        v_cmp_le_u32 vcc, 16, v{ln}
        v_cndmask_b32 v{vB}, v{vB}, v{vC}, vcc
        v_add_u32 v{vA}, v{vA}, v{vB}
        v_lshlrev_b32 v{vB}, 3, v{ln}
        v_add_u32 v{vB}, s{sQ}, v{vB}
        v_cmp_le_u32 vcc, 24, v{ln}
        v_cndmask_b32 v{vA}, v{vA}, v{vB}, vcc
        v_and_b32 v{vB}, 15, v{ln}
        v_lshlrev_b32 v{vB}, 12, v{vB}
        v_mov_b32 v{vC}, s{sFlag}
        v_mov_b32 v{vD}, s48
        v_cmp_le_u32 vcc, 16, v{ln}
        v_cndmask_b32 v{vC}, v{vC}, v{vD}, vcc
        v_add_u32 v{vB}, v{vB}, v{vC}
        s_waitcnt vmcnt(0)
        s_barrier
        """)
        common.mark(P, 14)
        lp = P.newlabel("m1_poll")
        P(f"""
        s_cmp_eq_u32 s{sW}, 4
        s_cbranch_scc0 {w0b}
        v_mov_b32 v{vC}, s{sNonce}
        s_mov_b32 s{sT}, {WS_FLG + FLG_K1}
        s_mov_b32 exec_hi, 0
        buffer_store_dword v{vC}, v{vB}, s[4:7], s{sT} offen sc1
        s_and_b32 s{sT2}, s2, {NREP - 1}
        s_lshl_b32 s{sT2}, s{sT2}, 12
        s_add_u32 s{sT}, s{sT}, s{sT2}
        s_mov_b32 exec_hi, 0xff
        """)
        depth = 1
        for x in exp:
            if x.startswith("kpipe="): depth = int(x[6:])
        if depth == 1:
            P.L(lp)
            P(f"""
            buffer_load_dwordx2 v[{vD}:{vD+1}], v{vA}, s[4:7], s{sT} offen sc1
            s_waitcnt vmcnt(0)
            v_cmp_ne_u32 vcc, s{sNonce}, v{vD}
            v_cmp_ne_u32 s[{sK}:{sK+1}], s{sNonce}, v{vD+1}
            s_or_b64 vcc, vcc, s[{sK}:{sK+1}]
            s_cbranch_scc0 {w0b}
            s_sleep {ksleep}
            s_branch {lp}
            """)
        else:
            for k in range(depth - 1):
                P(f"buffer_load_dwordx2 v[{vD+2*k}:{vD+2*k+1}], v{vA}, s[4:7], s{sT} offen sc1")
                P(f"s_sleep {ksleep}")
            P.L(lp)
            for k in range(depth):
                n = (k + depth - 1) % depth
                P(f"""
                buffer_load_dwordx2 v[{vD+2*n}:{vD+2*n+1}], v{vA}, s[4:7], s{sT} offen sc1
                s_waitcnt vmcnt({depth - 1})
                v_cmp_ne_u32 vcc, s{sNonce}, v{vD+2*k}
                v_cmp_ne_u32 s[{sK}:{sK+1}], s{sNonce}, v{vD+2*k+1}
                s_or_b64 vcc, vcc, s[{sK}:{sK+1}]
                s_cbranch_scc0 {w0b}
                s_sleep {ksleep}
                """)
            P(f"s_branch {lp}")
        P.L(w0b)
        P("s_mov_b64 exec, -1")
        P("s_barrier")
        common.mark(P, 15)

    nv = emit_attention(P, 2, end=e, exp=[x for x in exp if x != "attp3"], sWave=sWave, sync=sync, flag=f"s{sNonce}", flag_wave=4)
    P.L("m1_svc")
    P("s_sub_u32 s3, s2, 256")
    if "nosvc" in exp: P("s_branch m1_exit")
    if "prepp" in exp: P("s_setprio 3")
    rawb = "rawb" in exp
    npv = emit_prep(P, 3, sWave, exp=exp) if not rawb else 80
    if "pmarks" in exp: common.mark(P, 6)
    t0, t1 = P.newlabel("m1_s0"), P.newlabel("m1_s1")
    P(f"""
    s_cmp_eq_u32 s{sWave}, 7
    s_cbranch_scc0 {t0}
    """)
    nonce_fetch(P, 84, 1, False)
    nonce_wait(P, 84, 1, sNonce)
    P(f"""
    v_mov_b32 v2, 65536
    ds_write_b32 v2, v1
    """)
    P.L(t0)
    P(f"""
    s_waitcnt vmcnt(0) lgkmcnt(0)
    s_barrier
    v_mov_b32 v2, 65536
    ds_read_b32 v1, v2
    s_waitcnt lgkmcnt(0)
    v_readfirstlane_b32 s{sNonce}, v1
    s_cmp_eq_u32 s{sWave}, {7 if not rawb else 99}
    s_cbranch_scc0 {t1}
    s_lshl_b32 s8, s3, 2
    s_add_u32 s8, s8, {WS_FLG + FLG_PREP}
    v_lshlrev_b32 v2, 12, v0
    s_mov_b64 exec, 0xffff
    buffer_store_dword v1, v2, s[4:7], s8 offen sc1
    s_mov_b64 exec, -1
    """)
    P.L(t1)
    if "pmarks" in exp: common.mark(P, 5)
    nv = max(nv, nk, npv, vN + 1, emit_service(P, 3, end=e, exp=exp, sWave=sWave, sNonce=sNonce))
    P.L("m1_exit")
    P("s_endpgm")
    if timing and "dbgt" in exp:
        dbg_exit(P, "tl_exit", 0, [(1, 0, {1: "start", 2: 12, 3: 13, 4: 14, 5: 15, 6: 0, 7: 1, 8: "end"}), (200, 0, {9: "start", 10: "end"}),
                                   (256 + 70, 0, {11: 0, 12: 8, 13: 2, 14: 3, 15: "end"})], 127); nv = 128
        common.TIMING = False
    elif timing:
        timing_exit(P, "tl_exit", slot=0, vw=127); nv = 128
        common.TIMING = False
    return name, P.finalize([name]), nv, (name, 400, SVC_LDS, 512)


def k_empty():
    P = Prog(); name = "nop_kernel"
    P.L(name)
    P("s_endpgm")
    return name, P.finalize([name]), 8, (name, 1, 0, 64)

def assemble(ks, order=None):
    txt = launch_text([ks[i][3] for i in order] if order else [k[3] for k in ks])
    if len(ks) == 1 and ks[0][0] == KNAME:
        txt = "; @launch grid=(%d,1,1) block=(%d,1,1) lds=%d\n" % (ks[0][3][1], ks[0][3][3], ks[0][3][2])
    txt += '.amdgcn_target "amdgcn-amd-amdhsa--gfx950"\n.text\n'
    for name, body, nv, _ in ks:
        txt += kernel_header(name) + body
    txt += '.section .rodata,"a"\n.p2align 6\n'
    for name, body, nv, _ in ks:
        assert nv <= 256
        txt += kernel_desc(name, nv)
    return txt

def build(mode="sep", timing=False, exp=()):
    common.TIMING = False
    if "dbgt" in exp:
        timing = True
        common.REAL = True
    if mode == "m2":
        ks = [k_k1(timing, exp=exp), k_l2(timing, exp)]
    elif mode == "m1":
        ks = [k_m1(timing, exp)]
    elif mode == "k1":
        ks = [k_k1(timing, exp=exp)]
    for e in exp:
        if e.startswith("k1st=") or e.startswith("outst="):
            key, mods = e.split("=")
            mods = " " + mods.replace("_", " ")
            for i, (name, body, nv, l) in enumerate(ks):
                out = []
                for ln in body.split("\n"):
                    t = ln.strip()
                    if t.startswith("buffer_store") and "sc1" not in t:
                        if (key == "k1st" and name == "k1_kernel" and "s98" not in t) or (key == "outst" and name in ("l2_kernel", KNAME) and "s[40:43]" in t):
                            ln = ln + mods
                    out.append(ln)
                ks[i] = (name, "\n".join(out), nv, l)
    order = None
    for e in exp:
        if e.startswith("order="):
            ks.append(k_empty())
            order = [int(c) if c != "e" else len(ks) - 1 for c in e[6:]]
            if "e" not in e[6:]:
                ks.pop()
    print("vgprs", [(k[0], k[2]) for k in ks])
    return assemble(ks, order)

if __name__ == "__main__":
    mode = sys.argv[1] if len(sys.argv) > 1 else "sep"
    t = build(mode, True)
    open("out/all.s", "w").write(t)
    print(len(t))
```

```python
from asmgen import *
from layout import *
import common
import struct
from prepk import Prep, srd_from_kernarg


def f32(x):
    return "0x%08x" % struct.unpack("<I", struct.pack("<f", x))[0]


NST = 5
PRE = 2
LA = 3
STAGE = 32768
K1_LDS = NST * STAGE


class Queue:
    def __init__(self, P, q=()):
        self.P, self.q = P, list(q)

    def copy(self):
        return Queue(self.P, self.q)

    def add(self, tag, n):
        self.q += [tag] * n

    def wait(self, tag):
        idx = max(i for i, e in enumerate(self.q) if e == tag)
        self.P(f"s_waitcnt vmcnt({len(self.q) - 1 - idx})")


def emit_k1(P, sWG, pfx="k1", end="s_endpgm", exp=(), end_c=None):
    XE = 6
    ROT = (2, 1)
    wmask = "k1wm" in exp
    for e in exp:
        if e.startswith("k1xe="): XE = int(e[5:])
        if e.startswith("k1rot="): ROT = tuple(int(x) for x in e[6:].split("_"))
    noprep = "k1noprep" in exp
    vT = list(range(1, 9))
    V = Regs("v", 9)
    ACC = [[V.alloc(16) for _ in range(2)] for _ in range(2)]
    XF = [[V.alloc(4) for _ in range(2)] for _ in range(2)]
    WF = [[V.alloc(4) for _ in range(2)] for _ in range(2)]
    vXR = [V.alloc() for _ in range(4)]
    vWR = [V.alloc() for _ in range(2)]
    vXR2 = [V.alloc() for _ in range(4)]
    vWR2 = [V.alloc() for _ in range(2)]
    vXR3 = [V.alloc() for _ in range(4)]
    vWR3 = [V.alloc() for _ in range(2)]
    vD = [9, 10, 11, 12]
    VX = Regs("v", 13)
    vXA = VX.alloc(); vXT = VX.alloc(); XR = VX.alloc(4)
    VW = Regs("v", 13)
    vGA = VW.alloc(); vGO = VW.alloc()
    GX = [VW.alloc(4) for _ in range(9)]; GW = [VW.alloc(4) for _ in range(9)]
    vLane = 0
    sX, sW_, sD, sGW = 8, 12, 16, 20
    sTB, sFG, sWv, sWM, sWN, sM, sOff, sStep, sCol = 24, 25, 26, 27, 28, 29, 30, 31, 32
    sT, sT2, sT3, sIsV, sPB = 33, 34, 35, 36, 37
    sWrap, sRot, sEm = 38, 39, 40
    sLd = 44
    L = lambda n: f"{pfx}_{n}"
    ws = "s[4:7]"
    t0, t1, t2, t3, t4, t5 = vT[:6]

    P(f"""
    s_load_dwordx2 s[{sX}:{sX+1}], s[0:1], {KA_AX}
    s_load_dwordx2 s[{sW_}:{sW_+1}], s[0:1], {KA_WQKV}
    v_lshrrev_b32 v{t0}, 6, v0
    v_and_b32 v{vLane}, 63, v0
    v_readfirstlane_b32 s{sWv}, v{t0}
    s_and_b32 s{sT}, s{sWG}, 7
    s_lshr_b32 s{sT2}, s{sWG}, 3
    s_and_b32 s{sTB}, s{sT}, 1
    s_lshl_b32 s{sTB}, s{sTB}, 3
    s_and_b32 s{sT3}, s{sT2}, 7
    s_add_u32 s{sTB}, s{sTB}, s{sT3}
    s_lshr_b32 s{sFG}, s{sT}, 1
    s_lshl_b32 s{sFG}, s{sFG}, 2
    s_lshr_b32 s{sT}, s{sT2}, 3
    s_add_u32 s{sFG}, s{sFG}, s{sT}
    s_mul_i32 s{sT3}, s{sT3}, {ROT[0]}
    s_mul_i32 s{sT}, s{sT}, {ROT[1]}
    s_add_u32 s{sT}, s{sT}, s{sT3}
    s_mul_i32 s{sT2}, s{sT}, 7282
    s_lshr_b32 s{sT2}, s{sT2}, 16
    s_mul_i32 s{sT2}, s{sT2}, 9
    s_sub_u32 s{sRot}, s{sT}, s{sT2}
    s_lshr_b32 s{sLd}, s{sWv}, 2
    s_and_b32 s{sWv}, s{sWv}, 3
    s_lshl_b32 s{sM}, s{sWv}, 12
    """)
    P(f"""
    s_mul_i32 s{sCol}, s{sFG}, 216
    s_and_b32 s{sCol}, s{sCol}, {'0xffffff80' if 'k1al' in exp else '0xfffffff0'}
    s_sub_u32 s{sT}, s{sFG}, 11
    s_lshl_b32 s{sT}, s{sT}, 2
    s_min_u32 s{sT}, s{sT}, 14
    s_lshl_b32 s{sT2}, s{sT}, 6
    s_add_u32 s{sT2}, s{sT2}, 2304
    s_cmp_ge_u32 s{sFG}, 11
    s_cselect_b32 s{sIsV}, 1, 0
    s_cselect_b32 s{sCol}, s{sT2}, s{sCol}
    s_cselect_b32 s{sPB}, s{sT}, 0
    s_cmp_eq_u32 s{sLd}, 0
    s_cbranch_scc1 {L('compute')}
    """)
    sSh, sSw, sMk, sPitch, sRow, sDu = 45, 46, 47, 22, 23, 21
    P(f"""
    s_lshl_b32 s{sT}, s{sTB}, 7
    s_lshl_b32 s{sT2}, s{sWv}, 5
    s_add_u32 s{sT}, s{sT}, s{sT2}
    s_lshl_b32 s{sT2}, s{sWv}, 4
    s_add_u32 s{sT3}, s{sM}, 16384
    s_mov_b64 s[{sEm}:{sEm+1}], -1
    """)
    if wmask:
        P(f"""
        s_cmp_eq_u32 s{sLd}, 2
        s_cselect_b32 s{sSh}, s{sIsV}, 1
        s_cmp_eq_u32 s{sSh}, 0
        s_cmov_b32 s{sEm}, 0xf3ff3fff
        s_cmov_b32 s{sEm+1}, 0xfff3ff3f
        """)
    P(f"""
    s_cmp_eq_u32 s{sLd}, 2
    s_cselect_b32 s{sRow}, s{sT2}, s{sT}
    s_cselect_b32 s{sM}, s{sT3}, s{sM}
    s_cselect_b32 s{sSh}, 4, 3
    s_cselect_b32 s{sSw}, 2, 0
    s_cselect_b32 s{sMk}, 15, 7
    s_cselect_b32 s{sT3}, 0, 64
    s_cselect_b32 s{sT2}, s{sCol}, 0
    s_movk_i32 s{sPitch}, 1152
    s_cmov_b32 s{sPitch}, 3456
    s_movk_i32 s{sDu}, {9216 - 1024}
    s_cmov_b32 s{sDu}, {13824 - 1024}
    s_movk_i32 s{sStep}, 128
    s_cmov_b32 s{sStep}, {64 * 3456}
    s_mov_b32 s{sD+2}, {2048 * 1152}
    s_cmov_b32 s{sD+2}, {576 * 3456}
    s_mov_b32 s{sD+3}, 0x00020000
    v_lshrrev_b32 v{t0}, s{sSh}, v{vLane}
    v_add_u32 v{t0}, s{sRow}, v{t0}
    v_mul_u32_u24 v{t0}, s{sPitch}, v{t0}
    v_add_u32 v{t0}, s{sT2}, v{t0}
    v_lshrrev_b32 v{t1}, 4, v{vLane}
    v_lshlrev_b32 v{t1}, s{sSw}, v{t1}
    v_and_b32 v{t2}, s{sMk}, v{vLane}
    v_xor_b32 v{t1}, v{t1}, v{t2}
    v_lshlrev_b32 v{t1}, 4, v{t1}
    v_xor_b32 v{t2}, s{sT3}, v{t1}
    s_mul_i32 s{sT}, s{sDu}, 2
    s_mul_i32 s{sT2}, s{sDu}, 3
    v_add_u32 v{vD[0]}, v{t0}, v{t1}
    v_add3_u32 v{vD[1]}, v{t0}, v{t2}, s{sDu}
    v_add3_u32 v{vD[2]}, v{t0}, v{t1}, s{sT}
    v_add3_u32 v{vD[3]}, v{t0}, v{t2}, s{sT2}
    s_mul_i32 s{sOff}, s{sRot}, s{sStep}
    s_mul_i32 s{sWrap}, s{sStep}, 9
    s_cselect_b32 s{sD}, s{sW_}, s{sX}
    s_cselect_b32 s{sD+1}, s{sW_+1}, s{sX+1}
    """)

    def dma(Q, c):
        P(f"s_add_u32 m0, s{sM}, {(c % NST) * STAGE}")
        if wmask:
            P(f"s_mov_b64 exec, s[{sEm}:{sEm+1}]")
        for u in range(4):
            P(f"buffer_load_dwordx4 v{vD[u]}, s[{sD}:{sD+3}], s{sOff} offen offset:{u * 1024} lds")
        if wmask:
            P("s_mov_b64 exec, -1")
        P(f"""
        s_add_u32 s{sOff}, s{sOff}, s{sStep}
        s_cmp_eq_u32 s{sOff}, s{sWrap}
        s_cselect_b32 s{sOff}, 0, s{sOff}
        """)
        Q.add(c, 4)

    Q0 = Queue(P)
    common.mark(P, 0)
    for c in range(PRE):
        dma(Q0, c)
        if c == 0 and "k1b0" in exp:
            P("s_barrier")
    P(f"""
    s_cmp_eq_u32 s{sLd}, 2
    s_cbranch_scc1 {L('wload')}
    """)

    def loop(Q, c0, c1, rounds):
        for c in range(c0, c1):
            Q.wait(c + 1)
            P("s_waitcnt lgkmcnt(0)")
            P("s_barrier")
            if c + LA < 9:
                dma(Q, c + LA)
            if c % 3 == 1:
                rounds(Q, c // 3)

    def start(Q):
        Q.wait(0)
        common.mark(P, 1)
        P("s_barrier")
        for c in range(PRE, LA):
            dma(Q, c)

    def stage_of(dst, step_reg_or_const, tmp):
        P(f"""
        s_add_u32 s{dst}, s{sRot}, {step_reg_or_const}
        s_sub_u32 s{tmp}, s{dst}, 9
        s_cmp_ge_u32 s{dst}, 9
        s_cselect_b32 s{dst}, s{tmp}, s{dst}
        """)

    px = Prep(P, 48)
    px.alloc_x(VX)
    sMin, sXFo = 43, 42
    P(f"""
    v_and_b32 v{t0}, 31, v{vLane}
    v_lshrrev_b32 v{t1}, 2, v{t0}
    v_and_b32 v{t1}, 1, v{t1}
    v_lshlrev_b32 v{t1}, 5, v{t1}
    v_lshrrev_b32 v{t2}, 3, v{t0}
    v_lshlrev_b32 v{t2}, 2, v{t2}
    v_add_u32 v{t1}, v{t1}, v{t2}
    v_and_b32 v{t2}, 3, v{t0}
    v_add_u32 v{t1}, v{t1}, v{t2}
    s_lshr_b32 s{sT}, s{sFG}, 3
    s_lshl_b32 s{sT}, s{sT}, 6
    s_bfe_u32 s{sT2}, s{sFG}, 0x10002
    s_lshl_b32 s{sT2}, s{sT2}, 4
    s_add_u32 s{sT}, s{sT}, s{sT2}
    v_add_u32 v{t1}, s{sT}, v{t1}
    v_lshrrev_b32 v{t2}, 1, v{t1}
    v_and_b32 v{t2}, 7, v{t2}
    v_lshrrev_b32 v{t3}, 5, v{vLane}
    s_and_b32 s{sT}, s{sFG}, 3
    s_lshl_b32 s{sT2}, s{sT}, 1
    v_add_u32 v{t3}, s{sT2}, v{t3}
    v_xor_b32 v{t2}, v{t2}, v{t3}
    v_lshlrev_b32 v{t2}, 4, v{t2}
    v_lshlrev_b32 v{t1}, 7, v{t1}
    v_add_u32 v{vXA}, v{t1}, v{t2}
    s_lshl_b32 s{sT2}, s{sTB}, 2
    s_lshr_b32 s{sT3}, s{sFG}, 2
    s_add_u32 s{sT2}, s{sT2}, s{sT3}
    s_mul_i32 s{sT2}, s{sT2}, 36
    s_add_u32 s{sT2}, s{sT2}, s{sT}
    s_lshl_b32 s{sXFo}, s{sT2}, 10
    s_add_u32 s{sXFo}, s{sXFo}, {WS_XF}
    s_min_u32 s{sMin}, s{sWv}, 2
    v_lshlrev_b32 v{px.vL16}, 4, v{vLane}
    """)

    def x_round(Q, rd):
        P(f"""
        s_add_u32 s{sT}, s{sMin}, {3 * rd}
        s_sub_u32 s{sT2}, s{sT}, {NST}
        s_cmp_ge_u32 s{sT}, {NST}
        s_cselect_b32 s{sT2}, s{sT2}, s{sT}
        s_mul_i32 s{sT2}, s{sT2}, {STAGE}
        v_add_u32 v{vXT}, s{sT2}, v{vXA}
        ds_read_b128 {vr(XR,4)}, v{vXT}
        s_add_u32 s{sT}, s{sT}, s{sRot}
        s_sub_u32 s{sT2}, s{sT}, 9
        s_cmp_ge_u32 s{sT}, 9
        s_cselect_b32 s{sT}, s{sT2}, s{sT}
        s_lshl_b32 s{sT}, s{sT}, 12
        s_add_u32 s{sT}, s{sT}, s{sXFo}
        buffer_store_dwordx4 {vr(XR,4)}, v{px.vL16}, {ws}, s{sT} offen sc1
        """)
        Q.add("s", 1)

    Qx = Q0.copy()
    px.srds()
    start(Qx)
    loop(Qx, 0, XE + 1, x_round)
    if not noprep:
        P(f"""
        s_cmp_ge_u32 s{sWG}, 94
        s_cbranch_scc0 {L('xclr')}
        """)
        Qb = Qx.copy()
        Qb.add("x", px.loads_b(sWG, sWv))
        loop(Qb, XE + 1, 8, x_round)
        common.mark(P, 2)
        px.finish_b()
        P(f"s_branch {L('end')}")
        P.L(L("xclr"))
    lamt = "lamt" in exp
    if lamt:
        Qx = Qx.copy()
        Qx.add("x", px.loads_l(sWG, sWv))
    loop(Qx, XE + 1, 8, x_round)
    common.mark(P, 2)
    if lamt:
        px.finish_l()
    if not noprep:
        px.clear(sWG, sWv)
    P(f"s_branch {L('end')}")

    P.L(L("wload"))
    pw = Prep(P, 48)
    pw.alloc_w(VW)
    P(f"""
    v_lshrrev_b32 v{t0}, 3, v{vLane}
    v_and_b32 v{t0}, 1, v{t0}
    s_lshl_b32 s{sT}, s{sFG}, 3
    s_lshl_b32 s{sT2}, s{sWv}, 1
    s_add_u32 s{sT}, s{sT}, s{sT2}
    v_add_u32 v{t0}, s{sT}, v{t0}
    v_lshrrev_b32 v{t1}, 1, v{t0}
    v_and_b32 v{t2}, 7, v{vLane}
    v_xor_b32 v{t1}, v{t1}, v{t2}
    v_and_b32 v{t1}, 7, v{t1}
    v_lshlrev_b32 v{t1}, 4, v{t1}
    v_lshlrev_b32 v{t3}, 7, v{t0}
    v_add_u32 v{vGA}, v{t3}, v{t1}
    v_lshlrev_b32 v{vGO}, 4, v{t2}
    """)
    vG2, vG3 = VW.alloc(), VW.alloc()
    P(f"""
    v_add_u32 v{vG2}, 0x10000, v{vGA}
    v_add_u32 v{vG3}, 0x20000, v{vGA}
    """)

    def w_round(Q, rd):
        for s_ in range(3 * rd, 3 * rd + 3):
            off = (s_ % NST) * STAGE
            reg = (vGA, vG2, vG3)[off >> 16]
            P(f"ds_read_b128 {vr(GX[s_],4)}, v{reg} offset:{off & 65535}")

    def gw_loads():
        for s_ in range(9):
            stage_of(sT, s_, sT2)
            P(f"""
            s_lshl_b32 s{sT}, s{sT}, 7
            buffer_load_dwordx4 {vr(GW[s_],4)}, v{vGO}, s[{sGW}:{sGW+3}], s{sT} offen
            """)
        return 9

    def gate():
        acc = vT[0:2]
        P(f"v_mov_b32 v{acc[0]}, 0\nv_mov_b32 v{acc[1]}, 0")
        for s_ in range(9):
            for q in range(4):
                P(f"v_dot2c_f32_bf16 v{acc[q & 1]}, v{GX[s_] + q}, v{GW[s_] + q}")
        P(f"""
        v_add_f32 v{acc[0]}, v{acc[0]}, v{acc[1]}
        v_add_f32_dpp v{acc[0]}, v{acc[0]}, v{acc[0]} quad_perm:[1,0,3,2] row_mask:0xf bank_mask:0xf
        v_add_f32_dpp v{acc[0]}, v{acc[0]}, v{acc[0]} quad_perm:[2,3,0,1] row_mask:0xf bank_mask:0xf
        v_add_f32_dpp v{acc[0]}, v{acc[0]}, v{acc[0]} row_half_mirror row_mask:0xf bank_mask:0xf
        v_mul_f32 v{acc[0]}, {f32(-LOG2E)}, v{acc[0]}
        v_exp_f32 v{acc[0]}, v{acc[0]}
        v_add_f32 v{acc[0]}, 1.0, v{acc[0]}
        v_rcp_f32 v{acc[0]}, v{acc[0]}
        v_lshrrev_b32 v{acc[1]}, 3, v{vLane}
        v_lshlrev_b32 v{acc[1]}, 2, v{acc[1]}
        s_lshl_b32 s{sT}, s{sTB}, 7
        s_lshl_b32 s{sT2}, s{sFG}, 3
        s_add_u32 s{sT}, s{sT}, s{sT2}
        s_lshl_b32 s{sT2}, s{sWv}, 1
        s_add_u32 s{sT}, s{sT}, s{sT2}
        s_lshl_b32 s{sT}, s{sT}, 2
        s_add_u32 s{sT}, s{sT}, {WS_G}
        s_mov_b32 exec_lo, 0x101
        s_mov_b32 exec_hi, 0
        buffer_store_dword v{acc[0]}, v{acc[1]}, {ws}, s{sT} offen sc1
        s_mov_b64 exec, -1
        """)

    Qw = Q0.copy()
    srd_from_kernarg(P, sGW, KA_GW, 1152)
    pw.srds()
    Qw.add("g", gw_loads())
    start(Qw)
    loop(Qw, 0, XE + 1, w_round)
    paths = [("none", None, None)] if noprep else [("cf", 162, (pw.loads_c, pw.finish_c)), ("wf", 243, (pw.loads_w, pw.finish_w)), ("none", None, None)]
    for name, lim, fn in paths:
        nxt = L("wp_" + name + "_next")
        if lim is not None:
            P(f"""
            s_cmp_lt_u32 s{sWG}, {lim}
            s_cbranch_scc0 {nxt}
            """)
        Q = Qw.copy()
        if fn:
            Q.add("x", fn[0](sWG, sWv))
        loop(Q, XE + 1, 8, w_round)
        common.mark(P, 2)
        gate()
        if fn:
            fn[1]()
        P(f"s_branch {L('end')}")
        if lim is not None:
            P.L(nxt)

    P.L(L("compute"))
    if "k1b0" in exp:
        P("s_barrier")
    P(f"""
    s_and_b32 s{sWM}, s{sWv}, 1
    s_lshr_b32 s{sWN}, s{sWv}, 1
    """)
    if common.TIMING:
        common.MK0, common.NMARK = 52, 16
    P(f"""
    v_and_b32 v{t0}, 31, v{vLane}
    v_lshrrev_b32 v{t1}, 5, v{vLane}
    v_lshrrev_b32 v{t2}, 1, v{t0}
    v_and_b32 v{t2}, 7, v{t2}
    v_xor_b32 v{t2}, v{t2}, v{t1}
    v_lshlrev_b32 v{t2}, 4, v{t2}
    s_lshl_b32 s{sT}, s{sWM}, 6
    v_add_u32 v{t3}, s{sT}, v{t0}
    v_lshlrev_b32 v{t3}, 7, v{t3}
    v_add_u32 v{vXR[0]}, v{t2}, v{t3}
    v_xor_b32 v{vXR[1]}, 32, v{vXR[0]}
    v_xor_b32 v{vXR[2]}, 64, v{vXR[0]}
    v_xor_b32 v{vXR[3]}, 0x60, v{vXR[0]}
    """)
    P(f"""
    v_lshrrev_b32 v{t0}, 4, v{vLane}
    v_and_b32 v{t0}, 1, v{t0}
    v_lshlrev_b32 v{t0}, 2, v{t0}
    v_and_b32 v{t1}, 3, v{vLane}
    v_add_u32 v{t0}, v{t0}, v{t1}
    v_lshrrev_b32 v{t1}, 2, v{vLane}
    v_and_b32 v{t1}, 3, v{t1}
    v_lshrrev_b32 v{t2}, 5, v{vLane}
    v_lshlrev_b32 v{t3}, 3, v{t2}
    v_add_u32 v{t3}, v{t3}, v{t1}
    v_lshlrev_b32 v{t3}, 8, v{t3}
    v_add_u32 v{t3}, 16384, v{t3}
    s_cmp_eq_u32 s{sIsV}, 1
    s_cbranch_scc1 {L('vaddr')}
    """)
    P(f"""
    s_mul_i32 s{sPB}, s{sFG}, 3
    s_and_b32 s{sT}, s{sFG}, 1
    s_lshl_b32 s{sT}, s{sT}, 3
    v_lshrrev_b32 v{t4}, 2, v{t0}
    v_mul_u32_u24 v{t4}, 40, v{t4}
    v_and_b32 v{t5}, 1, v{t0}
    v_lshlrev_b32 v{t5}, 4, v{t5}
    v_add_u32 v{t4}, v{t4}, v{t5}
    v_lshrrev_b32 v{t5}, 1, v{t0}
    v_and_b32 v{t5}, 1, v{t5}
    v_lshlrev_b32 v{t5}, 3, v{t5}
    v_add_u32 v{t4}, v{t4}, v{t5}
    v_add_u32 v{t4}, s{sT}, v{t4}
    s_mul_i32 s{sT2}, s{sWN}, 144
    v_add_u32 v{vWR[0]}, s{sT2}, v{t4}
    v_add_u32 v{vWR[1]}, 72, v{vWR[0]}
    v_min_u32 v{t5}, 2, v{t0}
    v_mul_u32_u24 v{t5}, 72, v{t5}
    v_add_u32 v{t5}, 32, v{t5}
    v_add_u32 v{t5}, s{sT}, v{t5}
    s_cmp_eq_u32 s{sWN}, 1
    s_cbranch_scc0 {L('swz')}
    v_mov_b32 v{vWR[1]}, v{t5}
    s_branch {L('swz')}
    """)
    P.L(L("vaddr"))
    P(f"""
    v_lshlrev_b32 v{t4}, 3, v{t0}
    s_lshl_b32 s{sT2}, s{sWN}, 7
    v_add_u32 v{vWR[0]}, s{sT2}, v{t4}
    v_add_u32 v{vWR[1]}, 64, v{vWR[0]}
    """)
    P.L(L("swz"))
    P(f"v_lshlrev_b32 v{t1}, 6, v{t1}")
    for k in range(2):
        P(f"""
        v_xor_b32 v{vWR[k]}, v{vWR[k]}, v{t1}
        v_add_u32 v{vWR[k]}, v{vWR[k]}, v{t3}
        """)

    for k in range(4):
        P(f"v_add_u32 v{vXR2[k]}, 0x10000, v{vXR[k]}")
    for k in range(2):
        P(f"v_add_u32 v{vWR2[k]}, 0x10000, v{vWR[k]}")
    if NST > 4:
        for k in range(4):
            P(f"v_add_u32 v{vXR3[k]}, 0x20000, v{vXR[k]}")
        for k in range(2):
            P(f"v_add_u32 v{vWR3[k]}, 0x20000, v{vWR[k]}")

    def reads(n):
        c, ks = divmod(n, 4)
        st = (c % NST) * STAGE
        xr, wr = ((vXR, vWR), (vXR2, vWR2), (vXR3, vWR3))[st >> 16]
        st &= 65535
        b = n & 1
        out = []
        for tt in range(2):
            out.append(f"ds_read_b128 {vr(XF[b][tt],4)}, v{xr[ks]} offset:{st + tt * 4096}")
        for ft in range(2):
            for rd in range(2):
                out.append(f"ds_read_b64_tr_b16 {vr(WF[b][ft] + 2 * rd, 2)}, v{wr[ft]} offset:{st + ks * 4096 + rd * 1024}")
        return out

    def mainloop(isv):
        for n in range(36):
            c, ks = divmod(n, 4)
            b = n & 1
            mf = []
            for tt in range(2):
                for ft in range(2):
                    a_, b_ = (XF[b][tt], WF[b][ft]) if isv else (WF[b][ft], XF[b][tt])
                    cop = "0" if n == 0 else vr(ACC[tt][ft], 16)
                    mf.append(f"v_mfma_f32_32x32x16_bf16 {vr(ACC[tt][ft],16)}, {vr(a_,4)}, {vr(b_,4)}, {cop}")
            P("s_waitcnt lgkmcnt(0)")
            if ks == 3 and n + 1 < 36:
                P("s_barrier")
                common.mark(P, 2 + c)
            rs = reads(n + 1) if n + 1 < 36 else []
            if "k1noread" in exp:
                rs = []
            for k in range(4):
                if "k1nomfma" not in exp:
                    P(mf[k])
                take = rs[:2] if k < 3 else rs
                rs = rs[len(take):]
                for r in take:
                    P(r)

    P("s_barrier")
    common.mark(P, 0)
    for r in reads(0):
        P(r)
    P(f"""
    s_cmp_eq_u32 s{sIsV}, 1
    s_cbranch_scc1 {L('vmain')}
    """)

    mainloop(False)
    common.mark(P, 1)
    PK = XF[0][0]
    vA = [vT[0], vT[1], vT[2], vT[3]]
    P(f"v_lshlrev_b32 v{vA[0]}, 4, v{vLane}")

    def lo_store(tt, ft, sPBreg):
        skip = P.newlabel(pfx + "_skip")
        P(f"""
        s_cmp_ge_u32 s{sPBreg}, 32
        s_cbranch_scc1 {skip}
        s_and_b32 s{sT}, s{sPBreg}, 15
        s_lshl_b32 s{sT}, s{sT}, 17
        s_lshl_b32 s{sT2}, s{sTB}, 2
        s_lshl_b32 s{sT3}, s{sWM}, 1
        s_add_u32 s{sT2}, s{sT2}, s{sT3}
        s_add_u32 s{sT2}, s{sT2}, {tt}
        s_lshl_b32 s{sT2}, s{sT2}, 10
        s_add_u32 s{sT}, s{sT}, s{sT2}
        s_add_u32 s{sT2}, s{sT}, {WS_QLO}
        s_add_u32 s{sT}, s{sT}, {WS_KLO}
        s_cmp_lt_u32 s{sPBreg}, 16
        s_cselect_b32 s{sT}, s{sT2}, s{sT}
        s_cselect_b32 s{sT3}, {f32(QSCALE)}, 1.0
        s_add_u32 s{sT2}, s{sT}, 65536
        """)
        A = ACC[tt][ft]
        for r in range(16):
            P(f"v_mul_f32 v{A + r}, s{sT3}, v{A + r}")
        for k in range(8):
            P(f"v_cvt_pk_bf16_f32 v{PK + k}, v{A + 2 * k}, v{A + 2 * k + 1}")
        P(f"""
        buffer_store_dwordx4 {vr(PK,4)}, v{vA[0]}, {ws}, s{sT} offen
        buffer_store_dwordx4 {vr(PK+4,4)}, v{vA[0]}, {ws}, s{sT2} offen
        """)
        P.L(skip)

    sP0, sP1 = 38, 39
    P(f"""
    s_lshl_b32 s{sP0}, s{sWN}, 1
    s_add_u32 s{sP0}, s{sP0}, s{sPB}
    s_add_u32 s{sP1}, s{sP0}, 1
    """)
    for tt in range(2):
        lo_store(tt, 0, sP0)
    P(f"""
    s_cmp_eq_u32 s{sWN}, 1
    s_cbranch_scc1 {L('hi')}
    """)
    for tt in range(2):
        lo_store(tt, 1, sP1)
    P(f"s_branch {L('cend')}")
    P.L(L("hi"))
    big = 0x7ff00000
    for part in range(2):
        pb, adr, scl = vT[1], vT[2], vT[3]
        if part == 0:
            P(f"""
            v_lshrrev_b32 v{pb}, 5, v{vLane}
            v_add_u32 v{pb}, s{sPB}, v{pb}
            """)
        else:
            P(f"""
            s_add_u32 s{sT}, s{sPB}, 2
            v_mov_b32 v{pb}, s{sT}
            """)
        P(f"""
        v_and_b32 v{adr}, 15, v{pb}
        v_lshlrev_b32 v{adr}, 14, v{adr}
        v_and_b32 v{vT[4]}, 31, v{vLane}
        v_lshlrev_b32 v{vT[4]}, 2, v{vT[4]}
        v_add_u32 v{adr}, v{adr}, v{vT[4]}
        s_lshl_b32 s{sT2}, s{sTB}, 9
        s_lshl_b32 s{sT3}, s{sWM}, 8
        s_add_u32 s{sT2}, s{sT2}, s{sT3}
        v_add_u32 v{adr}, s{sT2}, v{adr}
        v_cmp_gt_u32 vcc, 16, v{pb}
        v_mov_b32 v{vT[4]}, {WS_KHI}
        v_mov_b32 v{vT[5]}, {WS_QHI}
        v_cndmask_b32 v{vT[4]}, v{vT[4]}, v{vT[5]}, vcc
        v_add_u32 v{adr}, v{adr}, v{vT[4]}
        v_mov_b32 v{vT[4]}, 1.0
        v_mov_b32 v{vT[5]}, {f32(QSCALE)}
        v_cndmask_b32 v{scl}, v{vT[4]}, v{vT[5]}, vcc
        v_cmp_le_u32 vcc, 32, v{pb}
        v_mov_b32 v{vT[4]}, {big}
        v_cndmask_b32 v{adr}, v{adr}, v{vT[4]}, vcc
        """)
        if part == 1:
            P(f"""
            v_cmp_le_u32 vcc, 32, v{vLane}
            v_cndmask_b32 v{adr}, v{adr}, v{vT[4]}, vcc
            """)
        for tt in range(2):
            A = ACC[tt][1] + 4 * part
            for r in range(4):
                P(f"v_mul_f32 v{A + r}, v{scl}, v{A + r}")
            P(f"""
            v_cvt_pk_bf16_f32 v{PK + 2 * tt}, v{A}, v{A+1}
            v_cvt_pk_bf16_f32 v{PK + 2 * tt + 1}, v{A+2}, v{A+3}
            v_add_u32 v{vT[4]}, 8192, v{adr}
            buffer_store_dword v{PK + 2 * tt}, v{adr}, {ws}, 0 offen offset:{128 * tt}
            buffer_store_dword v{PK + 2 * tt + 1}, v{vT[4]}, {ws}, 0 offen offset:{128 * tt}
            """)
    P(f"s_branch {L('cend')}")

    P.L(L("vmain"))
    mainloop(True)
    common.mark(P, 1)
    adr = vT[0]
    P(f"""
    v_lshrrev_b32 v{vT[1]}, 5, v{vLane}
    v_mul_u32_u24 v{vT[1]}, {VT_HALF}, v{vT[1]}
    v_and_b32 v{adr}, 31, v{vLane}
    v_lshlrev_b32 v{adr}, 4, v{adr}
    v_add_u32 v{adr}, v{adr}, v{vT[1]}
    s_lshl_b32 s{sT}, s{sTB}, 3
    s_lshl_b32 s{sT2}, s{sWM}, 2
    s_add_u32 s{sT}, s{sT}, s{sT2}
    s_mul_i32 s{sT}, s{sT}, {VT_GROUP}
    s_lshl_b32 s{sT2}, s{sWN}, 1
    s_add_u32 s{sT2}, s{sT2}, s{sPB}
    s_lshl_b32 s{sT2}, s{sT2}, 9
    s_add_u32 s{sT}, s{sT}, s{sT2}
    s_add_u32 s{sT}, s{sT}, {WS_VT}
    """)
    for tt in range(2):
        for ft in range(2):
            A = ACC[tt][ft]
            R = PK + 8 * ft
            for k in range(8):
                P(f"v_cvt_pk_bf16_f32 v{R + k}, v{A + 2 * k}, v{A + 2 * k + 1}")
            for sg in range(2):
                P(f"s_add_u32 s{sT2}, s{sT}, {(2 * tt + sg) * VT_GROUP}")
                P(f"buffer_store_dwordx4 {vr(R + 4 * sg, 4)}, v{adr}, {ws}, s{sT2} offen offset:{ft * 512}" + (" ; nosc1" if "vwb" in exp else ""))

    P.L(L("cend"))
    common.mark(P, 10)
    P(end_c or end)
    P.L(L("end"))
    P(end)
    return max(V.hi, VX.hi, VW.hi)
```

```python
from asmgen import *
from layout import *
import struct


def f32(x):
    return "0x%08x" % struct.unpack("<I", struct.pack("<f", x))[0]


def srd_from_kernarg(P, s, ka, nbytes):
    P(f"""
    s_load_dwordx2 s[{s}:{s+1}], s[0:1], {ka}
    s_mov_b32 s{s+2}, {nbytes}
    s_mov_b32 s{s+3}, 0x00020000
    """)


def emit_lambda(P, lre, lim, ldt, t, lr, li, coef=None):
    P(f"""
    v_lshlrev_b32 v{lre}, 16, v{lre}
    v_lshlrev_b32 v{lim}, 16, v{lim}
    v_lshlrev_b32 v{ldt}, 16, v{ldt}
    v_mul_f32 v{ldt}, {f32(LOG2E)}, v{ldt}
    v_exp_f32 v{ldt}, v{ldt}
    v_cvt_pk_bf16_f32 v{ldt}, v{ldt}, v{ldt}
    v_lshlrev_b32 v{ldt}, 16, v{ldt}
    v_mul_f32 v{t}, v{ldt}, v{lre}
    v_mul_f32 v{t+1}, v{ldt}, v{lim}
    v_mul_f32 v{t}, {f32(LOG2E)}, v{t}
    v_mul_f32 v{t+1}, 0.15915494, v{t+1}
    v_exp_f32 v{t}, v{t}
    v_cos_f32 v{t+2}, v{t+1}
    v_sin_f32 v{t+3}, v{t+1}
    v_mul_f32 v{lr}, v{t}, v{t+2}
    v_mul_f32 v{li}, v{t}, v{t+3}
    """)
    if coef:
        kr, ki = coef
        P(f"""
        v_add_f32 v{t}, -1.0, v{lr}
        v_mul_f32 v{t+1}, v{lre}, v{lre}
        v_fmac_f32 v{t+1}, v{lim}, v{lim}
        v_rcp_f32 v{t+1}, v{t+1}
        v_mul_f32 v{kr}, v{t}, v{lre}
        v_fmac_f32 v{kr}, v{li}, v{lim}
        v_mul_f32 v{ki}, v{li}, v{lre}
        v_mul_f32 v{t+2}, v{t}, v{lim}
        v_sub_f32 v{ki}, v{ki}, v{t+2}
        v_mul_f32 v{kr}, v{kr}, v{t+1}
        v_mul_f32 v{ki}, v{ki}, v{t+1}
        """)


class Prep:
    def __init__(self, P, s0, pfx="prep"):
        self.P, self.pfx = P, pfx
        S = Regs("s", s0, 84)
        self.ptr = S.alloc(16, 4)
        self.pWo = S.alloc(2)
        self.sT = S.alloc(); self.sT2 = S.alloc(); self.sT3 = S.alloc()
        self.sW = S.alloc()
        self.sSel = S.alloc(4); self.sSel2 = S.alloc(4)
        self.sF = [S.alloc() for _ in range(2)]
        self.vLane = 0

    def alloc_x(self, V):
        self.B = [V.alloc(4) for _ in range(2)]
        self.vL16 = V.alloc(); self.vBl = V.alloc()
        self.T = V.alloc(8, 4)

    def alloc_w(self, V):
        self.Cr = V.alloc(4); self.Ci = V.alloc(4)
        self.L = [V.alloc() for _ in range(3)]
        self.vL16 = V.alloc(); self.vBl = V.alloc(); self.vWl = V.alloc()
        self.T = V.alloc(24, 4)
        self.W = self.T + 8

    def srds(self):
        self.P(f"""
        s_load_dwordx16 s[{self.ptr}:{self.ptr+15}], s[0:1], {KA_LRE}
        s_load_dwordx2 s[{self.pWo}:{self.pWo+1}], s[0:1], {KA_WO}
        """)

    def use(self, srd, p, nbytes):
        self.P(f"""
        s_mov_b32 s{srd}, s{p}
        s_mov_b32 s{srd+1}, s{p+1}
        s_mov_b32 s{srd+2}, {nbytes}
        s_mov_b32 s{srd+3}, 0x00020000
        """)

    def _rowaddr(self):
        P, s, ln, T = self.P, self, self.vLane, self.T
        P(f"""
        v_lshlrev_b32 v{s.vL16}, 4, v{ln}
        v_lshrrev_b32 v{T}, 5, v{ln}
        v_lshlrev_b32 v{T}, 4, v{T}
        v_and_b32 v{T+1}, 31, v{ln}
        v_mul_u32_u24 v{s.vBl}, 1152, v{T+1}
        v_add_u32 v{s.vBl}, v{s.vBl}, v{T}
        """)

    def _div36(self, q, r, x):
        self.P(f"""
        s_mul_i32 s{q}, s{x}, 1821
        s_lshr_b32 s{q}, s{q}, 16
        s_mul_i32 s{r}, s{q}, 36
        s_sub_u32 s{r}, s{x}, s{r}
        """)

    def _store(self, regs, f, base):
        s = self
        self.P(f"""
        s_lshl_b32 s{s.sT}, s{f}, 10
        s_add_u32 s{s.sT}, s{s.sT}, {base}
        buffer_store_dwordx4 {vr(regs,4)}, v{s.vL16}, s[4:7], s{s.sT} offen sc1
        """)

    def loads_b(self, sWG, sWv):
        P, s = self.P, self
        self._rowaddr()
        P(f"""
        s_lshl_b32 s{s.sW}, s{sWG}, 2
        s_add_u32 s{s.sW}, s{s.sW}, s{sWv}
        s_sub_u32 s{s.sW}, 1023, s{s.sW}
        s_lshl_b32 s{s.sF[0]}, s{s.sW}, 1
        """)
        self._div36(s.sT, s.sT2, s.sF[0])
        P(f"""
        s_lshl_b32 s{s.sT2}, s{s.sT2}, 5
        s_lshr_b32 s{s.sT3}, s{s.sT}, 1
        s_mul_i32 s{s.sT3}, s{s.sT3}, {32 * 1152}
        s_add_u32 s{s.sT2}, s{s.sT2}, s{s.sT3}
        s_bitcmp1_b32 s{s.sT}, 0
        s_cselect_b32 s{s.sSel}, s{s.ptr+6}, s{s.ptr+4}
        s_cselect_b32 s{s.sSel+1}, s{s.ptr+7}, s{s.ptr+5}
        s_mov_b32 s{s.sSel+2}, {576 * 1152}
        s_mov_b32 s{s.sSel+3}, 0x00020000
        buffer_load_dwordx4 {vr(s.B[0],4)}, v{s.vBl}, s[{s.sSel}:{s.sSel+3}], s{s.sT2} offen
        buffer_load_dwordx4 {vr(s.B[1],4)}, v{s.vBl}, s[{s.sSel}:{s.sSel+3}], s{s.sT2} offen offset:32
        """)
        return 2

    def finish_b(self):
        s = self
        self._store(s.B[0], s.sF[0], WS_BF)
        self._store(s.B[1], s.sF[0], WS_BF + 1024)

    def clear(self, sWG, sWv):
        P, s, T = self.P, self, self.T
        l5 = P.newlabel(s.pfx + "_clr")
        P(f"""
        s_lshl_b32 s{s.sW}, s{sWG}, 2
        s_add_u32 s{s.sW}, s{s.sW}, s{sWv}
        s_cmp_lt_u32 s{s.sW}, 146
        s_cbranch_scc0 {l5}
        v_mov_b32 v{T}, 0
        v_mov_b32 v{T+1}, 0
        v_mov_b32 v{T+2}, 0
        v_mov_b32 v{T+3}, 0
        s_lshl_b32 s{s.sT}, s{s.sW}, 10
        s_add_u32 s{s.sT2}, s{s.sT}, {WS_E}
        s_add_u32 s{s.sT}, s{s.sT}, {WS_FLG - 144 * 1024}
        s_cmp_lt_u32 s{s.sW}, 144
        s_cselect_b32 s{s.sT}, s{s.sT2}, s{s.sT}
        buffer_store_dwordx4 {vr(T,4)}, v{s.vL16}, s[4:7], s{s.sT} offen sc1
        """)
        P.L(l5)

    def loads_l(self, sWG, sWv):
        P, s = self.P, self
        P(f"""
        s_lshl_b32 s{s.sW}, s{sWG}, 2
        s_add_u32 s{s.sW}, s{s.sW}, s{sWv}
        s_sub_u32 s{s.sT}, s{s.sW}, 148
        s_min_u32 s{s.sT}, s{s.sT}, 9
        s_lshl_b32 s{s.sT}, s{s.sT}, 6
        v_add_u32 v{s.vBl}, s{s.sT}, v{s.vLane}
        v_lshlrev_b32 v{s.T}, 1, v{s.vBl}
        """)
        for k, pidx in enumerate((0, 2, 12)):
            srd = (s.sSel, s.sSel2)[k & 1]
            self.use(srd, s.ptr + pidx, 1152)
            P(f"buffer_load_ushort v{s.B[0]+k}, v{s.T}, s[{srd}:{srd+3}], 0 offen")
        return 3

    def finish_l(self):
        P, s, T = self.P, self, self.T
        sk = P.newlabel(s.pfx + "_lam")
        lr, li, mr, mi = s.B[1], s.B[1] + 1, s.B[1] + 2, s.B[1] + 3
        br, bi = T + 4, T + 5
        P(f"""
        s_sub_u32 s{s.sT}, s{s.sW}, 148
        s_cmp_lt_u32 s{s.sT}, 9
        s_cbranch_scc0 {sk}
        s_waitcnt vmcnt(0)
        """)
        emit_lambda(P, s.B[0], s.B[0] + 1, s.B[0] + 2, T, lr, li)
        def csq(dr, di, sr, si):
            P(f"""
            v_mul_f32 v{T}, v{si}, v{si}
            v_add_f32 v{T+1}, v{sr}, v{sr}
            v_fma_f32 v{dr}, v{sr}, v{sr}, -v{T}
            v_mul_f32 v{di}, v{T+1}, v{si}
            """)
        csq(mr, mi, lr, li)
        for _ in range(4):
            csq(mr, mi, mr, mi)
        csq(br, bi, mr, mi)
        csq(br, bi, br, bi)
        P(f"""
        v_lshlrev_b32 v{T}, 5, v{s.vBl}
        s_mov_b32 s{s.sT}, {WS_LAM}
        buffer_store_dwordx4 {vr(s.B[1],4)}, v{T}, s[4:7], s{s.sT} offen sc1
        buffer_store_dwordx2 {vr(br,2)}, v{T}, s[4:7], s{s.sT} offen offset:16 sc1
        """)
        P.L(sk)

    def loads_c(self, sWG, sWv):
        P, s = self.P, self
        ln, T = s.vLane, s.T
        r4 = lambda n: f"s[{n}:{n+3}]"
        self._rowaddr()
        P(f"""
        s_lshl_b32 s{s.sW}, s{sWG}, 2
        s_add_u32 s{s.sW}, s{s.sW}, s{sWv}
        """)
        self._div36(s.sT, s.sT2, s.sW)
        P(f"""
        s_mul_i32 s{s.sF[0]}, s{s.sT}, 72
        s_add_u32 s{s.sF[0]}, s{s.sF[0]}, s{s.sT2}
        s_lshl_b32 s{s.sT2}, s{s.sT2}, 5
        s_mul_i32 s{s.sT3}, s{s.sT}, {32 * 1152}
        s_add_u32 s{s.sT3}, s{s.sT3}, s{s.sT2}
        """)
        self.use(s.sSel, s.ptr + 8, 576 * 1152)
        self.use(s.sSel2, s.ptr + 10, 576 * 1152)
        P(f"""
        buffer_load_dwordx4 {vr(s.Cr,4)}, v{s.vBl}, {r4(s.sSel)}, s{s.sT3} offen
        buffer_load_dwordx4 {vr(s.Ci,4)}, v{s.vBl}, {r4(s.sSel2)}, s{s.sT3} offen
        v_lshrrev_b32 v{T}, 5, v{ln}
        v_lshlrev_b32 v{T}, 3, v{T}
        v_and_b32 v{T+1}, 7, v{ln}
        v_add_u32 v{T}, v{T}, v{T+1}
        v_lshlrev_b32 v{T}, 1, v{T}
        """)
        for k, pidx in enumerate((0, 2, 12)):
            srd = (s.sSel, s.sSel2)[k & 1]
            self.use(srd, s.ptr + pidx, 1152)
            P(f"buffer_load_ushort v{s.L[k]}, v{T}, {r4(srd)}, s{s.sT2} offen")
        return 5

    def finish_c(self):
        P, s = self.P, self
        T = s.T
        store = self._store
        lr, li, kr, ki, t4 = T + 4, T + 5, T + 6, T + 7, T + 8
        emit_lambda(P, s.L[0], s.L[1], s.L[2], t4, lr, li, coef=(kr, ki))
        P(f"""
        v_add_f32 v{kr}, v{kr}, v{kr}
        v_add_f32 v{ki}, v{ki}, v{ki}
        """)
        R, I = T + 8, T + 16
        a, b = T + 4, T + 5
        for e in range(8):
            src_r, src_i = s.Cr + (e >> 1), s.Ci + (e >> 1)
            if e & 1:
                P(f"v_and_b32 v{a}, 0xffff0000, v{src_r}")
                P(f"v_and_b32 v{b}, 0xffff0000, v{src_i}")
            else:
                P(f"v_lshlrev_b32 v{a}, 16, v{src_r}")
                P(f"v_lshlrev_b32 v{b}, 16, v{src_i}")
            dpp = f"row_newbcast:{e} row_mask:0xf bank_mask:0xf"
            P(f"""
            v_mul_f32_dpp v{I+e}, v{ki}, v{b} {dpp}
            v_mul_f32_dpp v{R+e}, v{kr}, v{a} {dpp}
            v_sub_f32 v{R+e}, v{R+e}, v{I+e}
            v_mul_f32_dpp v{I+e}, v{ki}, v{a} {dpp}
            v_fmac_f32_dpp v{I+e}, v{kr}, v{b} {dpp}
            """)
        for k in range(4):
            P(f"v_cvt_pk_bf16_f32 v{s.Cr+k}, v{R+2*k}, v{R+2*k+1}")
            P(f"v_cvt_pk_bf16_f32 v{s.Ci+k}, -v{I+2*k}, -v{I+2*k+1}")
        store(s.Cr, s.sF[0], WS_CF)
        store(s.Ci, s.sF[0], WS_CF + 36 * 1024)

    def loads_w(self, sWG, sWv):
        P, s = self.P, self
        ln, T = s.vLane, s.T
        r4 = lambda n: f"s[{n}:{n+3}]"
        l4 = P.newlabel(s.pfx + "_w")
        P(f"""
        v_lshlrev_b32 v{s.vL16}, 4, v{ln}
        s_lshl_b32 s{s.sW}, s{sWG}, 2
        s_add_u32 s{s.sW}, s{s.sW}, s{sWv}
        s_sub_u32 s{s.sW}, s{s.sW}, 648
        """)
        self._div36(s.sT, s.sT2, s.sW)
        P(f"""
        s_mul_i32 s{s.sF[0]}, s{s.sT}, 72
        s_add_u32 s{s.sF[0]}, s{s.sF[0]}, s{s.sT2}
        v_and_b32 v{T}, 31, v{ln}
        v_lshlrev_b32 v{T}, 1, v{T}
        s_lshl_b32 s{s.sT}, s{s.sT}, 7
        v_add_u32 v{T}, s{s.sT}, v{T}
        v_lshrrev_b32 v{T+1}, 5, v{ln}
        s_mov_b32 s{s.sT3}, {72 * 1152}
        s_cmp_lt_u32 s{s.sT2}, 32
        s_cselect_b32 s{s.sT3}, {4 * 1152}, s{s.sT3}
        v_mul_lo_u32 v{T+1}, v{T+1}, s{s.sT3}
        v_add_u32 v{s.vWl}, v{T}, v{T+1}
        s_mul_i32 s{s.sT}, s{s.sT2}, {18 * 1152}
        s_sub_u32 s{s.sT3}, s{s.sT2}, 32
        s_mul_i32 s{s.sT3}, s{s.sT3}, {144 * 1152}
        s_add_u32 s{s.sT3}, s{s.sT3}, {16 * 1152}
        s_cmp_lt_u32 s{s.sT2}, 32
        s_cselect_b32 s{s.sT}, s{s.sT}, s{s.sT3}
        """)
        self.use(s.sSel, s.pWo, 576 * 1152)
        lhi = P.newlabel(s.pfx + "_whi")
        P(f"s_cmp_lt_u32 s{s.sT2}, 32")
        P(f"s_cbranch_scc0 {lhi}")
        for offs in ([(e if e < 4 else e + 4) * 1152 for e in range(8)], [(18 * (e >> 1) + (e & 1)) * 1152 for e in range(8)]):
            for e in range(8):
                P(f"s_add_u32 s{s.sT3}, s{s.sT}, {offs[e]}")
                P(f"buffer_load_ushort v{s.W+e}, v{s.vWl}, {r4(s.sSel)}, s{s.sT3} offen")
                P(f"buffer_load_ushort v{s.W+8+e}, v{s.vWl}, {r4(s.sSel)}, s{s.sT3} offen offset:64")
            if offs[1] == 1152 and offs[2] == 2 * 1152:
                P(f"s_branch {l4}")
                P.L(lhi)
        P.L(l4)
        return 16

    def finish_w(self):
        P, s = self.P, self
        T = s.T
        for h in range(2):
            for k in range(4):
                P(f"v_lshl_or_b32 v{T+4*h+k}, v{s.W+8*h+2*k+1}, 16, v{s.W+8*h+2*k}")
            self._store(T + 4 * h, s.sF[0], WS_WF + 36 * 1024 * h)
```

```python
from asmgen import *
from layout import *
from prepk import emit_lambda, srd_from_kernarg, f32
import common

SLOT = 16384
SVC_LDS = 81920
ELOC = 78 * 1024
HDEPTH = 16
ODEPTH = 12


def emit_service(P, sIdx, pfx="svc", end="s_endpgm", exp=(), sWave=None, sNonce=None):
    L = lambda n: f"{pfx}_{n}"
    ws = "s[4:7]"
    prio = {"b": 3, "c": 3, "0": 3, "l": 3, "s": 3}
    psleep = 2
    HDEPTH = globals()["HDEPTH"]
    mixc = 6
    for e in exp:
        if e.startswith("mixc="): mixc = int(e[5:])
    for e in exp:
        if e.startswith("hd="): HDEPTH = int(e[3:])
    for e in exp:
        if e.startswith("psleep="): psleep = int(e[7:])
        if e.startswith("pb="): prio["b"] = int(e[3:])
        if e.startswith("pc="): prio["c"] = int(e[3:])
        if e.startswith("p0="): prio["0"] = int(e[3:])
        if e.startswith("pl="): prio["l"] = int(e[3:])
        if e.startswith("ps="): prio["s"] = int(e[3:])
    sTB, sSB, sW, sWM, sWN, sM, sXo, sBo, sCo, sHo = 8, 9, 10, 11, 12, 13, 14, 15, 16, 17
    sT, sT2, sT3, sTag, sKH, sMT, sTile = 18, 19, 20, 21, 22, 23, 24
    sOk, sBad = 26, 28
    sWo = 30
    crot = "crot" in exp
    sRot, sHend, sCend = 48, 25, 31
    sE, sAX, sOut, sP = 32, 36, 40, 44
    vLane, vL16 = 0, 1
    hi = [2]

    def use(*regs):
        hi[0] = max(hi[0], max(regs) + 1)

    merged = sWave is not None
    rawb = merged and "rawb" in exp
    fusedb = "fusedb" in exp
    flag = f"s{sTag}" if merged else "1"

    def block_map(scan):
        if scan and rawb and "nomapa" not in exp:
            P(f"""
            s_lshr_b32 s{sT}, s{sIdx}, 3
            s_lshr_b32 s{sT2}, s{sIdx}, 1
            s_and_b32 s{sT2}, s{sT2}, 3
            s_lshl_b32 s{sT2}, s{sT2}, 1
            s_lshr_b32 s{sSB}, s{sT}, 3
            s_add_u32 s{sSB}, s{sSB}, s{sT2}
            s_and_b32 s{sTB}, s{sIdx}, 1
            s_lshl_b32 s{sTB}, s{sTB}, 3
            s_and_b32 s{sT3}, s{sT}, 7
            s_add_u32 s{sTB}, s{sTB}, s{sT3}
            s_cmp_ge_u32 s{sT}, 16
            s_cselect_b32 s{sSB}, 8, s{sSB}
            s_cselect_b32 s{sT2}, s{sT2}, 0
            s_add_u32 s{sTB}, s{sTB}, s{sT2}
            """)
        else:
            P(f"""
            s_and_b32 s{sTB}, s{sIdx}, 7
            s_lshl_b32 s{sTB}, s{sTB}, 1
            s_lshr_b32 s{sT}, s{sIdx}, 3
            s_and_b32 s{sT}, s{sT}, 1
            s_add_u32 s{sTB}, s{sTB}, s{sT}
            s_lshr_b32 s{sSB}, s{sIdx}, 4
            """)

    lfirst = "lfirst" in exp

    def base_min(scan=True):
        P(f"""
        {"v_lshrrev_b32 v2, 6, v0" if not merged else ""}
        {"v_and_b32 v%d, 63, v0" % vLane if not merged else ""}
        {"v_readfirstlane_b32 s%d, v2" % sW if not merged else "s_mov_b32 s%d, s%d" % (sW, sWave)}
        v_lshlrev_b32 v{vL16}, 4, v{vLane}
        """)
        block_map(scan)
        P(f"""
        s_and_b32 s{sMT}, s{sW}, 3
        s_lshr_b32 s{sKH}, s{sW}, 2
        """)

    def base_regs(scan=True, rest=False):
        srd_from_kernarg(P, sAX, KA_AX, 2048 * 1152)
        srd_from_kernarg(P, sOut, KA_OUT, 2048 * 2304)
        if not rest:
            base_min(scan)
        P(f"""
        s_mov_b32 s{sTag}, {TAG if not merged else 's%d' % sNonce}
        s_add_u32 s{sE}, s4, {WS_E}
        s_addc_u32 s{sE+1}, s5, 0
        s_mov_b32 s{sE+2}, {E_BYTES}
        s_mov_b32 s{sE+3}, 0x00020000
        s_lshl_b32 s{sTile}, s{sTB}, 2
        s_add_u32 s{sTile}, s{sTile}, s{sMT}
        s_and_b32 s{sT}, s{sTB}, 1
        s_lshl_b32 s{sT}, s{sT}, 2
        s_add_u32 s{sRot}, s{sSB}, s{sT}
        s_sub_u32 s{sT}, s{sRot}, 9
        s_cmp_ge_u32 s{sRot}, 9
        s_cselect_b32 s{sRot}, s{sT}, s{sRot}
        """)

    if "lmarks" in exp: common.mark(P, 4)
    if lfirst:
        P(f"s_setprio {prio['0']}")
        base_min()
        P(f"""
        s_cmp_eq_u32 s{sKH}, 0
        s_cbranch_scc1 {L('compute')}
        """)
        iC = len(P.items)
        P.L(L("compute"))
        base_regs(rest=True)
    else:
        base_regs()
        P(f"""
        s_setprio {prio['0']}
        s_cmp_eq_u32 s{sKH}, 0
        s_cbranch_scc0 {L('loader')}
        """)


    def wrap(reg, endreg):
        P(f"""
        s_sub_u32 s{sT3}, s{reg}, {9 * 4096}
        s_cmp_ge_u32 s{reg}, s{endreg}
        s_cselect_b32 s{reg}, s{sT3}, s{reg}
        """)

    def cf_dma(c):
        slot = (c + 2) % 5
        P(f"""
        s_add_u32 m0, s{sM}, {slot * SLOT}
        s_nop 0
        buffer_load_dwordx4 v{vL16}, {ws}, s{sCo} offen lds
        buffer_load_dwordx4 v{vL16}, {ws}, s{sCo} offen offset:1024 lds
        buffer_load_dwordx4 v{vL16}, {ws}, s{sCo} offen offset:2048 lds
        buffer_load_dwordx4 v{vL16}, {ws}, s{sCo} offen offset:3072 lds
        s_add_u32 s{sCo}, s{sCo}, 4096
        """)
        if crot:
            wrap(sCo, sCend)

    def wf_dma(j):
        slot = (9 + j + 2) % 5
        P(f"s_add_u32 m0, s{sM}, {slot * SLOT}")
        P("s_nop 0")
        nk = 4 if j < 4 else 2
        for k in range(nk):
            P(f"buffer_load_dwordx4 v{vL16}, {ws}, s{sWo} offen offset:{k * 1024} lds")
        P(f"s_add_u32 s{sWo}, s{sWo}, 4096")
        return nk

    def out_phases(loader):
        outA = "outA" in exp
        ACC = [2, 18]
        HF = [34 + 4 * i for i in range(HDEPTH)]
        BF = [[98, 102], [106, 110]]
        vC0, vC1 = 114, 115
        vG1, vX, vY, vO, vTm = 116, 117, 118, 119, 120
        XR, DR, GR = 50, 58, 60
        if HDEPTH <= 12:
            XR, DR, GR = 82, 90, 92
        T = 34
        use(121)
        P(f"""
        s_mul_i32 s{sHo}, s{sTile}, {72 * 1024}
        s_mul_i32 s{sT}, s{sKH}, {36 * 1024}
        s_add_u32 s{sHo}, s{sHo}, s{sT}
        s_add_u32 s{sHo}, s{sHo}, {WS_HF}
        s_lshl_b32 s{sT}, s{sKH}, 13
        v_add_u32 v{vC0}, s{sT}, v{vL16}
        v_add_u32 v{vC1}, 0x10000, v{vC0}
        """)
        if crot:
            P(f"""
            s_add_u32 s{sHend}, s{sHo}, {9 * 4096}
            s_lshl_b32 s{sT}, s{sRot}, 12
            s_add_u32 s{sHo}, s{sHo}, s{sT}
            """)
        P("s_barrier")
        common.mark(P, 1)
        vm = []
        if loader and rawb:
            for c in range(5):
                cf_dma(c)
                vm.extend([("c", c)] * 4)

        def hload(n):
            if n % 4 == 0 and n > 0:
                P(f"s_add_u32 s{sHo}, s{sHo}, 4096")
                if crot:
                    wrap(sHo, sHend)
            P(f"buffer_load_dwordx4 {vr(HF[n % HDEPTH],4)}, v{vL16}, {ws}, s{sHo} offen offset:{(n % 4) * 1024}" + ("" if "hfl2" in exp else " sc1"))
            vm.append(("h", n))

        for n in range(HDEPTH):
            hload(n)
        P(f"s_setprio {prio['c']}")
        srd_from_kernarg(P, sP, KA_DSK, 1152)

        def creads(n):
            c, ks = divmod(n, 4)
            slot = (c + 2) % 5
            base, off = (vC1, 0) if slot == 4 else (vC0, slot * SLOT)
            return [f"ds_read_b128 {vr(BF[n & 1][ct],4)}, v{base} offset:{off + ct * 4096 + ks * 1024}" for ct in range(2)]

        def mix_loads_a():
            P(f"""
            v_and_b32 v{vTm}, 31, v{vLane}
            v_lshrrev_b32 v{vY}, 5, v{vLane}
            v_mul_u32_u24 v{vX}, 1152, v{vTm}
            v_lshlrev_b32 v{vY}, 3, v{vY}
            v_add_u32 v{vX}, v{vX}, v{vY}
            s_mul_i32 s{sT}, s{sTile}, {32 * 1152}
            s_lshl_b32 s{sT2}, s{sSB}, 7
            s_lshl_b32 s{sT3}, s{sKH}, 6
            s_add_u32 s{sT2}, s{sT2}, s{sT3}
            s_add_u32 s{sT}, s{sT}, s{sT2}
            """)
            for q in range(4):
                P(f"buffer_load_dwordx2 {vr(XR + 2 * q, 2)}, v{vX}, s[{sAX}:{sAX+3}], s{sT} offen offset:{16 * q}")
            for q in range(4):
                P(f"buffer_load_dwordx2 {vr(DR + 2 * q, 2)}, v{vY}, s[{sP}:{sP+3}], s{sT2} offen offset:{16 * q}")
            P(f"""
            v_lshlrev_b32 v{vX}, 2, v{vTm}
            s_lshl_b32 s{sT}, s{sTile}, 7
            s_add_u32 s{sT}, s{sT}, {WS_G}
            buffer_load_dword v{vG1}, v{vX}, {ws}, s{sT} offen
            v_mul_u32_u24 v{vTm}, 2304, v{vTm}
            v_lshlrev_b32 v{vO}, 1, v{vY}
            v_add_u32 v{vO}, v{vO}, v{vTm}
            """)
            vm.extend([("x", 0)] * 9)

        def mix_loads():
            P(f"""
            v_lshrrev_b32 v{vTm}, 3, v{vLane}
            v_xor_b32 v{vO}, v{vTm}, v{vLane}
            v_and_b32 v{vO}, 7, v{vO}
            v_mul_u32_u24 v{vX}, 1152, v{vTm}
            v_lshlrev_b32 v{vY}, 3, v{vO}
            v_add_u32 v{vX}, v{vX}, v{vY}
            s_mul_i32 s{sT}, s{sTile}, {32 * 1152}
            s_lshl_b32 s{sT2}, s{sSB}, 7
            s_lshl_b32 s{sT3}, s{sKH}, 6
            s_add_u32 s{sT2}, s{sT2}, s{sT3}
            s_add_u32 s{sT}, s{sT}, s{sT2}
            """)
            for i in range(4):
                P(f"buffer_load_dwordx2 {vr(XR + 2 * i, 2)}, v{vX}, s[{sAX}:{sAX+3}], s{sT} offen")
                if i < 3:
                    P(f"s_add_u32 s{sT}, s{sT}, {8 * 1152}")
            P(f"""
            buffer_load_dwordx2 {vr(DR, 2)}, v{vY}, s[{sP}:{sP+3}], s{sT2} offen
            v_lshlrev_b32 v{vY}, 2, v{vTm}
            s_lshl_b32 s{sT}, s{sTile}, 7
            s_add_u32 s{sT}, s{sT}, {WS_G}
            """)
            for i in range(4):
                P(f"buffer_load_dword v{GR + i}, v{vY}, {ws}, s{sT} offen offset:{32 * i}")
            P(f"""
            v_and_b32 v{vX}, 31, v{vLane}
            v_lshlrev_b32 v{vX}, 2, v{vX}
            buffer_load_dword v{vG1}, v{vX}, {ws}, s{sT} offen
            v_mul_u32_u24 v{vTm}, 2304, v{vTm}
            v_lshlrev_b32 v{vO}, 4, v{vO}
            v_add_u32 v{vO}, v{vO}, v{vTm}
            """)
            vm.extend([("x", 0)] * 10)

        for c in range(9):
            if loader and (c >= 5 or rawb):
                idx = max(i for i, e in enumerate(vm) if e == ("c", c))
                P(f"s_waitcnt vmcnt({len(vm) - 1 - idx})")
            P("s_barrier")
            if loader and 1 <= c <= 4:
                cf_dma(c + 4)
                vm.extend([("c", c + 4)] * 4)
            if loader and c >= 5 and "wflate" not in exp:
                vm.extend([("w", c - 5)] * wf_dma(c - 5))
            if c == mixc and "mixlate" not in exp:
                if "mixp" in exp: P("s_setprio 3")
                mix_loads_a() if outA else mix_loads()
                if "mixp" in exp: P(f"s_setprio {prio['c']}")
            if "cmarks" in exp:
                common.mark(P, [4, 5, 6, 7, 8, 14, 15, 12, 13][c])
            else:
                if c == 4: common.mark(P, 14)
                if c == 7: common.mark(P, 15)
            for r in creads(4 * c):
                P(r)
            for ks in range(4):
                n = 4 * c + ks
                if ks < 3:
                    for r in creads(n + 1):
                        P(r)
                for ct in range(2):
                    cop = "0" if n == 0 else vr(ACC[ct], 16)
                    P(f"v_mfma_f32_32x32x16_bf16 {vr(ACC[ct],16)}, {vr(BF[n & 1][ct],4)}, {vr(HF[n % HDEPTH],4)}, {cop}")
                if n + HDEPTH < 36:
                    hload(n + HDEPTH)
            P("s_waitcnt lgkmcnt(0)")
        P("s_setprio 3")
        P("s_barrier")
        if loader:
            if "wflate" in exp:
                for j in range(4):
                    wf_dma(j)
            wf_dma(4)
        if "mixlate" in exp:
            mix_loads_a() if outA else mix_loads()
        common.mark(P, 2)
        if outA:
            for q in range(4):
                for j in range(4):
                    sx, sd = XR + 2 * q + (j >> 1), DR + 2 * q + (j >> 1)
                    if j & 1:
                        P(f"v_and_b32 v{T + 4 * q + j}, 0xffff0000, v{sx}")
                        P(f"v_and_b32 v{98 + j}, 0xffff0000, v{sd}")
                    else:
                        P(f"v_lshlrev_b32 v{T + 4 * q + j}, 16, v{sx}")
                        P(f"v_lshlrev_b32 v{98 + j}, 16, v{sd}")
                for j in range(4):
                    P(f"v_mul_f32 v{98 + j}, v{vG1}, v{98 + j}")
                for j in range(4):
                    P(f"v_mul_f32 v{T + 4 * q + j}, v{T + 4 * q + j}, v{98 + j}")
        else:
            Df = [98, 99, 100, 101]
            P(f"""
            v_lshlrev_b32 v{Df[0]}, 16, v{DR}
            v_and_b32 v{Df[1]}, 0xffff0000, v{DR}
            v_lshlrev_b32 v{Df[2]}, 16, v{DR+1}
            v_and_b32 v{Df[3]}, 0xffff0000, v{DR+1}
            """)
            for i in range(4):
                for j in range(4):
                    src = XR + 2 * i + (j >> 1)
                    if j & 1:
                        P(f"v_and_b32 v{T + 4 * i + j}, 0xffff0000, v{src}")
                    else:
                        P(f"v_lshlrev_b32 v{T + 4 * i + j}, 16, v{src}")
                for j in range(4):
                    P(f"v_mul_f32 v{T + 4 * i + j}, v{T + 4 * i + j}, v{Df[j]}")
                for j in range(4):
                    P(f"v_mul_f32 v{T + 4 * i + j}, v{T + 4 * i + j}, v{GR + i}")
        for ct in range(2):
            for r in range(16):
                P(f"v_mul_f32 v{ACC[ct] + r}, v{vG1}, v{ACC[ct] + r}")
        common.mark(P, 9)
        if outA:
            P(f"""
            s_lshl_b32 s{sT}, s{sW}, 12
            v_add_u32 v{vX}, s{sT}, v{vL16}
            s_xor_b32 s{sT}, s{sW}, 4
            s_lshl_b32 s{sT}, s{sT}, 12
            v_add_u32 v{vY}, s{sT}, v{vL16}
            """)
        else:
            P(f"""
        v_and_b32 v{vTm}, 31, v{vLane}
        v_lshrrev_b32 v{vX}, 5, v{vLane}
        v_xor_b32 v{vX}, v{vX}, v{vTm}
        v_and_b32 v{vX}, 7, v{vX}
        v_lshlrev_b32 v{vX}, 4, v{vX}
        v_lshlrev_b32 v{vTm}, 7, v{vTm}
        v_add_u32 v{vX}, v{vX}, v{vTm}
        s_lshl_b32 s{sT}, s{sMT}, 14
        s_lshl_b32 s{sT2}, s{sKH}, 12
        s_add_u32 s{sT2}, s{sT2}, s{sT}
        v_add_u32 v{vX}, s{sT2}, v{vX}
        s_lshl_b32 s{sT2}, s{sKH}, 13
        s_add_u32 s{sT2}, s{sT2}, s{sT}
        v_add_u32 v{vY}, s{sT2}, v{vL16}
        """)
        P(f"""
        s_mul_i32 s{sT}, s{sKH}, {18 * 1024}
        s_mul_i32 s{sHo}, s{sTile}, {36 * 1024}
        s_add_u32 s{sHo}, s{sHo}, s{sT}
        s_add_u32 s{sHo}, s{sHo}, {WS_OF}
        """)
        if not loader:
            lp, dn = P.newlabel(pfx + "_apoll"), P.newlabel(pfx + "_adone")
            P(f"""
            s_cmp_eq_u32 s{sW}, 0
            s_cbranch_scc0 {dn}
            s_lshr_b32 s{sT}, s{sTB}, 1
            s_lshl_b32 s{sT}, s{sT}, 7
            s_add_u32 s{sT}, s{sT}, {WS_FLG + FLG_ATT}
            v_lshlrev_b32 v121, 2, v{vLane}
            s_mov_b32 exec_hi, 0
            """)
            P.L(lp)
            P(f"""
            buffer_load_dword v122, v121, {ws}, s{sT} offen sc1
            s_waitcnt vmcnt(0)
            v_cmp_ne_u32 vcc, {flag}, v122
            s_cbranch_vccz {dn}
            s_sleep 1
            s_branch {lp}
            """)
            P.L(dn)
            P("s_mov_b64 exec, -1")
            use(123)
        P("s_waitcnt vmcnt(0)")
        P("s_barrier")
        common.mark(P, 3)
        OFr = [50 + 4 * i for i in range(ODEPTH)]
        WB = BF

        def oload(n):
            if n % 4 == 0 and n > 0:
                P(f"s_add_u32 s{sHo}, s{sHo}, 4096")
            shared = loader and n >= 14
            P(f"buffer_load_dwordx4 {vr(OFr[n % ODEPTH],4)}, v{vL16}, {ws}, s{sHo} offen offset:{(n % 4) * 1024}" + ("" if "ofl2" in exp and not shared else " sc1"))

        for n in range(ODEPTH):
            oload(n)

        def wreads(n):
            j, ks = divmod(n, 4)
            slot = (9 + j + 2) % 5
            base, off = (vC1, 0) if slot == 4 else (vC0, slot * SLOT)
            return [f"ds_read_b128 {vr(WB[n & 1][ct],4)}, v{base} offset:{off + ct * 4096 + ks * 1024}" for ct in range(2)]

        for r in wreads(0):
            P(r)
        for n in range(18):
            if n + 1 < 18:
                for r in wreads(n + 1):
                    P(r)
            for ct in range(2):
                P(f"v_mfma_f32_32x32x16_bf16 {vr(ACC[ct],16)}, {vr(WB[n & 1][ct],4)}, {vr(OFr[n % ODEPTH],4)}, {vr(ACC[ct],16)}")
            if n + ODEPTH < 18:
                oload(n + ODEPTH)
        common.mark(P, 10)
        P("s_barrier")
        if "cmarks" not in exp: common.mark(P, 12)
        if outA:
            keep, send = (ACC[1], ACC[0]) if loader else (ACC[0], ACC[1])
            for q in range(4):
                P(f"ds_write_b128 v{vX}, {vr(send + 4 * q, 4)} offset:{q * 1024}")
            for r in range(16):
                P(f"v_add_f32 v{T + r}, v{T + r}, v{keep + r}")
            P(f"""
            s_mul_i32 s{sT}, s{sTile}, {32 * 2304}
            s_lshl_b32 s{sT2}, s{sSB}, 8
            s_add_u32 s{sT}, s{sT}, s{sT2}
            s_lshl_b32 s{sT2}, s{sKH}, 7
            s_add_u32 s{sT}, s{sT}, s{sT2}
            s_waitcnt lgkmcnt(0)
            s_barrier
            """)
            common.mark(P, 13)
            RB = 50
            for q in range(4):
                P(f"ds_read_b128 {vr(RB + 4 * q, 4)}, v{vY} offset:{q * 1024}")
            for q in range(4):
                for j in range(4):
                    P(f"v_add_f32 v{T + 4 * q + j}, v{T + 4 * q + j}, v{RB + 4 * q + j}")
                P(f"buffer_store_dwordx4 {vr(T + 4 * q, 4)}, v{vO}, s[{sOut}:{sOut+3}], s{sT} offen offset:{32 * q}")
        else:
            for ct in range(2):
                for q in range(4):
                    a = vX
                    if q:
                        P(f"v_xor_b32 v{vTm}, {32 * q}, v{vX}")
                        a = vTm
                    P(f"ds_write_b128 v{a}, {vr(ACC[ct] + 4 * q, 4)} offset:{ct * 8192}")
            P(f"""
            s_mul_i32 s{sT}, s{sTile}, {32 * 2304}
            s_lshl_b32 s{sT2}, s{sSB}, 8
            s_add_u32 s{sT}, s{sT}, s{sT2}
            s_lshl_b32 s{sT2}, s{sKH}, 7
            s_add_u32 s{sT}, s{sT}, s{sT2}
            s_waitcnt lgkmcnt(0)
            s_barrier
            """)
            RB = 50
            common.mark(P, 13)
            for i in range(4):
                for h in range(2):
                    P(f"ds_read_b128 {vr(RB + 8 * i + 4 * h, 4)}, v{vY} offset:{h * 4096 + i * 1024}")
            for i in range(4):
                for j in range(4):
                    P(f"v_add_f32 v{T + 4 * i + j}, v{T + 4 * i + j}, v{RB + 8 * i + j}")
                    P(f"v_add_f32 v{T + 4 * i + j}, v{T + 4 * i + j}, v{RB + 8 * i + 4 + j}")
                P(f"buffer_store_dwordx4 {vr(T + 4 * i, 4)}, v{vO}, s[{sOut}:{sOut+3}], s{sT} offen")
                if i < 3:
                    P(f"s_add_u32 s{sT}, s{sT}, {8 * 2304}")
        common.mark(P, 11)
        P(end)

    ACC = [[2, 18], [34, 50]]
    XF = [[66, 70], [74, 78]]
    WF = [[82, 86], [90, 94]]
    vA0, vA1, vB0, vB1 = 98, 99, 100, 101
    lr, li, nli, mr, mi, br, bi = 102, 103, 104, 105, 106, 107, 108
    lamt = "lamt" in exp
    if lamt:
        lr, li, mr, mi, br, bi, nli = 102, 103, 104, 105, 106, 107, 108
    t = 110
    use(121)
    P(f"""
    s_and_b32 s{sWM}, s{sW}, 1
    s_lshr_b32 s{sWN}, s{sW}, 1
    s_lshl_b32 s{sT}, s{sSB}, 6
    s_lshl_b32 s{sT2}, s{sWN}, 5
    s_add_u32 s{sT}, s{sT}, s{sT2}
    v_and_b32 v{t+8}, 31, v{vLane}
    v_add_u32 v{t+8}, s{sT}, v{t+8}
    v_lshlrev_b32 v{t+9}, 1, v{t+8}
    """)
    UP = 66
    if fusedb:
        P(f"""
        s_mul_i32 s{sT}, s{sTB}, 18
        s_lshl_b32 s{sT2}, s{sSB}, 1
        s_add_u32 s{sT}, s{sT}, s{sT2}
        s_add_u32 s{sT}, s{sT}, s{sWN}
        s_lshl_b32 s{sT}, s{sT}, 14
        s_lshl_b32 s{sT2}, s{sWM}, 13
        s_add_u32 s{sT}, s{sT}, s{sT2}
        s_add_u32 s{sT}, s{sT}, {WS_XF if 'ufx' in exp else WS_UF}
        s_add_u32 s{sT2}, s{sT}, 4096
        """)
        for k in range(8):
            P(f"buffer_load_dwordx4 {vr(UP + 4 * k, 4)}, v{vL16}, {ws}, s{sT if k < 4 else sT2} offen offset:{(k & 3) * 1024}")
    if lamt:
        P(f"""
        v_lshlrev_b32 v{t+9}, 5, v{t+8}
        s_mov_b32 s{sT}, {WS_LAM}
        buffer_load_dwordx4 {vr(lr,4)}, v{t+9}, {ws}, s{sT} offen
        buffer_load_dwordx2 {vr(br,2)}, v{t+9}, {ws}, s{sT} offen offset:16
        """)
    for k, ka in enumerate((KA_LRE, KA_LIM, KA_LDT) if not lamt else ()):
        srd_from_kernarg(P, sP, ka, 1152)
        P(f"""
        s_waitcnt lgkmcnt(0)
        buffer_load_ushort v{t+4+k}, v{t+9}, s[{sP}:{sP+3}], 0 offen
        """)
    vXR = [98, 99, 101, 122]
    vB2 = 123
    XSLOT, NX, WSLOT, NWS, WBASE = 16384, 3, 8192, 4, 49152
    if merged:
        P(f"""
        v_and_b32 v{t}, 31, v{vLane}
        v_lshrrev_b32 v{t+1}, 5, v{vLane}
        v_lshrrev_b32 v{t+2}, 1, v{t}
        v_and_b32 v{t+2}, 7, v{t+2}
        v_xor_b32 v{t+2}, v{t+2}, v{t+1}
        v_lshlrev_b32 v{t+2}, 4, v{t+2}
        s_lshl_b32 s{sT}, s{sWM}, 6
        v_add_u32 v{t+3}, s{sT}, v{t}
        v_lshlrev_b32 v{t+3}, 7, v{t+3}
        v_add_u32 v{vXR[0]}, v{t+2}, v{t+3}
        v_xor_b32 v{vXR[1]}, 32, v{vXR[0]}
        v_xor_b32 v{vXR[2]}, 64, v{vXR[0]}
        v_xor_b32 v{vXR[3]}, 0x60, v{vXR[0]}
        """)
        if rawb:
            P(f"""
            v_lshrrev_b32 v{t+2}, 2, v{t}
            v_and_b32 v{t+2}, 3, v{t+2}
            v_xor_b32 v{t+2}, v{t+2}, v{t+1}
            v_lshlrev_b32 v{t+2}, 4, v{t+2}
            v_lshlrev_b32 v{t+3}, 6, v{t}
            s_lshl_b32 s{sT}, s{sWN}, 11
            s_add_u32 s{sT}, s{sT}, {WBASE}
            v_add_u32 v{t+3}, s{sT}, v{t+3}
            v_add_u32 v{vB0}, v{t+2}, v{t+3}
            v_xor_b32 v{vB2}, 32, v{vB0}
            """)
        else:
            P(f"""
            s_lshl_b32 s{sT}, s{sWN}, 12
            s_add_u32 s{sT}, s{sT}, {WBASE}
            v_add_u32 v{vB0}, s{sT}, v{vL16}
            """)
    else:
      P(f"""
    s_lshl_b32 s{sT}, s{sWM}, 12
    v_add_u32 v{vA0}, s{sT}, v{vL16}
    v_add_u32 v{vA1}, 0x10000, v{vA0}
    s_lshl_b32 s{sT}, s{sWN}, 12
    s_add_u32 s{sT}, s{sT}, 8192
    v_add_u32 v{vB0}, s{sT}, v{vL16}
    v_add_u32 v{vB1}, 0x10000, v{vB0}
    """)
    if "smarks" in exp:
        common.mark(P, 5)
        P("s_waitcnt vmcnt(0)")
        common.mark(P, 6)
    if not lamt:
        emit_lambda(P, t + 4, t + 5, t + 6, t, lr, li)
        P(f"v_sub_f32 v{nli}, 0, v{li}")

    def csq(dr, di, sr_, si_):
        P(f"""
        v_mul_f32 v{t}, v{si_}, v{si_}
        v_add_f32 v{t+1}, v{sr_}, v{sr_}
        v_fma_f32 v{dr}, v{sr_}, v{sr_}, -v{t}
        v_mul_f32 v{di}, v{t+1}, v{si_}
        """)

    if not lamt:
        csq(mr, mi, lr, li)
        for _ in range(4):
            csq(mr, mi, mr, mi)
        csq(br, bi, mr, mi)
        csq(br, bi, br, bi)

    early = "eaddr" in exp
    vTW, vTR, vX_ = (109, 126, t + 2) if early else (t, t + 1, t + 2)
    use(126)

    def tr_write_addr():
        P(f"""
        v_and_b32 v{t+4}, 31, v{vLane}
        v_lshrrev_b32 v{t+5}, 1, v{t+4}
        v_and_b32 v{t+5}, 1, v{t+5}
        v_lshlrev_b32 v{t+5}, 2, v{t+5}
        v_lshrrev_b32 v{t+6}, 2, v{t+4}
        v_and_b32 v{t+6}, 1, v{t+6}
        v_lshlrev_b32 v{t+6}, 1, v{t+6}
        v_or_b32 v{t+5}, v{t+5}, v{t+6}
        v_and_b32 v{t+6}, 1, v{t+4}
        v_or_b32 v{t+5}, v{t+5}, v{t+6}
        v_lshrrev_b32 v{t+6}, 5, v{vLane}
        v_lshlrev_b32 v{t+6}, 2, v{t+6}
        v_xor_b32 v{t+5}, v{t+5}, v{t+6}
        v_lshlrev_b32 v{t+5}, 4, v{t+5}
        v_lshlrev_b32 v{t+4}, 7, v{t+4}
        v_add_u32 v{vTW}, v{t+4}, v{t+5}
        s_lshl_b32 s{sT}, s{sW}, 13
        v_add_u32 v{vTW}, s{sT}, v{vTW}
        """)

    def tr_read_addr():
        P(f"""
        v_lshrrev_b32 v{t+4}, 5, v{vLane}
        v_lshlrev_b32 v{t+4}, 3, v{t+4}
        v_lshrrev_b32 v{t+5}, 2, v{vLane}
        v_and_b32 v{t+5}, 3, v{t+5}
        v_add_u32 v{t+4}, v{t+4}, v{t+5}
        v_lshlrev_b32 v{t+4}, 7, v{t+4}
        v_lshrrev_b32 v{t+5}, 4, v{vLane}
        v_and_b32 v{t+5}, 1, v{t+5}
        v_lshlrev_b32 v{t+5}, 1, v{t+5}
        v_lshrrev_b32 v{t+6}, 1, v{vLane}
        v_and_b32 v{t+6}, 1, v{t+6}
        v_or_b32 v{t+5}, v{t+5}, v{t+6}
        v_lshrrev_b32 v{t+6}, 3, v{vLane}
        v_and_b32 v{t+6}, 1, v{t+6}
        v_lshlrev_b32 v{t+6}, 2, v{t+6}
        v_xor_b32 v{t+5}, v{t+5}, v{t+6}
        v_lshrrev_b32 v{t+6}, 2, v{vLane}
        v_and_b32 v{t+6}, 1, v{t+6}
        v_xor_b32 v{t+5}, v{t+5}, v{t+6}
        v_lshlrev_b32 v{t+5}, 4, v{t+5}
        v_and_b32 v{t+6}, 1, v{vLane}
        v_lshlrev_b32 v{t+6}, 3, v{t+6}
        v_add_u32 v{t+4}, v{t+4}, v{t+5}
        v_add_u32 v{t+4}, v{t+4}, v{t+6}
        v_add_u32 v{vTR}, s{sT}, v{t+4}
        """)

    if early:
        tr_write_addr()
        tr_read_addr()
    def reads(n):
        if rawb:
            bb = n & 1
            xo, wo_ = ((n >> 2) % NX) * XSLOT, ((n >> 1) % NWS) * WSLOT
            vb = vB2 if n & 1 else vB0
            return [f"ds_read_b128 {vr(XF[bb][0],4)}, v{vXR[n & 3]} offset:{xo}",
                    f"ds_read_b128 {vr(WF[bb][0],4)}, v{vb} offset:{wo_}",
                    f"ds_read_b128 {vr(WF[bb][1],4)}, v{vb} offset:{wo_ + 4096}",
                    f"ds_read_b128 {vr(XF[bb][1],4)}, v{vXR[n & 3]} offset:{xo + 4096}"]
        if merged:
            bb = n & 1
            xo, wo_ = ((n >> 2) % NX) * XSLOT, ((n >> 1) % NWS) * WSLOT + (n & 1) * 1024
            return [f"ds_read_b128 {vr(XF[bb][0],4)}, v{vXR[n & 3]} offset:{xo}",
                    f"ds_read_b128 {vr(WF[bb][0],4)}, v{vB0} offset:{wo_}",
                    f"ds_read_b128 {vr(WF[bb][1],4)}, v{vB0} offset:{wo_ + 2048}",
                    f"ds_read_b128 {vr(XF[bb][1],4)}, v{vXR[n & 3]} offset:{xo + 4096}"]
        s_, ks = divmod(n, 2)
        slot = s_ % 5
        a, b, off = (vA1, vB1, 0) if slot == 4 else (vA0, vB0, slot * SLOT)
        bb = n & 1
        return [f"ds_read_b128 {vr(XF[bb][0],4)}, v{a} offset:{off + ks * 1024}",
                f"ds_read_b128 {vr(WF[bb][0],4)}, v{b} offset:{off + ks * 1024}",
                f"ds_read_b128 {vr(WF[bb][1],4)}, v{b} offset:{off + 2048 + ks * 1024}",
                f"ds_read_b128 {vr(XF[bb][1],4)}, v{a} offset:{off + 2048 + ks * 1024}"]

    if fusedb:
        common.mark(P, 0)
        for mt in range(2):
            for cp in range(2):
                for k in range(8):
                    src = UP + 16 * mt + 8 * cp + k
                    P(f"v_lshlrev_b32 v{ACC[mt][cp] + 2 * k}, 16, v{src}")
                    P(f"v_and_b32 v{ACC[mt][cp] + 2 * k + 1}, 0xffff0000, v{src}")
    else:
        if merged:
            P("s_barrier")
        if "smarks" in exp: common.mark(P, 7)
        P("s_barrier")
        common.mark(P, 0)
        P(f"s_setprio {prio['b']}")
        for r in reads(0):
            P(r)
    for n in range(36 if not fusedb else 0):
        bb = n & 1
        mf = []
        for mt in range(2):
            for cp in range(2):
                cop = "0" if n == 0 else vr(ACC[mt][cp], 16)
                mf.append(f"v_mfma_f32_32x32x16_bf16 {vr(ACC[mt][cp],16)}, {vr(XF[bb][mt],4)}, {vr(WF[bb][cp],4)}, {cop}")
        P("s_waitcnt lgkmcnt(0)")
        if "bmarks" in exp and n in (3, 11, 19): common.mark(P, {3: 5, 11: 6, 19: 7}[n])
        if bb == 1 and n + 1 < 36:
            P("s_barrier")
        rs = reads(n + 1) if n + 1 < 36 else []
        for k in range(4):
            P(mf[k])
            take = rs[:2] if k < 2 else []
            rs = rs[len(take):]
            for r in take:
                P(r)

    P(f"s_setprio {prio['s']}")
    common.mark(P, 4)
    if lamt:
        P("s_waitcnt vmcnt(0)")
        P(f"v_sub_f32 v{nli}, 0, v{li}")
    ea, eb = (t, t + 1), (t + 2, t + 3)
    U = lambda tau, cp: ACC[tau >> 4][cp] + (tau & 15)
    cur = (U(0, 0), U(0, 1))
    for tau in range(1, 32):
        nx = ea if tau & 1 else eb
        P(f"""
        v_fma_f32 v{nx[0]}, v{lr}, v{cur[0]}, v{U(tau,0)}
        v_fma_f32 v{nx[1]}, v{lr}, v{cur[1]}, v{U(tau,1)}
        v_fmac_f32 v{nx[0]}, v{nli}, v{cur[1]}
        v_fmac_f32 v{nx[1]}, v{li}, v{cur[0]}
        """)
        cur = nx
    assert cur == ea
    P(f"""
    v_lshrrev_b32 v{t+4}, 5, v{vLane}
    v_lshlrev_b32 v{t+4}, 9, v{t+4}
    v_and_b32 v{t+5}, 31, v{vLane}
    v_lshlrev_b32 v{t+5}, 3, v{t+5}
    s_lshl_b32 s{sT}, s{sWN}, 8
    s_add_u32 s{sT}, s{sT}, {ELOC}
    v_add_u32 v{t+5}, s{sT}, v{t+5}
    s_lshl_b32 s{sT}, s{sWM}, 10
    v_add_u32 v{t+4}, s{sT}, v{t+4}
    v_add_u32 v{t+4}, v{t+4}, v{t+5}
    ds_write_b64 v{t+4}, {vr(ea[0],2)}
    s_waitcnt lgkmcnt(0)
    s_barrier
    """)
    EL = [98, 100, 122, 124]
    for k in range(4):
        P(f"ds_read_b64 {vr(EL[k], 2)}, v{t+5} offset:{k * 512}")

    def cmuladd(dr, di, ar, ai, nai, xr, xi, yr, yi):
        P(f"""
        v_fma_f32 v{t+6}, v{ar}, v{xr}, v{yr}
        v_fma_f32 v{t+7}, v{ar}, v{xi}, v{yi}
        v_fma_f32 v{dr}, -v{ai}, v{xi}, v{t+6}
        v_fma_f32 v{di}, v{ai}, v{xr}, v{t+7}
        """) if (dr, di) != (xr, xi) else P(f"""
        v_fma_f32 v{t+6}, v{ar}, v{xr}, v{yr}
        v_fma_f32 v{t+7}, v{ar}, v{xi}, v{yi}
        v_fma_f32 v{t+7}, v{ai}, v{xr}, v{t+7}
        v_fma_f32 v{dr}, -v{ai}, v{xi}, v{t+6}
        v_mov_b32 v{di}, v{t+7}
        """)

    Eb = 66
    cmuladd(t, t + 1, mr, mi, None, EL[0], EL[0] + 1, EL[1], EL[1] + 1)
    cmuladd(t + 2, t + 3, mr, mi, None, t, t + 1, EL[2], EL[2] + 1)
    cmuladd(Eb, Eb + 2, mr, mi, None, t + 2, t + 3, EL[3], EL[3] + 1)
    nopub = P.newlabel(pfx + "_nopub")
    P(f"""
    v_mov_b32 v{Eb+1}, s{sTag}
    v_mov_b32 v{Eb+3}, s{sTag}
    s_mul_i32 s{sT}, s{sTB}, 576
    v_add_u32 v{t}, s{sT}, v{t+8}
    v_lshlrev_b32 v{t}, 4, v{t}
    s_cmp_eq_u32 s{sWM}, 0
    s_cbranch_scc0 {nopub}
    s_mov_b32 exec_hi, 0
    buffer_store_dwordx4 {vr(Eb,4)}, v{t}, s[{sE}:{sE+3}], 0 offen sc1
    s_mov_b32 exec_hi, -1
    """)
    P.L(nopub)
    EDr = [66 + 4 * i for i in range(8)]
    use(125)
    vN, vEo = t + 2, t + 3
    P(f"""
    v_lshrrev_b32 v{vN}, 5, v{vLane}
    v_lshlrev_b32 v{vN}, 3, v{vN}
    s_sub_i32 s{sT}, s{sTB}, 16
    v_add_u32 v{vN}, s{sT}, v{vN}
    s_movk_i32 s{sT}, 576
    v_mul_lo_u32 v{vEo}, v{vN}, s{sT}
    v_add_u32 v{vEo}, v{vEo}, v{t+8}
    v_lshlrev_b32 v{vEo}, 4, v{vEo}
    """)
    if "pmarks" not in exp and "bmarks" not in exp and "smarks" not in exp: common.mark(P, 5)
    for e in exp:
        if e.startswith("esleep="): P(f"s_sleep {int(e[7:])}")
    ep = P.newlabel(pfx + "_epoll")
    P.L(ep)
    for i in range(8):
        P(f"v_add_u32 v{t}, {i * 9216}, v{vEo}")
        P(f"buffer_load_dwordx4 {vr(EDr[i],4)}, v{t}, s[{sE}:{sE+3}], 0 offen sc1")
    P(f"s_mov_b64 s[{sBad}:{sBad+1}], 0")
    for i in range(8):
        P(f"""
        v_cmp_eq_u32 vcc, s{sTag}, v{EDr[i]+1}
        v_cmp_eq_u32 s[{sOk}:{sOk+1}], s{sTag}, v{EDr[i]+3}
        s_and_b64 s[{sOk}:{sOk+1}], s[{sOk}:{sOk+1}], vcc
        v_cmp_gt_i32 vcc, {-i}, v{vN}
        s_or_b64 s[{sOk}:{sOk+1}], s[{sOk}:{sOk+1}], vcc
        s_orn2_b64 s[{sBad}:{sBad+1}], s[{sBad}:{sBad+1}], s[{sOk}:{sOk+1}]
        """)
    edone = P.newlabel(pfx + "_edone")
    P(f"""
    s_cmp_eq_u64 s[{sBad}:{sBad+1}], 0
    s_cbranch_scc1 {edone}
    s_sleep 2
    s_branch {ep}
    """)
    P.L(edone)
    if "pmarks" not in exp and "bmarks" not in exp and "smarks" not in exp: common.mark(P, 6)
    H = (t + 4, t + 5)
    cmuladd(H[0], H[1], br, bi, None, EDr[0], EDr[0] + 2, EDr[1], EDr[1] + 2)
    for i in range(2, 8):
        cmuladd(H[0], H[1], br, bi, None, H[0], H[1], EDr[i], EDr[i] + 2)
    for _ in range(3):
        csq(br, bi, br, bi)
    a0, a1, b0, b1 = 66, 67, 68, 69
    P(f"""
    v_mov_b32 v{a0}, v{H[0]}
    v_mov_b32 v{b0}, v{H[0]}
    v_mov_b32 v{a1}, v{H[1]}
    v_mov_b32 v{b1}, v{H[1]}
    v_permlane32_swap_b32 v{a0}, v{b0}
    v_permlane32_swap_b32 v{a1}, v{b1}
    """)
    C0, C1, C2, C3 = (82, 83), (84, 85), (86, 87), (88, 89)
    cmuladd(C0[0], C0[1], br, bi, None, a0, a1, b0, b1)
    cmuladd(C1[0], C1[1], mr, mi, None, C0[0], C0[1], EL[0], EL[0] + 1)
    w1, gsel = P.newlabel(pfx + "_wm1"), P.newlabel(pfx + "_gsel")
    g0 = (t, t + 1)
    P(f"""
    v_cmp_le_u32 vcc, 32, v{vLane}
    s_cmp_eq_u32 s{sWM}, 0
    s_cbranch_scc0 {w1}
    v_cndmask_b32 v{g0[0]}, v{C0[0]}, v{C1[0]}, vcc
    v_cndmask_b32 v{g0[1]}, v{C0[1]}, v{C1[1]}, vcc
    s_branch {gsel}
    """)
    P.L(w1)
    cmuladd(C2[0], C2[1], mr, mi, None, C1[0], C1[1], EL[1], EL[1] + 1)
    cmuladd(C3[0], C3[1], mr, mi, None, C2[0], C2[1], EL[2], EL[2] + 1)
    P(f"""
    v_cndmask_b32 v{g0[0]}, v{C2[0]}, v{C3[0]}, vcc
    v_cndmask_b32 v{g0[1]}, v{C2[1]}, v{C3[1]}, vcc
    """)
    P.L(gsel)
    cur = g0
    for tau in range(32):
        ur, ui = U(tau, 0), U(tau, 1)
        P(f"""
        v_fmac_f32 v{ur}, v{lr}, v{cur[0]}
        v_fmac_f32 v{ui}, v{lr}, v{cur[1]}
        v_fmac_f32 v{ur}, v{nli}, v{cur[1]}
        v_fmac_f32 v{ui}, v{li}, v{cur[0]}
        """)
        cur = (ur, ui)
    if not early:
        tr_write_addr()
    PK = 66
    for cp in range(2):
        for k in range(16):
            P(f"v_cvt_pk_bf16_f32 v{PK + 16 * cp + k}, v{U(2 * k, cp)}, v{U(2 * k + 1, cp)}")
        for m in range(4):
            P(f"v_xor_b32 v{vX_}, {16 * m}, v{vTW}")
            P(f"ds_write_b128 v{vX_}, {vr(PK + 16 * cp + 4 * m, 4)} offset:{cp * 4096}")
    if not early:
        tr_read_addr()
    P(f"""
    s_lshl_b32 s{sT}, s{sTB}, 2
    s_lshl_b32 s{sT2}, s{sWM}, 1
    s_add_u32 s{sT}, s{sT}, s{sT2}
    s_mul_i32 s{sT}, s{sT}, 72
    s_lshl_b32 s{sT2}, s{sSB}, 2
    s_add_u32 s{sT}, s{sT}, s{sT2}
    s_lshl_b32 s{sT2}, s{sWN}, 1
    s_add_u32 s{sT}, s{sT}, s{sT2}
    s_lshl_b32 s{sT}, s{sT}, 10
    s_add_u32 s{sT}, s{sT}, {WS_HF}
    s_waitcnt lgkmcnt(0)
    """)
    TRA = [t + 4, t + 5, t + 6, t + 7]
    for tt2 in range(2):
        for rd in range(2):
            P(f"v_xor_b32 v{TRA[2 * tt2 + rd]}, {tt2 * 64 + rd * 32}, v{vTR}")
    FR = [2 + 4 * i for i in range(8)]
    k = 0
    for tt2 in range(2):
        for cp in range(2):
            for s16 in range(2):
                for rd in range(2):
                    P(f"ds_read_b64_tr_b16 {vr(FR[k] + 2 * rd, 2)}, v{TRA[2 * tt2 + rd]} offset:{cp * 4096 + s16 * 2048 + rd * 512}")
                k += 1
    k = 0
    for tt2 in range(2):
        for cp in range(2):
            P(f"s_add_u32 s{sT2}, s{sT}, {(tt2 * 72 + cp * 36) * 1024}")
            for s16 in range(2):
                P(f"buffer_store_dwordx4 {vr(FR[k],4)}, v{vL16}, {ws}, s{sT2} offen offset:{s16 * 1024} sc1")
                k += 1
    if "pmarks" not in exp and "bmarks" not in exp and "smarks" not in exp: common.mark(P, 7)
    P("s_waitcnt vmcnt(0)")
    P("s_barrier")
    common.mark(P, 8)
    fl = P.newlabel(pfx + "_noflag")
    if rawb:
        P(f"""
        s_cmp_eq_u32 s{sW}, 0
        s_cbranch_scc0 {fl}
        s_lshl_b32 s{sT}, s{sIdx}, 2
        s_add_u32 s{sT}, s{sT}, {WS_FLG + FLG_PREP}
        v_mov_b32 v2, {flag}
        v_lshlrev_b32 v3, 12, v{vLane}
        s_mov_b32 exec_hi, 0
        s_mov_b32 exec_lo, 0xffff
        buffer_store_dword v2, v3, {ws}, s{sT} offen sc1
        s_mov_b64 exec, -1
        """)
    else:
      P(f"""
    s_cmp_eq_u32 s{sW}, 0
    s_cbranch_scc0 {fl}
    s_lshl_b32 s{sT}, s{sTB}, 6
    s_lshl_b32 s{sT2}, s{sSB}, 2
    s_add_u32 s{sT}, s{sT}, s{sT2}
    s_add_u32 s{sT}, s{sT}, {WS_FLG + FLG_HF}
    v_mov_b32 v2, {flag}
    v_mov_b32 v3, 0
    s_mov_b32 exec_hi, 0
    s_mov_b32 exec_lo, 1
    buffer_store_dword v2, v3, {ws}, s{sT} offen sc1
    s_mov_b64 exec, -1
    """)
    P.L(fl)
    if rawb:
        block_map(False)
        P(f"""
        s_lshl_b32 s{sTile}, s{sTB}, 2
        s_add_u32 s{sTile}, s{sTile}, s{sMT}
        """)
    out_phases(False)

    iL = len(P.items)
    P.L(L("loader"))
    if "lmarks" in exp: common.mark(P, 6)
    P(f"""
    s_lshl_b32 s{sT}, s{sTB}, 2
    s_add_u32 s{sT}, s{sT}, s{sMT}
    s_mul_i32 s{sXo}, s{sT}, {36 * 1024}
    s_add_u32 s{sXo}, s{sXo}, {WS_XF}
    s_lshl_b32 s{sT}, s{sSB}, 2
    s_add_u32 s{sT}, s{sT}, s{sMT}
    s_mul_i32 s{sBo}, s{sT}, {36 * 1024}
    s_add_u32 s{sBo}, s{sBo}, {WS_BF}
    s_lshl_b32 s{sM}, s{sMT}, 11
    """)

    def dmaA(s_):
        slot = s_ % 5
        P(f"""
        s_add_u32 m0, s{sM}, {slot * SLOT}
        s_nop 0
        buffer_load_dwordx4 v{vL16}, {ws}, s{sXo} offen lds
        buffer_load_dwordx4 v{vL16}, {ws}, s{sXo} offen offset:1024 lds
        s_add_u32 m0, s{sM}, {slot * SLOT + 8192}
        s_add_u32 s{sXo}, s{sXo}, 2048
        buffer_load_dwordx4 v{vL16}, {ws}, s{sBo} offen lds
        buffer_load_dwordx4 v{vL16}, {ws}, s{sBo} offen offset:1024 lds
        s_add_u32 s{sBo}, s{sBo}, 2048
        """)

    if merged:
        vDX = [4, 5, 6, 7]
        sMX, sMW, sOffX = sM, 25, 31
        DUX = 4 * 1152 - 1024
        P(f"""
        v_lshrrev_b32 v8, 5, v{vLane}
        v_lshlrev_b32 v8, 5, v8
        v_lshrrev_b32 v9, 3, v{vLane}
        v_and_b32 v9, 3, v9
        v_add_u32 v8, v8, v9
        v_mul_u32_u24 v8, 1152, v8
        v_lshrrev_b32 v9, 4, v{vLane}
        v_and_b32 v10, 7, v{vLane}
        v_xor_b32 v9, v9, v10
        v_lshlrev_b32 v9, 4, v9
        v_xor_b32 v10, 64, v9
        v_add_u32 v{vDX[0]}, v8, v9
        v_add_u32 v10, v8, v10
        v_add_u32 v{vDX[1]}, {DUX}, v10
        v_add_u32 v{vDX[2]}, {2 * DUX}, v{vDX[0]}
        v_add_u32 v{vDX[3]}, {3 * DUX}, v10
        s_lshl_b32 s{sOffX}, s{sTB}, 7
        s_lshr_b32 s{sT}, s{sMT}, 1
        s_lshl_b32 s{sT}, s{sT}, 6
        s_add_u32 s{sOffX}, s{sOffX}, s{sT}
        s_and_b32 s{sT}, s{sMT}, 1
        s_lshl_b32 s{sT}, s{sT}, 4
        s_add_u32 s{sOffX}, s{sOffX}, s{sT}
        s_mul_i32 s{sOffX}, s{sOffX}, 1152
        s_lshl_b32 s{sMX}, s{sMT}, 12
        s_lshl_b32 s{sMW}, s{sMT}, 11
        s_add_u32 s{sMW}, s{sMW}, {WBASE}
        """)
        lp, dn = P.newlabel(pfx + "_ppoll"), P.newlabel(pfx + "_pdone")
        if rawb:
            sB4 = 44
            P(f"""
            s_load_dwordx4 s[52:55], s[0:1], {KA_BRE}
            """.replace("s[52:55]", "s[84:87]"))
            P(f"""
            v_lshrrev_b32 v8, 2, v{vLane}
            s_lshl_b32 s{sT}, s{sSB}, 6
            s_and_b32 s{sT2}, s{sMT}, 1
            s_lshl_b32 s{sT2}, s{sT2}, 5
            s_add_u32 s{sT}, s{sT}, s{sT2}
            v_add_u32 v8, s{sT}, v8
            v_mul_u32_u24 v8, 1152, v8
            v_lshrrev_b32 v9, 4, v{vLane}
            v_xor_b32 v9, v9, v{vLane}
            v_and_b32 v9, 3, v9
            v_lshlrev_b32 v9, 4, v9
            v_add_u32 v2, v8, v9
            v_add_u32 v3, {16 * 1152 - 1024}, v2
            s_mov_b32 s{sB4+2}, {576 * 1152}
            s_mov_b32 s{sB4+3}, 0x00020000
            s_mov_b32 s{sBo}, 0
            s_cmp_ge_u32 s{sMT}, 2
            s_waitcnt lgkmcnt(0)
            s_cselect_b32 s{sB4}, s86, s84
            s_cselect_b32 s{sB4+1}, s87, s85
            """)
            P(f"""
            s_cmp_eq_u32 s{sW}, 4
            s_cbranch_scc0 {dn}
            s_lshl_b32 s{sT}, s{sIdx}, 6
            s_add_u32 s{sT}, s{sT}, {WS_FLG + FLG_GO}
            s_mov_b64 exec, 1
            """)
            if "nogo" in exp:
                P(f"s_branch {dn}")
            P.L(lp)
            P(f"""
            buffer_load_dword v12, off, {ws}, s{sT} sc1
            s_waitcnt vmcnt(0)
            v_cmp_ne_u32 vcc, {flag}, v12
            s_cbranch_vccz {dn}
            s_sleep {psleep}
            s_branch {lp}
            """)
        else:
          P(f"""
        s_cmp_eq_u32 s{sW}, 4
        s_cbranch_scc0 {dn}
        s_and_b32 s{sT2}, s{sIdx}, {NREP - 1}
        s_lshl_b32 s{sT2}, s{sT2}, 12
        s_lshl_b32 s{sT}, s{sIdx}, 6
        s_add_u32 s{sT}, s{sT}, {FLG_GO - FLG_PREP}
        s_sub_u32 s{sT}, s{sT}, s{sT2}
        v_mov_b32 v9, s{sT}
        v_cmp_eq_u32 vcc, 36, v{vLane}
        v_cndmask_b32 v8, v{vL16}, v9, vcc
        s_add_u32 s{sT}, s{sT2}, {WS_FLG + FLG_PREP}
        s_mov_b32 exec_hi, {"0xf" if "nogo" in exp else "0x1f"}
        """)
        if not rawb:
          P.L(lp)
          P(f"""
        buffer_load_dwordx4 v[12:15], v8, {ws}, s{sT} offen sc1
        s_waitcnt vmcnt(0)
        v_cmp_ne_u32 vcc, {flag}, v12
        v_cmp_ne_u32 s[{sOk}:{sOk+1}], {flag}, v13
        s_or_b64 s[{sBad}:{sBad+1}], vcc, s[{sOk}:{sOk+1}]
        v_cmp_ne_u32 vcc, {flag}, v14
        v_cmp_ne_u32 s[{sOk}:{sOk+1}], {flag}, v15
        s_or_b64 s[{sBad}:{sBad+1}], s[{sBad}:{sBad+1}], vcc
        s_or_b64 s[{sBad}:{sBad+1}], s[{sBad}:{sBad+1}], s[{sOk}:{sOk+1}]
        s_cbranch_scc0 {dn}
        s_sleep {psleep}
        s_branch {lp}
        """)
        P.L(dn)
        P("s_mov_b64 exec, -1")
        if "bmarks" in exp: common.mark(P, 5)
        P("s_barrier")
        if "pmarks" in exp: common.mark(P, 7)
        q = []

        def dmax(c):
            P(f"s_add_u32 m0, s{sMX}, {(c % NX) * XSLOT}")
            P("s_nop 0")
            for u in range(4):
                P(f"buffer_load_dwordx4 v{vDX[u]}, s[{sAX}:{sAX+3}], s{sOffX} offen offset:{u * 1024} lds")
            P(f"s_add_u32 s{sOffX}, s{sOffX}, 128")
            q.extend([f"x{c}"] * 4)

        def dmab(b):
            if rawb:
                P(f"""
                s_add_u32 m0, s{sMW}, {(b % NWS) * WSLOT}
                s_nop 0
                buffer_load_dwordx4 v2, s[{sB4}:{sB4+3}], s{sBo} offen lds
                buffer_load_dwordx4 v3, s[{sB4}:{sB4+3}], s{sBo} offen offset:1024 lds
                s_add_u32 s{sBo}, s{sBo}, 64
                """)
                q.extend([f"w{b}"] * 2)
                return
            P(f"""
            s_add_u32 m0, s{sMW}, {(b % NWS) * WSLOT}
            s_nop 0
            buffer_load_dwordx4 v{vL16}, {ws}, s{sBo} offen lds
            buffer_load_dwordx4 v{vL16}, {ws}, s{sBo} offen offset:1024 lds
            s_add_u32 s{sBo}, s{sBo}, 2048
            """)
            q.extend([f"w{b}"] * 2)

        def wait(tags):
            idx = max(i for i, e in enumerate(q) if e in tags)
            P(f"s_waitcnt vmcnt({len(q) - 1 - idx})")

        dmax(0); dmab(0); dmab(1); dmax(1); dmab(2); dmab(3); dmax(2)
        P(f"s_setprio {prio['l']}")
        wait(["x0", "w0"])
        P("s_barrier")
        for b in range(17):
            wait([f"w{b + 1}"] + ([f"x{(b + 1) // 2}"] if b & 1 else []))
            P("s_barrier")
            if b + 4 < 18:
                dmab(b + 4)
            if b & 1 and (b - 1) // 2 + 3 < 9:
                dmax((b - 1) // 2 + 3)
        if rawb:
            from prepm import emit_prep
            emit_prep(P, sIdx, sWave, exp=exp, late=True, mid=lambda: P("s_barrier"))
            base_regs(False)
    elif not fusedb:
        pre = 5
        for e in exp:
            if e.startswith("spre="): pre = int(e[5:])
        issued = []

        def req(s_):
            dmaA(s_)
            issued.append(s_)

        def landed(s_):
            P(f"s_waitcnt vmcnt({4 * (len(issued) - 1 - issued.index(s_))})")

        for s_ in range(pre):
            req(s_)
            if "lmarks" in exp and s_ == 0: common.mark(P, 8)
        if lfirst:
            base_regs(rest=True)
        P(f"s_setprio {prio['l']}")
        if "smarks" in exp: common.mark(P, 5)
        landed(0)
        if "smarks" in exp: common.mark(P, 7)
        P("s_barrier")
        for s_ in range(pre, 5):
            req(s_)
        for s_ in range(17):
            landed(s_ + 1)
            P("s_barrier")
            if s_ + 5 < 18:
                req(s_ + 5)
    P(f"""
    s_lshl_b32 s{sT}, s{sSB}, 1
    s_and_b32 s{sT2}, s{sMT}, 1
    s_add_u32 s{sT}, s{sT}, s{sT2}
    s_mul_i32 s{sCo}, s{sT}, {72 * 1024}
    s_lshr_b32 s{sT2}, s{sMT}, 1
    s_mul_i32 s{sT2}, s{sT2}, {36 * 1024}
    s_add_u32 s{sCo}, s{sCo}, s{sT2}
    s_add_u32 s{sCo}, s{sCo}, {WS_CF}
    s_mul_i32 s{sWo}, s{sT}, {36 * 1024}
    s_lshr_b32 s{sT2}, s{sMT}, 1
    s_mul_i32 s{sT2}, s{sT2}, {18 * 1024}
    s_add_u32 s{sWo}, s{sWo}, s{sT2}
    s_add_u32 s{sWo}, s{sWo}, {WS_WF}
    s_lshl_b32 s{sM}, s{sMT}, 12
    """)
    if crot:
        P(f"""
        s_add_u32 s{sCend}, s{sCo}, {9 * 4096}
        s_lshl_b32 s{sT3}, s{sRot}, 12
        s_add_u32 s{sCo}, s{sCo}, s{sT3}
        """)
    lp, dn = P.newlabel(pfx + "_hpoll"), P.newlabel(pfx + "_hdone")
    if rawb:
        P(f"""
        s_waitcnt vmcnt(0)
        s_barrier
        s_cmp_eq_u32 s{sW}, 4
        s_cbranch_scc0 {dn}
        s_and_b32 s{sT2}, s{sIdx}, {NREP - 1}
        s_lshl_b32 s{sT2}, s{sT2}, 12
        s_add_u32 s{sT}, s{sT2}, {WS_FLG + FLG_K1}
        s_lshl_b32 s{sT2}, s{sTB}, 6
        s_add_u32 s{sT2}, s{sT2}, {FLG_K1T - FLG_K1 - 36 * 16}
        v_add_u32 v9, s{sT2}, v{vL16}
        v_add_u32 v8, {FLG_PREP - FLG_K1}, v{vL16}
        v_cmp_le_u32 vcc, 36, v{vLane}
        v_cndmask_b32 v8, v8, v9, vcc
        s_mov_b32 exec_hi, 0xff
        """)
        P.L(lp)
        P(f"""
        buffer_load_dwordx4 v[12:15], v8, {ws}, s{sT} offen sc1
        s_waitcnt vmcnt(0)
        v_cmp_ne_u32 vcc, {flag}, v12
        v_cmp_ne_u32 s[{sOk}:{sOk+1}], {flag}, v13
        s_or_b64 s[{sBad}:{sBad+1}], vcc, s[{sOk}:{sOk+1}]
        v_cmp_ne_u32 vcc, {flag}, v14
        v_cmp_ne_u32 s[{sOk}:{sOk+1}], {flag}, v15
        s_or_b64 s[{sBad}:{sBad+1}], s[{sBad}:{sBad+1}], vcc
        s_or_b64 s[{sBad}:{sBad+1}], s[{sBad}:{sBad+1}], s[{sOk}:{sOk+1}]
        s_cbranch_scc0 {dn}
        s_sleep 4
        s_branch {lp}
        """)
        P.L(dn)
        P("s_mov_b64 exec, -1")
        out_phases(True)
        return hi[0]
    P("s_barrier")
    cf_dma(0)
    cf_dma(1)
    P("s_barrier")
    for c in (2, 3, 4):
        cf_dma(c)
    P(f"""
    s_cmp_eq_u32 s{sW}, 4
    s_cbranch_scc0 {dn}
    s_lshl_b32 s{sT}, s{sTB}, 6
    s_add_u32 s{sT}, s{sT}, {WS_FLG + FLG_HF}
    v_lshlrev_b32 v2, 2, v{vLane}
    """)
    if merged:
        P(f"""
        s_and_b32 s{sT2}, s{sIdx}, {NREP - 1}
        s_lshl_b32 s{sT2}, s{sT2}, 12
        s_add_u32 s{sT2}, s{sT2}, {FLG_K1T - FLG_HF - 64}
        v_add_u32 v3, s{sT2}, v2
        v_cmp_le_u32 vcc, 16, v{vLane}
        v_cndmask_b32 v2, v2, v3, vcc
        """)
    P(f"""
    s_mov_b32 exec_hi, 0
    s_mov_b32 exec_lo, {"0xffff01ff" if merged else "0x1ff"}
    """)
    P.L(lp)
    P(f"""
    buffer_load_dword v3, v2, {ws}, s{sT} offen sc1
    s_waitcnt vmcnt(0)
    v_cmp_ne_u32 vcc, {flag}, v3
    s_cbranch_vccz {dn}
    s_sleep 2
    s_branch {lp}
    """)
    P.L(dn)
    P("s_mov_b64 exec, -1")
    P("s_waitcnt vmcnt(0)")
    out_phases(True)
    if lfirst:
        P.items = P.items[:iC] + P.items[iL:] + P.items[iC:iL]
    return hi[0]
```

```python
from asmgen import *
from layout import *
from prepk import emit_lambda, srd_from_kernarg, f32
import common

SLOT = 16384
SVC_LDS = 81920
ELOC = 78 * 1024
HDEPTH = 16
ODEPTH = 12


def emit_service(P, sIdx, pfx="svc", end="s_endpgm", exp=(), sWave=None, sNonce=None):
    L = lambda n: f"{pfx}_{n}"
    ws = "s[4:7]"
    prio = {"b": 3, "c": 3, "0": 3, "l": 3, "s": 3}
    psleep = 2
    HDEPTH = globals()["HDEPTH"]
    mixc = 6
    for e in exp:
        if e.startswith("mixc="): mixc = int(e[5:])
    for e in exp:
        if e.startswith("hd="): HDEPTH = int(e[3:])
    for e in exp:
        if e.startswith("psleep="): psleep = int(e[7:])
        if e.startswith("pb="): prio["b"] = int(e[3:])
        if e.startswith("pc="): prio["c"] = int(e[3:])
        if e.startswith("p0="): prio["0"] = int(e[3:])
        if e.startswith("pl="): prio["l"] = int(e[3:])
        if e.startswith("ps="): prio["s"] = int(e[3:])
    sTB, sSB, sW, sWM, sWN, sM, sXo, sBo, sCo, sHo = 8, 9, 10, 11, 12, 13, 14, 15, 16, 17
    sT, sT2, sT3, sTag, sKH, sMT, sTile = 18, 19, 20, 21, 22, 23, 24
    sOk, sBad = 26, 28
    sWo = 30
    crot = "crot" in exp
    sRot, sHend, sCend = 48, 25, 31
    sE, sAX, sOut, sP = 32, 36, 40, 44
    vLane, vL16 = 0, 1
    hi = [2]

    def use(*regs):
        hi[0] = max(hi[0], max(regs) + 1)

    merged = sWave is not None
    rawb = merged and "rawb" in exp
    fusedb = "fusedb" in exp
    flag = f"s{sTag}" if merged else "1"

    def block_map(scan):
        if scan and rawb and "nomapa" not in exp:
            P(f"""
            s_lshr_b32 s{sT}, s{sIdx}, 3
            s_lshr_b32 s{sT2}, s{sIdx}, 1
            s_and_b32 s{sT2}, s{sT2}, 3
            s_lshl_b32 s{sT2}, s{sT2}, 1
            s_lshr_b32 s{sSB}, s{sT}, 3
            s_add_u32 s{sSB}, s{sSB}, s{sT2}
            s_and_b32 s{sTB}, s{sIdx}, 1
            s_lshl_b32 s{sTB}, s{sTB}, 3
            s_and_b32 s{sT3}, s{sT}, 7
            s_add_u32 s{sTB}, s{sTB}, s{sT3}
            s_cmp_ge_u32 s{sT}, 16
            s_cselect_b32 s{sSB}, 8, s{sSB}
            s_cselect_b32 s{sT2}, s{sT2}, 0
            s_add_u32 s{sTB}, s{sTB}, s{sT2}
            """)
        else:
            P(f"""
            s_and_b32 s{sTB}, s{sIdx}, 7
            s_lshl_b32 s{sTB}, s{sTB}, 1
            s_lshr_b32 s{sT}, s{sIdx}, 3
            s_and_b32 s{sT}, s{sT}, 1
            s_add_u32 s{sTB}, s{sTB}, s{sT}
            s_lshr_b32 s{sSB}, s{sIdx}, 4
            """)

    lfirst = "lfirst" in exp

    def base_min(scan=True):
        P(f"""
        {"v_lshrrev_b32 v2, 6, v0" if not merged else ""}
        {"v_and_b32 v%d, 63, v0" % vLane if not merged else ""}
        {"v_readfirstlane_b32 s%d, v2" % sW if not merged else "s_mov_b32 s%d, s%d" % (sW, sWave)}
        v_lshlrev_b32 v{vL16}, 4, v{vLane}
        """)
        block_map(scan)
        P(f"""
        s_and_b32 s{sMT}, s{sW}, 3
        s_lshr_b32 s{sKH}, s{sW}, 2
        """)

    def base_regs(scan=True, rest=False):
        srd_from_kernarg(P, sAX, KA_AX, 2048 * 1152)
        srd_from_kernarg(P, sOut, KA_OUT, 2048 * 2304)
        if not rest:
            base_min(scan)
        P(f"""
        s_mov_b32 s{sTag}, {TAG if not merged else 's%d' % sNonce}
        s_add_u32 s{sE}, s4, {WS_E}
        s_addc_u32 s{sE+1}, s5, 0
        s_mov_b32 s{sE+2}, {E_BYTES}
        s_mov_b32 s{sE+3}, 0x00020000
        s_lshl_b32 s{sTile}, s{sTB}, 2
        s_add_u32 s{sTile}, s{sTile}, s{sMT}
        s_and_b32 s{sT}, s{sTB}, 1
        s_lshl_b32 s{sT}, s{sT}, 2
        s_add_u32 s{sRot}, s{sSB}, s{sT}
        s_sub_u32 s{sT}, s{sRot}, 9
        s_cmp_ge_u32 s{sRot}, 9
        s_cselect_b32 s{sRot}, s{sT}, s{sRot}
        """)

    if "lmarks" in exp: common.mark(P, 4)
    if lfirst:
        P(f"s_setprio {prio['0']}")
        base_min()
        P(f"""
        s_cmp_eq_u32 s{sKH}, 0
        s_cbranch_scc1 {L('compute')}
        """)
        iC = len(P.items)
        P.L(L("compute"))
        base_regs(rest=True)
    else:
        base_regs()
        P(f"""
        s_setprio {prio['0']}
        s_cmp_eq_u32 s{sKH}, 0
        s_cbranch_scc0 {L('loader')}
        """)


    def wrap(reg, endreg):
        P(f"""
        s_sub_u32 s{sT3}, s{reg}, {9 * 4096}
        s_cmp_ge_u32 s{reg}, s{endreg}
        s_cselect_b32 s{reg}, s{sT3}, s{reg}
        """)

    def cf_dma(c):
        slot = (c + 2) % 5
        P(f"""
        s_add_u32 m0, s{sM}, {slot * SLOT}
        s_nop 0
        buffer_load_dwordx4 v{vL16}, {ws}, s{sCo} offen lds
        buffer_load_dwordx4 v{vL16}, {ws}, s{sCo} offen offset:1024 lds
        buffer_load_dwordx4 v{vL16}, {ws}, s{sCo} offen offset:2048 lds
        buffer_load_dwordx4 v{vL16}, {ws}, s{sCo} offen offset:3072 lds
        s_add_u32 s{sCo}, s{sCo}, 4096
        """)
        if crot:
            wrap(sCo, sCend)

    def wf_dma(j):
        slot = (9 + j + 2) % 5
        P(f"s_add_u32 m0, s{sM}, {slot * SLOT}")
        P("s_nop 0")
        nk = 4 if j < 4 else 2
        for k in range(nk):
            P(f"buffer_load_dwordx4 v{vL16}, {ws}, s{sWo} offen offset:{k * 1024} lds")
        P(f"s_add_u32 s{sWo}, s{sWo}, 4096")
        return nk

    def out_phases(loader):
        outA = "outA" in exp
        ACC = [2, 18]
        HF = [34 + 4 * i for i in range(HDEPTH)]
        BF = [[98, 102], [106, 110]]
        vC0, vC1 = 114, 115
        vG1, vX, vY, vO, vTm = 116, 117, 118, 119, 120
        XR, DR, GR = 50, 58, 60
        if HDEPTH <= 12:
            XR, DR, GR = 82, 90, 92
        T = 34
        use(121)
        P(f"""
        s_mul_i32 s{sHo}, s{sTile}, {72 * 1024}
        s_mul_i32 s{sT}, s{sKH}, {36 * 1024}
        s_add_u32 s{sHo}, s{sHo}, s{sT}
        s_add_u32 s{sHo}, s{sHo}, {WS_HF}
        s_lshl_b32 s{sT}, s{sKH}, 13
        v_add_u32 v{vC0}, s{sT}, v{vL16}
        v_add_u32 v{vC1}, 0x10000, v{vC0}
        """)
        if crot:
            P(f"""
            s_add_u32 s{sHend}, s{sHo}, {9 * 4096}
            s_lshl_b32 s{sT}, s{sRot}, 12
            s_add_u32 s{sHo}, s{sHo}, s{sT}
            """)
        P("s_barrier")
        common.mark(P, 1)
        vm = []
        if loader and rawb:
            for c in range(5):
                cf_dma(c)
                vm.extend([("c", c)] * 4)

        def hload(n):
            if n % 4 == 0 and n > 0:
                P(f"s_add_u32 s{sHo}, s{sHo}, 4096")
                if crot:
                    wrap(sHo, sHend)
            P(f"buffer_load_dwordx4 {vr(HF[n % HDEPTH],4)}, v{vL16}, {ws}, s{sHo} offen offset:{(n % 4) * 1024}" + ("" if "hfl2" in exp else " sc1"))
            vm.append(("h", n))

        for n in range(HDEPTH):
            hload(n)
        P(f"s_setprio {prio['c']}")
        srd_from_kernarg(P, sP, KA_DSK, 1152)

        def creads(n):
            c, ks = divmod(n, 4)
            slot = (c + 2) % 5
            base, off = (vC1, 0) if slot == 4 else (vC0, slot * SLOT)
            return [f"ds_read_b128 {vr(BF[n & 1][ct],4)}, v{base} offset:{off + ct * 4096 + ks * 1024}" for ct in range(2)]

        def mix_loads_a():
            P(f"""
            v_and_b32 v{vTm}, 31, v{vLane}
            v_lshrrev_b32 v{vY}, 5, v{vLane}
            v_mul_u32_u24 v{vX}, 1152, v{vTm}
            v_lshlrev_b32 v{vY}, 3, v{vY}
            v_add_u32 v{vX}, v{vX}, v{vY}
            s_mul_i32 s{sT}, s{sTile}, {32 * 1152}
            s_lshl_b32 s{sT2}, s{sSB}, 7
            s_lshl_b32 s{sT3}, s{sKH}, 6
            s_add_u32 s{sT2}, s{sT2}, s{sT3}
            s_add_u32 s{sT}, s{sT}, s{sT2}
            """)
            for q in range(4):
                P(f"buffer_load_dwordx2 {vr(XR + 2 * q, 2)}, v{vX}, s[{sAX}:{sAX+3}], s{sT} offen offset:{16 * q}")
            for q in range(4):
                P(f"buffer_load_dwordx2 {vr(DR + 2 * q, 2)}, v{vY}, s[{sP}:{sP+3}], s{sT2} offen offset:{16 * q}")
            P(f"""
            v_lshlrev_b32 v{vX}, 2, v{vTm}
            s_lshl_b32 s{sT}, s{sTile}, 7
            s_add_u32 s{sT}, s{sT}, {WS_G}
            buffer_load_dword v{vG1}, v{vX}, {ws}, s{sT} offen
            v_mul_u32_u24 v{vTm}, 2304, v{vTm}
            v_lshlrev_b32 v{vO}, 1, v{vY}
            v_add_u32 v{vO}, v{vO}, v{vTm}
            """)
            vm.extend([("x", 0)] * 9)

        def mix_loads():
            P(f"""
            v_lshrrev_b32 v{vTm}, 3, v{vLane}
            v_xor_b32 v{vO}, v{vTm}, v{vLane}
            v_and_b32 v{vO}, 7, v{vO}
            v_mul_u32_u24 v{vX}, 1152, v{vTm}
            v_lshlrev_b32 v{vY}, 3, v{vO}
            v_add_u32 v{vX}, v{vX}, v{vY}
            s_mul_i32 s{sT}, s{sTile}, {32 * 1152}
            s_lshl_b32 s{sT2}, s{sSB}, 7
            s_lshl_b32 s{sT3}, s{sKH}, 6
            s_add_u32 s{sT2}, s{sT2}, s{sT3}
            s_add_u32 s{sT}, s{sT}, s{sT2}
            """)
            for i in range(4):
                P(f"buffer_load_dwordx2 {vr(XR + 2 * i, 2)}, v{vX}, s[{sAX}:{sAX+3}], s{sT} offen")
                if i < 3:
                    P(f"s_add_u32 s{sT}, s{sT}, {8 * 1152}")
            P(f"""
            buffer_load_dwordx2 {vr(DR, 2)}, v{vY}, s[{sP}:{sP+3}], s{sT2} offen
            v_lshlrev_b32 v{vY}, 2, v{vTm}
            s_lshl_b32 s{sT}, s{sTile}, 7
            s_add_u32 s{sT}, s{sT}, {WS_G}
            """)
            for i in range(4):
                P(f"buffer_load_dword v{GR + i}, v{vY}, {ws}, s{sT} offen offset:{32 * i}")
            P(f"""
            v_and_b32 v{vX}, 31, v{vLane}
            v_lshlrev_b32 v{vX}, 2, v{vX}
            buffer_load_dword v{vG1}, v{vX}, {ws}, s{sT} offen
            v_mul_u32_u24 v{vTm}, 2304, v{vTm}
            v_lshlrev_b32 v{vO}, 4, v{vO}
            v_add_u32 v{vO}, v{vO}, v{vTm}
            """)
            vm.extend([("x", 0)] * 10)

        for c in range(9):
            if loader and (c >= 5 or rawb):
                idx = max(i for i, e in enumerate(vm) if e == ("c", c))
                P(f"s_waitcnt vmcnt({len(vm) - 1 - idx})")
            P("s_barrier")
            if loader and 1 <= c <= 4:
                cf_dma(c + 4)
                vm.extend([("c", c + 4)] * 4)
            if loader and c >= 5 and "wflate" not in exp:
                vm.extend([("w", c - 5)] * wf_dma(c - 5))
            if c == mixc and "mixlate" not in exp:
                if "mixp" in exp: P("s_setprio 3")
                mix_loads_a() if outA else mix_loads()
                if "mixp" in exp: P(f"s_setprio {prio['c']}")
            if "cmarks" in exp:
                common.mark(P, [4, 5, 6, 7, 8, 14, 15, 12, 13][c])
            else:
                if c == 4: common.mark(P, 14)
                if c == 7: common.mark(P, 15)
            for r in creads(4 * c):
                P(r)
            for ks in range(4):
                n = 4 * c + ks
                if ks < 3:
                    for r in creads(n + 1):
                        P(r)
                for ct in range(2):
                    cop = "0" if n == 0 else vr(ACC[ct], 16)
                    P(f"v_mfma_f32_32x32x16_bf16 {vr(ACC[ct],16)}, {vr(BF[n & 1][ct],4)}, {vr(HF[n % HDEPTH],4)}, {cop}")
                if n + HDEPTH < 36:
                    hload(n + HDEPTH)
            P("s_waitcnt lgkmcnt(0)")
        P("s_setprio 3")
        P("s_barrier")
        if loader:
            if "wflate" in exp:
                for j in range(4):
                    wf_dma(j)
            wf_dma(4)
        if "mixlate" in exp:
            mix_loads_a() if outA else mix_loads()
        tpoll = "tpoll" in exp
        if tpoll:
            P(f"""
            s_lshr_b32 s{sT}, s{sTB}, 1
            s_lshl_b32 s{sT}, s{sT}, 7
            s_add_u32 s{sOk}, s{sT}, {WS_FLG + FLG_ATT}
            v_and_b32 v121, 31, v{vLane}
            v_lshlrev_b32 v121, 2, v121
            buffer_load_dword v122, v121, {ws}, s{sOk} offen sc1
            """)
        common.mark(P, 2)
        if outA:
            for q in range(4):
                for j in range(4):
                    sx, sd = XR + 2 * q + (j >> 1), DR + 2 * q + (j >> 1)
                    if j & 1:
                        P(f"v_and_b32 v{T + 4 * q + j}, 0xffff0000, v{sx}")
                        P(f"v_and_b32 v{98 + j}, 0xffff0000, v{sd}")
                    else:
                        P(f"v_lshlrev_b32 v{T + 4 * q + j}, 16, v{sx}")
                        P(f"v_lshlrev_b32 v{98 + j}, 16, v{sd}")
                for j in range(4):
                    P(f"v_mul_f32 v{98 + j}, v{vG1}, v{98 + j}")
                for j in range(4):
                    P(f"v_mul_f32 v{T + 4 * q + j}, v{T + 4 * q + j}, v{98 + j}")
        else:
            Df = [98, 99, 100, 101]
            P(f"""
            v_lshlrev_b32 v{Df[0]}, 16, v{DR}
            v_and_b32 v{Df[1]}, 0xffff0000, v{DR}
            v_lshlrev_b32 v{Df[2]}, 16, v{DR+1}
            v_and_b32 v{Df[3]}, 0xffff0000, v{DR+1}
            """)
            for i in range(4):
                for j in range(4):
                    src = XR + 2 * i + (j >> 1)
                    if j & 1:
                        P(f"v_and_b32 v{T + 4 * i + j}, 0xffff0000, v{src}")
                    else:
                        P(f"v_lshlrev_b32 v{T + 4 * i + j}, 16, v{src}")
                for j in range(4):
                    P(f"v_mul_f32 v{T + 4 * i + j}, v{T + 4 * i + j}, v{Df[j]}")
                for j in range(4):
                    P(f"v_mul_f32 v{T + 4 * i + j}, v{T + 4 * i + j}, v{GR + i}")
        for ct in range(2):
            for r in range(16):
                P(f"v_mul_f32 v{ACC[ct] + r}, v{vG1}, v{ACC[ct] + r}")
        common.mark(P, 9)
        if outA:
            P(f"""
            s_lshl_b32 s{sT}, s{sW}, 12
            v_add_u32 v{vX}, s{sT}, v{vL16}
            s_xor_b32 s{sT}, s{sW}, 4
            s_lshl_b32 s{sT}, s{sT}, 12
            v_add_u32 v{vY}, s{sT}, v{vL16}
            """)
        else:
            P(f"""
        v_and_b32 v{vTm}, 31, v{vLane}
        v_lshrrev_b32 v{vX}, 5, v{vLane}
        v_xor_b32 v{vX}, v{vX}, v{vTm}
        v_and_b32 v{vX}, 7, v{vX}
        v_lshlrev_b32 v{vX}, 4, v{vX}
        v_lshlrev_b32 v{vTm}, 7, v{vTm}
        v_add_u32 v{vX}, v{vX}, v{vTm}
        s_lshl_b32 s{sT}, s{sMT}, 14
        s_lshl_b32 s{sT2}, s{sKH}, 12
        s_add_u32 s{sT2}, s{sT2}, s{sT}
        v_add_u32 v{vX}, s{sT2}, v{vX}
        s_lshl_b32 s{sT2}, s{sKH}, 13
        s_add_u32 s{sT2}, s{sT2}, s{sT}
        v_add_u32 v{vY}, s{sT2}, v{vL16}
        """)
        P(f"""
        s_mul_i32 s{sT}, s{sKH}, {18 * 1024}
        s_mul_i32 s{sHo}, s{sTile}, {36 * 1024}
        s_add_u32 s{sHo}, s{sHo}, s{sT}
        s_add_u32 s{sHo}, s{sHo}, {WS_OF}
        """)
        if tpoll:
            lp, dn = P.newlabel(pfx + "_apoll"), P.newlabel(pfx + "_adone")
            P.L(lp)
            P(f"""
            s_waitcnt vmcnt(0)
            v_cmp_ne_u32 vcc, {flag}, v122
            s_cbranch_vccz {dn}
            s_sleep 1
            buffer_load_dword v122, v121, {ws}, s{sOk} offen sc1
            s_branch {lp}
            """)
            P.L(dn)
            use(123)
        elif not loader:
            lp, dn = P.newlabel(pfx + "_apoll"), P.newlabel(pfx + "_adone")
            P(f"""
            s_cmp_eq_u32 s{sW}, 0
            s_cbranch_scc0 {dn}
            s_lshr_b32 s{sT}, s{sTB}, 1
            s_lshl_b32 s{sT}, s{sT}, 7
            s_add_u32 s{sT}, s{sT}, {WS_FLG + FLG_ATT}
            v_lshlrev_b32 v121, 2, v{vLane}
            s_mov_b32 exec_hi, 0
            """)
            P.L(lp)
            P(f"""
            buffer_load_dword v122, v121, {ws}, s{sT} offen sc1
            s_waitcnt vmcnt(0)
            v_cmp_ne_u32 vcc, {flag}, v122
            s_cbranch_vccz {dn}
            s_sleep 1
            s_branch {lp}
            """)
            P.L(dn)
            P("s_mov_b64 exec, -1")
            use(123)
        if not tpoll:
            P("s_waitcnt vmcnt(0)")
            P("s_barrier")
        common.mark(P, 3)
        OFr = [50 + 4 * i for i in range(ODEPTH)]
        WB = BF

        def oload(n):
            if n % 4 == 0 and n > 0:
                P(f"s_add_u32 s{sHo}, s{sHo}, 4096")
            shared = loader and n >= 14
            P(f"buffer_load_dwordx4 {vr(OFr[n % ODEPTH],4)}, v{vL16}, {ws}, s{sHo} offen offset:{(n % 4) * 1024}" + ("" if "ofl2" in exp and not shared else " sc1"))

        for n in range(ODEPTH):
            oload(n)
        if tpoll:
            P("s_barrier")

        def wreads(n):
            j, ks = divmod(n, 4)
            slot = (9 + j + 2) % 5
            base, off = (vC1, 0) if slot == 4 else (vC0, slot * SLOT)
            return [f"ds_read_b128 {vr(WB[n & 1][ct],4)}, v{base} offset:{off + ct * 4096 + ks * 1024}" for ct in range(2)]

        for r in wreads(0):
            P(r)
        for n in range(18):
            if n + 1 < 18:
                for r in wreads(n + 1):
                    P(r)
            for ct in range(2):
                P(f"v_mfma_f32_32x32x16_bf16 {vr(ACC[ct],16)}, {vr(WB[n & 1][ct],4)}, {vr(OFr[n % ODEPTH],4)}, {vr(ACC[ct],16)}")
            if n + ODEPTH < 18:
                oload(n + ODEPTH)
        common.mark(P, 10)
        P("s_barrier")
        if "cmarks" not in exp: common.mark(P, 12)
        if outA:
            keep, send = (ACC[1], ACC[0]) if loader else (ACC[0], ACC[1])
            for q in range(4):
                P(f"ds_write_b128 v{vX}, {vr(send + 4 * q, 4)} offset:{q * 1024}")
            for r in range(16):
                P(f"v_add_f32 v{T + r}, v{T + r}, v{keep + r}")
            P(f"""
            s_mul_i32 s{sT}, s{sTile}, {32 * 2304}
            s_lshl_b32 s{sT2}, s{sSB}, 8
            s_add_u32 s{sT}, s{sT}, s{sT2}
            s_lshl_b32 s{sT2}, s{sKH}, 7
            s_add_u32 s{sT}, s{sT}, s{sT2}
            s_waitcnt lgkmcnt(0)
            s_barrier
            """)
            common.mark(P, 13)
            RB = 50
            for q in range(4):
                P(f"ds_read_b128 {vr(RB + 4 * q, 4)}, v{vY} offset:{q * 1024}")
            for q in range(4):
                for j in range(4):
                    P(f"v_add_f32 v{T + 4 * q + j}, v{T + 4 * q + j}, v{RB + 4 * q + j}")
                P(f"buffer_store_dwordx4 {vr(T + 4 * q, 4)}, v{vO}, s[{sOut}:{sOut+3}], s{sT} offen offset:{32 * q}")
        else:
            for ct in range(2):
                for q in range(4):
                    a = vX
                    if q:
                        P(f"v_xor_b32 v{vTm}, {32 * q}, v{vX}")
                        a = vTm
                    P(f"ds_write_b128 v{a}, {vr(ACC[ct] + 4 * q, 4)} offset:{ct * 8192}")
            P(f"""
            s_mul_i32 s{sT}, s{sTile}, {32 * 2304}
            s_lshl_b32 s{sT2}, s{sSB}, 8
            s_add_u32 s{sT}, s{sT}, s{sT2}
            s_lshl_b32 s{sT2}, s{sKH}, 7
            s_add_u32 s{sT}, s{sT}, s{sT2}
            s_waitcnt lgkmcnt(0)
            s_barrier
            """)
            RB = 50
            common.mark(P, 13)
            for i in range(4):
                for h in range(2):
                    P(f"ds_read_b128 {vr(RB + 8 * i + 4 * h, 4)}, v{vY} offset:{h * 4096 + i * 1024}")
            for i in range(4):
                for j in range(4):
                    P(f"v_add_f32 v{T + 4 * i + j}, v{T + 4 * i + j}, v{RB + 8 * i + j}")
                    P(f"v_add_f32 v{T + 4 * i + j}, v{T + 4 * i + j}, v{RB + 8 * i + 4 + j}")
                P(f"buffer_store_dwordx4 {vr(T + 4 * i, 4)}, v{vO}, s[{sOut}:{sOut+3}], s{sT} offen")
                if i < 3:
                    P(f"s_add_u32 s{sT}, s{sT}, {8 * 2304}")
        common.mark(P, 11)
        P(end)

    ACC = [[2, 18], [34, 50]]
    XF = [[66, 70], [74, 78]]
    WF = [[82, 86], [90, 94]]
    vA0, vA1, vB0, vB1 = 98, 99, 100, 101
    lr, li, nli, mr, mi, br, bi = 102, 103, 104, 105, 106, 107, 108
    lamt = "lamt" in exp
    if lamt:
        lr, li, mr, mi, br, bi, nli = 102, 103, 104, 105, 106, 107, 108
    t = 110
    use(121)
    P(f"""
    s_and_b32 s{sWM}, s{sW}, 1
    s_lshr_b32 s{sWN}, s{sW}, 1
    s_lshl_b32 s{sT}, s{sSB}, 6
    s_lshl_b32 s{sT2}, s{sWN}, 5
    s_add_u32 s{sT}, s{sT}, s{sT2}
    v_and_b32 v{t+8}, 31, v{vLane}
    v_add_u32 v{t+8}, s{sT}, v{t+8}
    v_lshlrev_b32 v{t+9}, 1, v{t+8}
    """)
    UP = 66
    if fusedb:
        P(f"""
        s_mul_i32 s{sT}, s{sTB}, 18
        s_lshl_b32 s{sT2}, s{sSB}, 1
        s_add_u32 s{sT}, s{sT}, s{sT2}
        s_add_u32 s{sT}, s{sT}, s{sWN}
        s_lshl_b32 s{sT}, s{sT}, 14
        s_lshl_b32 s{sT2}, s{sWM}, 13
        s_add_u32 s{sT}, s{sT}, s{sT2}
        s_add_u32 s{sT}, s{sT}, {WS_XF if 'ufx' in exp else WS_UF}
        s_add_u32 s{sT2}, s{sT}, 4096
        """)
        for k in range(8):
            P(f"buffer_load_dwordx4 {vr(UP + 4 * k, 4)}, v{vL16}, {ws}, s{sT if k < 4 else sT2} offen offset:{(k & 3) * 1024}")
    if lamt:
        P(f"""
        v_lshlrev_b32 v{t+9}, 5, v{t+8}
        s_mov_b32 s{sT}, {WS_LAM}
        buffer_load_dwordx4 {vr(lr,4)}, v{t+9}, {ws}, s{sT} offen
        buffer_load_dwordx2 {vr(br,2)}, v{t+9}, {ws}, s{sT} offen offset:16
        """)
    for k, ka in enumerate((KA_LRE, KA_LIM, KA_LDT) if not lamt else ()):
        srd_from_kernarg(P, sP, ka, 1152)
        P(f"""
        s_waitcnt lgkmcnt(0)
        buffer_load_ushort v{t+4+k}, v{t+9}, s[{sP}:{sP+3}], 0 offen
        """)
    vXR = [98, 99, 101, 122]
    vB2 = 123
    XSLOT, NX, WSLOT, NWS, WBASE = 16384, 3, 8192, 4, 49152
    if merged:
        P(f"""
        v_and_b32 v{t}, 31, v{vLane}
        v_lshrrev_b32 v{t+1}, 5, v{vLane}
        v_lshrrev_b32 v{t+2}, 1, v{t}
        v_and_b32 v{t+2}, 7, v{t+2}
        v_xor_b32 v{t+2}, v{t+2}, v{t+1}
        v_lshlrev_b32 v{t+2}, 4, v{t+2}
        s_lshl_b32 s{sT}, s{sWM}, 6
        v_add_u32 v{t+3}, s{sT}, v{t}
        v_lshlrev_b32 v{t+3}, 7, v{t+3}
        v_add_u32 v{vXR[0]}, v{t+2}, v{t+3}
        v_xor_b32 v{vXR[1]}, 32, v{vXR[0]}
        v_xor_b32 v{vXR[2]}, 64, v{vXR[0]}
        v_xor_b32 v{vXR[3]}, 0x60, v{vXR[0]}
        """)
        if rawb:
            P(f"""
            v_lshrrev_b32 v{t+2}, 2, v{t}
            v_and_b32 v{t+2}, 3, v{t+2}
            v_xor_b32 v{t+2}, v{t+2}, v{t+1}
            v_lshlrev_b32 v{t+2}, 4, v{t+2}
            v_lshlrev_b32 v{t+3}, 6, v{t}
            s_lshl_b32 s{sT}, s{sWN}, 11
            s_add_u32 s{sT}, s{sT}, {WBASE}
            v_add_u32 v{t+3}, s{sT}, v{t+3}
            v_add_u32 v{vB0}, v{t+2}, v{t+3}
            v_xor_b32 v{vB2}, 32, v{vB0}
            """)
        else:
            P(f"""
            s_lshl_b32 s{sT}, s{sWN}, 12
            s_add_u32 s{sT}, s{sT}, {WBASE}
            v_add_u32 v{vB0}, s{sT}, v{vL16}
            """)
    else:
      P(f"""
    s_lshl_b32 s{sT}, s{sWM}, 12
    v_add_u32 v{vA0}, s{sT}, v{vL16}
    v_add_u32 v{vA1}, 0x10000, v{vA0}
    s_lshl_b32 s{sT}, s{sWN}, 12
    s_add_u32 s{sT}, s{sT}, 8192
    v_add_u32 v{vB0}, s{sT}, v{vL16}
    v_add_u32 v{vB1}, 0x10000, v{vB0}
    """)
    if "smarks" in exp:
        common.mark(P, 5)
        P("s_waitcnt vmcnt(0)")
        common.mark(P, 6)
    if not lamt:
        emit_lambda(P, t + 4, t + 5, t + 6, t, lr, li)
        P(f"v_sub_f32 v{nli}, 0, v{li}")

    def csq(dr, di, sr_, si_):
        P(f"""
        v_mul_f32 v{t}, v{si_}, v{si_}
        v_add_f32 v{t+1}, v{sr_}, v{sr_}
        v_fma_f32 v{dr}, v{sr_}, v{sr_}, -v{t}
        v_mul_f32 v{di}, v{t+1}, v{si_}
        """)

    if not lamt:
        csq(mr, mi, lr, li)
        for _ in range(4):
            csq(mr, mi, mr, mi)
        csq(br, bi, mr, mi)
        csq(br, bi, br, bi)

    early = "eaddr" in exp
    vTW, vTR, vX_ = (109, 126, t + 2) if early else (t, t + 1, t + 2)
    use(126)

    def tr_write_addr():
        P(f"""
        v_and_b32 v{t+4}, 31, v{vLane}
        v_lshrrev_b32 v{t+5}, 1, v{t+4}
        v_and_b32 v{t+5}, 1, v{t+5}
        v_lshlrev_b32 v{t+5}, 2, v{t+5}
        v_lshrrev_b32 v{t+6}, 2, v{t+4}
        v_and_b32 v{t+6}, 1, v{t+6}
        v_lshlrev_b32 v{t+6}, 1, v{t+6}
        v_or_b32 v{t+5}, v{t+5}, v{t+6}
        v_and_b32 v{t+6}, 1, v{t+4}
        v_or_b32 v{t+5}, v{t+5}, v{t+6}
        v_lshrrev_b32 v{t+6}, 5, v{vLane}
        v_lshlrev_b32 v{t+6}, 2, v{t+6}
        v_xor_b32 v{t+5}, v{t+5}, v{t+6}
        v_lshlrev_b32 v{t+5}, 4, v{t+5}
        v_lshlrev_b32 v{t+4}, 7, v{t+4}
        v_add_u32 v{vTW}, v{t+4}, v{t+5}
        s_lshl_b32 s{sT}, s{sW}, 13
        v_add_u32 v{vTW}, s{sT}, v{vTW}
        """)

    def tr_read_addr():
        P(f"""
        v_lshrrev_b32 v{t+4}, 5, v{vLane}
        v_lshlrev_b32 v{t+4}, 3, v{t+4}
        v_lshrrev_b32 v{t+5}, 2, v{vLane}
        v_and_b32 v{t+5}, 3, v{t+5}
        v_add_u32 v{t+4}, v{t+4}, v{t+5}
        v_lshlrev_b32 v{t+4}, 7, v{t+4}
        v_lshrrev_b32 v{t+5}, 4, v{vLane}
        v_and_b32 v{t+5}, 1, v{t+5}
        v_lshlrev_b32 v{t+5}, 1, v{t+5}
        v_lshrrev_b32 v{t+6}, 1, v{vLane}
        v_and_b32 v{t+6}, 1, v{t+6}
        v_or_b32 v{t+5}, v{t+5}, v{t+6}
        v_lshrrev_b32 v{t+6}, 3, v{vLane}
        v_and_b32 v{t+6}, 1, v{t+6}
        v_lshlrev_b32 v{t+6}, 2, v{t+6}
        v_xor_b32 v{t+5}, v{t+5}, v{t+6}
        v_lshrrev_b32 v{t+6}, 2, v{vLane}
        v_and_b32 v{t+6}, 1, v{t+6}
        v_xor_b32 v{t+5}, v{t+5}, v{t+6}
        v_lshlrev_b32 v{t+5}, 4, v{t+5}
        v_and_b32 v{t+6}, 1, v{vLane}
        v_lshlrev_b32 v{t+6}, 3, v{t+6}
        v_add_u32 v{t+4}, v{t+4}, v{t+5}
        v_add_u32 v{t+4}, v{t+4}, v{t+6}
        v_add_u32 v{vTR}, s{sT}, v{t+4}
        """)

    if early:
        tr_write_addr()
        tr_read_addr()
    def reads(n):
        if rawb:
            bb = n & 1
            xo, wo_ = ((n >> 2) % NX) * XSLOT, ((n >> 1) % NWS) * WSLOT
            vb = vB2 if n & 1 else vB0
            return [f"ds_read_b128 {vr(XF[bb][0],4)}, v{vXR[n & 3]} offset:{xo}",
                    f"ds_read_b128 {vr(WF[bb][0],4)}, v{vb} offset:{wo_}",
                    f"ds_read_b128 {vr(WF[bb][1],4)}, v{vb} offset:{wo_ + 4096}",
                    f"ds_read_b128 {vr(XF[bb][1],4)}, v{vXR[n & 3]} offset:{xo + 4096}"]
        if merged:
            bb = n & 1
            xo, wo_ = ((n >> 2) % NX) * XSLOT, ((n >> 1) % NWS) * WSLOT + (n & 1) * 1024
            return [f"ds_read_b128 {vr(XF[bb][0],4)}, v{vXR[n & 3]} offset:{xo}",
                    f"ds_read_b128 {vr(WF[bb][0],4)}, v{vB0} offset:{wo_}",
                    f"ds_read_b128 {vr(WF[bb][1],4)}, v{vB0} offset:{wo_ + 2048}",
                    f"ds_read_b128 {vr(XF[bb][1],4)}, v{vXR[n & 3]} offset:{xo + 4096}"]
        s_, ks = divmod(n, 2)
        slot = s_ % 5
        a, b, off = (vA1, vB1, 0) if slot == 4 else (vA0, vB0, slot * SLOT)
        bb = n & 1
        return [f"ds_read_b128 {vr(XF[bb][0],4)}, v{a} offset:{off + ks * 1024}",
                f"ds_read_b128 {vr(WF[bb][0],4)}, v{b} offset:{off + ks * 1024}",
                f"ds_read_b128 {vr(WF[bb][1],4)}, v{b} offset:{off + 2048 + ks * 1024}",
                f"ds_read_b128 {vr(XF[bb][1],4)}, v{a} offset:{off + 2048 + ks * 1024}"]

    if fusedb:
        common.mark(P, 0)
        for mt in range(2):
            for cp in range(2):
                for k in range(8):
                    src = UP + 16 * mt + 8 * cp + k
                    P(f"v_lshlrev_b32 v{ACC[mt][cp] + 2 * k}, 16, v{src}")
                    P(f"v_and_b32 v{ACC[mt][cp] + 2 * k + 1}, 0xffff0000, v{src}")
    else:
        if merged:
            P("s_barrier")
        if "smarks" in exp: common.mark(P, 7)
        P("s_barrier")
        common.mark(P, 0)
        P(f"s_setprio {prio['b']}")
        for r in reads(0):
            P(r)
    for n in range(36 if not fusedb else 0):
        bb = n & 1
        mf = []
        for mt in range(2):
            for cp in range(2):
                cop = "0" if n == 0 else vr(ACC[mt][cp], 16)
                mf.append(f"v_mfma_f32_32x32x16_bf16 {vr(ACC[mt][cp],16)}, {vr(XF[bb][mt],4)}, {vr(WF[bb][cp],4)}, {cop}")
        P("s_waitcnt lgkmcnt(0)")
        if "bmarks" in exp and n in (3, 11, 19): common.mark(P, {3: 5, 11: 6, 19: 7}[n])
        if bb == 1 and n + 1 < 36:
            P("s_barrier")
        rs = reads(n + 1) if n + 1 < 36 else []
        for k in range(4):
            P(mf[k])
            take = rs[:2] if k < 2 else []
            rs = rs[len(take):]
            for r in take:
                P(r)

    P(f"s_setprio {prio['s']}")
    common.mark(P, 4)
    if lamt:
        P("s_waitcnt vmcnt(0)")
        P(f"v_sub_f32 v{nli}, 0, v{li}")
    ea, eb = (t, t + 1), (t + 2, t + 3)
    U = lambda tau, cp: ACC[tau >> 4][cp] + (tau & 15)
    cur = (U(0, 0), U(0, 1))
    for tau in range(1, 32):
        nx = ea if tau & 1 else eb
        P(f"""
        v_fma_f32 v{nx[0]}, v{lr}, v{cur[0]}, v{U(tau,0)}
        v_fma_f32 v{nx[1]}, v{lr}, v{cur[1]}, v{U(tau,1)}
        v_fmac_f32 v{nx[0]}, v{nli}, v{cur[1]}
        v_fmac_f32 v{nx[1]}, v{li}, v{cur[0]}
        """)
        cur = nx
    assert cur == ea
    P(f"""
    v_lshrrev_b32 v{t+4}, 5, v{vLane}
    v_lshlrev_b32 v{t+4}, 9, v{t+4}
    v_and_b32 v{t+5}, 31, v{vLane}
    v_lshlrev_b32 v{t+5}, 3, v{t+5}
    s_lshl_b32 s{sT}, s{sWN}, 8
    s_add_u32 s{sT}, s{sT}, {ELOC}
    v_add_u32 v{t+5}, s{sT}, v{t+5}
    s_lshl_b32 s{sT}, s{sWM}, 10
    v_add_u32 v{t+4}, s{sT}, v{t+4}
    v_add_u32 v{t+4}, v{t+4}, v{t+5}
    ds_write_b64 v{t+4}, {vr(ea[0],2)}
    s_waitcnt lgkmcnt(0)
    s_barrier
    """)
    EL = [98, 100, 122, 124]
    for k in range(4):
        P(f"ds_read_b64 {vr(EL[k], 2)}, v{t+5} offset:{k * 512}")

    def cmuladd(dr, di, ar, ai, nai, xr, xi, yr, yi):
        P(f"""
        v_fma_f32 v{t+6}, v{ar}, v{xr}, v{yr}
        v_fma_f32 v{t+7}, v{ar}, v{xi}, v{yi}
        v_fma_f32 v{dr}, -v{ai}, v{xi}, v{t+6}
        v_fma_f32 v{di}, v{ai}, v{xr}, v{t+7}
        """) if (dr, di) != (xr, xi) else P(f"""
        v_fma_f32 v{t+6}, v{ar}, v{xr}, v{yr}
        v_fma_f32 v{t+7}, v{ar}, v{xi}, v{yi}
        v_fma_f32 v{t+7}, v{ai}, v{xr}, v{t+7}
        v_fma_f32 v{dr}, -v{ai}, v{xi}, v{t+6}
        v_mov_b32 v{di}, v{t+7}
        """)

    Eb = 66
    cmuladd(t, t + 1, mr, mi, None, EL[0], EL[0] + 1, EL[1], EL[1] + 1)
    cmuladd(t + 2, t + 3, mr, mi, None, t, t + 1, EL[2], EL[2] + 1)
    cmuladd(Eb, Eb + 2, mr, mi, None, t + 2, t + 3, EL[3], EL[3] + 1)
    nopub = P.newlabel(pfx + "_nopub")
    P(f"""
    v_mov_b32 v{Eb+1}, s{sTag}
    v_mov_b32 v{Eb+3}, s{sTag}
    s_mul_i32 s{sT}, s{sTB}, 576
    v_add_u32 v{t}, s{sT}, v{t+8}
    v_lshlrev_b32 v{t}, 4, v{t}
    s_cmp_eq_u32 s{sWM}, 0
    s_cbranch_scc0 {nopub}
    s_mov_b32 exec_hi, 0
    buffer_store_dwordx4 {vr(Eb,4)}, v{t}, s[{sE}:{sE+3}], 0 offen sc1
    s_mov_b32 exec_hi, -1
    """)
    P.L(nopub)
    EDr = [66 + 4 * i for i in range(8)]
    use(125)
    vN, vEo = t + 2, t + 3
    P(f"""
    v_lshrrev_b32 v{vN}, 5, v{vLane}
    v_lshlrev_b32 v{vN}, 3, v{vN}
    s_sub_i32 s{sT}, s{sTB}, 16
    v_add_u32 v{vN}, s{sT}, v{vN}
    s_movk_i32 s{sT}, 576
    v_mul_lo_u32 v{vEo}, v{vN}, s{sT}
    v_add_u32 v{vEo}, v{vEo}, v{t+8}
    v_lshlrev_b32 v{vEo}, 4, v{vEo}
    """)
    if "pmarks" not in exp and "bmarks" not in exp and "smarks" not in exp: common.mark(P, 5)
    for e in exp:
        if e.startswith("esleep="): P(f"s_sleep {int(e[7:])}")
    ep = P.newlabel(pfx + "_epoll")
    P.L(ep)
    for i in range(8):
        P(f"v_add_u32 v{t}, {i * 9216}, v{vEo}")
        P(f"buffer_load_dwordx4 {vr(EDr[i],4)}, v{t}, s[{sE}:{sE+3}], 0 offen sc1")
    P(f"s_mov_b64 s[{sBad}:{sBad+1}], 0")
    for i in range(8):
        P(f"""
        v_cmp_eq_u32 vcc, s{sTag}, v{EDr[i]+1}
        v_cmp_eq_u32 s[{sOk}:{sOk+1}], s{sTag}, v{EDr[i]+3}
        s_and_b64 s[{sOk}:{sOk+1}], s[{sOk}:{sOk+1}], vcc
        v_cmp_gt_i32 vcc, {-i}, v{vN}
        s_or_b64 s[{sOk}:{sOk+1}], s[{sOk}:{sOk+1}], vcc
        s_orn2_b64 s[{sBad}:{sBad+1}], s[{sBad}:{sBad+1}], s[{sOk}:{sOk+1}]
        """)
    edone = P.newlabel(pfx + "_edone")
    P(f"""
    s_cmp_eq_u64 s[{sBad}:{sBad+1}], 0
    s_cbranch_scc1 {edone}
    s_sleep 2
    s_branch {ep}
    """)
    P.L(edone)
    if "pmarks" not in exp and "bmarks" not in exp and "smarks" not in exp: common.mark(P, 6)
    H = (t + 4, t + 5)
    cmuladd(H[0], H[1], br, bi, None, EDr[0], EDr[0] + 2, EDr[1], EDr[1] + 2)
    for i in range(2, 8):
        cmuladd(H[0], H[1], br, bi, None, H[0], H[1], EDr[i], EDr[i] + 2)
    for _ in range(3):
        csq(br, bi, br, bi)
    a0, a1, b0, b1 = 66, 67, 68, 69
    P(f"""
    v_mov_b32 v{a0}, v{H[0]}
    v_mov_b32 v{b0}, v{H[0]}
    v_mov_b32 v{a1}, v{H[1]}
    v_mov_b32 v{b1}, v{H[1]}
    v_permlane32_swap_b32 v{a0}, v{b0}
    v_permlane32_swap_b32 v{a1}, v{b1}
    """)
    C0, C1, C2, C3 = (82, 83), (84, 85), (86, 87), (88, 89)
    cmuladd(C0[0], C0[1], br, bi, None, a0, a1, b0, b1)
    cmuladd(C1[0], C1[1], mr, mi, None, C0[0], C0[1], EL[0], EL[0] + 1)
    w1, gsel = P.newlabel(pfx + "_wm1"), P.newlabel(pfx + "_gsel")
    g0 = (t, t + 1)
    P(f"""
    v_cmp_le_u32 vcc, 32, v{vLane}
    s_cmp_eq_u32 s{sWM}, 0
    s_cbranch_scc0 {w1}
    v_cndmask_b32 v{g0[0]}, v{C0[0]}, v{C1[0]}, vcc
    v_cndmask_b32 v{g0[1]}, v{C0[1]}, v{C1[1]}, vcc
    s_branch {gsel}
    """)
    P.L(w1)
    cmuladd(C2[0], C2[1], mr, mi, None, C1[0], C1[1], EL[1], EL[1] + 1)
    cmuladd(C3[0], C3[1], mr, mi, None, C2[0], C2[1], EL[2], EL[2] + 1)
    P(f"""
    v_cndmask_b32 v{g0[0]}, v{C2[0]}, v{C3[0]}, vcc
    v_cndmask_b32 v{g0[1]}, v{C2[1]}, v{C3[1]}, vcc
    """)
    P.L(gsel)
    cur = g0
    for tau in range(32):
        ur, ui = U(tau, 0), U(tau, 1)
        P(f"""
        v_fmac_f32 v{ur}, v{lr}, v{cur[0]}
        v_fmac_f32 v{ui}, v{lr}, v{cur[1]}
        v_fmac_f32 v{ur}, v{nli}, v{cur[1]}
        v_fmac_f32 v{ui}, v{li}, v{cur[0]}
        """)
        cur = (ur, ui)
    if not early:
        tr_write_addr()
    PK = 66
    for cp in range(2):
        for k in range(16):
            P(f"v_cvt_pk_bf16_f32 v{PK + 16 * cp + k}, v{U(2 * k, cp)}, v{U(2 * k + 1, cp)}")
        for m in range(4):
            P(f"v_xor_b32 v{vX_}, {16 * m}, v{vTW}")
            P(f"ds_write_b128 v{vX_}, {vr(PK + 16 * cp + 4 * m, 4)} offset:{cp * 4096}")
    if not early:
        tr_read_addr()
    P(f"""
    s_lshl_b32 s{sT}, s{sTB}, 2
    s_lshl_b32 s{sT2}, s{sWM}, 1
    s_add_u32 s{sT}, s{sT}, s{sT2}
    s_mul_i32 s{sT}, s{sT}, 72
    s_lshl_b32 s{sT2}, s{sSB}, 2
    s_add_u32 s{sT}, s{sT}, s{sT2}
    s_lshl_b32 s{sT2}, s{sWN}, 1
    s_add_u32 s{sT}, s{sT}, s{sT2}
    s_lshl_b32 s{sT}, s{sT}, 10
    s_add_u32 s{sT}, s{sT}, {WS_HF}
    s_waitcnt lgkmcnt(0)
    """)
    TRA = [t + 4, t + 5, t + 6, t + 7]
    for tt2 in range(2):
        for rd in range(2):
            P(f"v_xor_b32 v{TRA[2 * tt2 + rd]}, {tt2 * 64 + rd * 32}, v{vTR}")
    FR = [2 + 4 * i for i in range(8)]
    k = 0
    for tt2 in range(2):
        for cp in range(2):
            for s16 in range(2):
                for rd in range(2):
                    P(f"ds_read_b64_tr_b16 {vr(FR[k] + 2 * rd, 2)}, v{TRA[2 * tt2 + rd]} offset:{cp * 4096 + s16 * 2048 + rd * 512}")
                k += 1
    k = 0
    for tt2 in range(2):
        for cp in range(2):
            P(f"s_add_u32 s{sT2}, s{sT}, {(tt2 * 72 + cp * 36) * 1024}")
            for s16 in range(2):
                P(f"buffer_store_dwordx4 {vr(FR[k],4)}, v{vL16}, {ws}, s{sT2} offen offset:{s16 * 1024} sc1")
                k += 1
    if "pmarks" not in exp and "bmarks" not in exp and "smarks" not in exp: common.mark(P, 7)
    P("s_waitcnt vmcnt(0)")
    P("s_barrier")
    common.mark(P, 8)
    fl = P.newlabel(pfx + "_noflag")
    if rawb:
        P(f"""
        s_cmp_eq_u32 s{sW}, 0
        s_cbranch_scc0 {fl}
        s_lshl_b32 s{sT}, s{sIdx}, 2
        s_add_u32 s{sT}, s{sT}, {WS_FLG + FLG_PREP}
        v_mov_b32 v2, {flag}
        v_lshlrev_b32 v3, 12, v{vLane}
        s_mov_b32 exec_hi, 0
        s_mov_b32 exec_lo, 0xffff
        buffer_store_dword v2, v3, {ws}, s{sT} offen sc1
        s_mov_b64 exec, -1
        """)
    else:
      P(f"""
    s_cmp_eq_u32 s{sW}, 0
    s_cbranch_scc0 {fl}
    s_lshl_b32 s{sT}, s{sTB}, 6
    s_lshl_b32 s{sT2}, s{sSB}, 2
    s_add_u32 s{sT}, s{sT}, s{sT2}
    s_add_u32 s{sT}, s{sT}, {WS_FLG + FLG_HF}
    v_mov_b32 v2, {flag}
    v_mov_b32 v3, 0
    s_mov_b32 exec_hi, 0
    s_mov_b32 exec_lo, 1
    buffer_store_dword v2, v3, {ws}, s{sT} offen sc1
    s_mov_b64 exec, -1
    """)
    P.L(fl)
    if rawb:
        block_map(False)
        P(f"""
        s_lshl_b32 s{sTile}, s{sTB}, 2
        s_add_u32 s{sTile}, s{sTile}, s{sMT}
        """)
    out_phases(False)

    iL = len(P.items)
    P.L(L("loader"))
    if "lmarks" in exp: common.mark(P, 6)
    P(f"""
    s_lshl_b32 s{sT}, s{sTB}, 2
    s_add_u32 s{sT}, s{sT}, s{sMT}
    s_mul_i32 s{sXo}, s{sT}, {36 * 1024}
    s_add_u32 s{sXo}, s{sXo}, {WS_XF}
    s_lshl_b32 s{sT}, s{sSB}, 2
    s_add_u32 s{sT}, s{sT}, s{sMT}
    s_mul_i32 s{sBo}, s{sT}, {36 * 1024}
    s_add_u32 s{sBo}, s{sBo}, {WS_BF}
    s_lshl_b32 s{sM}, s{sMT}, 11
    """)

    def dmaA(s_):
        slot = s_ % 5
        P(f"""
        s_add_u32 m0, s{sM}, {slot * SLOT}
        s_nop 0
        buffer_load_dwordx4 v{vL16}, {ws}, s{sXo} offen lds
        buffer_load_dwordx4 v{vL16}, {ws}, s{sXo} offen offset:1024 lds
        s_add_u32 m0, s{sM}, {slot * SLOT + 8192}
        s_add_u32 s{sXo}, s{sXo}, 2048
        buffer_load_dwordx4 v{vL16}, {ws}, s{sBo} offen lds
        buffer_load_dwordx4 v{vL16}, {ws}, s{sBo} offen offset:1024 lds
        s_add_u32 s{sBo}, s{sBo}, 2048
        """)

    if merged:
        vDX = [4, 5, 6, 7]
        sMX, sMW, sOffX = sM, 25, 31
        DUX = 4 * 1152 - 1024
        P(f"""
        v_lshrrev_b32 v8, 5, v{vLane}
        v_lshlrev_b32 v8, 5, v8
        v_lshrrev_b32 v9, 3, v{vLane}
        v_and_b32 v9, 3, v9
        v_add_u32 v8, v8, v9
        v_mul_u32_u24 v8, 1152, v8
        v_lshrrev_b32 v9, 4, v{vLane}
        v_and_b32 v10, 7, v{vLane}
        v_xor_b32 v9, v9, v10
        v_lshlrev_b32 v9, 4, v9
        v_xor_b32 v10, 64, v9
        v_add_u32 v{vDX[0]}, v8, v9
        v_add_u32 v10, v8, v10
        v_add_u32 v{vDX[1]}, {DUX}, v10
        v_add_u32 v{vDX[2]}, {2 * DUX}, v{vDX[0]}
        v_add_u32 v{vDX[3]}, {3 * DUX}, v10
        s_lshl_b32 s{sOffX}, s{sTB}, 7
        s_lshr_b32 s{sT}, s{sMT}, 1
        s_lshl_b32 s{sT}, s{sT}, 6
        s_add_u32 s{sOffX}, s{sOffX}, s{sT}
        s_and_b32 s{sT}, s{sMT}, 1
        s_lshl_b32 s{sT}, s{sT}, 4
        s_add_u32 s{sOffX}, s{sOffX}, s{sT}
        s_mul_i32 s{sOffX}, s{sOffX}, 1152
        s_lshl_b32 s{sMX}, s{sMT}, 12
        s_lshl_b32 s{sMW}, s{sMT}, 11
        s_add_u32 s{sMW}, s{sMW}, {WBASE}
        """)
        lp, dn = P.newlabel(pfx + "_ppoll"), P.newlabel(pfx + "_pdone")
        if rawb:
            sB4 = 44
            P(f"""
            s_load_dwordx4 s[52:55], s[0:1], {KA_BRE}
            """.replace("s[52:55]", "s[84:87]"))
            P(f"""
            v_lshrrev_b32 v8, 2, v{vLane}
            s_lshl_b32 s{sT}, s{sSB}, 6
            s_and_b32 s{sT2}, s{sMT}, 1
            s_lshl_b32 s{sT2}, s{sT2}, 5
            s_add_u32 s{sT}, s{sT}, s{sT2}
            v_add_u32 v8, s{sT}, v8
            v_mul_u32_u24 v8, 1152, v8
            v_lshrrev_b32 v9, 4, v{vLane}
            v_xor_b32 v9, v9, v{vLane}
            v_and_b32 v9, 3, v9
            v_lshlrev_b32 v9, 4, v9
            v_add_u32 v2, v8, v9
            v_add_u32 v3, {16 * 1152 - 1024}, v2
            s_mov_b32 s{sB4+2}, {576 * 1152}
            s_mov_b32 s{sB4+3}, 0x00020000
            s_mov_b32 s{sBo}, 0
            s_cmp_ge_u32 s{sMT}, 2
            s_waitcnt lgkmcnt(0)
            s_cselect_b32 s{sB4}, s86, s84
            s_cselect_b32 s{sB4+1}, s87, s85
            """)
            P(f"""
            s_cmp_eq_u32 s{sW}, 4
            s_cbranch_scc0 {dn}
            s_lshl_b32 s{sT}, s{sIdx}, 6
            s_add_u32 s{sT}, s{sT}, {WS_FLG + FLG_GO}
            s_mov_b64 exec, 1
            """)
            if "nogo" in exp:
                P(f"s_branch {dn}")
            P.L(lp)
            P(f"""
            buffer_load_dword v12, off, {ws}, s{sT} sc1
            s_waitcnt vmcnt(0)
            v_cmp_ne_u32 vcc, {flag}, v12
            s_cbranch_vccz {dn}
            s_sleep {psleep}
            s_branch {lp}
            """)
        else:
          P(f"""
        s_cmp_eq_u32 s{sW}, 4
        s_cbranch_scc0 {dn}
        s_and_b32 s{sT2}, s{sIdx}, {NREP - 1}
        s_lshl_b32 s{sT2}, s{sT2}, 12
        s_lshl_b32 s{sT}, s{sIdx}, 6
        s_add_u32 s{sT}, s{sT}, {FLG_GO - FLG_PREP}
        s_sub_u32 s{sT}, s{sT}, s{sT2}
        v_mov_b32 v9, s{sT}
        v_cmp_eq_u32 vcc, 36, v{vLane}
        v_cndmask_b32 v8, v{vL16}, v9, vcc
        s_add_u32 s{sT}, s{sT2}, {WS_FLG + FLG_PREP}
        s_mov_b32 exec_hi, {"0xf" if "nogo" in exp else "0x1f"}
        """)
        if not rawb:
          P.L(lp)
          P(f"""
        buffer_load_dwordx4 v[12:15], v8, {ws}, s{sT} offen sc1
        s_waitcnt vmcnt(0)
        v_cmp_ne_u32 vcc, {flag}, v12
        v_cmp_ne_u32 s[{sOk}:{sOk+1}], {flag}, v13
        s_or_b64 s[{sBad}:{sBad+1}], vcc, s[{sOk}:{sOk+1}]
        v_cmp_ne_u32 vcc, {flag}, v14
        v_cmp_ne_u32 s[{sOk}:{sOk+1}], {flag}, v15
        s_or_b64 s[{sBad}:{sBad+1}], s[{sBad}:{sBad+1}], vcc
        s_or_b64 s[{sBad}:{sBad+1}], s[{sBad}:{sBad+1}], s[{sOk}:{sOk+1}]
        s_cbranch_scc0 {dn}
        s_sleep {psleep}
        s_branch {lp}
        """)
        P.L(dn)
        P("s_mov_b64 exec, -1")
        if "bmarks" in exp: common.mark(P, 5)
        P("s_barrier")
        if "pmarks" in exp: common.mark(P, 7)
        q = []

        def dmax(c):
            P(f"s_add_u32 m0, s{sMX}, {(c % NX) * XSLOT}")
            P("s_nop 0")
            for u in range(4):
                P(f"buffer_load_dwordx4 v{vDX[u]}, s[{sAX}:{sAX+3}], s{sOffX} offen offset:{u * 1024} lds")
            P(f"s_add_u32 s{sOffX}, s{sOffX}, 128")
            q.extend([f"x{c}"] * 4)

        def dmab(b):
            if rawb:
                P(f"""
                s_add_u32 m0, s{sMW}, {(b % NWS) * WSLOT}
                s_nop 0
                buffer_load_dwordx4 v2, s[{sB4}:{sB4+3}], s{sBo} offen lds
                buffer_load_dwordx4 v3, s[{sB4}:{sB4+3}], s{sBo} offen offset:1024 lds
                s_add_u32 s{sBo}, s{sBo}, 64
                """)
                q.extend([f"w{b}"] * 2)
                return
            P(f"""
            s_add_u32 m0, s{sMW}, {(b % NWS) * WSLOT}
            s_nop 0
            buffer_load_dwordx4 v{vL16}, {ws}, s{sBo} offen lds
            buffer_load_dwordx4 v{vL16}, {ws}, s{sBo} offen offset:1024 lds
            s_add_u32 s{sBo}, s{sBo}, 2048
            """)
            q.extend([f"w{b}"] * 2)

        def wait(tags):
            idx = max(i for i, e in enumerate(q) if e in tags)
            P(f"s_waitcnt vmcnt({len(q) - 1 - idx})")

        dmax(0); dmab(0); dmab(1); dmax(1); dmab(2); dmab(3); dmax(2)
        P(f"s_setprio {prio['l']}")
        wait(["x0", "w0"])
        P("s_barrier")
        for b in range(17):
            wait([f"w{b + 1}"] + ([f"x{(b + 1) // 2}"] if b & 1 else []))
            P("s_barrier")
            if b + 4 < 18:
                dmab(b + 4)
            if b & 1 and (b - 1) // 2 + 3 < 9:
                dmax((b - 1) // 2 + 3)
        if rawb:
            from prepm import emit_prep
            emit_prep(P, sIdx, sWave, exp=exp, late=True, mid=lambda: P("s_barrier"))
            base_regs(False)
    elif not fusedb:
        pre = 5
        for e in exp:
            if e.startswith("spre="): pre = int(e[5:])
        issued = []

        def req(s_):
            dmaA(s_)
            issued.append(s_)

        def landed(s_):
            P(f"s_waitcnt vmcnt({4 * (len(issued) - 1 - issued.index(s_))})")

        for s_ in range(pre):
            req(s_)
            if "lmarks" in exp and s_ == 0: common.mark(P, 8)
        if lfirst:
            base_regs(rest=True)
        P(f"s_setprio {prio['l']}")
        if "smarks" in exp: common.mark(P, 5)
        landed(0)
        if "smarks" in exp: common.mark(P, 7)
        P("s_barrier")
        for s_ in range(pre, 5):
            req(s_)
        for s_ in range(17):
            landed(s_ + 1)
            P("s_barrier")
            if s_ + 5 < 18:
                req(s_ + 5)
    P(f"""
    s_lshl_b32 s{sT}, s{sSB}, 1
    s_and_b32 s{sT2}, s{sMT}, 1
    s_add_u32 s{sT}, s{sT}, s{sT2}
    s_mul_i32 s{sCo}, s{sT}, {72 * 1024}
    s_lshr_b32 s{sT2}, s{sMT}, 1
    s_mul_i32 s{sT2}, s{sT2}, {36 * 1024}
    s_add_u32 s{sCo}, s{sCo}, s{sT2}
    s_add_u32 s{sCo}, s{sCo}, {WS_CF}
    s_mul_i32 s{sWo}, s{sT}, {36 * 1024}
    s_lshr_b32 s{sT2}, s{sMT}, 1
    s_mul_i32 s{sT2}, s{sT2}, {18 * 1024}
    s_add_u32 s{sWo}, s{sWo}, s{sT2}
    s_add_u32 s{sWo}, s{sWo}, {WS_WF}
    s_lshl_b32 s{sM}, s{sMT}, 12
    """)
    if crot:
        P(f"""
        s_add_u32 s{sCend}, s{sCo}, {9 * 4096}
        s_lshl_b32 s{sT3}, s{sRot}, 12
        s_add_u32 s{sCo}, s{sCo}, s{sT3}
        """)
    lp, dn = P.newlabel(pfx + "_hpoll"), P.newlabel(pfx + "_hdone")
    if rawb:
        P(f"""
        s_waitcnt vmcnt(0)
        s_barrier
        s_cmp_eq_u32 s{sW}, 4
        s_cbranch_scc0 {dn}
        s_and_b32 s{sT2}, s{sIdx}, {NREP - 1}
        s_lshl_b32 s{sT2}, s{sT2}, 12
        s_add_u32 s{sT}, s{sT2}, {WS_FLG + FLG_K1}
        s_lshl_b32 s{sT2}, s{sTB}, 6
        s_add_u32 s{sT2}, s{sT2}, {FLG_K1T - FLG_K1 - 36 * 16}
        v_add_u32 v9, s{sT2}, v{vL16}
        v_add_u32 v8, {FLG_PREP - FLG_K1}, v{vL16}
        v_cmp_le_u32 vcc, 36, v{vLane}
        v_cndmask_b32 v8, v8, v9, vcc
        s_mov_b32 exec_hi, 0xff
        """)
        P.L(lp)
        P(f"""
        buffer_load_dwordx4 v[12:15], v8, {ws}, s{sT} offen sc1
        s_waitcnt vmcnt(0)
        v_cmp_ne_u32 vcc, {flag}, v12
        v_cmp_ne_u32 s[{sOk}:{sOk+1}], {flag}, v13
        s_or_b64 s[{sBad}:{sBad+1}], vcc, s[{sOk}:{sOk+1}]
        v_cmp_ne_u32 vcc, {flag}, v14
        v_cmp_ne_u32 s[{sOk}:{sOk+1}], {flag}, v15
        s_or_b64 s[{sBad}:{sBad+1}], s[{sBad}:{sBad+1}], vcc
        s_or_b64 s[{sBad}:{sBad+1}], s[{sBad}:{sBad+1}], s[{sOk}:{sOk+1}]
        s_cbranch_scc0 {dn}
        s_sleep 4
        s_branch {lp}
        """)
        P.L(dn)
        P("s_mov_b64 exec, -1")
        out_phases(True)
        return hi[0]
    P("s_barrier")
    cf_dma(0)
    cf_dma(1)
    P("s_barrier")
    for c in (2, 3, 4):
        cf_dma(c)
    P(f"""
    s_cmp_eq_u32 s{sW}, 4
    s_cbranch_scc0 {dn}
    s_lshl_b32 s{sT}, s{sTB}, 6
    s_add_u32 s{sT}, s{sT}, {WS_FLG + FLG_HF}
    v_lshlrev_b32 v2, 2, v{vLane}
    """)
    if merged:
        P(f"""
        s_and_b32 s{sT2}, s{sIdx}, {NREP - 1}
        s_lshl_b32 s{sT2}, s{sT2}, 12
        s_add_u32 s{sT2}, s{sT2}, {FLG_K1T - FLG_HF - 64}
        v_add_u32 v3, s{sT2}, v2
        v_cmp_le_u32 vcc, 16, v{vLane}
        v_cndmask_b32 v2, v2, v3, vcc
        """)
    P(f"""
    s_mov_b32 exec_hi, 0
    s_mov_b32 exec_lo, {"0xffff01ff" if merged else "0x1ff"}
    """)
    P.L(lp)
    P(f"""
    buffer_load_dword v3, v2, {ws}, s{sT} offen sc1
    s_waitcnt vmcnt(0)
    v_cmp_ne_u32 vcc, {flag}, v3
    s_cbranch_vccz {dn}
    s_sleep 2
    s_branch {lp}
    """)
    P.L(dn)
    P("s_mov_b64 exec, -1")
    P("s_waitcnt vmcnt(0)")
    out_phases(True)
    if lfirst:
        P.items = P.items[:iC] + P.items[iL:] + P.items[iC:iL]
    return hi[0]
```

```python
from asmgen import *
from layout import *
import common
import struct


def f32(x):
    return "0x%08x" % struct.unpack("<I", struct.pack("<f", x))[0]


BUF = 20480
HALF = 10240


def emit_attention(P, sWG, pfx="att", end="s_endpgm", exp=(), sWave=None, sync=None, flag="1", flag_wave=0):
    V = Regs("v", 1)
    SA = V.alloc(16); SB = V.alloc(16); OA = V.alloc(16); OB = V.alloc(16)
    PA = V.alloc(8); PB = V.alloc(8)
    QLA = V.alloc(4); QLB = V.alloc(4); QHA = V.alloc(2); QHB = V.alloc(2)
    KL = V.alloc(4); KH = V.alloc(2); V0 = V.alloc(4); V1 = V.alloc(4)
    vL16 = V.alloc(); vKL = V.alloc(); vKH = V.alloc(); vV = V.alloc()
    vT = V.alloc(); vT2 = V.alloc(); vLane = 0
    vGq = V.alloc()
    vD = [V.alloc() for _ in range(5)]
    sHead, sQB, sW, sQG, sKH = 8, 9, 10, 11, 12
    sG0, sG1, sSt0, sSt1, sM, sIt, sAtt = 13, 14, 15, 16, 17, 18, 19
    sT, sT2, sG0i, sG1i = 20, 21, 22, 23
    sMask = 24
    sTile = 26
    sDuty, sSub = 36, 37
    sVm = 34
    srd = "s[4:7]"
    L = lambda n: f"{pfx}_{n}"

    if "attp3" in exp:
        P("s_setprio 3")
    P(f"""
    s_and_b32 s{sT}, s{sWG}, 7
    s_lshl_b32 s{sT}, s{sT}, 2
    s_lshr_b32 s{sT2}, s{sWG}, {6 if "hmap" in exp else 3}
    s_and_b32 s{sT2}, s{sT2}, 3
    s_add_u32 s{sHead}, s{sT}, s{sT2}
    s_lshr_b32 s{sQB}, s{sWG}, {3 if "hmap" in exp else 5}
    s_and_b32 s{sQB}, s{sQB}, 7
    {"v_lshrrev_b32 v%d, 6, v0" % vT if sWave is None else ""}
    {"v_and_b32 v%d, 63, v0" % vLane if sWave is None else ""}
    {"v_readfirstlane_b32 s%d, v%d" % (sW, vT) if sWave is None else "s_mov_b32 s%d, s%d" % (sW, sWave)}
    v_lshlrev_b32 v{vL16}, 4, v{vLane}
    s_and_b32 s{sQG}, s{sW}, 3
    s_lshr_b32 s{sKH}, s{sW}, 2
    s_lshr_b32 s{sT}, s{sQG}, 1
    s_cmp_eq_u32 s{sT}, s{sKH}
    s_cselect_b32 s{sDuty}, 1, 0
    s_and_b32 s{sSub}, s{sQG}, 1
    s_mul_i32 s{sT}, s{sKH}, {HALF}
    v_add_u32 v{vKL}, s{sT}, v{vL16}
    v_and_b32 v{vT}, 31, v{vLane}
    v_lshlrev_b32 v{vKH}, 2, v{vT}
    v_lshrrev_b32 v{vT2}, 5, v{vLane}
    v_mul_u32_u24 v{vT2}, 18, v{vT2}
    v_add_u32 v{vT2}, v{vT2}, v{vT}
    v_lshlrev_b32 v{vV}, 4, v{vT2}
    v_add_u32 v{vV}, s{sT}, v{vV}
    s_lshl_b32 s{sTile}, s{sQB}, 3
    s_lshl_b32 s{sT2}, s{sQG}, 1
    s_add_u32 s{sTile}, s{sTile}, s{sT2}
    """)
    def qloads():
        P(f"""
        s_lshl_b32 s{sT}, s{sHead}, 16
        s_lshl_b32 s{sT2}, s{sTile}, 10
        s_add_u32 s{sT}, s{sT}, s{sT2}
        s_add_u32 s{sT}, s{sT}, {WS_QLO}
        buffer_load_dwordx4 {vr(QLA,4)}, v{vL16}, {srd}, s{sT} offen
        buffer_load_dwordx4 {vr(QLB,4)}, v{vL16}, {srd}, s{sT} offen offset:1024
        s_lshl_b32 s{sT}, s{sHead}, 13
        s_lshl_b32 s{sT2}, s{sTile}, 7
        s_add_u32 s{sT}, s{sT}, s{sT2}
        s_add_u32 s{sT}, s{sT}, {WS_QHI}
        buffer_load_dword v{QHA}, v{vKH}, {srd}, s{sT} offen
        buffer_load_dword v{QHB}, v{vKH}, {srd}, s{sT} offen offset:128
        s_add_u32 s{sT}, s{sTile}, s{sKH}
        s_lshl_b32 s{sT}, s{sT}, 7
        s_add_u32 s{sT}, s{sT}, {WS_G}
        buffer_load_dword v{vGq}, v{vKH}, {srd}, s{sT} offen
        """)

    lateq = "attq2" in exp
    if not sync and not lateq:
        qloads()
    P(f"""
    s_lshl_b32 s{sT}, s{sHead}, 16
    s_lshl_b32 s{sT2}, s{sKH}, 15
    s_add_u32 s{sT}, s{sT}, s{sT2}
    s_add_u32 s27, s{sT}, {WS_KLO}
    s_lshl_b32 s{sT}, s{sHead}, 13
    s_lshl_b32 s{sT2}, s{sKH}, 12
    s_add_u32 s{sT}, s{sT}, s{sT2}
    s_add_u32 s28, s{sT}, {WS_KHI}
    s_mul_i32 s{sT}, s{sHead}, 288
    s_mul_i32 s{sT2}, s{sKH}, {64 * VT_GROUP}
    s_add_u32 s{sT}, s{sT}, s{sT2}
    s_add_u32 s29, s{sT}, {WS_VT}
    s_add_u32 s30, s27, 1024
    s_add_u32 s31, s28, 128
    s_cmp_eq_u32 s{sSub}, 0
    s_cselect_b32 s{sG0i}, s30, s29
    s_cselect_b32 s{sG1i}, s31, s29
    s_mov_b32 s30, {8 * VT_GROUP}
    s_cselect_b32 s{sSt0}, 4096, s30
    s_cselect_b32 s{sSt1}, 512, s30
    s_cselect_b64 vcc, -1, 0
    s_mul_i32 s{sM}, s{sKH}, {HALF}
    s_mul_i32 s{sT}, s{sSub}, 5120
    s_add_u32 s{sM}, s{sM}, s{sT}
    """)
    for u in range(5):
        P(f"""
        v_add_u32 v{SA}, {64 * u}, v{vLane}
        v_min_u32 v{SA}, 287, v{SA}
        v_mul_u32_u24 v{SA+1}, 3641, v{SA}
        v_lshrrev_b32 v{SA+1}, 16, v{SA+1}
        v_mul_u32_u24 v{SA+2}, {VT_HALF - 18 * 16}, v{SA+1}
        v_lshlrev_b32 v{SA}, 4, v{SA}
        v_add_u32 v{SA}, v{SA}, v{SA+2}
        v_subrev_u32 v{SA}, {(u & 3) * 1024}, v{SA}
        v_cndmask_b32 v{vD[u]}, v{SA}, v{vL16}, vcc
        """)
    P(f"""
    v_cmp_gt_u32 vcc, 32, v{vLane}
    v_mov_b32 v{QHA+1}, 0
    v_mov_b32 v{QHB+1}, 0
    v_mov_b32 v{KH+1}, 0x3f803f80
    s_mov_b32 s{sAtt}, 0
    s_mov_b32 s{sVm}, 0x3ffff
    s_mov_b32 s{sVm+1}, 0x3ffff
    """)

    if sync:
        sync(dict(sHead=sHead, sQB=sQB, sW=sW, sT=sT, sT2=sT2, vLane=vLane, vA=SB, vB=SB + 1, vC=SB + 2))
    if sync or lateq:
        qloads()

    def dma(par):
        skip = P.newlabel(pfx + "_nodma")
        P(f"""
        s_cmp_eq_u32 s{sDuty}, 0
        s_cbranch_scc1 {skip}
        s_add_u32 m0, s{sM}, {par * BUF}
        s_nop 0
        buffer_load_dwordx4 v{vD[0]}, {srd}, s{sG0} offen lds
        buffer_load_dwordx4 v{vD[1]}, {srd}, s{sG0} offen offset:1024 lds
        buffer_load_dwordx4 v{vD[2]}, {srd}, s{sG0} offen offset:2048 lds
        buffer_load_dwordx4 v{vD[3]}, {srd}, s{sG0} offen offset:3072 lds
        s_add_u32 m0, s{sM}, {par * BUF + 4096}
        s_add_u32 s{sG0}, s{sG0}, s{sSt0}
        buffer_load_dwordx4 v{vD[4]}, {srd}, s{sG1} offen lds
        s_add_u32 s{sG1}, s{sG1}, s{sSt1}
        """)
        P.L(skip)

    P.L(L("start"))
    P(f"""
    buffer_load_dwordx4 {vr(KL,4)}, v{vL16}, {srd}, s27 offen
    buffer_load_dword v{KH}, v{vKH}, {srd}, s28 offen
    s_mov_b32 s{sG0}, s{sG0i}
    s_mov_b32 s{sG1}, s{sG1i}
    """)
    dma(0)
    dma(1)
    P(f"""
    s_mul_i32 s{sT}, s{sKH}, {HALF}
    v_add_u32 v{vT2}, s{sT}, v{vKH}
    s_mov_b32 s{sIt}, 0
    v_cmp_gt_u32 vcc, 32, v{vLane}
    """)
    for r in range(8):
        P(f"v_mov_b32 v{PB + r}, 0")
    P(f"v_and_b32 v{vT}, 31, v{vLane}")
    P(f"v_cmp_eq_u32 s[{sMask}:{sMask+1}], 18, v{vT}")
    P(f"v_mov_b32 v{vT}, 0x3f803f80")
    for r in range(4):
        P(f"v_cndmask_b32 v{V0 + r}, 0, v{vT}, s[{sMask}:{sMask+1}]")
        P(f"v_cndmask_b32 v{V1 + r}, 0, v{vT}, s[{sMask}:{sMask+1}]")
    P(f"""
    v_cndmask_b32 v{QHA}, 0, v{QHA}, vcc
    v_cndmask_b32 v{QHB}, 0, v{QHB}, vcc
    v_mfma_f32_32x32x8bf16_1k {vr(SA,16)}, {vr(KH,2)}, {vr(QHA,2)}, 0
    v_mfma_f32_32x32x16_bf16 {vr(SA,16)}, {vr(KL,4)}, {vr(QLA,4)}, {vr(SA,16)}
    """)
    for r in range(16):
        P(f"v_mov_b32 v{OA + r}, 0")
        P(f"v_mov_b32 v{OB + r}, 0")
    P(f"""
    s_waitcnt vmcnt(5)
    s_barrier
    """)
    vKHl = vT2

    def valu_seq(S, Pk):
        seq = []
        e = lambda r: f"v_exp_f32 v{S + r}, v{S + r}"
        c = lambda k: f"v_cvt_pk_bf16_f32 v{Pk + k}, v{S + 2 * k}, v{S + 2 * k + 1}"
        seq += [e(0), e(1)]
        for k in range(7):
            seq += [e(2 * k + 2), c(k), e(2 * k + 3)]
        seq += [None, c(7)]
        return seq

    def phase(S, Pk, mf, extra):
        seq = valu_seq(S, Pk)
        pos = [0, 6, 12, 18]
        k = 0
        out = []
        for idx, ins in enumerate(seq):
            if k < 4 and idx == pos[k]:
                out += mf[k] if isinstance(mf[k], list) else [mf[k]]
                out += extra.get(k, [])
                k += 1
            if ins is None:
                out.append("s_nop 0")
            else:
                out.append(ins)
        for o in out:
            P(o)

    def qk(S, QH, QL):
        return [f"v_mfma_f32_32x32x8bf16_1k {vr(S,16)}, {vr(KH,2)}, {vr(QH,2)}, 0",
                f"v_mfma_f32_32x32x16_bf16 {vr(S,16)}, {vr(KL,4)}, {vr(QL,4)}, {vr(S,16)}"]

    def pv(O, Pk):
        return [f"v_mfma_f32_32x32x16_bf16 {vr(O,16)}, {vr(V0,4)}, {vr(Pk,4)}, {vr(O,16)}",
                f"v_mfma_f32_32x32x16_bf16 {vr(O,16)}, {vr(V1,4)}, {vr(Pk+4,4)}, {vr(O,16)}"]

    def step(par, t):
        a = qk(SB, QHB, QLB); b = pv(OB, PB)
        ex = {1: [f"ds_read_b32 v{KH}, v{vKHl} offset:{par * BUF + 4096 + t * 128}",
                  f"ds_read_b128 {vr(KL,4)}, v{vKL} offset:{par * BUF + t * 1024}"],
              3: [f"ds_read_b128 {vr(V0,4)}, v{vV} offset:{par * BUF + 5120 + 2 * t * 576}",
                  f"ds_read_b128 {vr(V1,4)}, v{vV} offset:{par * BUF + 5120 + (2 * t + 1) * 576}"]}
        if "nozero" not in exp:
            ex[3] = [f"s_mov_b64 exec, s[{sVm}:{sVm+1}]"] + ex[3] + ["s_mov_b64 exec, -1"]
        if "noread" in exp:
            ex = {}
        phase(SA, PA, [a[0], a[1], b[0], b[1]], ex)
        a = qk(SA, QHA, QLA); b = pv(OA, PA)
        phase(SB, PB, [["s_waitcnt lgkmcnt(2)", a[0]], a[1], ["s_waitcnt lgkmcnt(0)", b[0]], b[1]], {})

    common.mark(P, 0)
    prio_of = lambda c, t: 3 - t
    if 'attp1' in exp:
        prio_of = lambda c, t: max(1, 3 - t)
    if 'attp2' in exp:
        prio_of = lambda c, t: (3, 2, 2, 1)[t]
    for c in range(8):
        par = c & 1
        for t in range(4):
            if "noprio" not in exp:
                P(f"s_setprio {prio_of(c, t)}")
            step(par, t)
        P("s_waitcnt vmcnt(0) lgkmcnt(0)")
        if "nobar" not in exp:
            P("s_barrier")
        if c < 6 and "nodma" not in exp:
            dma(par)
        common.mark(P, 4 + c)
    common.mark(P, 1)
    for m in pv(OB, PB):
        P(m)

    XL = 24576
    P(f"""
    s_lshl_b32 s{sT}, s{sQG}, 9
    s_lshl_b32 s{sT2}, s{sKH}, 2
    s_add_u32 s{sT}, s{sT}, s{sT2}
    s_add_u32 s{sT}, s{sT}, {XL}
    v_and_b32 v{vT}, 31, v{vLane}
    v_lshlrev_b32 v{vT}, 3, v{vT}
    v_add_u32 v{vT}, s{sT}, v{vT}
    s_mul_i32 s{sT}, s{sW}, 3072
    v_add_u32 v{SA}, s{sT}, v{vL16}
    s_xor_b32 s{sT2}, s{sW}, 4
    s_mul_i32 s{sT2}, s{sT2}, 3072
    v_add_u32 v{SA+1}, s{sT2}, v{vL16}
    s_mov_b32 exec_hi, 0
    ds_write_b32 v{vT}, v{OA+10}
    ds_write_b32 v{vT}, v{OB+10} offset:256
    s_mov_b32 exec_hi, -1
    s_cmp_eq_u32 s{sKH}, 0
    s_cbranch_scc0 {L('send_a')}
    ds_write_b128 v{SA}, {vr(OB,4)}
    ds_write_b128 v{SA}, {vr(OB+4,4)} offset:1024
    ds_write_b128 v{SA}, {vr(OB+8,4)} offset:2048
    s_branch {L('sent')}
    """)
    P.L(L("send_a"))
    P(f"""
    ds_write_b128 v{SA}, {vr(OA,4)}
    ds_write_b128 v{SA}, {vr(OA+4,4)} offset:1024
    ds_write_b128 v{SA}, {vr(OA+8,4)} offset:2048
    s_waitcnt lgkmcnt(0)
    """)
    for r in range(12):
        P(f"v_mov_b32 v{OA + r}, v{OB + r}")
    P.L(L("sent"))
    P(f"""
    s_waitcnt lgkmcnt(0)
    s_barrier
    ds_read_b128 {vr(SB,4)}, v{SA+1}
    ds_read_b128 {vr(SB+4,4)}, v{SA+1} offset:1024
    ds_read_b128 {vr(SB+8,4)}, v{SA+1} offset:2048
    v_lshlrev_b32 v{vT}, 3, v{vLane}
    ds_read_b64 {vr(PA,2)}, v{vT} offset:{XL}
    ds_read_b64 {vr(PA+2,2)}, v{vT} offset:{XL + 512}
    ds_read_b64 {vr(PB,2)}, v{vT} offset:{XL + 1024}
    ds_read_b64 {vr(PB+2,2)}, v{vT} offset:{XL + 1536}
    """)
    for r in range(11):
        P(f"v_add_f32 v{OA + r}, v{OA + r}, v{SB + r}")
    P(f"""
    v_add_f32 v{PA}, v{PA}, v{PA+1}
    v_add_f32 v{PA+2}, v{PA+2}, v{PA+3}
    v_add_f32 v{PB}, v{PB}, v{PB+1}
    v_add_f32 v{PB+2}, v{PB+2}, v{PB+3}
    s_cmp_eq_u32 s{sAtt}, 1
    s_cbranch_scc1 {L('final')}
    v_mov_b32 v{PA+6}, {f32(2.0 ** -64)}
    v_mov_b32 v{PA+7}, {f32(2.0 ** 64)}
    s_mov_b64 s[{sMask}:{sMask+1}], exec
    """)
    for r in (PA, PA + 2, PB, PB + 2):
        P(f"""
        v_cmp_ge_f32 vcc, v{r}, v{PA+6}
        s_and_b64 s[{sMask}:{sMask+1}], s[{sMask}:{sMask+1}], vcc
        v_cmp_le_f32 vcc, v{r}, v{PA+7}
        s_and_b64 s[{sMask}:{sMask+1}], s[{sMask}:{sMask+1}], vcc
        """)
    P(f"""
    s_andn2_b64 s[{sMask}:{sMask+1}], exec, s[{sMask}:{sMask+1}]
    s_cbranch_scc1 {L('maxpass')}
    """)
    P.L(L("final"))
    common.mark(P, 2)
    P(f"""
    v_mov_b32 v{SB}, v{OA+10}
    v_mov_b32 v{SB+1}, v{OA+10}
    s_add_u32 s{sTile}, s{sTile}, s{sKH}
    s_mul_i32 s{sT}, s{sTile}, {36 * 1024}
    v_permlane32_swap_b32 v{SB}, v{SB+1}
    s_add_u32 s{sT}, s{sT}, {WS_OF}
    v_rcp_f32 v{SB}, v{SB}
    {"v_mov_b32 v%d, 1.0" % (SB + 1) if "oldtail" in exp else "v_sub_f32 v%d, 1.0, v%d" % (SB + 1, vGq)}
    s_lshl_b32 s{sT2}, s{sHead}, 10
    s_add_u32 s{sT2}, s{sT2}, s{sT}
    v_mul_f32 v{SB}, v{SB}, v{SB+1}
    """)
    for r in range(10):
        P(f"v_mul_f32 v{OA + r}, v{OA + r}, v{SB}")
    for k in range(5):
        P(f"v_cvt_pk_bf16_f32 v{PA + k}, v{OA + 2 * k}, v{OA + 2 * k + 1}")
    P(f"""
    buffer_store_dwordx4 {vr(PA,4)}, v{vL16}, {srd}, s{sT2} offen sc1
    s_lshr_b32 s{sT2}, s{sHead}, 3
    s_add_u32 s{sT2}, s{sT2}, 32
    s_lshl_b32 s{sT2}, s{sT2}, 10
    s_add_u32 s{sT}, s{sT}, s{sT2}
    s_lshr_b32 s{sT2}, s{sHead}, 2
    s_and_b32 s{sT2}, s{sT2}, 1
    s_lshl_b32 s{sT2}, s{sT2}, 9
    s_add_u32 s{sT}, s{sT}, s{sT2}
    s_and_b32 s{sT2}, s{sHead}, 3
    s_lshl_b32 s{sT2}, s{sT2}, 2
    s_add_u32 s{sT}, s{sT}, s{sT2}
    s_mov_b32 exec_hi, 0
    buffer_store_dword v{PA+4}, v{vL16}, {srd}, s{sT} offen sc1
    """)
    if "wflag" in exp:
        P(f"""
        s_lshl_b32 s{sT}, s{sTile}, 7
        s_lshl_b32 s{sT2}, s{sHead}, 2
        s_add_u32 s{sT}, s{sT}, s{sT2}
        s_add_u32 s{sT}, s{sT}, {WS_FLG + FLG_ATT2}
        s_waitcnt vmcnt(0)
        """)
    else:
        P(f"""
        s_waitcnt vmcnt(0)
        s_barrier
        s_cmp_eq_u32 s{sW}, {flag_wave}
        s_cbranch_scc0 {L('noflag')}
        s_lshl_b32 s{sT}, s{sQB}, 7
        s_lshl_b32 s{sT2}, s{sHead}, 2
        s_add_u32 s{sT}, s{sT}, s{sT2}
        s_add_u32 s{sT}, s{sT}, {WS_FLG + FLG_ATT}
        """)
    P(f"""
    v_mov_b32 v{PA}, {flag}
    v_mov_b32 v{PA+1}, 0
    s_mov_b32 exec_lo, 1
    buffer_store_dword v{PA}, v{PA+1}, {srd}, s{sT} offen sc1
    """)
    P.L(L("noflag"))
    P(end)

    P.L(L("maxpass"))
    P(f"""
    s_barrier
    s_mov_b32 s{sAtt}, 1
    s_mov_b32 s{sIt}, 0
    s_mov_b32 s{sG0}, s27
    s_mov_b32 s{sG1}, s28
    v_mov_b32 v{QHA+1}, 0
    v_mov_b32 v{QHB+1}, 0
    v_mov_b32 v{PA}, 0xff800000
    v_mov_b32 v{PB}, 0xff800000
    """)
    P.L(L("maxloop"))
    P(f"""
    buffer_load_dwordx4 {vr(KL,4)}, v{vL16}, {srd}, s{sG0} offen
    buffer_load_dword v{KH}, v{vKH}, {srd}, s{sG1} offen
    s_add_u32 s{sG0}, s{sG0}, 1024
    s_add_u32 s{sG1}, s{sG1}, 128
    """)
    for m in qk(SA, QHA, QLA) + qk(SB, QHB, QLB):
        P(m)
    for S, M in ((SA, PA), (SB, PB)):
        for r in range(0, 16, 2):
            P(f"v_max3_f32 v{M}, v{S + r}, v{S + r + 1}, v{M}")
    P(f"""
    s_add_u32 s{sIt}, s{sIt}, 1
    s_cmp_lt_u32 s{sIt}, 32
    s_cbranch_scc1 {L('maxloop')}
    """)
    for M in (PA, PB):
        P(f"""
        v_mov_b32 v{M+1}, v{M}
        v_mov_b32 v{M+2}, v{M}
        v_permlane32_swap_b32 v{M+1}, v{M+2}
        v_max3_f32 v{M}, v{M}, v{M+1}, v{M+2}
        """)
    P(f"""
    s_lshl_b32 s{sT}, s{sW}, 9
    v_lshlrev_b32 v{vT}, 3, v{vLane}
    v_add_u32 v{SA}, s{sT}, v{vT}
    s_xor_b32 s{sT}, s{sW}, 4
    s_lshl_b32 s{sT}, s{sT}, 9
    v_add_u32 v{SA+1}, s{sT}, v{vT}
    v_mov_b32 v{PA+1}, v{PB}
    ds_write_b64 v{SA}, {vr(PA,2)}
    s_waitcnt lgkmcnt(0)
    s_barrier
    ds_read_b64 {vr(PA+2,2)}, v{SA+1}
    v_cmp_gt_u32 vcc, 32, v{vLane}
    v_max_f32 v{PA}, v{PA}, v{PA+2}
    v_max_f32 v{PB}, v{PB}, v{PA+3}
    """)
    for M, QH in ((PA, QHA), (PB, QHB)):
        P(f"""
        v_sub_f32 v{M}, 0, v{M}
        v_and_b32 v{M+1}, 0xffff0000, v{M}
        v_sub_f32 v{M+2}, v{M}, v{M+1}
        v_and_b32 v{M+3}, 0xffff0000, v{M+2}
        v_sub_f32 v{M+4}, v{M+2}, v{M+3}
        v_lshrrev_b32 v{M+5}, 16, v{M+1}
        v_or_b32 v{M+5}, v{M+5}, v{M+3}
        v_lshrrev_b32 v{M+6}, 16, v{M+4}
        v_cndmask_b32 v{QH+1}, v{M+6}, v{M+5}, vcc
        """)
    P(f"""
    s_barrier
    s_branch {L('start')}
    """)
    return V.hi
```

```python
from asmgen import *
from layout import *
import common
import struct
from prepk import Prep, srd_from_kernarg


def f32(x):
    return "0x%08x" % struct.unpack("<I", struct.pack("<f", x))[0]


NST = 5
PRE = 2
LA = 3
STAGE = 32768
K1_LDS = NST * STAGE


class Queue:
    def __init__(self, P, q=()):
        self.P, self.q = P, list(q)

    def copy(self):
        return Queue(self.P, self.q)

    def add(self, tag, n):
        self.q += [tag] * n

    def wait(self, tag):
        idx = max(i for i, e in enumerate(self.q) if e == tag)
        self.P(f"s_waitcnt vmcnt({len(self.q) - 1 - idx})")


def emit_k1(P, sWG, pfx="k1", end="s_endpgm", exp=(), end_c=None):
    XE = 6
    ROT = (2, 1)
    wmask = "k1wm" in exp
    for e in exp:
        if e.startswith("k1xe="): XE = int(e[5:])
        if e.startswith("k1rot="): ROT = tuple(int(x) for x in e[6:].split("_"))
    noprep = "k1noprep" in exp
    vT = list(range(1, 9))
    V = Regs("v", 9)
    ACC = [[V.alloc(16) for _ in range(2)] for _ in range(2)]
    XF = [[V.alloc(4) for _ in range(2)] for _ in range(2)]
    WF = [[V.alloc(4) for _ in range(2)] for _ in range(2)]
    vXR = [V.alloc() for _ in range(4)]
    vWR = [V.alloc() for _ in range(2)]
    vXR2 = [V.alloc() for _ in range(4)]
    vWR2 = [V.alloc() for _ in range(2)]
    vXR3 = [V.alloc() for _ in range(4)]
    vWR3 = [V.alloc() for _ in range(2)]
    vD = [9, 10, 11, 12]
    VX = Regs("v", 13)
    vXA = VX.alloc(); vXT = VX.alloc(); XR = VX.alloc(4)
    VW = Regs("v", 13)
    vGA = VW.alloc(); vGO = VW.alloc()
    GX = [VW.alloc(4) for _ in range(9)]; GW = [VW.alloc(4) for _ in range(9)]
    vLane = 0
    sX, sW_, sD, sGW = 8, 12, 16, 20
    sTB, sFG, sWv, sWM, sWN, sM, sOff, sStep, sCol = 24, 25, 26, 27, 28, 29, 30, 31, 32
    sT, sT2, sT3, sIsV, sPB = 33, 34, 35, 36, 37
    sWrap, sRot, sEm = 38, 39, 40
    sLd = 44
    L = lambda n: f"{pfx}_{n}"
    ws = "s[4:7]"
    t0, t1, t2, t3, t4, t5 = vT[:6]

    P(f"""
    s_load_dwordx2 s[{sX}:{sX+1}], s[0:1], {KA_AX}
    s_load_dwordx2 s[{sW_}:{sW_+1}], s[0:1], {KA_WQKV}
    v_lshrrev_b32 v{t0}, 6, v0
    v_and_b32 v{vLane}, 63, v0
    v_readfirstlane_b32 s{sWv}, v{t0}
    s_and_b32 s{sT}, s{sWG}, 7
    s_lshr_b32 s{sT2}, s{sWG}, 3
    s_and_b32 s{sTB}, s{sT}, 1
    s_lshl_b32 s{sTB}, s{sTB}, 3
    s_and_b32 s{sT3}, s{sT2}, 7
    s_add_u32 s{sTB}, s{sTB}, s{sT3}
    s_lshr_b32 s{sFG}, s{sT}, 1
    s_lshl_b32 s{sFG}, s{sFG}, 2
    s_lshr_b32 s{sT}, s{sT2}, 3
    s_add_u32 s{sFG}, s{sFG}, s{sT}
    s_mul_i32 s{sT3}, s{sT3}, {ROT[0]}
    s_mul_i32 s{sT}, s{sT}, {ROT[1]}
    s_add_u32 s{sT}, s{sT}, s{sT3}
    s_mul_i32 s{sT2}, s{sT}, 7282
    s_lshr_b32 s{sT2}, s{sT2}, 16
    s_mul_i32 s{sT2}, s{sT2}, 9
    s_sub_u32 s{sRot}, s{sT}, s{sT2}
    s_lshr_b32 s{sLd}, s{sWv}, 2
    s_and_b32 s{sWv}, s{sWv}, 3
    s_lshl_b32 s{sM}, s{sWv}, 12
    """)
    P(f"""
    s_mul_i32 s{sCol}, s{sFG}, 216
    s_and_b32 s{sCol}, s{sCol}, {'0xffffff80' if 'k1al' in exp else '0xfffffff0'}
    s_sub_u32 s{sT}, s{sFG}, 11
    s_lshl_b32 s{sT}, s{sT}, 2
    s_min_u32 s{sT}, s{sT}, 14
    s_lshl_b32 s{sT2}, s{sT}, 6
    s_add_u32 s{sT2}, s{sT2}, 2304
    s_cmp_ge_u32 s{sFG}, 11
    s_cselect_b32 s{sIsV}, 1, 0
    s_cselect_b32 s{sCol}, s{sT2}, s{sCol}
    s_cselect_b32 s{sPB}, s{sT}, 0
    s_cmp_eq_u32 s{sLd}, 0
    s_cbranch_scc1 {L('compute')}
    """)
    sSh, sSw, sMk, sPitch, sRow, sDu = 45, 46, 47, 22, 23, 21
    P(f"""
    s_lshl_b32 s{sT}, s{sTB}, 7
    s_lshl_b32 s{sT2}, s{sWv}, 5
    s_add_u32 s{sT}, s{sT}, s{sT2}
    s_lshl_b32 s{sT2}, s{sWv}, 4
    s_add_u32 s{sT3}, s{sM}, 16384
    s_mov_b64 s[{sEm}:{sEm+1}], -1
    """)
    if wmask:
        P(f"""
        s_cmp_eq_u32 s{sLd}, 2
        s_cselect_b32 s{sSh}, s{sIsV}, 1
        s_cmp_eq_u32 s{sSh}, 0
        s_cmov_b32 s{sEm}, 0xf3ff3fff
        s_cmov_b32 s{sEm+1}, 0xfff3ff3f
        """)
    P(f"""
    s_cmp_eq_u32 s{sLd}, 2
    s_cselect_b32 s{sRow}, s{sT2}, s{sT}
    s_cselect_b32 s{sM}, s{sT3}, s{sM}
    s_cselect_b32 s{sSh}, 4, 3
    s_cselect_b32 s{sSw}, 2, 0
    s_cselect_b32 s{sMk}, 15, 7
    s_cselect_b32 s{sT3}, 0, 64
    s_cselect_b32 s{sT2}, s{sCol}, 0
    s_movk_i32 s{sPitch}, 1152
    s_cmov_b32 s{sPitch}, 3456
    s_movk_i32 s{sDu}, {9216 - 1024}
    s_cmov_b32 s{sDu}, {13824 - 1024}
    s_movk_i32 s{sStep}, 128
    s_cmov_b32 s{sStep}, {64 * 3456}
    s_mov_b32 s{sD+2}, {2048 * 1152}
    s_cmov_b32 s{sD+2}, {576 * 3456}
    s_mov_b32 s{sD+3}, 0x00020000
    v_lshrrev_b32 v{t0}, s{sSh}, v{vLane}
    v_add_u32 v{t0}, s{sRow}, v{t0}
    v_mul_u32_u24 v{t0}, s{sPitch}, v{t0}
    v_add_u32 v{t0}, s{sT2}, v{t0}
    v_lshrrev_b32 v{t1}, 4, v{vLane}
    v_lshlrev_b32 v{t1}, s{sSw}, v{t1}
    v_and_b32 v{t2}, s{sMk}, v{vLane}
    v_xor_b32 v{t1}, v{t1}, v{t2}
    v_lshlrev_b32 v{t1}, 4, v{t1}
    v_xor_b32 v{t2}, s{sT3}, v{t1}
    s_mul_i32 s{sT}, s{sDu}, 2
    s_mul_i32 s{sT2}, s{sDu}, 3
    v_add_u32 v{vD[0]}, v{t0}, v{t1}
    v_add3_u32 v{vD[1]}, v{t0}, v{t2}, s{sDu}
    v_add3_u32 v{vD[2]}, v{t0}, v{t1}, s{sT}
    v_add3_u32 v{vD[3]}, v{t0}, v{t2}, s{sT2}
    s_mul_i32 s{sOff}, s{sRot}, s{sStep}
    s_mul_i32 s{sWrap}, s{sStep}, 9
    s_cselect_b32 s{sD}, s{sW_}, s{sX}
    s_cselect_b32 s{sD+1}, s{sW_+1}, s{sX+1}
    """)

    def dma(Q, c):
        P(f"s_add_u32 m0, s{sM}, {(c % NST) * STAGE}")
        if wmask:
            P(f"s_mov_b64 exec, s[{sEm}:{sEm+1}]")
        for u in range(4):
            P(f"buffer_load_dwordx4 v{vD[u]}, s[{sD}:{sD+3}], s{sOff} offen offset:{u * 1024} lds")
        if wmask:
            P("s_mov_b64 exec, -1")
        P(f"""
        s_add_u32 s{sOff}, s{sOff}, s{sStep}
        s_cmp_eq_u32 s{sOff}, s{sWrap}
        s_cselect_b32 s{sOff}, 0, s{sOff}
        """)
        Q.add(c, 4)

    Q0 = Queue(P)
    common.mark(P, 0)
    for c in range(PRE):
        dma(Q0, c)
        if c == 0 and "k1b0" in exp:
            P("s_barrier")
    P(f"""
    s_cmp_eq_u32 s{sLd}, 2
    s_cbranch_scc1 {L('wload')}
    """)

    def loop(Q, c0, c1, rounds):
        for c in range(c0, c1):
            Q.wait(c + 1)
            P("s_waitcnt lgkmcnt(0)")
            P("s_barrier")
            if c + LA < 9:
                dma(Q, c + LA)
            if c % 3 == 1:
                rounds(Q, c // 3)

    def start(Q):
        Q.wait(0)
        common.mark(P, 1)
        P("s_barrier")
        for c in range(PRE, LA):
            dma(Q, c)

    def stage_of(dst, step_reg_or_const, tmp):
        P(f"""
        s_add_u32 s{dst}, s{sRot}, {step_reg_or_const}
        s_sub_u32 s{tmp}, s{dst}, 9
        s_cmp_ge_u32 s{dst}, 9
        s_cselect_b32 s{dst}, s{tmp}, s{dst}
        """)

    px = Prep(P, 48)
    if "wflag" in exp:
        px.nclr = 154
    px.alloc_x(VX)
    sMin, sXFo = 43, 42
    P(f"""
    v_and_b32 v{t0}, 31, v{vLane}
    v_lshrrev_b32 v{t1}, 2, v{t0}
    v_and_b32 v{t1}, 1, v{t1}
    v_lshlrev_b32 v{t1}, 5, v{t1}
    """)
    if "pks" in exp:
        P(f"""
        v_lshrrev_b32 v{t2}, 3, v{t0}
        v_lshlrev_b32 v{t2}, 1, v{t2}
        v_add_u32 v{t1}, v{t1}, v{t2}
        v_and_b32 v{t2}, 1, v{t0}
        v_lshlrev_b32 v{t2}, 4, v{t2}
        v_add_u32 v{t1}, v{t1}, v{t2}
        v_bfe_u32 v{t2}, v{t0}, 1, 1
        v_add_u32 v{t1}, v{t1}, v{t2}
        """)
    else:
        P(f"""
        v_lshrrev_b32 v{t2}, 3, v{t0}
        v_lshlrev_b32 v{t2}, 2, v{t2}
        v_add_u32 v{t1}, v{t1}, v{t2}
        v_and_b32 v{t2}, 3, v{t0}
        v_add_u32 v{t1}, v{t1}, v{t2}
        """)
    P(f"""
    s_lshr_b32 s{sT}, s{sFG}, 3
    s_lshl_b32 s{sT}, s{sT}, 6
    s_bfe_u32 s{sT2}, s{sFG}, 0x10002
    s_lshl_b32 s{sT2}, s{sT2}, {3 if "pks" in exp else 4}
    s_add_u32 s{sT}, s{sT}, s{sT2}
    v_add_u32 v{t1}, s{sT}, v{t1}
    v_lshrrev_b32 v{t2}, 1, v{t1}
    v_and_b32 v{t2}, 7, v{t2}
    v_lshrrev_b32 v{t3}, 5, v{vLane}
    s_and_b32 s{sT}, s{sFG}, 3
    s_lshl_b32 s{sT2}, s{sT}, 1
    v_add_u32 v{t3}, s{sT2}, v{t3}
    v_xor_b32 v{t2}, v{t2}, v{t3}
    v_lshlrev_b32 v{t2}, 4, v{t2}
    v_lshlrev_b32 v{t1}, 7, v{t1}
    v_add_u32 v{vXA}, v{t1}, v{t2}
    s_lshl_b32 s{sT2}, s{sTB}, 2
    s_lshr_b32 s{sT3}, s{sFG}, 2
    s_add_u32 s{sT2}, s{sT2}, s{sT3}
    s_mul_i32 s{sT2}, s{sT2}, 36
    s_add_u32 s{sT2}, s{sT2}, s{sT}
    s_lshl_b32 s{sXFo}, s{sT2}, 10
    s_add_u32 s{sXFo}, s{sXFo}, {WS_XF}
    s_min_u32 s{sMin}, s{sWv}, 2
    v_lshlrev_b32 v{px.vL16}, 4, v{vLane}
    """)

    def x_round(Q, rd):
        P(f"""
        s_add_u32 s{sT}, s{sMin}, {3 * rd}
        s_sub_u32 s{sT2}, s{sT}, {NST}
        s_cmp_ge_u32 s{sT}, {NST}
        s_cselect_b32 s{sT2}, s{sT2}, s{sT}
        s_mul_i32 s{sT2}, s{sT2}, {STAGE}
        v_add_u32 v{vXT}, s{sT2}, v{vXA}
        ds_read_b128 {vr(XR,4)}, v{vXT}
        s_add_u32 s{sT}, s{sT}, s{sRot}
        s_sub_u32 s{sT2}, s{sT}, 9
        s_cmp_ge_u32 s{sT}, 9
        s_cselect_b32 s{sT}, s{sT2}, s{sT}
        s_lshl_b32 s{sT}, s{sT}, 12
        s_add_u32 s{sT}, s{sT}, s{sXFo}
        buffer_store_dwordx4 {vr(XR,4)}, v{px.vL16}, {ws}, s{sT} offen sc1
        """)
        Q.add("s", 1)

    Qx = Q0.copy()
    px.srds()
    start(Qx)
    loop(Qx, 0, XE + 1, x_round)
    if not noprep:
        P(f"""
        s_cmp_ge_u32 s{sWG}, 94
        s_cbranch_scc0 {L('xclr')}
        """)
        Qb = Qx.copy()
        Qb.add("x", px.loads_b(sWG, sWv))
        loop(Qb, XE + 1, 8, x_round)
        common.mark(P, 2)
        px.finish_b()
        P(f"s_branch {L('end')}")
        P.L(L("xclr"))
    lamt = "lamt" in exp
    if lamt:
        Qx = Qx.copy()
        Qx.add("x", px.loads_l(sWG, sWv))
    loop(Qx, XE + 1, 8, x_round)
    common.mark(P, 2)
    if lamt:
        px.finish_l()
    if not noprep:
        px.clear(sWG, sWv)
    P(f"s_branch {L('end')}")

    P.L(L("wload"))
    pw = Prep(P, 48)
    pw.alloc_w(VW)
    P(f"""
    v_lshrrev_b32 v{t0}, 3, v{vLane}
    v_and_b32 v{t0}, 1, v{t0}
    s_lshl_b32 s{sT}, s{sFG}, 3
    s_lshl_b32 s{sT2}, s{sWv}, 1
    s_add_u32 s{sT}, s{sT}, s{sT2}
    v_add_u32 v{t0}, s{sT}, v{t0}
    v_lshrrev_b32 v{t1}, 1, v{t0}
    v_and_b32 v{t2}, 7, v{vLane}
    v_xor_b32 v{t1}, v{t1}, v{t2}
    v_and_b32 v{t1}, 7, v{t1}
    v_lshlrev_b32 v{t1}, 4, v{t1}
    v_lshlrev_b32 v{t3}, 7, v{t0}
    v_add_u32 v{vGA}, v{t3}, v{t1}
    v_lshlrev_b32 v{vGO}, 4, v{t2}
    """)
    vG2, vG3 = VW.alloc(), VW.alloc()
    P(f"""
    v_add_u32 v{vG2}, 0x10000, v{vGA}
    v_add_u32 v{vG3}, 0x20000, v{vGA}
    """)

    def w_round(Q, rd):
        for s_ in range(3 * rd, 3 * rd + 3):
            off = (s_ % NST) * STAGE
            reg = (vGA, vG2, vG3)[off >> 16]
            P(f"ds_read_b128 {vr(GX[s_],4)}, v{reg} offset:{off & 65535}")

    def gw_loads():
        for s_ in range(9):
            stage_of(sT, s_, sT2)
            P(f"""
            s_lshl_b32 s{sT}, s{sT}, 7
            buffer_load_dwordx4 {vr(GW[s_],4)}, v{vGO}, s[{sGW}:{sGW+3}], s{sT} offen
            """)
        return 9

    def gate():
        acc = vT[0:2]
        P(f"v_mov_b32 v{acc[0]}, 0\nv_mov_b32 v{acc[1]}, 0")
        for s_ in range(9):
            for q in range(4):
                P(f"v_dot2c_f32_bf16 v{acc[q & 1]}, v{GX[s_] + q}, v{GW[s_] + q}")
        P(f"""
        v_add_f32 v{acc[0]}, v{acc[0]}, v{acc[1]}
        v_add_f32_dpp v{acc[0]}, v{acc[0]}, v{acc[0]} quad_perm:[1,0,3,2] row_mask:0xf bank_mask:0xf
        v_add_f32_dpp v{acc[0]}, v{acc[0]}, v{acc[0]} quad_perm:[2,3,0,1] row_mask:0xf bank_mask:0xf
        v_add_f32_dpp v{acc[0]}, v{acc[0]}, v{acc[0]} row_half_mirror row_mask:0xf bank_mask:0xf
        v_mul_f32 v{acc[0]}, {f32(-LOG2E)}, v{acc[0]}
        v_exp_f32 v{acc[0]}, v{acc[0]}
        v_add_f32 v{acc[0]}, 1.0, v{acc[0]}
        v_rcp_f32 v{acc[0]}, v{acc[0]}
        v_lshrrev_b32 v{acc[1]}, 3, v{vLane}
        v_lshlrev_b32 v{acc[1]}, 2, v{acc[1]}
        s_lshl_b32 s{sT}, s{sTB}, 7
        s_lshl_b32 s{sT2}, s{sFG}, 3
        s_add_u32 s{sT}, s{sT}, s{sT2}
        s_lshl_b32 s{sT2}, s{sWv}, 1
        s_add_u32 s{sT}, s{sT}, s{sT2}
        s_lshl_b32 s{sT}, s{sT}, 2
        s_add_u32 s{sT}, s{sT}, {WS_G}
        s_mov_b32 exec_lo, 0x101
        s_mov_b32 exec_hi, 0
        buffer_store_dword v{acc[0]}, v{acc[1]}, {ws}, s{sT} offen sc1
        s_mov_b64 exec, -1
        """)

    Qw = Q0.copy()
    srd_from_kernarg(P, sGW, KA_GW, 1152)
    pw.srds()
    Qw.add("g", gw_loads())
    start(Qw)
    loop(Qw, 0, XE + 1, w_round)
    paths = [("none", None, None)] if noprep else [("cf", 162, (pw.loads_c, pw.finish_c)), ("wf", 243, (pw.loads_w, pw.finish_w)), ("none", None, None)]
    for name, lim, fn in paths:
        nxt = L("wp_" + name + "_next")
        if lim is not None:
            P(f"""
            s_cmp_lt_u32 s{sWG}, {lim}
            s_cbranch_scc0 {nxt}
            """)
        Q = Qw.copy()
        if fn:
            Q.add("x", fn[0](sWG, sWv))
        loop(Q, XE + 1, 8, w_round)
        common.mark(P, 2)
        gate()
        if fn:
            fn[1]()
        P(f"s_branch {L('end')}")
        if lim is not None:
            P.L(nxt)

    P.L(L("compute"))
    if "k1b0" in exp:
        P("s_barrier")
    P(f"""
    s_and_b32 s{sWM}, s{sWv}, 1
    s_lshr_b32 s{sWN}, s{sWv}, 1
    """)
    if common.TIMING:
        common.MK0, common.NMARK = 52, 16
    P(f"""
    v_and_b32 v{t0}, 31, v{vLane}
    v_lshrrev_b32 v{t1}, 5, v{vLane}
    v_lshrrev_b32 v{t2}, 1, v{t0}
    v_and_b32 v{t2}, 7, v{t2}
    v_xor_b32 v{t2}, v{t2}, v{t1}
    v_lshlrev_b32 v{t2}, 4, v{t2}
    s_lshl_b32 s{sT}, s{sWM}, 6
    v_add_u32 v{t3}, s{sT}, v{t0}
    v_lshlrev_b32 v{t3}, 7, v{t3}
    v_add_u32 v{vXR[0]}, v{t2}, v{t3}
    v_xor_b32 v{vXR[1]}, 32, v{vXR[0]}
    v_xor_b32 v{vXR[2]}, 64, v{vXR[0]}
    v_xor_b32 v{vXR[3]}, 0x60, v{vXR[0]}
    """)
    P(f"""
    v_lshrrev_b32 v{t0}, 4, v{vLane}
    v_and_b32 v{t0}, 1, v{t0}
    v_lshlrev_b32 v{t0}, 2, v{t0}
    v_and_b32 v{t1}, 3, v{vLane}
    v_add_u32 v{t0}, v{t0}, v{t1}
    v_lshrrev_b32 v{t1}, 2, v{vLane}
    v_and_b32 v{t1}, 3, v{t1}
    v_lshrrev_b32 v{t2}, 5, v{vLane}
    v_lshlrev_b32 v{t3}, 3, v{t2}
    v_add_u32 v{t3}, v{t3}, v{t1}
    v_lshlrev_b32 v{t3}, 8, v{t3}
    v_add_u32 v{t3}, 16384, v{t3}
    s_cmp_eq_u32 s{sIsV}, 1
    s_cbranch_scc1 {L('vaddr')}
    """)
    P(f"""
    s_mul_i32 s{sPB}, s{sFG}, 3
    s_and_b32 s{sT}, s{sFG}, 1
    s_lshl_b32 s{sT}, s{sT}, 3
    v_lshrrev_b32 v{t4}, 2, v{t0}
    v_mul_u32_u24 v{t4}, 40, v{t4}
    v_and_b32 v{t5}, 1, v{t0}
    v_lshlrev_b32 v{t5}, 4, v{t5}
    v_add_u32 v{t4}, v{t4}, v{t5}
    v_lshrrev_b32 v{t5}, 1, v{t0}
    v_and_b32 v{t5}, 1, v{t5}
    v_lshlrev_b32 v{t5}, 3, v{t5}
    v_add_u32 v{t4}, v{t4}, v{t5}
    v_add_u32 v{t4}, s{sT}, v{t4}
    s_mul_i32 s{sT2}, s{sWN}, 144
    v_add_u32 v{vWR[0]}, s{sT2}, v{t4}
    v_add_u32 v{vWR[1]}, 72, v{vWR[0]}
    v_min_u32 v{t5}, 2, v{t0}
    v_mul_u32_u24 v{t5}, 72, v{t5}
    v_add_u32 v{t5}, 32, v{t5}
    v_add_u32 v{t5}, s{sT}, v{t5}
    s_cmp_eq_u32 s{sWN}, 1
    s_cbranch_scc0 {L('swz')}
    v_mov_b32 v{vWR[1]}, v{t5}
    s_branch {L('swz')}
    """)
    P.L(L("vaddr"))
    P(f"""
    v_lshlrev_b32 v{t4}, 3, v{t0}
    s_lshl_b32 s{sT2}, s{sWN}, 7
    v_add_u32 v{vWR[0]}, s{sT2}, v{t4}
    v_add_u32 v{vWR[1]}, 64, v{vWR[0]}
    """)
    P.L(L("swz"))
    P(f"v_lshlrev_b32 v{t1}, 6, v{t1}")
    for k in range(2):
        P(f"""
        v_xor_b32 v{vWR[k]}, v{vWR[k]}, v{t1}
        v_add_u32 v{vWR[k]}, v{vWR[k]}, v{t3}
        """)

    for k in range(4):
        P(f"v_add_u32 v{vXR2[k]}, 0x10000, v{vXR[k]}")
    for k in range(2):
        P(f"v_add_u32 v{vWR2[k]}, 0x10000, v{vWR[k]}")
    if NST > 4:
        for k in range(4):
            P(f"v_add_u32 v{vXR3[k]}, 0x20000, v{vXR[k]}")
        for k in range(2):
            P(f"v_add_u32 v{vWR3[k]}, 0x20000, v{vWR[k]}")

    def reads(n):
        c, ks = divmod(n, 4)
        st = (c % NST) * STAGE
        xr, wr = ((vXR, vWR), (vXR2, vWR2), (vXR3, vWR3))[st >> 16]
        st &= 65535
        b = n & 1
        out = []
        for tt in range(2):
            out.append(f"ds_read_b128 {vr(XF[b][tt],4)}, v{xr[ks]} offset:{st + tt * 4096}")
        for ft in range(2):
            for rd in range(2):
                out.append(f"ds_read_b64_tr_b16 {vr(WF[b][ft] + 2 * rd, 2)}, v{wr[ft]} offset:{st + ks * 4096 + rd * 1024}")
        return out

    def mainloop(isv):
        for n in range(36):
            c, ks = divmod(n, 4)
            b = n & 1
            mf = []
            for tt in range(2):
                for ft in range(2):
                    a_, b_ = (XF[b][tt], WF[b][ft]) if isv else (WF[b][ft], XF[b][tt])
                    cop = "0" if n == 0 else vr(ACC[tt][ft], 16)
                    mf.append(f"v_mfma_f32_32x32x16_bf16 {vr(ACC[tt][ft],16)}, {vr(a_,4)}, {vr(b_,4)}, {cop}")
            P("s_waitcnt lgkmcnt(0)")
            if ks == 3 and n + 1 < 36:
                P("s_barrier")
                common.mark(P, 2 + c)
            rs = reads(n + 1) if n + 1 < 36 else []
            if "k1noread" in exp:
                rs = []
            for k in range(4):
                if "k1nomfma" not in exp:
                    P(mf[k])
                take = rs[:2] if k < 3 else rs
                rs = rs[len(take):]
                for r in take:
                    P(r)

    P("s_barrier")
    common.mark(P, 0)
    for r in reads(0):
        P(r)
    P(f"""
    s_cmp_eq_u32 s{sIsV}, 1
    s_cbranch_scc1 {L('vmain')}
    """)

    mainloop(False)
    common.mark(P, 1)
    PK = XF[0][0]
    vA = [vT[0], vT[1], vT[2], vT[3]]
    P(f"v_lshlrev_b32 v{vA[0]}, 4, v{vLane}")

    def lo_store(tt, ft, sPBreg):
        skip = P.newlabel(pfx + "_skip")
        P(f"""
        s_cmp_ge_u32 s{sPBreg}, 32
        s_cbranch_scc1 {skip}
        s_and_b32 s{sT}, s{sPBreg}, 15
        s_lshl_b32 s{sT}, s{sT}, 17
        s_lshl_b32 s{sT2}, s{sTB}, 2
        s_lshl_b32 s{sT3}, s{sWM}, 1
        s_add_u32 s{sT2}, s{sT2}, s{sT3}
        s_add_u32 s{sT2}, s{sT2}, {tt}
        s_lshl_b32 s{sT2}, s{sT2}, 10
        s_add_u32 s{sT}, s{sT}, s{sT2}
        s_add_u32 s{sT2}, s{sT}, {WS_QLO}
        s_add_u32 s{sT}, s{sT}, {WS_KLO}
        s_cmp_lt_u32 s{sPBreg}, 16
        s_cselect_b32 s{sT}, s{sT2}, s{sT}
        s_cselect_b32 s{sT3}, {f32(QSCALE)}, 1.0
        s_add_u32 s{sT2}, s{sT}, 65536
        """)
        A = ACC[tt][ft]
        for r in range(16):
            P(f"v_mul_f32 v{A + r}, s{sT3}, v{A + r}")
        for k in range(8):
            P(f"v_cvt_pk_bf16_f32 v{PK + k}, v{A + 2 * k}, v{A + 2 * k + 1}")
        P(f"""
        buffer_store_dwordx4 {vr(PK,4)}, v{vA[0]}, {ws}, s{sT} offen
        buffer_store_dwordx4 {vr(PK+4,4)}, v{vA[0]}, {ws}, s{sT2} offen
        """)
        P.L(skip)

    sP0, sP1 = 38, 39
    P(f"""
    s_lshl_b32 s{sP0}, s{sWN}, 1
    s_add_u32 s{sP0}, s{sP0}, s{sPB}
    s_add_u32 s{sP1}, s{sP0}, 1
    """)
    for tt in range(2):
        lo_store(tt, 0, sP0)
    P(f"""
    s_cmp_eq_u32 s{sWN}, 1
    s_cbranch_scc1 {L('hi')}
    """)
    for tt in range(2):
        lo_store(tt, 1, sP1)
    P(f"s_branch {L('cend')}")
    P.L(L("hi"))
    big = 0x7ff00000
    for part in range(2):
        pb, adr, scl = vT[1], vT[2], vT[3]
        if part == 0:
            P(f"""
            v_lshrrev_b32 v{pb}, 5, v{vLane}
            v_add_u32 v{pb}, s{sPB}, v{pb}
            """)
        else:
            P(f"""
            s_add_u32 s{sT}, s{sPB}, 2
            v_mov_b32 v{pb}, s{sT}
            """)
        P(f"""
        v_and_b32 v{adr}, 15, v{pb}
        v_lshlrev_b32 v{adr}, 14, v{adr}
        v_and_b32 v{vT[4]}, 31, v{vLane}
        v_lshlrev_b32 v{vT[4]}, 2, v{vT[4]}
        v_add_u32 v{adr}, v{adr}, v{vT[4]}
        s_lshl_b32 s{sT2}, s{sTB}, 9
        s_lshl_b32 s{sT3}, s{sWM}, 8
        s_add_u32 s{sT2}, s{sT2}, s{sT3}
        v_add_u32 v{adr}, s{sT2}, v{adr}
        v_cmp_gt_u32 vcc, 16, v{pb}
        v_mov_b32 v{vT[4]}, {WS_KHI}
        v_mov_b32 v{vT[5]}, {WS_QHI}
        v_cndmask_b32 v{vT[4]}, v{vT[4]}, v{vT[5]}, vcc
        v_add_u32 v{adr}, v{adr}, v{vT[4]}
        v_mov_b32 v{vT[4]}, 1.0
        v_mov_b32 v{vT[5]}, {f32(QSCALE)}
        v_cndmask_b32 v{scl}, v{vT[4]}, v{vT[5]}, vcc
        v_cmp_le_u32 vcc, 32, v{pb}
        v_mov_b32 v{vT[4]}, {big}
        v_cndmask_b32 v{adr}, v{adr}, v{vT[4]}, vcc
        """)
        if part == 1:
            P(f"""
            v_cmp_le_u32 vcc, 32, v{vLane}
            v_cndmask_b32 v{adr}, v{adr}, v{vT[4]}, vcc
            """)
        for tt in range(2):
            A = ACC[tt][1] + 4 * part
            for r in range(4):
                P(f"v_mul_f32 v{A + r}, v{scl}, v{A + r}")
            P(f"""
            v_cvt_pk_bf16_f32 v{PK + 2 * tt}, v{A}, v{A+1}
            v_cvt_pk_bf16_f32 v{PK + 2 * tt + 1}, v{A+2}, v{A+3}
            v_add_u32 v{vT[4]}, 8192, v{adr}
            buffer_store_dword v{PK + 2 * tt}, v{adr}, {ws}, 0 offen offset:{128 * tt}
            buffer_store_dword v{PK + 2 * tt + 1}, v{vT[4]}, {ws}, 0 offen offset:{128 * tt}
            """)
    P(f"s_branch {L('cend')}")

    P.L(L("vmain"))
    mainloop(True)
    common.mark(P, 1)
    adr = vT[0]
    P(f"""
    v_lshrrev_b32 v{vT[1]}, 5, v{vLane}
    v_mul_u32_u24 v{vT[1]}, {VT_HALF}, v{vT[1]}
    v_and_b32 v{adr}, 31, v{vLane}
    v_lshlrev_b32 v{adr}, 4, v{adr}
    v_add_u32 v{adr}, v{adr}, v{vT[1]}
    s_lshl_b32 s{sT}, s{sTB}, 3
    s_lshl_b32 s{sT2}, s{sWM}, 2
    s_add_u32 s{sT}, s{sT}, s{sT2}
    s_mul_i32 s{sT}, s{sT}, {VT_GROUP}
    s_lshl_b32 s{sT2}, s{sWN}, 1
    s_add_u32 s{sT2}, s{sT2}, s{sPB}
    s_lshl_b32 s{sT2}, s{sT2}, 9
    s_add_u32 s{sT}, s{sT}, s{sT2}
    s_add_u32 s{sT}, s{sT}, {WS_VT}
    """)
    for tt in range(2):
        for ft in range(2):
            A = ACC[tt][ft]
            R = PK + 8 * ft
            for k in range(8):
                P(f"v_cvt_pk_bf16_f32 v{R + k}, v{A + 2 * k}, v{A + 2 * k + 1}")
            for sg in range(2):
                P(f"s_add_u32 s{sT2}, s{sT}, {(2 * tt + sg) * VT_GROUP}")
                P(f"buffer_store_dwordx4 {vr(R + 4 * sg, 4)}, v{adr}, {ws}, s{sT2} offen offset:{ft * 512}" + (" ; nosc1" if "vwb" in exp else ""))

    P.L(L("cend"))
    common.mark(P, 10)
    P(end_c or end)
    P.L(L("end"))
    P(end)
    return max(V.hi, VX.hi, VW.hi)
```

```python
from asmgen import *
from layout import *
import struct


def f32(x):
    return "0x%08x" % struct.unpack("<I", struct.pack("<f", x))[0]


def srd_from_kernarg(P, s, ka, nbytes):
    P(f"""
    s_load_dwordx2 s[{s}:{s+1}], s[0:1], {ka}
    s_mov_b32 s{s+2}, {nbytes}
    s_mov_b32 s{s+3}, 0x00020000
    """)


def emit_lambda(P, lre, lim, ldt, t, lr, li, coef=None):
    P(f"""
    v_lshlrev_b32 v{lre}, 16, v{lre}
    v_lshlrev_b32 v{lim}, 16, v{lim}
    v_lshlrev_b32 v{ldt}, 16, v{ldt}
    v_mul_f32 v{ldt}, {f32(LOG2E)}, v{ldt}
    v_exp_f32 v{ldt}, v{ldt}
    v_cvt_pk_bf16_f32 v{ldt}, v{ldt}, v{ldt}
    v_lshlrev_b32 v{ldt}, 16, v{ldt}
    v_mul_f32 v{t}, v{ldt}, v{lre}
    v_mul_f32 v{t+1}, v{ldt}, v{lim}
    v_mul_f32 v{t}, {f32(LOG2E)}, v{t}
    v_mul_f32 v{t+1}, 0.15915494, v{t+1}
    v_exp_f32 v{t}, v{t}
    v_cos_f32 v{t+2}, v{t+1}
    v_sin_f32 v{t+3}, v{t+1}
    v_mul_f32 v{lr}, v{t}, v{t+2}
    v_mul_f32 v{li}, v{t}, v{t+3}
    """)
    if coef:
        kr, ki = coef
        P(f"""
        v_add_f32 v{t}, -1.0, v{lr}
        v_mul_f32 v{t+1}, v{lre}, v{lre}
        v_fmac_f32 v{t+1}, v{lim}, v{lim}
        v_rcp_f32 v{t+1}, v{t+1}
        v_mul_f32 v{kr}, v{t}, v{lre}
        v_fmac_f32 v{kr}, v{li}, v{lim}
        v_mul_f32 v{ki}, v{li}, v{lre}
        v_mul_f32 v{t+2}, v{t}, v{lim}
        v_sub_f32 v{ki}, v{ki}, v{t+2}
        v_mul_f32 v{kr}, v{kr}, v{t+1}
        v_mul_f32 v{ki}, v{ki}, v{t+1}
        """)


class Prep:
    def __init__(self, P, s0, pfx="prep"):
        self.P, self.pfx = P, pfx
        self.nclr = 146
        S = Regs("s", s0, 84)
        self.ptr = S.alloc(16, 4)
        self.pWo = S.alloc(2)
        self.sT = S.alloc(); self.sT2 = S.alloc(); self.sT3 = S.alloc()
        self.sW = S.alloc()
        self.sSel = S.alloc(4); self.sSel2 = S.alloc(4)
        self.sF = [S.alloc() for _ in range(2)]
        self.vLane = 0

    def alloc_x(self, V):
        self.B = [V.alloc(4) for _ in range(2)]
        self.vL16 = V.alloc(); self.vBl = V.alloc()
        self.T = V.alloc(8, 4)

    def alloc_w(self, V):
        self.Cr = V.alloc(4); self.Ci = V.alloc(4)
        self.L = [V.alloc() for _ in range(3)]
        self.vL16 = V.alloc(); self.vBl = V.alloc(); self.vWl = V.alloc()
        self.T = V.alloc(24, 4)
        self.W = self.T + 8

    def srds(self):
        self.P(f"""
        s_load_dwordx16 s[{self.ptr}:{self.ptr+15}], s[0:1], {KA_LRE}
        s_load_dwordx2 s[{self.pWo}:{self.pWo+1}], s[0:1], {KA_WO}
        """)

    def use(self, srd, p, nbytes):
        self.P(f"""
        s_mov_b32 s{srd}, s{p}
        s_mov_b32 s{srd+1}, s{p+1}
        s_mov_b32 s{srd+2}, {nbytes}
        s_mov_b32 s{srd+3}, 0x00020000
        """)

    def _rowaddr(self):
        P, s, ln, T = self.P, self, self.vLane, self.T
        P(f"""
        v_lshlrev_b32 v{s.vL16}, 4, v{ln}
        v_lshrrev_b32 v{T}, 5, v{ln}
        v_lshlrev_b32 v{T}, 4, v{T}
        v_and_b32 v{T+1}, 31, v{ln}
        v_mul_u32_u24 v{s.vBl}, 1152, v{T+1}
        v_add_u32 v{s.vBl}, v{s.vBl}, v{T}
        """)

    def _div36(self, q, r, x):
        self.P(f"""
        s_mul_i32 s{q}, s{x}, 1821
        s_lshr_b32 s{q}, s{q}, 16
        s_mul_i32 s{r}, s{q}, 36
        s_sub_u32 s{r}, s{x}, s{r}
        """)

    def _store(self, regs, f, base):
        s = self
        self.P(f"""
        s_lshl_b32 s{s.sT}, s{f}, 10
        s_add_u32 s{s.sT}, s{s.sT}, {base}
        buffer_store_dwordx4 {vr(regs,4)}, v{s.vL16}, s[4:7], s{s.sT} offen sc1
        """)

    def loads_b(self, sWG, sWv):
        P, s = self.P, self
        self._rowaddr()
        P(f"""
        s_lshl_b32 s{s.sW}, s{sWG}, 2
        s_add_u32 s{s.sW}, s{s.sW}, s{sWv}
        s_sub_u32 s{s.sW}, 1023, s{s.sW}
        s_lshl_b32 s{s.sF[0]}, s{s.sW}, 1
        """)
        self._div36(s.sT, s.sT2, s.sF[0])
        P(f"""
        s_lshl_b32 s{s.sT2}, s{s.sT2}, 5
        s_lshr_b32 s{s.sT3}, s{s.sT}, 1
        s_mul_i32 s{s.sT3}, s{s.sT3}, {32 * 1152}
        s_add_u32 s{s.sT2}, s{s.sT2}, s{s.sT3}
        s_bitcmp1_b32 s{s.sT}, 0
        s_cselect_b32 s{s.sSel}, s{s.ptr+6}, s{s.ptr+4}
        s_cselect_b32 s{s.sSel+1}, s{s.ptr+7}, s{s.ptr+5}
        s_mov_b32 s{s.sSel+2}, {576 * 1152}
        s_mov_b32 s{s.sSel+3}, 0x00020000
        buffer_load_dwordx4 {vr(s.B[0],4)}, v{s.vBl}, s[{s.sSel}:{s.sSel+3}], s{s.sT2} offen
        buffer_load_dwordx4 {vr(s.B[1],4)}, v{s.vBl}, s[{s.sSel}:{s.sSel+3}], s{s.sT2} offen offset:32
        """)
        return 2

    def finish_b(self):
        s = self
        self._store(s.B[0], s.sF[0], WS_BF)
        self._store(s.B[1], s.sF[0], WS_BF + 1024)

    def clear(self, sWG, sWv):
        P, s, T = self.P, self, self.T
        l5 = P.newlabel(s.pfx + "_clr")
        P(f"""
        s_lshl_b32 s{s.sW}, s{sWG}, 2
        s_add_u32 s{s.sW}, s{s.sW}, s{sWv}
        s_cmp_lt_u32 s{s.sW}, {self.nclr}
        s_cbranch_scc0 {l5}
        v_mov_b32 v{T}, 0
        v_mov_b32 v{T+1}, 0
        v_mov_b32 v{T+2}, 0
        v_mov_b32 v{T+3}, 0
        s_lshl_b32 s{s.sT}, s{s.sW}, 10
        s_add_u32 s{s.sT2}, s{s.sT}, {WS_E}
        s_add_u32 s{s.sT}, s{s.sT}, {WS_FLG - 144 * 1024}
        s_cmp_lt_u32 s{s.sW}, 144
        s_cselect_b32 s{s.sT}, s{s.sT2}, s{s.sT}
        buffer_store_dwordx4 {vr(T,4)}, v{s.vL16}, s[4:7], s{s.sT} offen sc1
        """)
        P.L(l5)

    def loads_l(self, sWG, sWv):
        P, s = self.P, self
        P(f"""
        s_lshl_b32 s{s.sW}, s{sWG}, 2
        s_add_u32 s{s.sW}, s{s.sW}, s{sWv}
        s_sub_u32 s{s.sT}, s{s.sW}, 148
        s_min_u32 s{s.sT}, s{s.sT}, 9
        s_lshl_b32 s{s.sT}, s{s.sT}, 6
        v_add_u32 v{s.vBl}, s{s.sT}, v{s.vLane}
        v_lshlrev_b32 v{s.T}, 1, v{s.vBl}
        """)
        for k, pidx in enumerate((0, 2, 12)):
            srd = (s.sSel, s.sSel2)[k & 1]
            self.use(srd, s.ptr + pidx, 1152)
            P(f"buffer_load_ushort v{s.B[0]+k}, v{s.T}, s[{srd}:{srd+3}], 0 offen")
        return 3

    def finish_l(self):
        P, s, T = self.P, self, self.T
        sk = P.newlabel(s.pfx + "_lam")
        lr, li, mr, mi = s.B[1], s.B[1] + 1, s.B[1] + 2, s.B[1] + 3
        br, bi = T + 4, T + 5
        P(f"""
        s_sub_u32 s{s.sT}, s{s.sW}, 148
        s_cmp_lt_u32 s{s.sT}, 9
        s_cbranch_scc0 {sk}
        s_waitcnt vmcnt(0)
        """)
        emit_lambda(P, s.B[0], s.B[0] + 1, s.B[0] + 2, T, lr, li)
        def csq(dr, di, sr, si):
            P(f"""
            v_mul_f32 v{T}, v{si}, v{si}
            v_add_f32 v{T+1}, v{sr}, v{sr}
            v_fma_f32 v{dr}, v{sr}, v{sr}, -v{T}
            v_mul_f32 v{di}, v{T+1}, v{si}
            """)
        hr, hi = T + 6, T + 7
        csq(hr, hi, lr, li)
        for _ in range(3):
            csq(hr, hi, hr, hi)
        csq(mr, mi, hr, hi)
        csq(br, bi, mr, mi)
        csq(br, bi, br, bi)
        P(f"""
        v_lshlrev_b32 v{T}, 5, v{s.vBl}
        s_mov_b32 s{s.sT}, {WS_LAM}
        buffer_store_dwordx4 {vr(s.B[1],4)}, v{T}, s[4:7], s{s.sT} offen sc1
        buffer_store_dwordx4 {vr(br,4)}, v{T}, s[4:7], s{s.sT} offen offset:16 sc1
        """)
        P.L(sk)

    def loads_c(self, sWG, sWv):
        P, s = self.P, self
        ln, T = s.vLane, s.T
        r4 = lambda n: f"s[{n}:{n+3}]"
        self._rowaddr()
        P(f"""
        s_lshl_b32 s{s.sW}, s{sWG}, 2
        s_add_u32 s{s.sW}, s{s.sW}, s{sWv}
        """)
        self._div36(s.sT, s.sT2, s.sW)
        P(f"""
        s_mul_i32 s{s.sF[0]}, s{s.sT}, 72
        s_add_u32 s{s.sF[0]}, s{s.sF[0]}, s{s.sT2}
        s_lshl_b32 s{s.sT2}, s{s.sT2}, 5
        s_mul_i32 s{s.sT3}, s{s.sT}, {32 * 1152}
        s_add_u32 s{s.sT3}, s{s.sT3}, s{s.sT2}
        """)
        self.use(s.sSel, s.ptr + 8, 576 * 1152)
        self.use(s.sSel2, s.ptr + 10, 576 * 1152)
        P(f"""
        buffer_load_dwordx4 {vr(s.Cr,4)}, v{s.vBl}, {r4(s.sSel)}, s{s.sT3} offen
        buffer_load_dwordx4 {vr(s.Ci,4)}, v{s.vBl}, {r4(s.sSel2)}, s{s.sT3} offen
        v_lshrrev_b32 v{T}, 5, v{ln}
        v_lshlrev_b32 v{T}, 3, v{T}
        v_and_b32 v{T+1}, 7, v{ln}
        v_add_u32 v{T}, v{T}, v{T+1}
        v_lshlrev_b32 v{T}, 1, v{T}
        """)
        for k, pidx in enumerate((0, 2, 12)):
            srd = (s.sSel, s.sSel2)[k & 1]
            self.use(srd, s.ptr + pidx, 1152)
            P(f"buffer_load_ushort v{s.L[k]}, v{T}, {r4(srd)}, s{s.sT2} offen")
        return 5

    def finish_c(self):
        P, s = self.P, self
        T = s.T
        store = self._store
        lr, li, kr, ki, t4 = T + 4, T + 5, T + 6, T + 7, T + 8
        emit_lambda(P, s.L[0], s.L[1], s.L[2], t4, lr, li, coef=(kr, ki))
        P(f"""
        v_add_f32 v{kr}, v{kr}, v{kr}
        v_add_f32 v{ki}, v{ki}, v{ki}
        """)
        R, I = T + 8, T + 16
        a, b = T + 4, T + 5
        for e in range(8):
            src_r, src_i = s.Cr + (e >> 1), s.Ci + (e >> 1)
            if e & 1:
                P(f"v_and_b32 v{a}, 0xffff0000, v{src_r}")
                P(f"v_and_b32 v{b}, 0xffff0000, v{src_i}")
            else:
                P(f"v_lshlrev_b32 v{a}, 16, v{src_r}")
                P(f"v_lshlrev_b32 v{b}, 16, v{src_i}")
            dpp = f"row_newbcast:{e} row_mask:0xf bank_mask:0xf"
            P(f"""
            v_mul_f32_dpp v{I+e}, v{ki}, v{b} {dpp}
            v_mul_f32_dpp v{R+e}, v{kr}, v{a} {dpp}
            v_sub_f32 v{R+e}, v{R+e}, v{I+e}
            v_mul_f32_dpp v{I+e}, v{ki}, v{a} {dpp}
            v_fmac_f32_dpp v{I+e}, v{kr}, v{b} {dpp}
            """)
        for k in range(4):
            P(f"v_cvt_pk_bf16_f32 v{s.Cr+k}, v{R+2*k}, v{R+2*k+1}")
            P(f"v_cvt_pk_bf16_f32 v{s.Ci+k}, -v{I+2*k}, -v{I+2*k+1}")
        store(s.Cr, s.sF[0], WS_CF)
        store(s.Ci, s.sF[0], WS_CF + 36 * 1024)

    def loads_w(self, sWG, sWv):
        P, s = self.P, self
        ln, T = s.vLane, s.T
        r4 = lambda n: f"s[{n}:{n+3}]"
        l4 = P.newlabel(s.pfx + "_w")
        P(f"""
        v_lshlrev_b32 v{s.vL16}, 4, v{ln}
        s_lshl_b32 s{s.sW}, s{sWG}, 2
        s_add_u32 s{s.sW}, s{s.sW}, s{sWv}
        s_sub_u32 s{s.sW}, s{s.sW}, 648
        """)
        self._div36(s.sT, s.sT2, s.sW)
        P(f"""
        s_mul_i32 s{s.sF[0]}, s{s.sT}, 72
        s_add_u32 s{s.sF[0]}, s{s.sF[0]}, s{s.sT2}
        v_and_b32 v{T}, 31, v{ln}
        v_lshlrev_b32 v{T}, 1, v{T}
        s_lshl_b32 s{s.sT}, s{s.sT}, 7
        v_add_u32 v{T}, s{s.sT}, v{T}
        v_lshrrev_b32 v{T+1}, 5, v{ln}
        s_mov_b32 s{s.sT3}, {72 * 1152}
        s_cmp_lt_u32 s{s.sT2}, 32
        s_cselect_b32 s{s.sT3}, {4 * 1152}, s{s.sT3}
        v_mul_lo_u32 v{T+1}, v{T+1}, s{s.sT3}
        v_add_u32 v{s.vWl}, v{T}, v{T+1}
        s_mul_i32 s{s.sT}, s{s.sT2}, {18 * 1152}
        s_sub_u32 s{s.sT3}, s{s.sT2}, 32
        s_mul_i32 s{s.sT3}, s{s.sT3}, {144 * 1152}
        s_add_u32 s{s.sT3}, s{s.sT3}, {16 * 1152}
        s_cmp_lt_u32 s{s.sT2}, 32
        s_cselect_b32 s{s.sT}, s{s.sT}, s{s.sT3}
        """)
        self.use(s.sSel, s.pWo, 576 * 1152)
        lhi = P.newlabel(s.pfx + "_whi")
        P(f"s_cmp_lt_u32 s{s.sT2}, 32")
        P(f"s_cbranch_scc0 {lhi}")
        for offs in ([(e if e < 4 else e + 4) * 1152 for e in range(8)], [(18 * (e >> 1) + (e & 1)) * 1152 for e in range(8)]):
            for e in range(8):
                P(f"s_add_u32 s{s.sT3}, s{s.sT}, {offs[e]}")
                P(f"buffer_load_ushort v{s.W+e}, v{s.vWl}, {r4(s.sSel)}, s{s.sT3} offen")
                P(f"buffer_load_ushort v{s.W+8+e}, v{s.vWl}, {r4(s.sSel)}, s{s.sT3} offen offset:64")
            if offs[1] == 1152 and offs[2] == 2 * 1152:
                P(f"s_branch {l4}")
                P.L(lhi)
        P.L(l4)
        return 16

    def finish_w(self):
        P, s = self.P, self
        T = s.T
        for h in range(2):
            for k in range(4):
                P(f"v_lshl_or_b32 v{T+4*h+k}, v{s.W+8*h+2*k+1}, 16, v{s.W+8*h+2*k}")
            self._store(T + 4 * h, s.sF[0], WS_WF + 36 * 1024 * h)
```

```python
from asmgen import *
from layout import *
from prepk import emit_lambda, srd_from_kernarg, f32
import common

SLOT = 16384
SVC_LDS = 81920
ELOC = 78 * 1024
HDEPTH = 16
ODEPTH = 12


def emit_service(P, sIdx, pfx="svc", end="s_endpgm", exp=(), sWave=None, sNonce=None):
    L = lambda n: f"{pfx}_{n}"
    ws = "s[4:7]"
    prio = {"b": 3, "c": 3, "0": 3, "l": 3, "s": 3}
    psleep = 2
    HDEPTH = globals()["HDEPTH"]
    mixc = 6
    for e in exp:
        if e.startswith("mixc="): mixc = int(e[5:])
    for e in exp:
        if e.startswith("hd="): HDEPTH = int(e[3:])
    for e in exp:
        if e.startswith("psleep="): psleep = int(e[7:])
        if e.startswith("pb="): prio["b"] = int(e[3:])
        if e.startswith("pc="): prio["c"] = int(e[3:])
        if e.startswith("p0="): prio["0"] = int(e[3:])
        if e.startswith("pl="): prio["l"] = int(e[3:])
        if e.startswith("ps="): prio["s"] = int(e[3:])
    sTB, sSB, sW, sWM, sWN, sM, sXo, sBo, sCo, sHo = 8, 9, 10, 11, 12, 13, 14, 15, 16, 17
    sT, sT2, sT3, sTag, sKH, sMT, sTile = 18, 19, 20, 21, 22, 23, 24
    sOk, sBad = 26, 28
    sWo = 30
    crot = "crot" in exp
    sRot, sHend, sCend = 48, 25, 31
    sE, sAX, sOut, sP = 32, 36, 40, 44
    vLane, vL16 = 0, 1
    hi = [2]

    def use(*regs):
        hi[0] = max(hi[0], max(regs) + 1)

    merged = sWave is not None
    rawb = merged and "rawb" in exp
    fusedb = "fusedb" in exp
    flag = f"s{sTag}" if merged else "1"

    def block_map(scan):
        if scan and rawb and "nomapa" not in exp:
            P(f"""
            s_lshr_b32 s{sT}, s{sIdx}, 3
            s_lshr_b32 s{sT2}, s{sIdx}, 1
            s_and_b32 s{sT2}, s{sT2}, 3
            s_lshl_b32 s{sT2}, s{sT2}, 1
            s_lshr_b32 s{sSB}, s{sT}, 3
            s_add_u32 s{sSB}, s{sSB}, s{sT2}
            s_and_b32 s{sTB}, s{sIdx}, 1
            s_lshl_b32 s{sTB}, s{sTB}, 3
            s_and_b32 s{sT3}, s{sT}, 7
            s_add_u32 s{sTB}, s{sTB}, s{sT3}
            s_cmp_ge_u32 s{sT}, 16
            s_cselect_b32 s{sSB}, 8, s{sSB}
            s_cselect_b32 s{sT2}, s{sT2}, 0
            s_add_u32 s{sTB}, s{sTB}, s{sT2}
            """)
        else:
            P(f"""
            s_and_b32 s{sTB}, s{sIdx}, 7
            s_lshl_b32 s{sTB}, s{sTB}, 1
            s_lshr_b32 s{sT}, s{sIdx}, 3
            s_and_b32 s{sT}, s{sT}, 1
            s_add_u32 s{sTB}, s{sTB}, s{sT}
            s_lshr_b32 s{sSB}, s{sIdx}, 4
            """)

    lfirst = "lfirst" in exp

    def base_min(scan=True):
        P(f"""
        {"v_lshrrev_b32 v2, 6, v0" if not merged else ""}
        {"v_and_b32 v%d, 63, v0" % vLane if not merged else ""}
        {"v_readfirstlane_b32 s%d, v2" % sW if not merged else "s_mov_b32 s%d, s%d" % (sW, sWave)}
        v_lshlrev_b32 v{vL16}, 4, v{vLane}
        """)
        block_map(scan)
        P(f"""
        s_and_b32 s{sMT}, s{sW}, 3
        s_lshr_b32 s{sKH}, s{sW}, 2
        """)

    def base_regs(scan=True, rest=False):
        srd_from_kernarg(P, sAX, KA_AX, 2048 * 1152)
        srd_from_kernarg(P, sOut, KA_OUT, 2048 * 2304)
        if not rest:
            base_min(scan)
        P(f"""
        s_mov_b32 s{sTag}, {TAG if not merged else 's%d' % sNonce}
        s_add_u32 s{sE}, s4, {WS_E}
        s_addc_u32 s{sE+1}, s5, 0
        s_mov_b32 s{sE+2}, {E_BYTES}
        s_mov_b32 s{sE+3}, 0x00020000
        s_lshl_b32 s{sTile}, s{sTB}, 2
        s_add_u32 s{sTile}, s{sTile}, s{sMT}
        s_and_b32 s{sT}, s{sTB}, 1
        s_lshl_b32 s{sT}, s{sT}, 2
        s_add_u32 s{sRot}, s{sSB}, s{sT}
        s_sub_u32 s{sT}, s{sRot}, 9
        s_cmp_ge_u32 s{sRot}, 9
        s_cselect_b32 s{sRot}, s{sT}, s{sRot}
        """)

    if "lmarks" in exp: common.mark(P, 4)
    if lfirst:
        P(f"s_setprio {prio['0']}")
        base_min()
        P(f"""
        s_cmp_eq_u32 s{sKH}, 0
        s_cbranch_scc1 {L('compute')}
        """)
        iC = len(P.items)
        P.L(L("compute"))
        base_regs(rest=True)
    else:
        base_regs()
        P(f"""
        s_setprio {prio['0']}
        s_cmp_eq_u32 s{sKH}, 0
        s_cbranch_scc0 {L('loader')}
        """)


    def wrap(reg, endreg):
        P(f"""
        s_sub_u32 s{sT3}, s{reg}, {9 * 4096}
        s_cmp_ge_u32 s{reg}, s{endreg}
        s_cselect_b32 s{reg}, s{sT3}, s{reg}
        """)

    def cf_dma(c):
        slot = (c + 2) % 5
        P(f"""
        s_add_u32 m0, s{sM}, {slot * SLOT}
        s_nop 0
        buffer_load_dwordx4 v{vL16}, {ws}, s{sCo} offen lds
        buffer_load_dwordx4 v{vL16}, {ws}, s{sCo} offen offset:1024 lds
        buffer_load_dwordx4 v{vL16}, {ws}, s{sCo} offen offset:2048 lds
        buffer_load_dwordx4 v{vL16}, {ws}, s{sCo} offen offset:3072 lds
        s_add_u32 s{sCo}, s{sCo}, 4096
        """)
        if crot:
            wrap(sCo, sCend)

    def wf_dma(j):
        slot = (9 + j + 2) % 5
        P(f"s_add_u32 m0, s{sM}, {slot * SLOT}")
        P("s_nop 0")
        nk = 4 if j < 4 else 2
        for k in range(nk):
            P(f"buffer_load_dwordx4 v{vL16}, {ws}, s{sWo} offen offset:{k * 1024} lds")
        P(f"s_add_u32 s{sWo}, s{sWo}, 4096")
        return nk

    def out_phases(loader):
        outA = "outA" in exp
        ACC = [2, 18]
        HF = [34 + 4 * i for i in range(HDEPTH)]
        BF = [[98, 102], [106, 110]]
        vC0, vC1 = 114, 115
        vG1, vX, vY, vO, vTm = 116, 117, 118, 119, 120
        XR, DR, GR = 50, 58, 60
        if HDEPTH <= 12:
            XR, DR, GR = 82, 90, 92
        T = 34
        use(121)
        P(f"""
        s_mul_i32 s{sHo}, s{sTile}, {72 * 1024}
        s_mul_i32 s{sT}, s{sKH}, {36 * 1024}
        s_add_u32 s{sHo}, s{sHo}, s{sT}
        s_add_u32 s{sHo}, s{sHo}, {WS_HF}
        s_lshl_b32 s{sT}, s{sKH}, 13
        v_add_u32 v{vC0}, s{sT}, v{vL16}
        v_add_u32 v{vC1}, 0x10000, v{vC0}
        """)
        if crot:
            P(f"""
            s_add_u32 s{sHend}, s{sHo}, {9 * 4096}
            s_lshl_b32 s{sT}, s{sRot}, 12
            s_add_u32 s{sHo}, s{sHo}, s{sT}
            """)
        P("s_barrier")
        common.mark(P, 1)
        vm = []
        if loader and rawb:
            for c in range(5):
                cf_dma(c)
                vm.extend([("c", c)] * 4)

        def hload(n):
            if n % 4 == 0 and n > 0:
                P(f"s_add_u32 s{sHo}, s{sHo}, 4096")
                if crot:
                    wrap(sHo, sHend)
            P(f"buffer_load_dwordx4 {vr(HF[n % HDEPTH],4)}, v{vL16}, {ws}, s{sHo} offen offset:{(n % 4) * 1024}" + ("" if "hfl2" in exp else " sc1"))
            vm.append(("h", n))

        for n in range(HDEPTH):
            hload(n)
        P(f"s_setprio {prio['c']}")
        srd_from_kernarg(P, sP, KA_DSK, 1152)

        def creads(n):
            c, ks = divmod(n, 4)
            slot = (c + 2) % 5
            base, off = (vC1, 0) if slot == 4 else (vC0, slot * SLOT)
            return [f"ds_read_b128 {vr(BF[n & 1][ct],4)}, v{base} offset:{off + ct * 4096 + ks * 1024}" for ct in range(2)]

        def mix_loads_a():
            P(f"""
            v_and_b32 v{vTm}, 31, v{vLane}
            v_lshrrev_b32 v{vY}, 5, v{vLane}
            v_mul_u32_u24 v{vX}, 1152, v{vTm}
            v_lshlrev_b32 v{vY}, 3, v{vY}
            v_add_u32 v{vX}, v{vX}, v{vY}
            s_mul_i32 s{sT}, s{sTile}, {32 * 1152}
            s_lshl_b32 s{sT2}, s{sSB}, 7
            s_lshl_b32 s{sT3}, s{sKH}, 6
            s_add_u32 s{sT2}, s{sT2}, s{sT3}
            s_add_u32 s{sT}, s{sT}, s{sT2}
            """)
            for q in range(4):
                P(f"buffer_load_dwordx2 {vr(XR + 2 * q, 2)}, v{vX}, s[{sAX}:{sAX+3}], s{sT} offen offset:{16 * q}")
            for q in range(4):
                P(f"buffer_load_dwordx2 {vr(DR + 2 * q, 2)}, v{vY}, s[{sP}:{sP+3}], s{sT2} offen offset:{16 * q}")
            P(f"""
            v_lshlrev_b32 v{vX}, 2, v{vTm}
            s_lshl_b32 s{sT}, s{sTile}, 7
            s_add_u32 s{sT}, s{sT}, {WS_G}
            buffer_load_dword v{vG1}, v{vX}, {ws}, s{sT} offen
            v_mul_u32_u24 v{vTm}, 2304, v{vTm}
            v_lshlrev_b32 v{vO}, 1, v{vY}
            v_add_u32 v{vO}, v{vO}, v{vTm}
            """)
            vm.extend([("x", 0)] * 9)

        def mix_loads():
            P(f"""
            v_lshrrev_b32 v{vTm}, 3, v{vLane}
            v_xor_b32 v{vO}, v{vTm}, v{vLane}
            v_and_b32 v{vO}, 7, v{vO}
            v_mul_u32_u24 v{vX}, 1152, v{vTm}
            v_lshlrev_b32 v{vY}, 3, v{vO}
            v_add_u32 v{vX}, v{vX}, v{vY}
            s_mul_i32 s{sT}, s{sTile}, {32 * 1152}
            s_lshl_b32 s{sT2}, s{sSB}, 7
            s_lshl_b32 s{sT3}, s{sKH}, 6
            s_add_u32 s{sT2}, s{sT2}, s{sT3}
            s_add_u32 s{sT}, s{sT}, s{sT2}
            """)
            for i in range(4):
                P(f"buffer_load_dwordx2 {vr(XR + 2 * i, 2)}, v{vX}, s[{sAX}:{sAX+3}], s{sT} offen")
                if i < 3:
                    P(f"s_add_u32 s{sT}, s{sT}, {8 * 1152}")
            P(f"""
            buffer_load_dwordx2 {vr(DR, 2)}, v{vY}, s[{sP}:{sP+3}], s{sT2} offen
            v_lshlrev_b32 v{vY}, 2, v{vTm}
            s_lshl_b32 s{sT}, s{sTile}, 7
            s_add_u32 s{sT}, s{sT}, {WS_G}
            """)
            for i in range(4):
                P(f"buffer_load_dword v{GR + i}, v{vY}, {ws}, s{sT} offen offset:{32 * i}")
            P(f"""
            v_and_b32 v{vX}, 31, v{vLane}
            v_lshlrev_b32 v{vX}, 2, v{vX}
            buffer_load_dword v{vG1}, v{vX}, {ws}, s{sT} offen
            v_mul_u32_u24 v{vTm}, 2304, v{vTm}
            v_lshlrev_b32 v{vO}, 4, v{vO}
            v_add_u32 v{vO}, v{vO}, v{vTm}
            """)
            vm.extend([("x", 0)] * 10)

        for c in range(9):
            if loader and (c >= 5 or rawb):
                idx = max(i for i, e in enumerate(vm) if e == ("c", c))
                P(f"s_waitcnt vmcnt({len(vm) - 1 - idx})")
            P("s_barrier")
            if loader and 1 <= c <= 4:
                cf_dma(c + 4)
                vm.extend([("c", c + 4)] * 4)
            if loader and c >= 5 and "wflate" not in exp:
                vm.extend([("w", c - 5)] * wf_dma(c - 5))
            if c == mixc and "mixlate" not in exp:
                if "mixp" in exp: P("s_setprio 3")
                mix_loads_a() if outA else mix_loads()
                if "mixp" in exp: P(f"s_setprio {prio['c']}")
            if "cmarks" in exp:
                common.mark(P, [4, 5, 6, 7, 8, 14, 15, 12, 13][c])
            else:
                if c == 4: common.mark(P, 14)
                if c == 7: common.mark(P, 15)
            for r in creads(4 * c):
                P(r)
            for ks in range(4):
                n = 4 * c + ks
                if ks < 3:
                    for r in creads(n + 1):
                        P(r)
                for ct in range(2):
                    cop = "0" if n == 0 else vr(ACC[ct], 16)
                    P(f"v_mfma_f32_32x32x16_bf16 {vr(ACC[ct],16)}, {vr(BF[n & 1][ct],4)}, {vr(HF[n % HDEPTH],4)}, {cop}")
                if n + HDEPTH < 36:
                    hload(n + HDEPTH)
            P("s_waitcnt lgkmcnt(0)")
        P("s_setprio 3")
        P("s_barrier")
        if loader:
            if "wflate" in exp:
                for j in range(4):
                    wf_dma(j)
            wf_dma(4)
        if "mixlate" in exp:
            mix_loads_a() if outA else mix_loads()
        tpoll = "tpoll" in exp
        if tpoll:
            if "wflag" in exp:
                P(f"""
                s_lshl_b32 s{sT}, s{sTile}, 7
                s_add_u32 s{sOk}, s{sT}, {WS_FLG + FLG_ATT2}
                v_and_b32 v121, 31, v{vLane}
                {"" if loader else "v_min_u32 v121, 17, v121"}
                """)
            else:
                P(f"""
                s_lshr_b32 s{sT}, s{sTB}, 1
                s_lshl_b32 s{sT}, s{sT}, 7
                s_add_u32 s{sOk}, s{sT}, {WS_FLG + FLG_ATT}
                v_and_b32 v121, 31, v{vLane}
                """)
            P(f"""
            v_lshlrev_b32 v121, 2, v121
            buffer_load_dword v122, v121, {ws}, s{sOk} offen sc1
            """)
        common.mark(P, 2)
        if outA:
            for q in range(4):
                for j in range(4):
                    sx, sd = XR + 2 * q + (j >> 1), DR + 2 * q + (j >> 1)
                    if j & 1:
                        P(f"v_and_b32 v{T + 4 * q + j}, 0xffff0000, v{sx}")
                        P(f"v_and_b32 v{98 + j}, 0xffff0000, v{sd}")
                    else:
                        P(f"v_lshlrev_b32 v{T + 4 * q + j}, 16, v{sx}")
                        P(f"v_lshlrev_b32 v{98 + j}, 16, v{sd}")
                for j in range(4):
                    P(f"v_mul_f32 v{98 + j}, v{vG1}, v{98 + j}")
                for j in range(4):
                    P(f"v_mul_f32 v{T + 4 * q + j}, v{T + 4 * q + j}, v{98 + j}")
        else:
            Df = [98, 99, 100, 101]
            P(f"""
            v_lshlrev_b32 v{Df[0]}, 16, v{DR}
            v_and_b32 v{Df[1]}, 0xffff0000, v{DR}
            v_lshlrev_b32 v{Df[2]}, 16, v{DR+1}
            v_and_b32 v{Df[3]}, 0xffff0000, v{DR+1}
            """)
            for i in range(4):
                for j in range(4):
                    src = XR + 2 * i + (j >> 1)
                    if j & 1:
                        P(f"v_and_b32 v{T + 4 * i + j}, 0xffff0000, v{src}")
                    else:
                        P(f"v_lshlrev_b32 v{T + 4 * i + j}, 16, v{src}")
                for j in range(4):
                    P(f"v_mul_f32 v{T + 4 * i + j}, v{T + 4 * i + j}, v{Df[j]}")
                for j in range(4):
                    P(f"v_mul_f32 v{T + 4 * i + j}, v{T + 4 * i + j}, v{GR + i}")
        for ct in range(2):
            for r in range(16):
                P(f"v_mul_f32 v{ACC[ct] + r}, v{vG1}, v{ACC[ct] + r}")
        common.mark(P, 9)
        if outA:
            P(f"""
            s_lshl_b32 s{sT}, s{sW}, 12
            v_add_u32 v{vX}, s{sT}, v{vL16}
            s_xor_b32 s{sT}, s{sW}, 4
            s_lshl_b32 s{sT}, s{sT}, 12
            v_add_u32 v{vY}, s{sT}, v{vL16}
            """)
        else:
            P(f"""
        v_and_b32 v{vTm}, 31, v{vLane}
        v_lshrrev_b32 v{vX}, 5, v{vLane}
        v_xor_b32 v{vX}, v{vX}, v{vTm}
        v_and_b32 v{vX}, 7, v{vX}
        v_lshlrev_b32 v{vX}, 4, v{vX}
        v_lshlrev_b32 v{vTm}, 7, v{vTm}
        v_add_u32 v{vX}, v{vX}, v{vTm}
        s_lshl_b32 s{sT}, s{sMT}, 14
        s_lshl_b32 s{sT2}, s{sKH}, 12
        s_add_u32 s{sT2}, s{sT2}, s{sT}
        v_add_u32 v{vX}, s{sT2}, v{vX}
        s_lshl_b32 s{sT2}, s{sKH}, 13
        s_add_u32 s{sT2}, s{sT2}, s{sT}
        v_add_u32 v{vY}, s{sT2}, v{vL16}
        """)
        P(f"""
        s_mul_i32 s{sT}, s{sKH}, {18 * 1024}
        s_mul_i32 s{sHo}, s{sTile}, {36 * 1024}
        s_add_u32 s{sHo}, s{sHo}, s{sT}
        s_add_u32 s{sHo}, s{sHo}, {WS_OF}
        """)
        if tpoll:
            lp, dn = P.newlabel(pfx + "_apoll"), P.newlabel(pfx + "_adone")
            if "tb2" in exp:
                P("s_waitcnt vmcnt(0)")
                P("s_barrier")
            P.L(lp)
            P(f"""
            s_waitcnt vmcnt(0)
            v_cmp_ne_u32 vcc, {flag}, v122
            s_cbranch_vccz {dn}
            s_sleep 1
            buffer_load_dword v122, v121, {ws}, s{sOk} offen sc1
            s_branch {lp}
            """)
            P.L(dn)
            use(123)
        elif not loader:
            lp, dn = P.newlabel(pfx + "_apoll"), P.newlabel(pfx + "_adone")
            P(f"""
            s_cmp_eq_u32 s{sW}, 0
            s_cbranch_scc0 {dn}
            s_lshr_b32 s{sT}, s{sTB}, 1
            s_lshl_b32 s{sT}, s{sT}, 7
            s_add_u32 s{sT}, s{sT}, {WS_FLG + FLG_ATT}
            v_lshlrev_b32 v121, 2, v{vLane}
            s_mov_b32 exec_hi, 0
            """)
            P.L(lp)
            P(f"""
            buffer_load_dword v122, v121, {ws}, s{sT} offen sc1
            s_waitcnt vmcnt(0)
            v_cmp_ne_u32 vcc, {flag}, v122
            s_cbranch_vccz {dn}
            s_sleep 1
            s_branch {lp}
            """)
            P.L(dn)
            P("s_mov_b64 exec, -1")
            use(123)
        if not tpoll:
            P("s_waitcnt vmcnt(0)")
            P("s_barrier")
        common.mark(P, 3)
        OFr = [50 + 4 * i for i in range(ODEPTH)]
        WB = BF

        def oload(n):
            if n % 4 == 0 and n > 0:
                P(f"s_add_u32 s{sHo}, s{sHo}, 4096")
            shared = loader and n >= 14
            P(f"buffer_load_dwordx4 {vr(OFr[n % ODEPTH],4)}, v{vL16}, {ws}, s{sHo} offen offset:{(n % 4) * 1024}" + ("" if "ofl2" in exp and not shared else " sc1"))

        for n in range(ODEPTH):
            oload(n)
        if tpoll and "tb2" not in exp:
            P("s_barrier")

        def wreads(n):
            j, ks = divmod(n, 4)
            slot = (9 + j + 2) % 5
            base, off = (vC1, 0) if slot == 4 else (vC0, slot * SLOT)
            return [f"ds_read_b128 {vr(WB[n & 1][ct],4)}, v{base} offset:{off + ct * 4096 + ks * 1024}" for ct in range(2)]

        for r in wreads(0):
            P(r)
        for n in range(18):
            if n + 1 < 18:
                for r in wreads(n + 1):
                    P(r)
            for ct in range(2):
                P(f"v_mfma_f32_32x32x16_bf16 {vr(ACC[ct],16)}, {vr(WB[n & 1][ct],4)}, {vr(OFr[n % ODEPTH],4)}, {vr(ACC[ct],16)}")
            if n + ODEPTH < 18:
                oload(n + ODEPTH)
        common.mark(P, 10)
        P("s_barrier")
        if "cmarks" not in exp: common.mark(P, 12)
        if outA:
            keep, send = (ACC[1], ACC[0]) if loader else (ACC[0], ACC[1])
            for q in range(4):
                P(f"ds_write_b128 v{vX}, {vr(send + 4 * q, 4)} offset:{q * 1024}")
            for r in range(16):
                P(f"v_add_f32 v{T + r}, v{T + r}, v{keep + r}")
            P(f"""
            s_mul_i32 s{sT}, s{sTile}, {32 * 2304}
            s_lshl_b32 s{sT2}, s{sSB}, 8
            s_add_u32 s{sT}, s{sT}, s{sT2}
            s_lshl_b32 s{sT2}, s{sKH}, 7
            s_add_u32 s{sT}, s{sT}, s{sT2}
            s_waitcnt lgkmcnt(0)
            s_barrier
            """)
            common.mark(P, 13)
            RB = 50
            for q in range(4):
                P(f"ds_read_b128 {vr(RB + 4 * q, 4)}, v{vY} offset:{q * 1024}")
            for q in range(4):
                for j in range(4):
                    P(f"v_add_f32 v{T + 4 * q + j}, v{T + 4 * q + j}, v{RB + 4 * q + j}")
                P(f"buffer_store_dwordx4 {vr(T + 4 * q, 4)}, v{vO}, s[{sOut}:{sOut+3}], s{sT} offen offset:{32 * q}")
        else:
            for ct in range(2):
                for q in range(4):
                    a = vX
                    if q:
                        P(f"v_xor_b32 v{vTm}, {32 * q}, v{vX}")
                        a = vTm
                    P(f"ds_write_b128 v{a}, {vr(ACC[ct] + 4 * q, 4)} offset:{ct * 8192}")
            P(f"""
            s_mul_i32 s{sT}, s{sTile}, {32 * 2304}
            s_lshl_b32 s{sT2}, s{sSB}, 8
            s_add_u32 s{sT}, s{sT}, s{sT2}
            s_lshl_b32 s{sT2}, s{sKH}, 7
            s_add_u32 s{sT}, s{sT}, s{sT2}
            s_waitcnt lgkmcnt(0)
            s_barrier
            """)
            RB = 50
            common.mark(P, 13)
            for i in range(4):
                for h in range(2):
                    P(f"ds_read_b128 {vr(RB + 8 * i + 4 * h, 4)}, v{vY} offset:{h * 4096 + i * 1024}")
            for i in range(4):
                for j in range(4):
                    P(f"v_add_f32 v{T + 4 * i + j}, v{T + 4 * i + j}, v{RB + 8 * i + j}")
                    P(f"v_add_f32 v{T + 4 * i + j}, v{T + 4 * i + j}, v{RB + 8 * i + 4 + j}")
                P(f"buffer_store_dwordx4 {vr(T + 4 * i, 4)}, v{vO}, s[{sOut}:{sOut+3}], s{sT} offen")
                if i < 3:
                    P(f"s_add_u32 s{sT}, s{sT}, {8 * 2304}")
        common.mark(P, 11)
        P(end)

    ACC = [[2, 18], [34, 50]]
    XF = [[66, 70], [74, 78]]
    WF = [[82, 86], [90, 94]]
    vA0, vA1, vB0, vB1 = 98, 99, 100, 101
    lr, li, nli, mr, mi, br, bi = 102, 103, 104, 105, 106, 107, 108
    lamt = "lamt" in exp
    pks = "pks" in exp
    if lamt:
        lr, li, mr, mi, br, bi, nli = 102, 103, 104, 105, 106, 107, 108
    if pks:
        assert lamt and "eaddr" not in exp
        hr, hi_ = 108, 109
    t = 110
    use(121)
    P(f"""
    s_and_b32 s{sWM}, s{sW}, 1
    s_lshr_b32 s{sWN}, s{sW}, 1
    s_lshl_b32 s{sT}, s{sSB}, 6
    s_lshl_b32 s{sT2}, s{sWN}, 5
    s_add_u32 s{sT}, s{sT}, s{sT2}
    v_and_b32 v{t+8}, 31, v{vLane}
    v_add_u32 v{t+8}, s{sT}, v{t+8}
    v_lshlrev_b32 v{t+9}, 1, v{t+8}
    """)
    UP = 66
    if fusedb:
        P(f"""
        s_mul_i32 s{sT}, s{sTB}, 18
        s_lshl_b32 s{sT2}, s{sSB}, 1
        s_add_u32 s{sT}, s{sT}, s{sT2}
        s_add_u32 s{sT}, s{sT}, s{sWN}
        s_lshl_b32 s{sT}, s{sT}, 14
        s_lshl_b32 s{sT2}, s{sWM}, 13
        s_add_u32 s{sT}, s{sT}, s{sT2}
        s_add_u32 s{sT}, s{sT}, {WS_XF if 'ufx' in exp else WS_UF}
        s_add_u32 s{sT2}, s{sT}, 4096
        """)
        for k in range(8):
            P(f"buffer_load_dwordx4 {vr(UP + 4 * k, 4)}, v{vL16}, {ws}, s{sT if k < 4 else sT2} offen offset:{(k & 3) * 1024}")
    if lamt:
        P(f"""
        v_lshlrev_b32 v{t+9}, 5, v{t+8}
        s_mov_b32 s{sT}, {WS_LAM}
        buffer_load_dwordx4 {vr(lr,4)}, v{t+9}, {ws}, s{sT} offen
        buffer_load_dwordx{4 if pks else 2} {vr(br,4 if pks else 2)}, v{t+9}, {ws}, s{sT} offen offset:16
        """)
    for k, ka in enumerate((KA_LRE, KA_LIM, KA_LDT) if not lamt else ()):
        srd_from_kernarg(P, sP, ka, 1152)
        P(f"""
        s_waitcnt lgkmcnt(0)
        buffer_load_ushort v{t+4+k}, v{t+9}, s[{sP}:{sP+3}], 0 offen
        """)
    vXR = [98, 99, 101, 122]
    vB2 = 123
    XSLOT, NX, WSLOT, NWS, WBASE = 16384, 3, 8192, 4, 49152
    if merged:
        P(f"""
        v_and_b32 v{t}, 31, v{vLane}
        v_lshrrev_b32 v{t+1}, 5, v{vLane}
        v_lshrrev_b32 v{t+2}, 1, v{t}
        v_and_b32 v{t+2}, 7, v{t+2}
        v_xor_b32 v{t+2}, v{t+2}, v{t+1}
        v_lshlrev_b32 v{t+2}, 4, v{t+2}
        s_lshl_b32 s{sT}, s{sWM}, 6
        v_add_u32 v{t+3}, s{sT}, v{t}
        v_lshlrev_b32 v{t+3}, 7, v{t+3}
        v_add_u32 v{vXR[0]}, v{t+2}, v{t+3}
        v_xor_b32 v{vXR[1]}, 32, v{vXR[0]}
        v_xor_b32 v{vXR[2]}, 64, v{vXR[0]}
        v_xor_b32 v{vXR[3]}, 0x60, v{vXR[0]}
        """)
        if rawb:
            P(f"""
            v_lshrrev_b32 v{t+2}, 2, v{t}
            v_and_b32 v{t+2}, 3, v{t+2}
            v_xor_b32 v{t+2}, v{t+2}, v{t+1}
            v_lshlrev_b32 v{t+2}, 4, v{t+2}
            v_lshlrev_b32 v{t+3}, 6, v{t}
            s_lshl_b32 s{sT}, s{sWN}, 11
            s_add_u32 s{sT}, s{sT}, {WBASE}
            v_add_u32 v{t+3}, s{sT}, v{t+3}
            v_add_u32 v{vB0}, v{t+2}, v{t+3}
            v_xor_b32 v{vB2}, 32, v{vB0}
            """)
        else:
            P(f"""
            s_lshl_b32 s{sT}, s{sWN}, 12
            s_add_u32 s{sT}, s{sT}, {WBASE}
            v_add_u32 v{vB0}, s{sT}, v{vL16}
            """)
    else:
      P(f"""
    s_lshl_b32 s{sT}, s{sWM}, 12
    v_add_u32 v{vA0}, s{sT}, v{vL16}
    v_add_u32 v{vA1}, 0x10000, v{vA0}
    s_lshl_b32 s{sT}, s{sWN}, 12
    s_add_u32 s{sT}, s{sT}, 8192
    v_add_u32 v{vB0}, s{sT}, v{vL16}
    v_add_u32 v{vB1}, 0x10000, v{vB0}
    """)
    if "smarks" in exp:
        common.mark(P, 5)
        P("s_waitcnt vmcnt(0)")
        common.mark(P, 6)
    if not lamt:
        emit_lambda(P, t + 4, t + 5, t + 6, t, lr, li)
        P(f"v_sub_f32 v{nli}, 0, v{li}")

    def csq(dr, di, sr_, si_):
        P(f"""
        v_mul_f32 v{t}, v{si_}, v{si_}
        v_add_f32 v{t+1}, v{sr_}, v{sr_}
        v_fma_f32 v{dr}, v{sr_}, v{sr_}, -v{t}
        v_mul_f32 v{di}, v{t+1}, v{si_}
        """)

    if not lamt:
        csq(mr, mi, lr, li)
        for _ in range(4):
            csq(mr, mi, mr, mi)
        csq(br, bi, mr, mi)
        csq(br, bi, br, bi)

    early = "eaddr" in exp
    vTW, vTR, vX_ = (109, 126, t + 2) if early else (t, t + 1, t + 2)
    use(126)

    def tr_write_addr():
        P(f"""
        v_and_b32 v{t+4}, 31, v{vLane}
        v_lshrrev_b32 v{t+5}, 1, v{t+4}
        v_and_b32 v{t+5}, 1, v{t+5}
        v_lshlrev_b32 v{t+5}, 2, v{t+5}
        v_lshrrev_b32 v{t+6}, 2, v{t+4}
        v_and_b32 v{t+6}, 1, v{t+6}
        v_lshlrev_b32 v{t+6}, 1, v{t+6}
        v_or_b32 v{t+5}, v{t+5}, v{t+6}
        v_and_b32 v{t+6}, 1, v{t+4}
        v_or_b32 v{t+5}, v{t+5}, v{t+6}
        v_lshrrev_b32 v{t+6}, 5, v{vLane}
        v_lshlrev_b32 v{t+6}, 2, v{t+6}
        v_xor_b32 v{t+5}, v{t+5}, v{t+6}
        v_lshlrev_b32 v{t+5}, 4, v{t+5}
        v_lshlrev_b32 v{t+4}, 7, v{t+4}
        v_add_u32 v{vTW}, v{t+4}, v{t+5}
        s_lshl_b32 s{sT}, s{sW}, 13
        v_add_u32 v{vTW}, s{sT}, v{vTW}
        """)

    def tr_read_addr():
        P(f"""
        v_lshrrev_b32 v{t+4}, 5, v{vLane}
        v_lshlrev_b32 v{t+4}, 3, v{t+4}
        v_lshrrev_b32 v{t+5}, 2, v{vLane}
        v_and_b32 v{t+5}, 3, v{t+5}
        v_add_u32 v{t+4}, v{t+4}, v{t+5}
        v_lshlrev_b32 v{t+4}, 7, v{t+4}
        v_lshrrev_b32 v{t+5}, 4, v{vLane}
        v_and_b32 v{t+5}, 1, v{t+5}
        v_lshlrev_b32 v{t+5}, 1, v{t+5}
        v_lshrrev_b32 v{t+6}, 1, v{vLane}
        v_and_b32 v{t+6}, 1, v{t+6}
        v_or_b32 v{t+5}, v{t+5}, v{t+6}
        v_lshrrev_b32 v{t+6}, 3, v{vLane}
        v_and_b32 v{t+6}, 1, v{t+6}
        v_lshlrev_b32 v{t+6}, 2, v{t+6}
        v_xor_b32 v{t+5}, v{t+5}, v{t+6}
        v_lshrrev_b32 v{t+6}, 2, v{vLane}
        v_and_b32 v{t+6}, 1, v{t+6}
        v_xor_b32 v{t+5}, v{t+5}, v{t+6}
        v_lshlrev_b32 v{t+5}, 4, v{t+5}
        v_and_b32 v{t+6}, 1, v{vLane}
        v_lshlrev_b32 v{t+6}, 3, v{t+6}
        v_add_u32 v{t+4}, v{t+4}, v{t+5}
        v_add_u32 v{t+4}, v{t+4}, v{t+6}
        v_add_u32 v{vTR}, s{sT}, v{t+4}
        """)

    if early:
        tr_write_addr()
        tr_read_addr()
    def reads(n):
        if rawb:
            bb = n & 1
            xo, wo_ = ((n >> 2) % NX) * XSLOT, ((n >> 1) % NWS) * WSLOT
            vb = vB2 if n & 1 else vB0
            return [f"ds_read_b128 {vr(XF[bb][0],4)}, v{vXR[n & 3]} offset:{xo}",
                    f"ds_read_b128 {vr(WF[bb][0],4)}, v{vb} offset:{wo_}",
                    f"ds_read_b128 {vr(WF[bb][1],4)}, v{vb} offset:{wo_ + 4096}",
                    f"ds_read_b128 {vr(XF[bb][1],4)}, v{vXR[n & 3]} offset:{xo + 4096}"]
        if merged:
            bb = n & 1
            xo, wo_ = ((n >> 2) % NX) * XSLOT, ((n >> 1) % NWS) * WSLOT + (n & 1) * 1024
            return [f"ds_read_b128 {vr(XF[bb][0],4)}, v{vXR[n & 3]} offset:{xo}",
                    f"ds_read_b128 {vr(WF[bb][0],4)}, v{vB0} offset:{wo_}",
                    f"ds_read_b128 {vr(WF[bb][1],4)}, v{vB0} offset:{wo_ + 2048}",
                    f"ds_read_b128 {vr(XF[bb][1],4)}, v{vXR[n & 3]} offset:{xo + 4096}"]
        s_, ks = divmod(n, 2)
        slot = s_ % 5
        a, b, off = (vA1, vB1, 0) if slot == 4 else (vA0, vB0, slot * SLOT)
        bb = n & 1
        return [f"ds_read_b128 {vr(XF[bb][0],4)}, v{a} offset:{off + ks * 1024}",
                f"ds_read_b128 {vr(WF[bb][0],4)}, v{b} offset:{off + ks * 1024}",
                f"ds_read_b128 {vr(WF[bb][1],4)}, v{b} offset:{off + 2048 + ks * 1024}",
                f"ds_read_b128 {vr(XF[bb][1],4)}, v{a} offset:{off + 2048 + ks * 1024}"]

    if fusedb:
        common.mark(P, 0)
        for mt in range(2):
            for cp in range(2):
                for k in range(8):
                    src = UP + 16 * mt + 8 * cp + k
                    P(f"v_lshlrev_b32 v{ACC[mt][cp] + 2 * k}, 16, v{src}")
                    P(f"v_and_b32 v{ACC[mt][cp] + 2 * k + 1}, 0xffff0000, v{src}")
    else:
        if merged:
            P("s_barrier")
        if "smarks" in exp: common.mark(P, 7)
        P("s_barrier")
        common.mark(P, 0)
        P(f"s_setprio {prio['b']}")
        for r in reads(0):
            P(r)
    for n in range(36 if not fusedb else 0):
        bb = n & 1
        mf = []
        for mt in range(2):
            for cp in range(2):
                cop = "0" if n == 0 else vr(ACC[mt][cp], 16)
                mf.append(f"v_mfma_f32_32x32x16_bf16 {vr(ACC[mt][cp],16)}, {vr(XF[bb][mt],4)}, {vr(WF[bb][cp],4)}, {cop}")
        P("s_waitcnt lgkmcnt(0)")
        if "bmarks" in exp and n in (3, 11, 19): common.mark(P, {3: 5, 11: 6, 19: 7}[n])
        if bb == 1 and n + 1 < 36:
            P("s_barrier")
        rs = reads(n + 1) if n + 1 < 36 else []
        for k in range(4):
            P(mf[k])
            take = rs[:2] if k < 2 else []
            rs = rs[len(take):]
            for r in take:
                P(r)

    P(f"s_setprio {prio['s']}")
    common.mark(P, 4)
    if lamt:
        P("s_waitcnt vmcnt(0)")
        if not pks:
            P(f"v_sub_f32 v{nli}, 0, v{li}")
    ea, eb = (t, t + 1), (t + 2, t + 3)
    U = lambda tau, cp: ACC[tau >> 4][cp] + (tau & 15)
    EAr = (t + 10, t + 11)

    def pk_step(dst, cur, add):
        L2 = vr(lr, 2)
        P(f"""
        v_pk_fma_f32 {vr(dst[0],2)}, {L2}, {vr(cur[0],2)}, {vr(add[0],2)} op_sel:[0,0,0] op_sel_hi:[0,1,1]
        v_pk_fma_f32 {vr(dst[1],2)}, {L2}, {vr(cur[1],2)}, {vr(add[1],2)} op_sel:[0,0,0] op_sel_hi:[0,1,1]
        v_pk_fma_f32 {vr(dst[0],2)}, {L2}, {vr(cur[1],2)}, {vr(dst[0],2)} op_sel:[1,0,0] op_sel_hi:[1,1,1] neg_lo:[1,0,0] neg_hi:[1,0,0]
        v_pk_fma_f32 {vr(dst[1],2)}, {L2}, {vr(cur[0],2)}, {vr(dst[1],2)} op_sel:[1,0,0] op_sel_hi:[1,1,1]
        """)

    if pks:
        Ureg = U
        Upair = lambda j: (Ureg(2 * j, 0), Ureg(2 * j, 1))
        cur = Upair(0)
        for j in range(1, 16):
            nx = (t, t + 2) if j & 1 else (t + 4, t + 6)
            pk_step(nx, cur, Upair(j))
            cur = nx
        assert cur == (t, t + 2)
        P(f"""
        v_mov_b32 v{EAr[0]}, v{t}
        v_mov_b32 v{EAr[1]}, v{t+2}
        v_fma_f32 v{t+4}, v{hr}, v{t}, v{t+1}
        v_fma_f32 v{t+5}, v{hr}, v{t+2}, v{t+3}
        v_fma_f32 v{t}, -v{hi_}, v{EAr[1]}, v{t+4}
        v_fma_f32 v{t+1}, v{hi_}, v{EAr[0]}, v{t+5}
        """)
        U = lambda tau, cp: Ureg(2 * (tau & 15) + (tau >> 4), cp)
    else:
        cur = (U(0, 0), U(0, 1))
        for tau in range(1, 32):
            nx = ea if tau & 1 else eb
            P(f"""
            v_fma_f32 v{nx[0]}, v{lr}, v{cur[0]}, v{U(tau,0)}
            v_fma_f32 v{nx[1]}, v{lr}, v{cur[1]}, v{U(tau,1)}
            v_fmac_f32 v{nx[0]}, v{nli}, v{cur[1]}
            v_fmac_f32 v{nx[1]}, v{li}, v{cur[0]}
            """)
            cur = nx
        assert cur == ea
    P(f"""
    v_lshrrev_b32 v{t+4}, 5, v{vLane}
    v_lshlrev_b32 v{t+4}, 9, v{t+4}
    v_and_b32 v{t+5}, 31, v{vLane}
    v_lshlrev_b32 v{t+5}, 3, v{t+5}
    s_lshl_b32 s{sT}, s{sWN}, 8
    s_add_u32 s{sT}, s{sT}, {ELOC}
    v_add_u32 v{t+5}, s{sT}, v{t+5}
    s_lshl_b32 s{sT}, s{sWM}, 10
    v_add_u32 v{t+4}, s{sT}, v{t+4}
    v_add_u32 v{t+4}, v{t+4}, v{t+5}
    ds_write_b64 v{t+4}, {vr(ea[0],2)}
    s_waitcnt lgkmcnt(0)
    s_barrier
    """)
    EL = [98, 100, 122, 124]
    for k in range(4):
        P(f"ds_read_b64 {vr(EL[k], 2)}, v{t+5} offset:{k * 512}")

    def cmuladd(dr, di, ar, ai, nai, xr, xi, yr, yi):
        P(f"""
        v_fma_f32 v{t+6}, v{ar}, v{xr}, v{yr}
        v_fma_f32 v{t+7}, v{ar}, v{xi}, v{yi}
        v_fma_f32 v{dr}, -v{ai}, v{xi}, v{t+6}
        v_fma_f32 v{di}, v{ai}, v{xr}, v{t+7}
        """) if (dr, di) != (xr, xi) else P(f"""
        v_fma_f32 v{t+6}, v{ar}, v{xr}, v{yr}
        v_fma_f32 v{t+7}, v{ar}, v{xi}, v{yi}
        v_fma_f32 v{t+7}, v{ai}, v{xr}, v{t+7}
        v_fma_f32 v{dr}, -v{ai}, v{xi}, v{t+6}
        v_mov_b32 v{di}, v{t+7}
        """)

    Eb = 66
    cmuladd(t, t + 1, mr, mi, None, EL[0], EL[0] + 1, EL[1], EL[1] + 1)
    cmuladd(t + 2, t + 3, mr, mi, None, t, t + 1, EL[2], EL[2] + 1)
    cmuladd(Eb, Eb + 2, mr, mi, None, t + 2, t + 3, EL[3], EL[3] + 1)
    nopub = P.newlabel(pfx + "_nopub")
    P(f"""
    v_mov_b32 v{Eb+1}, s{sTag}
    v_mov_b32 v{Eb+3}, s{sTag}
    s_mul_i32 s{sT}, s{sTB}, 576
    v_add_u32 v{t}, s{sT}, v{t+8}
    v_lshlrev_b32 v{t}, 4, v{t}
    s_cmp_eq_u32 s{sWM}, 0
    s_cbranch_scc0 {nopub}
    s_mov_b32 exec_hi, 0
    buffer_store_dwordx4 {vr(Eb,4)}, v{t}, s[{sE}:{sE+3}], 0 offen sc1
    s_mov_b32 exec_hi, -1
    """)
    P.L(nopub)
    EDr = [66 + 4 * i for i in range(8)]
    use(125)
    vN, vEo = t + 2, t + 3
    P(f"""
    v_lshrrev_b32 v{vN}, 5, v{vLane}
    v_lshlrev_b32 v{vN}, 3, v{vN}
    s_sub_i32 s{sT}, s{sTB}, 16
    v_add_u32 v{vN}, s{sT}, v{vN}
    s_movk_i32 s{sT}, 576
    v_mul_lo_u32 v{vEo}, v{vN}, s{sT}
    v_add_u32 v{vEo}, v{vEo}, v{t+8}
    v_lshlrev_b32 v{vEo}, 4, v{vEo}
    """)
    if "pmarks" not in exp and "bmarks" not in exp and "smarks" not in exp: common.mark(P, 5)
    for e in exp:
        if e.startswith("esleep="): P(f"s_sleep {int(e[7:])}")
    ep = P.newlabel(pfx + "_epoll")
    P.L(ep)
    for i in range(8):
        P(f"v_add_u32 v{t}, {i * 9216}, v{vEo}")
        P(f"buffer_load_dwordx4 {vr(EDr[i],4)}, v{t}, s[{sE}:{sE+3}], 0 offen sc1")
    P(f"s_mov_b64 s[{sBad}:{sBad+1}], 0")
    for i in range(8):
        P(f"""
        v_cmp_eq_u32 vcc, s{sTag}, v{EDr[i]+1}
        v_cmp_eq_u32 s[{sOk}:{sOk+1}], s{sTag}, v{EDr[i]+3}
        s_and_b64 s[{sOk}:{sOk+1}], s[{sOk}:{sOk+1}], vcc
        v_cmp_gt_i32 vcc, {-i}, v{vN}
        s_or_b64 s[{sOk}:{sOk+1}], s[{sOk}:{sOk+1}], vcc
        s_orn2_b64 s[{sBad}:{sBad+1}], s[{sBad}:{sBad+1}], s[{sOk}:{sOk+1}]
        """)
    edone = P.newlabel(pfx + "_edone")
    P(f"""
    s_cmp_eq_u64 s[{sBad}:{sBad+1}], 0
    s_cbranch_scc1 {edone}
    s_sleep 2
    s_branch {ep}
    """)
    P.L(edone)
    if "pmarks" not in exp and "bmarks" not in exp and "smarks" not in exp: common.mark(P, 6)
    H = (t + 4, t + 5)
    cmuladd(H[0], H[1], br, bi, None, EDr[0], EDr[0] + 2, EDr[1], EDr[1] + 2)
    for i in range(2, 8):
        cmuladd(H[0], H[1], br, bi, None, H[0], H[1], EDr[i], EDr[i] + 2)
    for _ in range(3):
        csq(br, bi, br, bi)
    a0, a1, b0, b1 = 66, 67, 68, 69
    P(f"""
    v_mov_b32 v{a0}, v{H[0]}
    v_mov_b32 v{b0}, v{H[0]}
    v_mov_b32 v{a1}, v{H[1]}
    v_mov_b32 v{b1}, v{H[1]}
    v_permlane32_swap_b32 v{a0}, v{b0}
    v_permlane32_swap_b32 v{a1}, v{b1}
    """)
    C0, C1, C2, C3 = (82, 83), (84, 85), (86, 87), (88, 89)
    cmuladd(C0[0], C0[1], br, bi, None, a0, a1, b0, b1)
    cmuladd(C1[0], C1[1], mr, mi, None, C0[0], C0[1], EL[0], EL[0] + 1)
    w1, gsel = P.newlabel(pfx + "_wm1"), P.newlabel(pfx + "_gsel")
    g0 = (t, t + 1)
    P(f"""
    v_cmp_le_u32 vcc, 32, v{vLane}
    s_cmp_eq_u32 s{sWM}, 0
    s_cbranch_scc0 {w1}
    v_cndmask_b32 v{g0[0]}, v{C0[0]}, v{C1[0]}, vcc
    v_cndmask_b32 v{g0[1]}, v{C0[1]}, v{C1[1]}, vcc
    s_branch {gsel}
    """)
    P.L(w1)
    cmuladd(C2[0], C2[1], mr, mi, None, C1[0], C1[1], EL[1], EL[1] + 1)
    cmuladd(C3[0], C3[1], mr, mi, None, C2[0], C2[1], EL[2], EL[2] + 1)
    P(f"""
    v_cndmask_b32 v{g0[0]}, v{C2[0]}, v{C3[0]}, vcc
    v_cndmask_b32 v{g0[1]}, v{C2[1]}, v{C3[1]}, vcc
    """)
    P.L(gsel)
    cur = g0
    if pks:
        P(f"""
        v_mov_b32 v{t+2}, v{g0[0]}
        v_mov_b32 v{t+4}, v{g0[1]}
        """)
        cmuladd(t + 3, t + 5, hr, hi_, None, g0[0], g0[1], EAr[0], EAr[1])
        cur = (t + 2, t + 4)
        for j in range(16):
            pk_step(Upair(j), cur, Upair(j))
            cur = Upair(j)
    for tau in range(32 if not pks else 0):
        ur, ui = U(tau, 0), U(tau, 1)
        P(f"""
        v_fmac_f32 v{ur}, v{lr}, v{cur[0]}
        v_fmac_f32 v{ui}, v{lr}, v{cur[1]}
        v_fmac_f32 v{ur}, v{nli}, v{cur[1]}
        v_fmac_f32 v{ui}, v{li}, v{cur[0]}
        """)
        cur = (ur, ui)
    if not early:
        tr_write_addr()
    PK = 66
    for cp in range(2):
        for k in range(16):
            P(f"v_cvt_pk_bf16_f32 v{PK + 16 * cp + k}, v{U(2 * k, cp)}, v{U(2 * k + 1, cp)}")
        for m in range(4):
            P(f"v_xor_b32 v{vX_}, {16 * m}, v{vTW}")
            P(f"ds_write_b128 v{vX_}, {vr(PK + 16 * cp + 4 * m, 4)} offset:{cp * 4096}")
    if not early:
        tr_read_addr()
    P(f"""
    s_lshl_b32 s{sT}, s{sTB}, 2
    s_lshl_b32 s{sT2}, s{sWM}, 1
    s_add_u32 s{sT}, s{sT}, s{sT2}
    s_mul_i32 s{sT}, s{sT}, 72
    s_lshl_b32 s{sT2}, s{sSB}, 2
    s_add_u32 s{sT}, s{sT}, s{sT2}
    s_lshl_b32 s{sT2}, s{sWN}, 1
    s_add_u32 s{sT}, s{sT}, s{sT2}
    s_lshl_b32 s{sT}, s{sT}, 10
    s_add_u32 s{sT}, s{sT}, {WS_HF}
    s_waitcnt lgkmcnt(0)
    """)
    TRA = [t + 4, t + 5, t + 6, t + 7]
    for tt2 in range(2):
        for rd in range(2):
            P(f"v_xor_b32 v{TRA[2 * tt2 + rd]}, {tt2 * 64 + rd * 32}, v{vTR}")
    FR = [2 + 4 * i for i in range(8)]
    k = 0
    for tt2 in range(2):
        for cp in range(2):
            for s16 in range(2):
                for rd in range(2):
                    P(f"ds_read_b64_tr_b16 {vr(FR[k] + 2 * rd, 2)}, v{TRA[2 * tt2 + rd]} offset:{cp * 4096 + s16 * 2048 + rd * 512}")
                k += 1
    k = 0
    for tt2 in range(2):
        for cp in range(2):
            P(f"s_add_u32 s{sT2}, s{sT}, {(tt2 * 72 + cp * 36) * 1024}")
            for s16 in range(2):
                P(f"buffer_store_dwordx4 {vr(FR[k],4)}, v{vL16}, {ws}, s{sT2} offen offset:{s16 * 1024} sc1")
                k += 1
    if "pmarks" not in exp and "bmarks" not in exp and "smarks" not in exp: common.mark(P, 7)
    P("s_waitcnt vmcnt(0)")
    P("s_barrier")
    common.mark(P, 8)
    fl = P.newlabel(pfx + "_noflag")
    if rawb:
        P(f"""
        s_cmp_eq_u32 s{sW}, 0
        s_cbranch_scc0 {fl}
        s_lshl_b32 s{sT}, s{sIdx}, 2
        s_add_u32 s{sT}, s{sT}, {WS_FLG + FLG_PREP}
        v_mov_b32 v2, {flag}
        v_lshlrev_b32 v3, 12, v{vLane}
        s_mov_b32 exec_hi, 0
        s_mov_b32 exec_lo, 0xffff
        buffer_store_dword v2, v3, {ws}, s{sT} offen sc1
        s_mov_b64 exec, -1
        """)
    else:
      P(f"""
    s_cmp_eq_u32 s{sW}, 0
    s_cbranch_scc0 {fl}
    s_lshl_b32 s{sT}, s{sTB}, 6
    s_lshl_b32 s{sT2}, s{sSB}, 2
    s_add_u32 s{sT}, s{sT}, s{sT2}
    s_add_u32 s{sT}, s{sT}, {WS_FLG + FLG_HF}
    v_mov_b32 v2, {flag}
    v_mov_b32 v3, 0
    s_mov_b32 exec_hi, 0
    s_mov_b32 exec_lo, 1
    buffer_store_dword v2, v3, {ws}, s{sT} offen sc1
    s_mov_b64 exec, -1
    """)
    P.L(fl)
    if rawb:
        block_map(False)
        P(f"""
        s_lshl_b32 s{sTile}, s{sTB}, 2
        s_add_u32 s{sTile}, s{sTile}, s{sMT}
        """)
    out_phases(False)

    iL = len(P.items)
    P.L(L("loader"))
    if "lmarks" in exp: common.mark(P, 6)
    P(f"""
    s_lshl_b32 s{sT}, s{sTB}, 2
    s_add_u32 s{sT}, s{sT}, s{sMT}
    s_mul_i32 s{sXo}, s{sT}, {36 * 1024}
    s_add_u32 s{sXo}, s{sXo}, {WS_XF}
    s_lshl_b32 s{sT}, s{sSB}, 2
    s_add_u32 s{sT}, s{sT}, s{sMT}
    s_mul_i32 s{sBo}, s{sT}, {36 * 1024}
    s_add_u32 s{sBo}, s{sBo}, {WS_BF}
    s_lshl_b32 s{sM}, s{sMT}, 11
    """)

    def dmaA(s_):
        slot = s_ % 5
        P(f"""
        s_add_u32 m0, s{sM}, {slot * SLOT}
        s_nop 0
        buffer_load_dwordx4 v{vL16}, {ws}, s{sXo} offen lds
        buffer_load_dwordx4 v{vL16}, {ws}, s{sXo} offen offset:1024 lds
        s_add_u32 m0, s{sM}, {slot * SLOT + 8192}
        s_add_u32 s{sXo}, s{sXo}, 2048
        buffer_load_dwordx4 v{vL16}, {ws}, s{sBo} offen lds
        buffer_load_dwordx4 v{vL16}, {ws}, s{sBo} offen offset:1024 lds
        s_add_u32 s{sBo}, s{sBo}, 2048
        """)

    if merged:
        vDX = [4, 5, 6, 7]
        sMX, sMW, sOffX = sM, 25, 31
        DUX = 4 * 1152 - 1024
        P(f"""
        v_lshrrev_b32 v8, 5, v{vLane}
        v_lshlrev_b32 v8, 5, v8
        v_lshrrev_b32 v9, 3, v{vLane}
        v_and_b32 v9, 3, v9
        v_add_u32 v8, v8, v9
        v_mul_u32_u24 v8, 1152, v8
        v_lshrrev_b32 v9, 4, v{vLane}
        v_and_b32 v10, 7, v{vLane}
        v_xor_b32 v9, v9, v10
        v_lshlrev_b32 v9, 4, v9
        v_xor_b32 v10, 64, v9
        v_add_u32 v{vDX[0]}, v8, v9
        v_add_u32 v10, v8, v10
        v_add_u32 v{vDX[1]}, {DUX}, v10
        v_add_u32 v{vDX[2]}, {2 * DUX}, v{vDX[0]}
        v_add_u32 v{vDX[3]}, {3 * DUX}, v10
        s_lshl_b32 s{sOffX}, s{sTB}, 7
        s_lshr_b32 s{sT}, s{sMT}, 1
        s_lshl_b32 s{sT}, s{sT}, 6
        s_add_u32 s{sOffX}, s{sOffX}, s{sT}
        s_and_b32 s{sT}, s{sMT}, 1
        s_lshl_b32 s{sT}, s{sT}, 4
        s_add_u32 s{sOffX}, s{sOffX}, s{sT}
        s_mul_i32 s{sOffX}, s{sOffX}, 1152
        s_lshl_b32 s{sMX}, s{sMT}, 12
        s_lshl_b32 s{sMW}, s{sMT}, 11
        s_add_u32 s{sMW}, s{sMW}, {WBASE}
        """)
        lp, dn = P.newlabel(pfx + "_ppoll"), P.newlabel(pfx + "_pdone")
        if rawb:
            sB4 = 44
            P(f"""
            s_load_dwordx4 s[52:55], s[0:1], {KA_BRE}
            """.replace("s[52:55]", "s[84:87]"))
            P(f"""
            v_lshrrev_b32 v8, 2, v{vLane}
            s_lshl_b32 s{sT}, s{sSB}, 6
            s_and_b32 s{sT2}, s{sMT}, 1
            s_lshl_b32 s{sT2}, s{sT2}, 5
            s_add_u32 s{sT}, s{sT}, s{sT2}
            v_add_u32 v8, s{sT}, v8
            v_mul_u32_u24 v8, 1152, v8
            v_lshrrev_b32 v9, 4, v{vLane}
            v_xor_b32 v9, v9, v{vLane}
            v_and_b32 v9, 3, v9
            v_lshlrev_b32 v9, 4, v9
            v_add_u32 v2, v8, v9
            v_add_u32 v3, {16 * 1152 - 1024}, v2
            s_mov_b32 s{sB4+2}, {576 * 1152}
            s_mov_b32 s{sB4+3}, 0x00020000
            s_mov_b32 s{sBo}, 0
            s_cmp_ge_u32 s{sMT}, 2
            s_waitcnt lgkmcnt(0)
            s_cselect_b32 s{sB4}, s86, s84
            s_cselect_b32 s{sB4+1}, s87, s85
            """)
            P(f"""
            s_cmp_eq_u32 s{sW}, 4
            s_cbranch_scc0 {dn}
            s_lshl_b32 s{sT}, s{sIdx}, 6
            s_add_u32 s{sT}, s{sT}, {WS_FLG + FLG_GO}
            s_mov_b64 exec, 1
            """)
            if "nogo" in exp:
                P(f"s_branch {dn}")
            P.L(lp)
            P(f"""
            buffer_load_dword v12, off, {ws}, s{sT} sc1
            s_waitcnt vmcnt(0)
            v_cmp_ne_u32 vcc, {flag}, v12
            s_cbranch_vccz {dn}
            s_sleep {psleep}
            s_branch {lp}
            """)
        else:
          P(f"""
        s_cmp_eq_u32 s{sW}, 4
        s_cbranch_scc0 {dn}
        s_and_b32 s{sT2}, s{sIdx}, {NREP - 1}
        s_lshl_b32 s{sT2}, s{sT2}, 12
        s_lshl_b32 s{sT}, s{sIdx}, 6
        s_add_u32 s{sT}, s{sT}, {FLG_GO - FLG_PREP}
        s_sub_u32 s{sT}, s{sT}, s{sT2}
        v_mov_b32 v9, s{sT}
        v_cmp_eq_u32 vcc, 36, v{vLane}
        v_cndmask_b32 v8, v{vL16}, v9, vcc
        s_add_u32 s{sT}, s{sT2}, {WS_FLG + FLG_PREP}
        s_mov_b32 exec_hi, {"0xf" if "nogo" in exp else "0x1f"}
        """)
        if not rawb:
          P.L(lp)
          P(f"""
        buffer_load_dwordx4 v[12:15], v8, {ws}, s{sT} offen sc1
        s_waitcnt vmcnt(0)
        v_cmp_ne_u32 vcc, {flag}, v12
        v_cmp_ne_u32 s[{sOk}:{sOk+1}], {flag}, v13
        s_or_b64 s[{sBad}:{sBad+1}], vcc, s[{sOk}:{sOk+1}]
        v_cmp_ne_u32 vcc, {flag}, v14
        v_cmp_ne_u32 s[{sOk}:{sOk+1}], {flag}, v15
        s_or_b64 s[{sBad}:{sBad+1}], s[{sBad}:{sBad+1}], vcc
        s_or_b64 s[{sBad}:{sBad+1}], s[{sBad}:{sBad+1}], s[{sOk}:{sOk+1}]
        s_cbranch_scc0 {dn}
        s_sleep {psleep}
        s_branch {lp}
        """)
        P.L(dn)
        P("s_mov_b64 exec, -1")
        if "bmarks" in exp: common.mark(P, 5)
        P("s_barrier")
        if "pmarks" in exp: common.mark(P, 7)
        q = []

        def dmax(c):
            P(f"s_add_u32 m0, s{sMX}, {(c % NX) * XSLOT}")
            P("s_nop 0")
            for u in range(4):
                P(f"buffer_load_dwordx4 v{vDX[u]}, s[{sAX}:{sAX+3}], s{sOffX} offen offset:{u * 1024} lds")
            P(f"s_add_u32 s{sOffX}, s{sOffX}, 128")
            q.extend([f"x{c}"] * 4)

        def dmab(b):
            if rawb:
                P(f"""
                s_add_u32 m0, s{sMW}, {(b % NWS) * WSLOT}
                s_nop 0
                buffer_load_dwordx4 v2, s[{sB4}:{sB4+3}], s{sBo} offen lds
                buffer_load_dwordx4 v3, s[{sB4}:{sB4+3}], s{sBo} offen offset:1024 lds
                s_add_u32 s{sBo}, s{sBo}, 64
                """)
                q.extend([f"w{b}"] * 2)
                return
            P(f"""
            s_add_u32 m0, s{sMW}, {(b % NWS) * WSLOT}
            s_nop 0
            buffer_load_dwordx4 v{vL16}, {ws}, s{sBo} offen lds
            buffer_load_dwordx4 v{vL16}, {ws}, s{sBo} offen offset:1024 lds
            s_add_u32 s{sBo}, s{sBo}, 2048
            """)
            q.extend([f"w{b}"] * 2)

        def wait(tags):
            idx = max(i for i, e in enumerate(q) if e in tags)
            P(f"s_waitcnt vmcnt({len(q) - 1 - idx})")

        dmax(0); dmab(0); dmab(1); dmax(1); dmab(2); dmab(3); dmax(2)
        P(f"s_setprio {prio['l']}")
        wait(["x0", "w0"])
        P("s_barrier")
        for b in range(17):
            wait([f"w{b + 1}"] + ([f"x{(b + 1) // 2}"] if b & 1 else []))
            P("s_barrier")
            if b + 4 < 18:
                dmab(b + 4)
            if b & 1 and (b - 1) // 2 + 3 < 9:
                dmax((b - 1) // 2 + 3)
        if rawb:
            from prepm import emit_prep
            emit_prep(P, sIdx, sWave, exp=exp, late=True, mid=lambda: P("s_barrier"))
            base_regs(False)
    elif not fusedb:
        pre = 5
        for e in exp:
            if e.startswith("spre="): pre = int(e[5:])
        issued = []

        def req(s_):
            dmaA(s_)
            issued.append(s_)

        def landed(s_):
            P(f"s_waitcnt vmcnt({4 * (len(issued) - 1 - issued.index(s_))})")

        for s_ in range(pre):
            req(s_)
            if "lmarks" in exp and s_ == 0: common.mark(P, 8)
        if lfirst:
            base_regs(rest=True)
        P(f"s_setprio {prio['l']}")
        if "smarks" in exp: common.mark(P, 5)
        landed(0)
        if "smarks" in exp: common.mark(P, 7)
        P("s_barrier")
        for s_ in range(pre, 5):
            req(s_)
        for s_ in range(17):
            landed(s_ + 1)
            P("s_barrier")
            if s_ + 5 < 18:
                req(s_ + 5)
    P(f"""
    s_lshl_b32 s{sT}, s{sSB}, 1
    s_and_b32 s{sT2}, s{sMT}, 1
    s_add_u32 s{sT}, s{sT}, s{sT2}
    s_mul_i32 s{sCo}, s{sT}, {72 * 1024}
    s_lshr_b32 s{sT2}, s{sMT}, 1
    s_mul_i32 s{sT2}, s{sT2}, {36 * 1024}
    s_add_u32 s{sCo}, s{sCo}, s{sT2}
    s_add_u32 s{sCo}, s{sCo}, {WS_CF}
    s_mul_i32 s{sWo}, s{sT}, {36 * 1024}
    s_lshr_b32 s{sT2}, s{sMT}, 1
    s_mul_i32 s{sT2}, s{sT2}, {18 * 1024}
    s_add_u32 s{sWo}, s{sWo}, s{sT2}
    s_add_u32 s{sWo}, s{sWo}, {WS_WF}
    s_lshl_b32 s{sM}, s{sMT}, 12
    """)
    if crot:
        P(f"""
        s_add_u32 s{sCend}, s{sCo}, {9 * 4096}
        s_lshl_b32 s{sT3}, s{sRot}, 12
        s_add_u32 s{sCo}, s{sCo}, s{sT3}
        """)
    lp, dn = P.newlabel(pfx + "_hpoll"), P.newlabel(pfx + "_hdone")
    if rawb:
        P(f"""
        s_waitcnt vmcnt(0)
        s_barrier
        s_cmp_eq_u32 s{sW}, 4
        s_cbranch_scc0 {dn}
        s_and_b32 s{sT2}, s{sIdx}, {NREP - 1}
        s_lshl_b32 s{sT2}, s{sT2}, 12
        s_add_u32 s{sT}, s{sT2}, {WS_FLG + FLG_K1}
        s_lshl_b32 s{sT2}, s{sTB}, 6
        s_add_u32 s{sT2}, s{sT2}, {FLG_K1T - FLG_K1 - 36 * 16}
        v_add_u32 v9, s{sT2}, v{vL16}
        v_add_u32 v8, {FLG_PREP - FLG_K1}, v{vL16}
        v_cmp_le_u32 vcc, 36, v{vLane}
        v_cndmask_b32 v8, v8, v9, vcc
        s_mov_b32 exec_hi, 0xff
        """)
        P.L(lp)
        P(f"""
        buffer_load_dwordx4 v[12:15], v8, {ws}, s{sT} offen sc1
        s_waitcnt vmcnt(0)
        v_cmp_ne_u32 vcc, {flag}, v12
        v_cmp_ne_u32 s[{sOk}:{sOk+1}], {flag}, v13
        s_or_b64 s[{sBad}:{sBad+1}], vcc, s[{sOk}:{sOk+1}]
        v_cmp_ne_u32 vcc, {flag}, v14
        v_cmp_ne_u32 s[{sOk}:{sOk+1}], {flag}, v15
        s_or_b64 s[{sBad}:{sBad+1}], s[{sBad}:{sBad+1}], vcc
        s_or_b64 s[{sBad}:{sBad+1}], s[{sBad}:{sBad+1}], s[{sOk}:{sOk+1}]
        s_cbranch_scc0 {dn}
        s_sleep 4
        s_branch {lp}
        """)
        P.L(dn)
        P("s_mov_b64 exec, -1")
        out_phases(True)
        return hi[0]
    P("s_barrier")
    cf_dma(0)
    cf_dma(1)
    P("s_barrier")
    for c in (2, 3, 4):
        cf_dma(c)
    P(f"""
    s_cmp_eq_u32 s{sW}, 4
    s_cbranch_scc0 {dn}
    s_lshl_b32 s{sT}, s{sTB}, 6
    s_add_u32 s{sT}, s{sT}, {WS_FLG + FLG_HF}
    v_lshlrev_b32 v2, 2, v{vLane}
    """)
    if merged:
        P(f"""
        s_and_b32 s{sT2}, s{sIdx}, {NREP - 1}
        s_lshl_b32 s{sT2}, s{sT2}, 12
        s_add_u32 s{sT2}, s{sT2}, {FLG_K1T - FLG_HF - 64}
        v_add_u32 v3, s{sT2}, v2
        v_cmp_le_u32 vcc, 16, v{vLane}
        v_cndmask_b32 v2, v2, v3, vcc
        """)
    P(f"""
    s_mov_b32 exec_hi, 0
    s_mov_b32 exec_lo, {"0xffff01ff" if merged else "0x1ff"}
    """)
    P.L(lp)
    P(f"""
    buffer_load_dword v3, v2, {ws}, s{sT} offen sc1
    s_waitcnt vmcnt(0)
    v_cmp_ne_u32 vcc, {flag}, v3
    s_cbranch_vccz {dn}
    s_sleep 2
    s_branch {lp}
    """)
    P.L(dn)
    P("s_mov_b64 exec, -1")
    P("s_waitcnt vmcnt(0)")
    out_phases(True)
    if lfirst:
        P.items = P.items[:iC] + P.items[iL:] + P.items[iC:iL]
    return hi[0]
```

```python
from asmgen import *
from layout import *
from prepk import emit_lambda, srd_from_kernarg, f32
import common

SLOT = 16384
SVC_LDS = 81920
ELOC = 78 * 1024
HDEPTH = 16
ODEPTH = 12


def emit_service(P, sIdx, pfx="svc", end="s_endpgm", exp=(), sWave=None, sNonce=None):
    L = lambda n: f"{pfx}_{n}"
    ws = "s[4:7]"
    prio = {"b": 3, "c": 3, "0": 3, "l": 3, "s": 3}
    psleep = 2
    HDEPTH = globals()["HDEPTH"]
    xearly = None
    for e in exp:
        if e.startswith("xearly="): xearly = int(e[7:])
    mixc = 6
    for e in exp:
        if e.startswith("mixc="): mixc = int(e[5:])
    for e in exp:
        if e.startswith("hd="): HDEPTH = int(e[3:])
    for e in exp:
        if e.startswith("psleep="): psleep = int(e[7:])
        if e.startswith("pb="): prio["b"] = int(e[3:])
        if e.startswith("pc="): prio["c"] = int(e[3:])
        if e.startswith("p0="): prio["0"] = int(e[3:])
        if e.startswith("pl="): prio["l"] = int(e[3:])
        if e.startswith("ps="): prio["s"] = int(e[3:])
    sTB, sSB, sW, sWM, sWN, sM, sXo, sBo, sCo, sHo = 8, 9, 10, 11, 12, 13, 14, 15, 16, 17
    sT, sT2, sT3, sTag, sKH, sMT, sTile = 18, 19, 20, 21, 22, 23, 24
    sOk, sBad = 26, 28
    sWo = 30
    crot = "crot" in exp
    sRot, sHend, sCend = 48, 25, 31
    sE, sAX, sOut, sP = 32, 36, 40, 44
    vLane, vL16 = 0, 1
    hi = [2]

    def use(*regs):
        hi[0] = max(hi[0], max(regs) + 1)

    merged = sWave is not None
    rawb = merged and "rawb" in exp
    fusedb = "fusedb" in exp
    flag = f"s{sTag}" if merged else "1"

    def block_map(scan):
        if scan and rawb and "nomapa" not in exp:
            P(f"""
            s_lshr_b32 s{sT}, s{sIdx}, 3
            s_lshr_b32 s{sT2}, s{sIdx}, 1
            s_and_b32 s{sT2}, s{sT2}, 3
            s_lshl_b32 s{sT2}, s{sT2}, 1
            s_lshr_b32 s{sSB}, s{sT}, 3
            s_add_u32 s{sSB}, s{sSB}, s{sT2}
            s_and_b32 s{sTB}, s{sIdx}, 1
            s_lshl_b32 s{sTB}, s{sTB}, 3
            s_and_b32 s{sT3}, s{sT}, 7
            s_add_u32 s{sTB}, s{sTB}, s{sT3}
            s_cmp_ge_u32 s{sT}, 16
            s_cselect_b32 s{sSB}, 8, s{sSB}
            s_cselect_b32 s{sT2}, s{sT2}, 0
            s_add_u32 s{sTB}, s{sTB}, s{sT2}
            """)
        else:
            P(f"""
            s_and_b32 s{sTB}, s{sIdx}, 7
            s_lshl_b32 s{sTB}, s{sTB}, 1
            s_lshr_b32 s{sT}, s{sIdx}, 3
            s_and_b32 s{sT}, s{sT}, 1
            s_add_u32 s{sTB}, s{sTB}, s{sT}
            s_lshr_b32 s{sSB}, s{sIdx}, 4
            """)

    lfirst = "lfirst" in exp

    def base_min(scan=True):
        P(f"""
        {"v_lshrrev_b32 v2, 6, v0" if not merged else ""}
        {"v_and_b32 v%d, 63, v0" % vLane if not merged else ""}
        {"v_readfirstlane_b32 s%d, v2" % sW if not merged else "s_mov_b32 s%d, s%d" % (sW, sWave)}
        v_lshlrev_b32 v{vL16}, 4, v{vLane}
        """)
        block_map(scan)
        P(f"""
        s_and_b32 s{sMT}, s{sW}, 3
        s_lshr_b32 s{sKH}, s{sW}, 2
        """)

    def base_regs(scan=True, rest=False):
        srd_from_kernarg(P, sAX, KA_AX, 2048 * 1152)
        srd_from_kernarg(P, sOut, KA_OUT, 2048 * 2304)
        if not rest:
            base_min(scan)
        P(f"""
        s_mov_b32 s{sTag}, {TAG if not merged else 's%d' % sNonce}
        s_add_u32 s{sE}, s4, {WS_E}
        s_addc_u32 s{sE+1}, s5, 0
        s_mov_b32 s{sE+2}, {E_BYTES}
        s_mov_b32 s{sE+3}, 0x00020000
        s_lshl_b32 s{sTile}, s{sTB}, 2
        s_add_u32 s{sTile}, s{sTile}, s{sMT}
        s_and_b32 s{sT}, s{sTB}, 1
        s_lshl_b32 s{sT}, s{sT}, 2
        s_add_u32 s{sRot}, s{sSB}, s{sT}
        s_sub_u32 s{sT}, s{sRot}, 9
        s_cmp_ge_u32 s{sRot}, 9
        s_cselect_b32 s{sRot}, s{sT}, s{sRot}
        """)

    if "lmarks" in exp: common.mark(P, 4)
    if lfirst:
        P(f"s_setprio {prio['0']}")
        base_min()
        P(f"""
        s_cmp_eq_u32 s{sKH}, 0
        s_cbranch_scc1 {L('compute')}
        """)
        iC = len(P.items)
        P.L(L("compute"))
        base_regs(rest=True)
    else:
        base_regs()
        P(f"""
        s_setprio {prio['0']}
        s_cmp_eq_u32 s{sKH}, 0
        s_cbranch_scc0 {L('loader')}
        """)


    def wrap(reg, endreg):
        P(f"""
        s_sub_u32 s{sT3}, s{reg}, {9 * 4096}
        s_cmp_ge_u32 s{reg}, s{endreg}
        s_cselect_b32 s{reg}, s{sT3}, s{reg}
        """)

    def cf_dma(c):
        slot = (c + 2) % 5
        P(f"""
        s_add_u32 m0, s{sM}, {slot * SLOT}
        s_nop 0
        buffer_load_dwordx4 v{vL16}, {ws}, s{sCo} offen lds
        buffer_load_dwordx4 v{vL16}, {ws}, s{sCo} offen offset:1024 lds
        buffer_load_dwordx4 v{vL16}, {ws}, s{sCo} offen offset:2048 lds
        buffer_load_dwordx4 v{vL16}, {ws}, s{sCo} offen offset:3072 lds
        s_add_u32 s{sCo}, s{sCo}, 4096
        """)
        if crot:
            wrap(sCo, sCend)

    def wf_dma(j):
        slot = (9 + j + 2) % 5
        P(f"s_add_u32 m0, s{sM}, {slot * SLOT}")
        P("s_nop 0")
        nk = 4 if j < 4 else 2
        for k in range(nk):
            P(f"buffer_load_dwordx4 v{vL16}, {ws}, s{sWo} offen offset:{k * 1024} lds")
        P(f"s_add_u32 s{sWo}, s{sWo}, 4096")
        return nk

    def out_phases(loader):
        outA = "outA" in exp
        ACC = [2, 18]
        HF = [34 + 4 * i for i in range(HDEPTH)]
        BF = [[98, 102], [106, 110]]
        vC0, vC1 = 114, 115
        vG1, vX, vY, vO, vTm = 116, 117, 118, 119, 120
        XR, DR, GR = 50, 58, 60
        if HDEPTH <= 12:
            XR, DR, GR = 82, 90, 92
        T = 34
        use(121)
        P(f"""
        s_mul_i32 s{sHo}, s{sTile}, {72 * 1024}
        s_mul_i32 s{sT}, s{sKH}, {36 * 1024}
        s_add_u32 s{sHo}, s{sHo}, s{sT}
        s_add_u32 s{sHo}, s{sHo}, {WS_HF}
        s_lshl_b32 s{sT}, s{sKH}, 13
        v_add_u32 v{vC0}, s{sT}, v{vL16}
        v_add_u32 v{vC1}, 0x10000, v{vC0}
        """)
        if crot:
            P(f"""
            s_add_u32 s{sHend}, s{sHo}, {9 * 4096}
            s_lshl_b32 s{sT}, s{sRot}, 12
            s_add_u32 s{sHo}, s{sHo}, s{sT}
            """)
        P("s_barrier")
        common.mark(P, 1)
        vm = []
        if loader and rawb:
            for c in range(5):
                cf_dma(c)
                vm.extend([("c", c)] * 4)

        def hload(n):
            if n % 4 == 0 and n > 0:
                P(f"s_add_u32 s{sHo}, s{sHo}, 4096")
                if crot:
                    wrap(sHo, sHend)
            P(f"buffer_load_dwordx4 {vr(HF[n % HDEPTH],4)}, v{vL16}, {ws}, s{sHo} offen offset:{(n % 4) * 1024}" + ("" if "hfl2" in exp else " sc1"))
            vm.append(("h", n))

        for n in range(HDEPTH):
            hload(n)
        P(f"s_setprio {prio['c']}")
        srd_from_kernarg(P, sP, KA_DSK, 1152)

        def creads(n):
            c, ks = divmod(n, 4)
            slot = (c + 2) % 5
            base, off = (vC1, 0) if slot == 4 else (vC0, slot * SLOT)
            return [f"ds_read_b128 {vr(BF[n & 1][ct],4)}, v{base} offset:{off + ct * 4096 + ks * 1024}" for ct in range(2)]

        def mix_loads_a():
            P(f"""
            v_and_b32 v{vTm}, 31, v{vLane}
            v_lshrrev_b32 v{vY}, 5, v{vLane}
            v_mul_u32_u24 v{vX}, 1152, v{vTm}
            v_lshlrev_b32 v{vY}, 3, v{vY}
            v_add_u32 v{vX}, v{vX}, v{vY}
            s_mul_i32 s{sT}, s{sTile}, {32 * 1152}
            s_lshl_b32 s{sT2}, s{sSB}, 7
            s_lshl_b32 s{sT3}, s{sKH}, 6
            s_add_u32 s{sT2}, s{sT2}, s{sT3}
            s_add_u32 s{sT}, s{sT}, s{sT2}
            """)
            for q in range(4):
                P(f"buffer_load_dwordx2 {vr(XR + 2 * q, 2)}, v{vX}, s[{sAX}:{sAX+3}], s{sT} offen offset:{16 * q}")
            for q in range(4):
                P(f"buffer_load_dwordx2 {vr(DR + 2 * q, 2)}, v{vY}, s[{sP}:{sP+3}], s{sT2} offen offset:{16 * q}")
            P(f"""
            v_lshlrev_b32 v{vX}, 2, v{vTm}
            s_lshl_b32 s{sT}, s{sTile}, 7
            s_add_u32 s{sT}, s{sT}, {WS_G}
            buffer_load_dword v{vG1}, v{vX}, {ws}, s{sT} offen
            v_mul_u32_u24 v{vTm}, 2304, v{vTm}
            v_lshlrev_b32 v{vO}, 1, v{vY}
            v_add_u32 v{vO}, v{vO}, v{vTm}
            """)
            vm.extend([("x", 0)] * 9)

        def mix_loads():
            P(f"""
            v_lshrrev_b32 v{vTm}, 3, v{vLane}
            v_xor_b32 v{vO}, v{vTm}, v{vLane}
            v_and_b32 v{vO}, 7, v{vO}
            v_mul_u32_u24 v{vX}, 1152, v{vTm}
            v_lshlrev_b32 v{vY}, 3, v{vO}
            v_add_u32 v{vX}, v{vX}, v{vY}
            s_mul_i32 s{sT}, s{sTile}, {32 * 1152}
            s_lshl_b32 s{sT2}, s{sSB}, 7
            s_lshl_b32 s{sT3}, s{sKH}, 6
            s_add_u32 s{sT2}, s{sT2}, s{sT3}
            s_add_u32 s{sT}, s{sT}, s{sT2}
            """)
            for i in range(4):
                P(f"buffer_load_dwordx2 {vr(XR + 2 * i, 2)}, v{vX}, s[{sAX}:{sAX+3}], s{sT} offen")
                if i < 3:
                    P(f"s_add_u32 s{sT}, s{sT}, {8 * 1152}")
            P(f"""
            buffer_load_dwordx2 {vr(DR, 2)}, v{vY}, s[{sP}:{sP+3}], s{sT2} offen
            v_lshlrev_b32 v{vY}, 2, v{vTm}
            s_lshl_b32 s{sT}, s{sTile}, 7
            s_add_u32 s{sT}, s{sT}, {WS_G}
            """)
            for i in range(4):
                P(f"buffer_load_dword v{GR + i}, v{vY}, {ws}, s{sT} offen offset:{32 * i}")
            P(f"""
            v_and_b32 v{vX}, 31, v{vLane}
            v_lshlrev_b32 v{vX}, 2, v{vX}
            buffer_load_dword v{vG1}, v{vX}, {ws}, s{sT} offen
            v_mul_u32_u24 v{vTm}, 2304, v{vTm}
            v_lshlrev_b32 v{vO}, 4, v{vO}
            v_add_u32 v{vO}, v{vO}, v{vTm}
            """)
            vm.extend([("x", 0)] * 10)

        for c in range(9):
            if loader and (c >= 5 or rawb):
                idx = max(i for i, e in enumerate(vm) if e == ("c", c))
                P(f"s_waitcnt vmcnt({len(vm) - 1 - idx})")
            P("s_barrier")
            if loader and 1 <= c <= 4:
                cf_dma(c + 4)
                vm.extend([("c", c + 4)] * 4)
            if loader and c >= 5 and "wflate" not in exp:
                vm.extend([("w", c - 5)] * wf_dma(c - 5))
            if c == mixc and "mixlate" not in exp:
                if "mixp" in exp: P("s_setprio 3")
                mix_loads_a() if outA else mix_loads()
                if "mixp" in exp: P(f"s_setprio {prio['c']}")
            if "cmarks" in exp:
                common.mark(P, [4, 5, 6, 7, 8, 14, 15, 12, 13][c])
            else:
                if c == 4: common.mark(P, 14)
                if c == 7: common.mark(P, 15)
            for r in creads(4 * c):
                P(r)
            for ks in range(4):
                n = 4 * c + ks
                if ks < 3:
                    for r in creads(n + 1):
                        P(r)
                for ct in range(2):
                    cop = "0" if n == 0 else vr(ACC[ct], 16)
                    P(f"v_mfma_f32_32x32x16_bf16 {vr(ACC[ct],16)}, {vr(BF[n & 1][ct],4)}, {vr(HF[n % HDEPTH],4)}, {cop}")
                if n + HDEPTH < 36:
                    hload(n + HDEPTH)
            P("s_waitcnt lgkmcnt(0)")
        P("s_setprio 3")
        P("s_barrier")
        if loader:
            if "wflate" in exp:
                for j in range(4):
                    wf_dma(j)
            wf_dma(4)
        if "mixlate" in exp:
            mix_loads_a() if outA else mix_loads()
        tpoll = "tpoll" in exp
        if tpoll:
            if "wflag" in exp:
                P(f"""
                s_lshl_b32 s{sT}, s{sTile}, 7
                s_add_u32 s{sOk}, s{sT}, {WS_FLG + FLG_ATT2}
                v_and_b32 v121, 31, v{vLane}
                {"" if loader else "v_min_u32 v121, 17, v121"}
                """)
            else:
                P(f"""
                s_lshr_b32 s{sT}, s{sTB}, 1
                s_lshl_b32 s{sT}, s{sT}, 7
                s_add_u32 s{sOk}, s{sT}, {WS_FLG + FLG_ATT}
                v_and_b32 v121, 31, v{vLane}
                """)
            P(f"""
            v_lshlrev_b32 v121, 2, v121
            buffer_load_dword v122, v121, {ws}, s{sOk} offen sc1
            """)
        common.mark(P, 2)
        if outA:
            for q in range(4):
                for j in range(4):
                    sx, sd = XR + 2 * q + (j >> 1), DR + 2 * q + (j >> 1)
                    if j & 1:
                        P(f"v_and_b32 v{T + 4 * q + j}, 0xffff0000, v{sx}")
                        P(f"v_and_b32 v{98 + j}, 0xffff0000, v{sd}")
                    else:
                        P(f"v_lshlrev_b32 v{T + 4 * q + j}, 16, v{sx}")
                        P(f"v_lshlrev_b32 v{98 + j}, 16, v{sd}")
                for j in range(4):
                    P(f"v_mul_f32 v{98 + j}, v{vG1}, v{98 + j}")
                for j in range(4):
                    P(f"v_mul_f32 v{T + 4 * q + j}, v{T + 4 * q + j}, v{98 + j}")
        else:
            Df = [98, 99, 100, 101]
            P(f"""
            v_lshlrev_b32 v{Df[0]}, 16, v{DR}
            v_and_b32 v{Df[1]}, 0xffff0000, v{DR}
            v_lshlrev_b32 v{Df[2]}, 16, v{DR+1}
            v_and_b32 v{Df[3]}, 0xffff0000, v{DR+1}
            """)
            for i in range(4):
                for j in range(4):
                    src = XR + 2 * i + (j >> 1)
                    if j & 1:
                        P(f"v_and_b32 v{T + 4 * i + j}, 0xffff0000, v{src}")
                    else:
                        P(f"v_lshlrev_b32 v{T + 4 * i + j}, 16, v{src}")
                for j in range(4):
                    P(f"v_mul_f32 v{T + 4 * i + j}, v{T + 4 * i + j}, v{Df[j]}")
                for j in range(4):
                    P(f"v_mul_f32 v{T + 4 * i + j}, v{T + 4 * i + j}, v{GR + i}")
        for ct in range(2):
            for r in range(16):
                P(f"v_mul_f32 v{ACC[ct] + r}, v{vG1}, v{ACC[ct] + r}")
        common.mark(P, 9)
        if outA:
            P(f"""
            s_lshl_b32 s{sT}, s{sW}, 12
            v_add_u32 v{vX}, s{sT}, v{vL16}
            s_xor_b32 s{sT}, s{sW}, 4
            s_lshl_b32 s{sT}, s{sT}, 12
            v_add_u32 v{vY}, s{sT}, v{vL16}
            """)
        else:
            P(f"""
        v_and_b32 v{vTm}, 31, v{vLane}
        v_lshrrev_b32 v{vX}, 5, v{vLane}
        v_xor_b32 v{vX}, v{vX}, v{vTm}
        v_and_b32 v{vX}, 7, v{vX}
        v_lshlrev_b32 v{vX}, 4, v{vX}
        v_lshlrev_b32 v{vTm}, 7, v{vTm}
        v_add_u32 v{vX}, v{vX}, v{vTm}
        s_lshl_b32 s{sT}, s{sMT}, 14
        s_lshl_b32 s{sT2}, s{sKH}, {12 if xearly is None else 13}
        s_add_u32 s{sT2}, s{sT2}, s{sT}
        v_add_u32 v{vX}, s{sT2}, v{vX}
        s_lshl_b32 s{sT2}, s{sKH}, {13 if xearly is None else 12}
        s_add_u32 s{sT2}, s{sT2}, s{sT}
        v_add_u32 v{vY}, s{sT2}, v{vL16}
        """)
        P(f"""
        s_mul_i32 s{sT}, s{sKH}, {18 * 1024}
        s_mul_i32 s{sHo}, s{sTile}, {36 * 1024}
        s_add_u32 s{sHo}, s{sHo}, s{sT}
        s_add_u32 s{sHo}, s{sHo}, {WS_OF}
        """)
        if tpoll:
            lp, dn = P.newlabel(pfx + "_apoll"), P.newlabel(pfx + "_adone")
            if "tb2" in exp:
                P("s_waitcnt vmcnt(0)")
                P("s_barrier")
            P.L(lp)
            P(f"""
            s_waitcnt vmcnt(0)
            v_cmp_ne_u32 vcc, {flag}, v122
            s_cbranch_vccz {dn}
            s_sleep 1
            buffer_load_dword v122, v121, {ws}, s{sOk} offen sc1
            s_branch {lp}
            """)
            P.L(dn)
            use(123)
        elif not loader:
            lp, dn = P.newlabel(pfx + "_apoll"), P.newlabel(pfx + "_adone")
            P(f"""
            s_cmp_eq_u32 s{sW}, 0
            s_cbranch_scc0 {dn}
            s_lshr_b32 s{sT}, s{sTB}, 1
            s_lshl_b32 s{sT}, s{sT}, 7
            s_add_u32 s{sT}, s{sT}, {WS_FLG + FLG_ATT}
            v_lshlrev_b32 v121, 2, v{vLane}
            s_mov_b32 exec_hi, 0
            """)
            P.L(lp)
            P(f"""
            buffer_load_dword v122, v121, {ws}, s{sT} offen sc1
            s_waitcnt vmcnt(0)
            v_cmp_ne_u32 vcc, {flag}, v122
            s_cbranch_vccz {dn}
            s_sleep 1
            s_branch {lp}
            """)
            P.L(dn)
            P("s_mov_b64 exec, -1")
            use(123)
        if not tpoll:
            P("s_waitcnt vmcnt(0)")
            P("s_barrier")
        common.mark(P, 3)
        OFr = [50 + 4 * i for i in range(ODEPTH)]
        WB = BF

        def oload(n):
            if n % 4 == 0 and n > 0:
                P(f"s_add_u32 s{sHo}, s{sHo}, 4096")
            shared = loader and n >= 14
            P(f"buffer_load_dwordx4 {vr(OFr[n % ODEPTH],4)}, v{vL16}, {ws}, s{sHo} offen offset:{(n % 4) * 1024}" + ("" if "ofl2" in exp and not shared else " sc1"))

        for n in range(ODEPTH):
            oload(n)
        if tpoll and "tb2" not in exp:
            P("s_barrier")

        def wreads(n):
            j, ks = divmod(n, 4)
            slot = (9 + j + 2) % 5
            base, off = (vC1, 0) if slot == 4 else (vC0, slot * SLOT)
            return [f"ds_read_b128 {vr(WB[n & 1][ct],4)}, v{base} offset:{off + ct * 4096 + ks * 1024}" for ct in range(2)]

        for r in wreads(0):
            P(r)
        for n in range(18):
            if n + 1 < 18:
                for r in wreads(n + 1):
                    P(r)
            for ct in range(2):
                P(f"v_mfma_f32_32x32x16_bf16 {vr(ACC[ct],16)}, {vr(WB[n & 1][ct],4)}, {vr(OFr[n % ODEPTH],4)}, {vr(ACC[ct],16)}")
            if n + ODEPTH < 18:
                oload(n + ODEPTH)
            if xearly is not None and loader and n == xearly:
                P("s_barrier")
        common.mark(P, 10)
        P("s_barrier")
        if xearly is not None and not loader:
            for ct in range(2):
                for q in range(4):
                    a = vX
                    if q:
                        P(f"v_xor_b32 v{vTm}, {32 * q}, v{vX}")
                        a = vTm
                    P(f"ds_write_b128 v{a}, {vr(ACC[ct] + 4 * q, 4)} offset:{ct * 4096}")
            P("s_barrier")
        if "cmarks" not in exp: common.mark(P, 12)
        if outA:
            keep, send = (ACC[1], ACC[0]) if loader else (ACC[0], ACC[1])
            for q in range(4):
                P(f"ds_write_b128 v{vX}, {vr(send + 4 * q, 4)} offset:{q * 1024}")
            for r in range(16):
                P(f"v_add_f32 v{T + r}, v{T + r}, v{keep + r}")
            P(f"""
            s_mul_i32 s{sT}, s{sTile}, {32 * 2304}
            s_lshl_b32 s{sT2}, s{sSB}, 8
            s_add_u32 s{sT}, s{sT}, s{sT2}
            s_lshl_b32 s{sT2}, s{sKH}, 7
            s_add_u32 s{sT}, s{sT}, s{sT2}
            s_waitcnt lgkmcnt(0)
            s_barrier
            """)
            common.mark(P, 13)
            RB = 50
            for q in range(4):
                P(f"ds_read_b128 {vr(RB + 4 * q, 4)}, v{vY} offset:{q * 1024}")
            for q in range(4):
                for j in range(4):
                    P(f"v_add_f32 v{T + 4 * q + j}, v{T + 4 * q + j}, v{RB + 4 * q + j}")
                P(f"buffer_store_dwordx4 {vr(T + 4 * q, 4)}, v{vO}, s[{sOut}:{sOut+3}], s{sT} offen offset:{32 * q}")
        else:
            for ct in range(2 if xearly is None or loader else 0):
                for q in range(4):
                    a = vX
                    if q:
                        P(f"v_xor_b32 v{vTm}, {32 * q}, v{vX}")
                        a = vTm
                    P(f"ds_write_b128 v{a}, {vr(ACC[ct] + 4 * q, 4)} offset:{ct * (8192 if xearly is None else 4096)}")
            P(f"""
            s_mul_i32 s{sT}, s{sTile}, {32 * 2304}
            s_lshl_b32 s{sT2}, s{sSB}, 8
            s_add_u32 s{sT}, s{sT}, s{sT2}
            s_lshl_b32 s{sT2}, s{sKH}, 7
            s_add_u32 s{sT}, s{sT}, s{sT2}
            s_waitcnt lgkmcnt(0)
            s_barrier
            """)
            RB = 50
            common.mark(P, 13)
            for i in range(4):
                for h in range(2):
                    P(f"ds_read_b128 {vr(RB + 8 * i + 4 * h, 4)}, v{vY} offset:{h * (4096 if xearly is None else 8192) + i * 1024}")
            for i in range(4):
                for j in range(4):
                    P(f"v_add_f32 v{T + 4 * i + j}, v{T + 4 * i + j}, v{RB + 8 * i + j}")
                    P(f"v_add_f32 v{T + 4 * i + j}, v{T + 4 * i + j}, v{RB + 8 * i + 4 + j}")
                P(f"buffer_store_dwordx4 {vr(T + 4 * i, 4)}, v{vO}, s[{sOut}:{sOut+3}], s{sT} offen")
                if i < 3:
                    P(f"s_add_u32 s{sT}, s{sT}, {8 * 2304}")
        common.mark(P, 11)
        P(end)

    ACC = [[2, 18], [34, 50]]
    XF = [[66, 70], [74, 78]]
    WF = [[82, 86], [90, 94]]
    vA0, vA1, vB0, vB1 = 98, 99, 100, 101
    lr, li, nli, mr, mi, br, bi = 102, 103, 104, 105, 106, 107, 108
    lamt = "lamt" in exp
    pks = "pks" in exp
    if lamt:
        lr, li, mr, mi, br, bi, nli = 102, 103, 104, 105, 106, 107, 108
    if pks:
        assert lamt and "eaddr" not in exp
        hr, hi_ = 108, 109
    t = 110
    use(121)
    P(f"""
    s_and_b32 s{sWM}, s{sW}, 1
    s_lshr_b32 s{sWN}, s{sW}, 1
    s_lshl_b32 s{sT}, s{sSB}, 6
    s_lshl_b32 s{sT2}, s{sWN}, 5
    s_add_u32 s{sT}, s{sT}, s{sT2}
    v_and_b32 v{t+8}, 31, v{vLane}
    v_add_u32 v{t+8}, s{sT}, v{t+8}
    v_lshlrev_b32 v{t+9}, 1, v{t+8}
    """)
    UP = 66
    if fusedb:
        P(f"""
        s_mul_i32 s{sT}, s{sTB}, 18
        s_lshl_b32 s{sT2}, s{sSB}, 1
        s_add_u32 s{sT}, s{sT}, s{sT2}
        s_add_u32 s{sT}, s{sT}, s{sWN}
        s_lshl_b32 s{sT}, s{sT}, 14
        s_lshl_b32 s{sT2}, s{sWM}, 13
        s_add_u32 s{sT}, s{sT}, s{sT2}
        s_add_u32 s{sT}, s{sT}, {WS_XF if 'ufx' in exp else WS_UF}
        s_add_u32 s{sT2}, s{sT}, 4096
        """)
        for k in range(8):
            P(f"buffer_load_dwordx4 {vr(UP + 4 * k, 4)}, v{vL16}, {ws}, s{sT if k < 4 else sT2} offen offset:{(k & 3) * 1024}")
    if lamt:
        P(f"""
        v_lshlrev_b32 v{t+9}, 5, v{t+8}
        s_mov_b32 s{sT}, {WS_LAM}
        buffer_load_dwordx4 {vr(lr,4)}, v{t+9}, {ws}, s{sT} offen
        buffer_load_dwordx{4 if pks else 2} {vr(br,4 if pks else 2)}, v{t+9}, {ws}, s{sT} offen offset:16
        """)
    for k, ka in enumerate((KA_LRE, KA_LIM, KA_LDT) if not lamt else ()):
        srd_from_kernarg(P, sP, ka, 1152)
        P(f"""
        s_waitcnt lgkmcnt(0)
        buffer_load_ushort v{t+4+k}, v{t+9}, s[{sP}:{sP+3}], 0 offen
        """)
    vXR = [98, 99, 101, 122]
    vB2 = 123
    XSLOT, NX, WSLOT, NWS, WBASE = 16384, 3, 8192, 4, 49152
    if merged:
        P(f"""
        v_and_b32 v{t}, 31, v{vLane}
        v_lshrrev_b32 v{t+1}, 5, v{vLane}
        v_lshrrev_b32 v{t+2}, 1, v{t}
        v_and_b32 v{t+2}, 7, v{t+2}
        v_xor_b32 v{t+2}, v{t+2}, v{t+1}
        v_lshlrev_b32 v{t+2}, 4, v{t+2}
        s_lshl_b32 s{sT}, s{sWM}, 6
        v_add_u32 v{t+3}, s{sT}, v{t}
        v_lshlrev_b32 v{t+3}, 7, v{t+3}
        v_add_u32 v{vXR[0]}, v{t+2}, v{t+3}
        v_xor_b32 v{vXR[1]}, 32, v{vXR[0]}
        v_xor_b32 v{vXR[2]}, 64, v{vXR[0]}
        v_xor_b32 v{vXR[3]}, 0x60, v{vXR[0]}
        """)
        if rawb:
            P(f"""
            v_lshrrev_b32 v{t+2}, 2, v{t}
            v_and_b32 v{t+2}, 3, v{t+2}
            v_xor_b32 v{t+2}, v{t+2}, v{t+1}
            v_lshlrev_b32 v{t+2}, 4, v{t+2}
            v_lshlrev_b32 v{t+3}, 6, v{t}
            s_lshl_b32 s{sT}, s{sWN}, 11
            s_add_u32 s{sT}, s{sT}, {WBASE}
            v_add_u32 v{t+3}, s{sT}, v{t+3}
            v_add_u32 v{vB0}, v{t+2}, v{t+3}
            v_xor_b32 v{vB2}, 32, v{vB0}
            """)
        else:
            P(f"""
            s_lshl_b32 s{sT}, s{sWN}, 12
            s_add_u32 s{sT}, s{sT}, {WBASE}
            v_add_u32 v{vB0}, s{sT}, v{vL16}
            """)
    else:
      P(f"""
    s_lshl_b32 s{sT}, s{sWM}, 12
    v_add_u32 v{vA0}, s{sT}, v{vL16}
    v_add_u32 v{vA1}, 0x10000, v{vA0}
    s_lshl_b32 s{sT}, s{sWN}, 12
    s_add_u32 s{sT}, s{sT}, 8192
    v_add_u32 v{vB0}, s{sT}, v{vL16}
    v_add_u32 v{vB1}, 0x10000, v{vB0}
    """)
    if "smarks" in exp:
        common.mark(P, 5)
        P("s_waitcnt vmcnt(0)")
        common.mark(P, 6)
    if not lamt:
        emit_lambda(P, t + 4, t + 5, t + 6, t, lr, li)
        P(f"v_sub_f32 v{nli}, 0, v{li}")

    def csq(dr, di, sr_, si_):
        P(f"""
        v_mul_f32 v{t}, v{si_}, v{si_}
        v_add_f32 v{t+1}, v{sr_}, v{sr_}
        v_fma_f32 v{dr}, v{sr_}, v{sr_}, -v{t}
        v_mul_f32 v{di}, v{t+1}, v{si_}
        """)

    if not lamt:
        csq(mr, mi, lr, li)
        for _ in range(4):
            csq(mr, mi, mr, mi)
        csq(br, bi, mr, mi)
        csq(br, bi, br, bi)

    early = "eaddr" in exp
    vTW, vTR, vX_ = (109, 126, t + 2) if early else (t, t + 1, t + 2)
    use(126)

    def tr_write_addr():
        P(f"""
        v_and_b32 v{t+4}, 31, v{vLane}
        v_lshrrev_b32 v{t+5}, 1, v{t+4}
        v_and_b32 v{t+5}, 1, v{t+5}
        v_lshlrev_b32 v{t+5}, 2, v{t+5}
        v_lshrrev_b32 v{t+6}, 2, v{t+4}
        v_and_b32 v{t+6}, 1, v{t+6}
        v_lshlrev_b32 v{t+6}, 1, v{t+6}
        v_or_b32 v{t+5}, v{t+5}, v{t+6}
        v_and_b32 v{t+6}, 1, v{t+4}
        v_or_b32 v{t+5}, v{t+5}, v{t+6}
        v_lshrrev_b32 v{t+6}, 5, v{vLane}
        v_lshlrev_b32 v{t+6}, 2, v{t+6}
        v_xor_b32 v{t+5}, v{t+5}, v{t+6}
        v_lshlrev_b32 v{t+5}, 4, v{t+5}
        v_lshlrev_b32 v{t+4}, 7, v{t+4}
        v_add_u32 v{vTW}, v{t+4}, v{t+5}
        s_lshl_b32 s{sT}, s{sW}, 13
        v_add_u32 v{vTW}, s{sT}, v{vTW}
        """)

    def tr_read_addr():
        P(f"""
        v_lshrrev_b32 v{t+4}, 5, v{vLane}
        v_lshlrev_b32 v{t+4}, 3, v{t+4}
        v_lshrrev_b32 v{t+5}, 2, v{vLane}
        v_and_b32 v{t+5}, 3, v{t+5}
        v_add_u32 v{t+4}, v{t+4}, v{t+5}
        v_lshlrev_b32 v{t+4}, 7, v{t+4}
        v_lshrrev_b32 v{t+5}, 4, v{vLane}
        v_and_b32 v{t+5}, 1, v{t+5}
        v_lshlrev_b32 v{t+5}, 1, v{t+5}
        v_lshrrev_b32 v{t+6}, 1, v{vLane}
        v_and_b32 v{t+6}, 1, v{t+6}
        v_or_b32 v{t+5}, v{t+5}, v{t+6}
        v_lshrrev_b32 v{t+6}, 3, v{vLane}
        v_and_b32 v{t+6}, 1, v{t+6}
        v_lshlrev_b32 v{t+6}, 2, v{t+6}
        v_xor_b32 v{t+5}, v{t+5}, v{t+6}
        v_lshrrev_b32 v{t+6}, 2, v{vLane}
        v_and_b32 v{t+6}, 1, v{t+6}
        v_xor_b32 v{t+5}, v{t+5}, v{t+6}
        v_lshlrev_b32 v{t+5}, 4, v{t+5}
        v_and_b32 v{t+6}, 1, v{vLane}
        v_lshlrev_b32 v{t+6}, 3, v{t+6}
        v_add_u32 v{t+4}, v{t+4}, v{t+5}
        v_add_u32 v{t+4}, v{t+4}, v{t+6}
        v_add_u32 v{vTR}, s{sT}, v{t+4}
        """)

    if early:
        tr_write_addr()
        tr_read_addr()
    def reads(n):
        if rawb:
            bb = n & 1
            xo, wo_ = ((n >> 2) % NX) * XSLOT, ((n >> 1) % NWS) * WSLOT
            vb = vB2 if n & 1 else vB0
            return [f"ds_read_b128 {vr(XF[bb][0],4)}, v{vXR[n & 3]} offset:{xo}",
                    f"ds_read_b128 {vr(WF[bb][0],4)}, v{vb} offset:{wo_}",
                    f"ds_read_b128 {vr(WF[bb][1],4)}, v{vb} offset:{wo_ + 4096}",
                    f"ds_read_b128 {vr(XF[bb][1],4)}, v{vXR[n & 3]} offset:{xo + 4096}"]
        if merged:
            bb = n & 1
            xo, wo_ = ((n >> 2) % NX) * XSLOT, ((n >> 1) % NWS) * WSLOT + (n & 1) * 1024
            return [f"ds_read_b128 {vr(XF[bb][0],4)}, v{vXR[n & 3]} offset:{xo}",
                    f"ds_read_b128 {vr(WF[bb][0],4)}, v{vB0} offset:{wo_}",
                    f"ds_read_b128 {vr(WF[bb][1],4)}, v{vB0} offset:{wo_ + 2048}",
                    f"ds_read_b128 {vr(XF[bb][1],4)}, v{vXR[n & 3]} offset:{xo + 4096}"]
        s_, ks = divmod(n, 2)
        slot = s_ % 5
        a, b, off = (vA1, vB1, 0) if slot == 4 else (vA0, vB0, slot * SLOT)
        bb = n & 1
        return [f"ds_read_b128 {vr(XF[bb][0],4)}, v{a} offset:{off + ks * 1024}",
                f"ds_read_b128 {vr(WF[bb][0],4)}, v{b} offset:{off + ks * 1024}",
                f"ds_read_b128 {vr(WF[bb][1],4)}, v{b} offset:{off + 2048 + ks * 1024}",
                f"ds_read_b128 {vr(XF[bb][1],4)}, v{a} offset:{off + 2048 + ks * 1024}"]

    if fusedb:
        common.mark(P, 0)
        for mt in range(2):
            for cp in range(2):
                for k in range(8):
                    src = UP + 16 * mt + 8 * cp + k
                    P(f"v_lshlrev_b32 v{ACC[mt][cp] + 2 * k}, 16, v{src}")
                    P(f"v_and_b32 v{ACC[mt][cp] + 2 * k + 1}, 0xffff0000, v{src}")
    else:
        if merged:
            P("s_barrier")
        if "smarks" in exp: common.mark(P, 7)
        P("s_barrier")
        common.mark(P, 0)
        P(f"s_setprio {prio['b']}")
        for r in reads(0):
            P(r)
    for n in range(36 if not fusedb else 0):
        bb = n & 1
        mf = []
        for mt in range(2):
            for cp in range(2):
                cop = "0" if n == 0 else vr(ACC[mt][cp], 16)
                mf.append(f"v_mfma_f32_32x32x16_bf16 {vr(ACC[mt][cp],16)}, {vr(XF[bb][mt],4)}, {vr(WF[bb][cp],4)}, {cop}")
        P("s_waitcnt lgkmcnt(0)")
        if "bmarks" in exp and n in (3, 11, 19): common.mark(P, {3: 5, 11: 6, 19: 7}[n])
        if bb == 1 and n + 1 < 36:
            P("s_barrier")
        rs = reads(n + 1) if n + 1 < 36 else []
        for k in range(4):
            P(mf[k])
            take = rs[:2] if k < 2 else []
            rs = rs[len(take):]
            for r in take:
                P(r)

    P(f"s_setprio {prio['s']}")
    common.mark(P, 4)
    if lamt:
        P("s_waitcnt vmcnt(0)")
        if not pks:
            P(f"v_sub_f32 v{nli}, 0, v{li}")
    ea, eb = (t, t + 1), (t + 2, t + 3)
    U = lambda tau, cp: ACC[tau >> 4][cp] + (tau & 15)
    EAr = (t + 10, t + 11)

    def pk_step(dst, cur, add):
        L2 = vr(lr, 2)
        P(f"""
        v_pk_fma_f32 {vr(dst[0],2)}, {L2}, {vr(cur[0],2)}, {vr(add[0],2)} op_sel:[0,0,0] op_sel_hi:[0,1,1]
        v_pk_fma_f32 {vr(dst[1],2)}, {L2}, {vr(cur[1],2)}, {vr(add[1],2)} op_sel:[0,0,0] op_sel_hi:[0,1,1]
        v_pk_fma_f32 {vr(dst[0],2)}, {L2}, {vr(cur[1],2)}, {vr(dst[0],2)} op_sel:[1,0,0] op_sel_hi:[1,1,1] neg_lo:[1,0,0] neg_hi:[1,0,0]
        v_pk_fma_f32 {vr(dst[1],2)}, {L2}, {vr(cur[0],2)}, {vr(dst[1],2)} op_sel:[1,0,0] op_sel_hi:[1,1,1]
        """)

    if pks:
        Ureg = U
        Upair = lambda j: (Ureg(2 * j, 0), Ureg(2 * j, 1))
        cur = Upair(0)
        for j in range(1, 16):
            nx = (t, t + 2) if j & 1 else (t + 4, t + 6)
            pk_step(nx, cur, Upair(j))
            cur = nx
        assert cur == (t, t + 2)
        P(f"""
        v_mov_b32 v{EAr[0]}, v{t}
        v_mov_b32 v{EAr[1]}, v{t+2}
        v_fma_f32 v{t+4}, v{hr}, v{t}, v{t+1}
        v_fma_f32 v{t+5}, v{hr}, v{t+2}, v{t+3}
        v_fma_f32 v{t}, -v{hi_}, v{EAr[1]}, v{t+4}
        v_fma_f32 v{t+1}, v{hi_}, v{EAr[0]}, v{t+5}
        """)
        U = lambda tau, cp: Ureg(2 * (tau & 15) + (tau >> 4), cp)
    else:
        cur = (U(0, 0), U(0, 1))
        for tau in range(1, 32):
            nx = ea if tau & 1 else eb
            P(f"""
            v_fma_f32 v{nx[0]}, v{lr}, v{cur[0]}, v{U(tau,0)}
            v_fma_f32 v{nx[1]}, v{lr}, v{cur[1]}, v{U(tau,1)}
            v_fmac_f32 v{nx[0]}, v{nli}, v{cur[1]}
            v_fmac_f32 v{nx[1]}, v{li}, v{cur[0]}
            """)
            cur = nx
        assert cur == ea
    P(f"""
    v_lshrrev_b32 v{t+4}, 5, v{vLane}
    v_lshlrev_b32 v{t+4}, 9, v{t+4}
    v_and_b32 v{t+5}, 31, v{vLane}
    v_lshlrev_b32 v{t+5}, 3, v{t+5}
    s_lshl_b32 s{sT}, s{sWN}, 8
    s_add_u32 s{sT}, s{sT}, {ELOC}
    v_add_u32 v{t+5}, s{sT}, v{t+5}
    s_lshl_b32 s{sT}, s{sWM}, 10
    v_add_u32 v{t+4}, s{sT}, v{t+4}
    v_add_u32 v{t+4}, v{t+4}, v{t+5}
    ds_write_b64 v{t+4}, {vr(ea[0],2)}
    s_waitcnt lgkmcnt(0)
    s_barrier
    """)
    EL = [98, 100, 122, 124]
    for k in range(4):
        P(f"ds_read_b64 {vr(EL[k], 2)}, v{t+5} offset:{k * 512}")

    def cmuladd(dr, di, ar, ai, nai, xr, xi, yr, yi):
        P(f"""
        v_fma_f32 v{t+6}, v{ar}, v{xr}, v{yr}
        v_fma_f32 v{t+7}, v{ar}, v{xi}, v{yi}
        v_fma_f32 v{dr}, -v{ai}, v{xi}, v{t+6}
        v_fma_f32 v{di}, v{ai}, v{xr}, v{t+7}
        """) if (dr, di) != (xr, xi) else P(f"""
        v_fma_f32 v{t+6}, v{ar}, v{xr}, v{yr}
        v_fma_f32 v{t+7}, v{ar}, v{xi}, v{yi}
        v_fma_f32 v{t+7}, v{ai}, v{xr}, v{t+7}
        v_fma_f32 v{dr}, -v{ai}, v{xi}, v{t+6}
        v_mov_b32 v{di}, v{t+7}
        """)

    Eb = 66
    cmuladd(t, t + 1, mr, mi, None, EL[0], EL[0] + 1, EL[1], EL[1] + 1)
    cmuladd(t + 2, t + 3, mr, mi, None, t, t + 1, EL[2], EL[2] + 1)
    cmuladd(Eb, Eb + 2, mr, mi, None, t + 2, t + 3, EL[3], EL[3] + 1)
    nopub = P.newlabel(pfx + "_nopub")
    P(f"""
    v_mov_b32 v{Eb+1}, s{sTag}
    v_mov_b32 v{Eb+3}, s{sTag}
    s_mul_i32 s{sT}, s{sTB}, 576
    v_add_u32 v{t}, s{sT}, v{t+8}
    v_lshlrev_b32 v{t}, 4, v{t}
    s_cmp_eq_u32 s{sWM}, 0
    s_cbranch_scc0 {nopub}
    s_mov_b32 exec_hi, 0
    buffer_store_dwordx4 {vr(Eb,4)}, v{t}, s[{sE}:{sE+3}], 0 offen sc1
    s_mov_b32 exec_hi, -1
    """)
    P.L(nopub)
    EDr = [66 + 4 * i for i in range(8)]
    use(125)
    vN, vEo = t + 2, t + 3
    P(f"""
    v_lshrrev_b32 v{vN}, 5, v{vLane}
    v_lshlrev_b32 v{vN}, 3, v{vN}
    s_sub_i32 s{sT}, s{sTB}, 16
    v_add_u32 v{vN}, s{sT}, v{vN}
    s_movk_i32 s{sT}, 576
    v_mul_lo_u32 v{vEo}, v{vN}, s{sT}
    v_add_u32 v{vEo}, v{vEo}, v{t+8}
    v_lshlrev_b32 v{vEo}, 4, v{vEo}
    """)
    if "pmarks" not in exp and "bmarks" not in exp and "smarks" not in exp: common.mark(P, 5)
    for e in exp:
        if e.startswith("esleep="): P(f"s_sleep {int(e[7:])}")
    ep = P.newlabel(pfx + "_epoll")
    P.L(ep)
    for i in range(8):
        P(f"v_add_u32 v{t}, {i * 9216}, v{vEo}")
        P(f"buffer_load_dwordx4 {vr(EDr[i],4)}, v{t}, s[{sE}:{sE+3}], 0 offen sc1")
    P(f"s_mov_b64 s[{sBad}:{sBad+1}], 0")
    for i in range(8):
        P(f"""
        v_cmp_eq_u32 vcc, s{sTag}, v{EDr[i]+1}
        v_cmp_eq_u32 s[{sOk}:{sOk+1}], s{sTag}, v{EDr[i]+3}
        s_and_b64 s[{sOk}:{sOk+1}], s[{sOk}:{sOk+1}], vcc
        v_cmp_gt_i32 vcc, {-i}, v{vN}
        s_or_b64 s[{sOk}:{sOk+1}], s[{sOk}:{sOk+1}], vcc
        s_orn2_b64 s[{sBad}:{sBad+1}], s[{sBad}:{sBad+1}], s[{sOk}:{sOk+1}]
        """)
    edone = P.newlabel(pfx + "_edone")
    P(f"""
    s_cmp_eq_u64 s[{sBad}:{sBad+1}], 0
    s_cbranch_scc1 {edone}
    s_sleep 2
    s_branch {ep}
    """)
    P.L(edone)
    if "pmarks" not in exp and "bmarks" not in exp and "smarks" not in exp: common.mark(P, 6)
    H = (t + 4, t + 5)
    cmuladd(H[0], H[1], br, bi, None, EDr[0], EDr[0] + 2, EDr[1], EDr[1] + 2)
    for i in range(2, 8):
        cmuladd(H[0], H[1], br, bi, None, H[0], H[1], EDr[i], EDr[i] + 2)
    for _ in range(3):
        csq(br, bi, br, bi)
    a0, a1, b0, b1 = 66, 67, 68, 69
    P(f"""
    v_mov_b32 v{a0}, v{H[0]}
    v_mov_b32 v{b0}, v{H[0]}
    v_mov_b32 v{a1}, v{H[1]}
    v_mov_b32 v{b1}, v{H[1]}
    v_permlane32_swap_b32 v{a0}, v{b0}
    v_permlane32_swap_b32 v{a1}, v{b1}
    """)
    C0, C1, C2, C3 = (82, 83), (84, 85), (86, 87), (88, 89)
    cmuladd(C0[0], C0[1], br, bi, None, a0, a1, b0, b1)
    cmuladd(C1[0], C1[1], mr, mi, None, C0[0], C0[1], EL[0], EL[0] + 1)
    w1, gsel = P.newlabel(pfx + "_wm1"), P.newlabel(pfx + "_gsel")
    g0 = (t, t + 1)
    P(f"""
    v_cmp_le_u32 vcc, 32, v{vLane}
    s_cmp_eq_u32 s{sWM}, 0
    s_cbranch_scc0 {w1}
    v_cndmask_b32 v{g0[0]}, v{C0[0]}, v{C1[0]}, vcc
    v_cndmask_b32 v{g0[1]}, v{C0[1]}, v{C1[1]}, vcc
    s_branch {gsel}
    """)
    P.L(w1)
    cmuladd(C2[0], C2[1], mr, mi, None, C1[0], C1[1], EL[1], EL[1] + 1)
    cmuladd(C3[0], C3[1], mr, mi, None, C2[0], C2[1], EL[2], EL[2] + 1)
    P(f"""
    v_cndmask_b32 v{g0[0]}, v{C2[0]}, v{C3[0]}, vcc
    v_cndmask_b32 v{g0[1]}, v{C2[1]}, v{C3[1]}, vcc
    """)
    P.L(gsel)
    cur = g0
    if pks:
        P(f"""
        v_mov_b32 v{t+2}, v{g0[0]}
        v_mov_b32 v{t+4}, v{g0[1]}
        """)
        cmuladd(t + 3, t + 5, hr, hi_, None, g0[0], g0[1], EAr[0], EAr[1])
        cur = (t + 2, t + 4)
        for j in range(16):
            pk_step(Upair(j), cur, Upair(j))
            cur = Upair(j)
    for tau in range(32 if not pks else 0):
        ur, ui = U(tau, 0), U(tau, 1)
        P(f"""
        v_fmac_f32 v{ur}, v{lr}, v{cur[0]}
        v_fmac_f32 v{ui}, v{lr}, v{cur[1]}
        v_fmac_f32 v{ur}, v{nli}, v{cur[1]}
        v_fmac_f32 v{ui}, v{li}, v{cur[0]}
        """)
        cur = (ur, ui)
    if not early:
        tr_write_addr()
    PK = 66
    for cp in range(2):
        for k in range(16):
            P(f"v_cvt_pk_bf16_f32 v{PK + 16 * cp + k}, v{U(2 * k, cp)}, v{U(2 * k + 1, cp)}")
        for m in range(4):
            P(f"v_xor_b32 v{vX_}, {16 * m}, v{vTW}")
            P(f"ds_write_b128 v{vX_}, {vr(PK + 16 * cp + 4 * m, 4)} offset:{cp * 4096}")
    if not early:
        tr_read_addr()
    P(f"""
    s_lshl_b32 s{sT}, s{sTB}, 2
    s_lshl_b32 s{sT2}, s{sWM}, 1
    s_add_u32 s{sT}, s{sT}, s{sT2}
    s_mul_i32 s{sT}, s{sT}, 72
    s_lshl_b32 s{sT2}, s{sSB}, 2
    s_add_u32 s{sT}, s{sT}, s{sT2}
    s_lshl_b32 s{sT2}, s{sWN}, 1
    s_add_u32 s{sT}, s{sT}, s{sT2}
    s_lshl_b32 s{sT}, s{sT}, 10
    s_add_u32 s{sT}, s{sT}, {WS_HF}
    s_waitcnt lgkmcnt(0)
    """)
    TRA = [t + 4, t + 5, t + 6, t + 7]
    for tt2 in range(2):
        for rd in range(2):
            P(f"v_xor_b32 v{TRA[2 * tt2 + rd]}, {tt2 * 64 + rd * 32}, v{vTR}")
    FR = [2 + 4 * i for i in range(8)]
    k = 0
    for tt2 in range(2):
        for cp in range(2):
            for s16 in range(2):
                for rd in range(2):
                    P(f"ds_read_b64_tr_b16 {vr(FR[k] + 2 * rd, 2)}, v{TRA[2 * tt2 + rd]} offset:{cp * 4096 + s16 * 2048 + rd * 512}")
                k += 1
    k = 0
    for tt2 in range(2):
        for cp in range(2):
            P(f"s_add_u32 s{sT2}, s{sT}, {(tt2 * 72 + cp * 36) * 1024}")
            for s16 in range(2):
                P(f"buffer_store_dwordx4 {vr(FR[k],4)}, v{vL16}, {ws}, s{sT2} offen offset:{s16 * 1024} sc1")
                k += 1
    if "pmarks" not in exp and "bmarks" not in exp and "smarks" not in exp: common.mark(P, 7)
    P("s_waitcnt vmcnt(0)")
    P("s_barrier")
    common.mark(P, 8)
    fl = P.newlabel(pfx + "_noflag")
    if rawb:
        P(f"""
        s_cmp_eq_u32 s{sW}, 0
        s_cbranch_scc0 {fl}
        s_lshl_b32 s{sT}, s{sIdx}, 2
        s_add_u32 s{sT}, s{sT}, {WS_FLG + FLG_PREP}
        v_mov_b32 v2, {flag}
        v_lshlrev_b32 v3, 12, v{vLane}
        s_mov_b32 exec_hi, 0
        s_mov_b32 exec_lo, 0xffff
        buffer_store_dword v2, v3, {ws}, s{sT} offen sc1
        s_mov_b64 exec, -1
        """)
    else:
      P(f"""
    s_cmp_eq_u32 s{sW}, 0
    s_cbranch_scc0 {fl}
    s_lshl_b32 s{sT}, s{sTB}, 6
    s_lshl_b32 s{sT2}, s{sSB}, 2
    s_add_u32 s{sT}, s{sT}, s{sT2}
    s_add_u32 s{sT}, s{sT}, {WS_FLG + FLG_HF}
    v_mov_b32 v2, {flag}
    v_mov_b32 v3, 0
    s_mov_b32 exec_hi, 0
    s_mov_b32 exec_lo, 1
    buffer_store_dword v2, v3, {ws}, s{sT} offen sc1
    s_mov_b64 exec, -1
    """)
    P.L(fl)
    if rawb:
        block_map(False)
        P(f"""
        s_lshl_b32 s{sTile}, s{sTB}, 2
        s_add_u32 s{sTile}, s{sTile}, s{sMT}
        """)
    out_phases(False)

    iL = len(P.items)
    P.L(L("loader"))
    if "lmarks" in exp: common.mark(P, 6)
    P(f"""
    s_lshl_b32 s{sT}, s{sTB}, 2
    s_add_u32 s{sT}, s{sT}, s{sMT}
    s_mul_i32 s{sXo}, s{sT}, {36 * 1024}
    s_add_u32 s{sXo}, s{sXo}, {WS_XF}
    s_lshl_b32 s{sT}, s{sSB}, 2
    s_add_u32 s{sT}, s{sT}, s{sMT}
    s_mul_i32 s{sBo}, s{sT}, {36 * 1024}
    s_add_u32 s{sBo}, s{sBo}, {WS_BF}
    s_lshl_b32 s{sM}, s{sMT}, 11
    """)

    def dmaA(s_):
        slot = s_ % 5
        P(f"""
        s_add_u32 m0, s{sM}, {slot * SLOT}
        s_nop 0
        buffer_load_dwordx4 v{vL16}, {ws}, s{sXo} offen lds
        buffer_load_dwordx4 v{vL16}, {ws}, s{sXo} offen offset:1024 lds
        s_add_u32 m0, s{sM}, {slot * SLOT + 8192}
        s_add_u32 s{sXo}, s{sXo}, 2048
        buffer_load_dwordx4 v{vL16}, {ws}, s{sBo} offen lds
        buffer_load_dwordx4 v{vL16}, {ws}, s{sBo} offen offset:1024 lds
        s_add_u32 s{sBo}, s{sBo}, 2048
        """)

    if merged:
        vDX = [4, 5, 6, 7]
        sMX, sMW, sOffX = sM, 25, 31
        DUX = 4 * 1152 - 1024
        P(f"""
        v_lshrrev_b32 v8, 5, v{vLane}
        v_lshlrev_b32 v8, 5, v8
        v_lshrrev_b32 v9, 3, v{vLane}
        v_and_b32 v9, 3, v9
        v_add_u32 v8, v8, v9
        v_mul_u32_u24 v8, 1152, v8
        v_lshrrev_b32 v9, 4, v{vLane}
        v_and_b32 v10, 7, v{vLane}
        v_xor_b32 v9, v9, v10
        v_lshlrev_b32 v9, 4, v9
        v_xor_b32 v10, 64, v9
        v_add_u32 v{vDX[0]}, v8, v9
        v_add_u32 v10, v8, v10
        v_add_u32 v{vDX[1]}, {DUX}, v10
        v_add_u32 v{vDX[2]}, {2 * DUX}, v{vDX[0]}
        v_add_u32 v{vDX[3]}, {3 * DUX}, v10
        s_lshl_b32 s{sOffX}, s{sTB}, 7
        s_lshr_b32 s{sT}, s{sMT}, 1
        s_lshl_b32 s{sT}, s{sT}, 6
        s_add_u32 s{sOffX}, s{sOffX}, s{sT}
        s_and_b32 s{sT}, s{sMT}, 1
        s_lshl_b32 s{sT}, s{sT}, 4
        s_add_u32 s{sOffX}, s{sOffX}, s{sT}
        s_mul_i32 s{sOffX}, s{sOffX}, 1152
        s_lshl_b32 s{sMX}, s{sMT}, 12
        s_lshl_b32 s{sMW}, s{sMT}, 11
        s_add_u32 s{sMW}, s{sMW}, {WBASE}
        """)
        lp, dn = P.newlabel(pfx + "_ppoll"), P.newlabel(pfx + "_pdone")
        if rawb:
            sB4 = 44
            P(f"""
            s_load_dwordx4 s[52:55], s[0:1], {KA_BRE}
            """.replace("s[52:55]", "s[84:87]"))
            P(f"""
            v_lshrrev_b32 v8, 2, v{vLane}
            s_lshl_b32 s{sT}, s{sSB}, 6
            s_and_b32 s{sT2}, s{sMT}, 1
            s_lshl_b32 s{sT2}, s{sT2}, 5
            s_add_u32 s{sT}, s{sT}, s{sT2}
            v_add_u32 v8, s{sT}, v8
            v_mul_u32_u24 v8, 1152, v8
            v_lshrrev_b32 v9, 4, v{vLane}
            v_xor_b32 v9, v9, v{vLane}
            v_and_b32 v9, 3, v9
            v_lshlrev_b32 v9, 4, v9
            v_add_u32 v2, v8, v9
            v_add_u32 v3, {16 * 1152 - 1024}, v2
            s_mov_b32 s{sB4+2}, {576 * 1152}
            s_mov_b32 s{sB4+3}, 0x00020000
            s_mov_b32 s{sBo}, 0
            s_cmp_ge_u32 s{sMT}, 2
            s_waitcnt lgkmcnt(0)
            s_cselect_b32 s{sB4}, s86, s84
            s_cselect_b32 s{sB4+1}, s87, s85
            """)
            P(f"""
            s_cmp_eq_u32 s{sW}, 4
            s_cbranch_scc0 {dn}
            s_lshl_b32 s{sT}, s{sIdx}, 6
            s_add_u32 s{sT}, s{sT}, {WS_FLG + FLG_GO}
            s_mov_b64 exec, 1
            """)
            if "nogo" in exp:
                P(f"s_branch {dn}")
            P.L(lp)
            P(f"""
            buffer_load_dword v12, off, {ws}, s{sT} sc1
            s_waitcnt vmcnt(0)
            v_cmp_ne_u32 vcc, {flag}, v12
            s_cbranch_vccz {dn}
            s_sleep {psleep}
            s_branch {lp}
            """)
        else:
          P(f"""
        s_cmp_eq_u32 s{sW}, 4
        s_cbranch_scc0 {dn}
        s_and_b32 s{sT2}, s{sIdx}, {NREP - 1}
        s_lshl_b32 s{sT2}, s{sT2}, 12
        s_lshl_b32 s{sT}, s{sIdx}, 6
        s_add_u32 s{sT}, s{sT}, {FLG_GO - FLG_PREP}
        s_sub_u32 s{sT}, s{sT}, s{sT2}
        v_mov_b32 v9, s{sT}
        v_cmp_eq_u32 vcc, 36, v{vLane}
        v_cndmask_b32 v8, v{vL16}, v9, vcc
        s_add_u32 s{sT}, s{sT2}, {WS_FLG + FLG_PREP}
        s_mov_b32 exec_hi, {"0xf" if "nogo" in exp else "0x1f"}
        """)
        if not rawb:
          P.L(lp)
          P(f"""
        buffer_load_dwordx4 v[12:15], v8, {ws}, s{sT} offen sc1
        s_waitcnt vmcnt(0)
        v_cmp_ne_u32 vcc, {flag}, v12
        v_cmp_ne_u32 s[{sOk}:{sOk+1}], {flag}, v13
        s_or_b64 s[{sBad}:{sBad+1}], vcc, s[{sOk}:{sOk+1}]
        v_cmp_ne_u32 vcc, {flag}, v14
        v_cmp_ne_u32 s[{sOk}:{sOk+1}], {flag}, v15
        s_or_b64 s[{sBad}:{sBad+1}], s[{sBad}:{sBad+1}], vcc
        s_or_b64 s[{sBad}:{sBad+1}], s[{sBad}:{sBad+1}], s[{sOk}:{sOk+1}]
        s_cbranch_scc0 {dn}
        s_sleep {psleep}
        s_branch {lp}
        """)
        P.L(dn)
        P("s_mov_b64 exec, -1")
        if "bmarks" in exp: common.mark(P, 5)
        P("s_barrier")
        if "pmarks" in exp: common.mark(P, 7)
        q = []

        def dmax(c):
            P(f"s_add_u32 m0, s{sMX}, {(c % NX) * XSLOT}")
            P("s_nop 0")
            for u in range(4):
                P(f"buffer_load_dwordx4 v{vDX[u]}, s[{sAX}:{sAX+3}], s{sOffX} offen offset:{u * 1024} lds")
            P(f"s_add_u32 s{sOffX}, s{sOffX}, 128")
            q.extend([f"x{c}"] * 4)

        def dmab(b):
            if rawb:
                P(f"""
                s_add_u32 m0, s{sMW}, {(b % NWS) * WSLOT}
                s_nop 0
                buffer_load_dwordx4 v2, s[{sB4}:{sB4+3}], s{sBo} offen lds
                buffer_load_dwordx4 v3, s[{sB4}:{sB4+3}], s{sBo} offen offset:1024 lds
                s_add_u32 s{sBo}, s{sBo}, 64
                """)
                q.extend([f"w{b}"] * 2)
                return
            P(f"""
            s_add_u32 m0, s{sMW}, {(b % NWS) * WSLOT}
            s_nop 0
            buffer_load_dwordx4 v{vL16}, {ws}, s{sBo} offen lds
            buffer_load_dwordx4 v{vL16}, {ws}, s{sBo} offen offset:1024 lds
            s_add_u32 s{sBo}, s{sBo}, 2048
            """)
            q.extend([f"w{b}"] * 2)

        def wait(tags):
            idx = max(i for i, e in enumerate(q) if e in tags)
            P(f"s_waitcnt vmcnt({len(q) - 1 - idx})")

        dmax(0); dmab(0); dmab(1); dmax(1); dmab(2); dmab(3); dmax(2)
        P(f"s_setprio {prio['l']}")
        wait(["x0", "w0"])
        P("s_barrier")
        for b in range(17):
            wait([f"w{b + 1}"] + ([f"x{(b + 1) // 2}"] if b & 1 else []))
            P("s_barrier")
            if b + 4 < 18:
                dmab(b + 4)
            if b & 1 and (b - 1) // 2 + 3 < 9:
                dmax((b - 1) // 2 + 3)
        if rawb:
            from prepm import emit_prep
            emit_prep(P, sIdx, sWave, exp=exp, late=True, mid=lambda: P("s_barrier"))
            base_regs(False)
    elif not fusedb:
        pre = 5
        for e in exp:
            if e.startswith("spre="): pre = int(e[5:])
        issued = []

        def req(s_):
            dmaA(s_)
            issued.append(s_)

        def landed(s_):
            P(f"s_waitcnt vmcnt({4 * (len(issued) - 1 - issued.index(s_))})")

        for s_ in range(pre):
            req(s_)
            if "lmarks" in exp and s_ == 0: common.mark(P, 8)
        if lfirst:
            base_regs(rest=True)
        P(f"s_setprio {prio['l']}")
        if "smarks" in exp: common.mark(P, 5)
        landed(0)
        if "smarks" in exp: common.mark(P, 7)
        P("s_barrier")
        for s_ in range(pre, 5):
            req(s_)
        for s_ in range(17):
            landed(s_ + 1)
            P("s_barrier")
            if s_ + 5 < 18:
                req(s_ + 5)
    P(f"""
    s_lshl_b32 s{sT}, s{sSB}, 1
    s_and_b32 s{sT2}, s{sMT}, 1
    s_add_u32 s{sT}, s{sT}, s{sT2}
    s_mul_i32 s{sCo}, s{sT}, {72 * 1024}
    s_lshr_b32 s{sT2}, s{sMT}, 1
    s_mul_i32 s{sT2}, s{sT2}, {36 * 1024}
    s_add_u32 s{sCo}, s{sCo}, s{sT2}
    s_add_u32 s{sCo}, s{sCo}, {WS_CF}
    s_mul_i32 s{sWo}, s{sT}, {36 * 1024}
    s_lshr_b32 s{sT2}, s{sMT}, 1
    s_mul_i32 s{sT2}, s{sT2}, {18 * 1024}
    s_add_u32 s{sWo}, s{sWo}, s{sT2}
    s_add_u32 s{sWo}, s{sWo}, {WS_WF}
    s_lshl_b32 s{sM}, s{sMT}, 12
    """)
    if crot:
        P(f"""
        s_add_u32 s{sCend}, s{sCo}, {9 * 4096}
        s_lshl_b32 s{sT3}, s{sRot}, 12
        s_add_u32 s{sCo}, s{sCo}, s{sT3}
        """)
    lp, dn = P.newlabel(pfx + "_hpoll"), P.newlabel(pfx + "_hdone")
    if rawb:
        P(f"""
        s_waitcnt vmcnt(0)
        s_barrier
        s_cmp_eq_u32 s{sW}, 4
        s_cbranch_scc0 {dn}
        s_and_b32 s{sT2}, s{sIdx}, {NREP - 1}
        s_lshl_b32 s{sT2}, s{sT2}, 12
        s_add_u32 s{sT}, s{sT2}, {WS_FLG + FLG_K1}
        s_lshl_b32 s{sT2}, s{sTB}, 6
        s_add_u32 s{sT2}, s{sT2}, {FLG_K1T - FLG_K1 - 36 * 16}
        v_add_u32 v9, s{sT2}, v{vL16}
        v_add_u32 v8, {FLG_PREP - FLG_K1}, v{vL16}
        v_cmp_le_u32 vcc, 36, v{vLane}
        v_cndmask_b32 v8, v8, v9, vcc
        s_mov_b32 exec_hi, 0xff
        """)
        P.L(lp)
        P(f"""
        buffer_load_dwordx4 v[12:15], v8, {ws}, s{sT} offen sc1
        s_waitcnt vmcnt(0)
        v_cmp_ne_u32 vcc, {flag}, v12
        v_cmp_ne_u32 s[{sOk}:{sOk+1}], {flag}, v13
        s_or_b64 s[{sBad}:{sBad+1}], vcc, s[{sOk}:{sOk+1}]
        v_cmp_ne_u32 vcc, {flag}, v14
        v_cmp_ne_u32 s[{sOk}:{sOk+1}], {flag}, v15
        s_or_b64 s[{sBad}:{sBad+1}], s[{sBad}:{sBad+1}], vcc
        s_or_b64 s[{sBad}:{sBad+1}], s[{sBad}:{sBad+1}], s[{sOk}:{sOk+1}]
        s_cbranch_scc0 {dn}
        s_sleep 4
        s_branch {lp}
        """)
        P.L(dn)
        P("s_mov_b64 exec, -1")
        out_phases(True)
        return hi[0]
    P("s_barrier")
    cf_dma(0)
    cf_dma(1)
    P("s_barrier")
    for c in (2, 3, 4):
        cf_dma(c)
    P(f"""
    s_cmp_eq_u32 s{sW}, 4
    s_cbranch_scc0 {dn}
    s_lshl_b32 s{sT}, s{sTB}, 6
    s_add_u32 s{sT}, s{sT}, {WS_FLG + FLG_HF}
    v_lshlrev_b32 v2, 2, v{vLane}
    """)
    if merged:
        P(f"""
        s_and_b32 s{sT2}, s{sIdx}, {NREP - 1}
        s_lshl_b32 s{sT2}, s{sT2}, 12
        s_add_u32 s{sT2}, s{sT2}, {FLG_K1T - FLG_HF - 64}
        v_add_u32 v3, s{sT2}, v2
        v_cmp_le_u32 vcc, 16, v{vLane}
        v_cndmask_b32 v2, v2, v3, vcc
        """)
    P(f"""
    s_mov_b32 exec_hi, 0
    s_mov_b32 exec_lo, {"0xffff01ff" if merged else "0x1ff"}
    """)
    P.L(lp)
    P(f"""
    buffer_load_dword v3, v2, {ws}, s{sT} offen sc1
    s_waitcnt vmcnt(0)
    v_cmp_ne_u32 vcc, {flag}, v3
    s_cbranch_vccz {dn}
    s_sleep 2
    s_branch {lp}
    """)
    P.L(dn)
    P("s_mov_b64 exec, -1")
    P("s_waitcnt vmcnt(0)")
    out_phases(True)
    if lfirst:
        P.items = P.items[:iC] + P.items[iL:] + P.items[iC:iL]
    return hi[0]
```

```python
from asmgen import *
from layout import *
from prepk import emit_lambda, srd_from_kernarg, f32
import common

SLOT = 16384
SVC_LDS = 81920
ELOC = 78 * 1024
HDEPTH = 16
ODEPTH = 12


def emit_service(P, sIdx, pfx="svc", end="s_endpgm", exp=(), sWave=None, sNonce=None):
    L = lambda n: f"{pfx}_{n}"
    ws = "s[4:7]"
    prio = {"b": 3, "c": 3, "0": 3, "l": 3, "s": 3}
    psleep = 2
    HDEPTH = globals()["HDEPTH"]
    xearly = None
    for e in exp:
        if e.startswith("xearly="): xearly = int(e[7:])
    mixc = 6
    for e in exp:
        if e.startswith("mixc="): mixc = int(e[5:])
    for e in exp:
        if e.startswith("hd="): HDEPTH = int(e[3:])
    for e in exp:
        if e.startswith("psleep="): psleep = int(e[7:])
        if e.startswith("pb="): prio["b"] = int(e[3:])
        if e.startswith("pc="): prio["c"] = int(e[3:])
        if e.startswith("p0="): prio["0"] = int(e[3:])
        if e.startswith("pl="): prio["l"] = int(e[3:])
        if e.startswith("ps="): prio["s"] = int(e[3:])
    sTB, sSB, sW, sWM, sWN, sM, sXo, sBo, sCo, sHo = 8, 9, 10, 11, 12, 13, 14, 15, 16, 17
    sT, sT2, sT3, sTag, sKH, sMT, sTile = 18, 19, 20, 21, 22, 23, 24
    sOk, sBad = 26, 28
    sWo = 30
    crot = "crot" in exp
    sRot, sHend, sCend = 48, 25, 31
    sE, sAX, sOut, sP = 32, 36, 40, 44
    vLane, vL16 = 0, 1
    hi = [2]

    def use(*regs):
        hi[0] = max(hi[0], max(regs) + 1)

    merged = sWave is not None
    rawb = merged and "rawb" in exp
    fusedb = "fusedb" in exp
    flag = f"s{sTag}" if merged else "1"

    def block_map(scan):
        if scan and rawb and "nomapa" not in exp:
            P(f"""
            s_lshr_b32 s{sT}, s{sIdx}, 3
            s_lshr_b32 s{sT2}, s{sIdx}, 1
            s_and_b32 s{sT2}, s{sT2}, 3
            s_lshl_b32 s{sT2}, s{sT2}, 1
            s_lshr_b32 s{sSB}, s{sT}, 3
            s_add_u32 s{sSB}, s{sSB}, s{sT2}
            s_and_b32 s{sTB}, s{sIdx}, 1
            s_lshl_b32 s{sTB}, s{sTB}, 3
            s_and_b32 s{sT3}, s{sT}, 7
            s_add_u32 s{sTB}, s{sTB}, s{sT3}
            s_cmp_ge_u32 s{sT}, 16
            s_cselect_b32 s{sSB}, 8, s{sSB}
            s_cselect_b32 s{sT2}, s{sT2}, 0
            s_add_u32 s{sTB}, s{sTB}, s{sT2}
            """)
        else:
            P(f"""
            s_and_b32 s{sTB}, s{sIdx}, 7
            s_lshl_b32 s{sTB}, s{sTB}, 1
            s_lshr_b32 s{sT}, s{sIdx}, 3
            s_and_b32 s{sT}, s{sT}, 1
            s_add_u32 s{sTB}, s{sTB}, s{sT}
            s_lshr_b32 s{sSB}, s{sIdx}, 4
            """)

    lfirst = "lfirst" in exp

    def base_min(scan=True):
        P(f"""
        {"v_lshrrev_b32 v2, 6, v0" if not merged else ""}
        {"v_and_b32 v%d, 63, v0" % vLane if not merged else ""}
        {"v_readfirstlane_b32 s%d, v2" % sW if not merged else "s_mov_b32 s%d, s%d" % (sW, sWave)}
        v_lshlrev_b32 v{vL16}, 4, v{vLane}
        """)
        block_map(scan)
        P(f"""
        s_and_b32 s{sMT}, s{sW}, 3
        s_lshr_b32 s{sKH}, s{sW}, 2
        """)

    def base_regs(scan=True, rest=False):
        srd_from_kernarg(P, sAX, KA_AX, 2048 * 1152)
        srd_from_kernarg(P, sOut, KA_OUT, 2048 * 2304)
        if not rest:
            base_min(scan)
        P(f"""
        s_mov_b32 s{sTag}, {TAG if not merged else 's%d' % sNonce}
        s_add_u32 s{sE}, s4, {WS_E}
        s_addc_u32 s{sE+1}, s5, 0
        s_mov_b32 s{sE+2}, {E_BYTES}
        s_mov_b32 s{sE+3}, 0x00020000
        s_lshl_b32 s{sTile}, s{sTB}, 2
        s_add_u32 s{sTile}, s{sTile}, s{sMT}
        s_and_b32 s{sT}, s{sTB}, 1
        s_lshl_b32 s{sT}, s{sT}, 2
        s_add_u32 s{sRot}, s{sSB}, s{sT}
        s_sub_u32 s{sT}, s{sRot}, 9
        s_cmp_ge_u32 s{sRot}, 9
        s_cselect_b32 s{sRot}, s{sT}, s{sRot}
        """)

    if "lmarks" in exp: common.mark(P, 4)
    if lfirst:
        P(f"s_setprio {prio['0']}")
        base_min()
        P(f"""
        s_cmp_eq_u32 s{sKH}, 0
        s_cbranch_scc1 {L('compute')}
        """)
        iC = len(P.items)
        P.L(L("compute"))
        base_regs(rest=True)
    else:
        base_regs()
        P(f"""
        s_setprio {prio['0']}
        s_cmp_eq_u32 s{sKH}, 0
        s_cbranch_scc0 {L('loader')}
        """)


    def wrap(reg, endreg):
        P(f"""
        s_sub_u32 s{sT3}, s{reg}, {9 * 4096}
        s_cmp_ge_u32 s{reg}, s{endreg}
        s_cselect_b32 s{reg}, s{sT3}, s{reg}
        """)

    def cf_dma(c):
        slot = (c + 2) % 5
        P(f"""
        s_add_u32 m0, s{sM}, {slot * SLOT}
        s_nop 0
        buffer_load_dwordx4 v{vL16}, {ws}, s{sCo} offen lds
        buffer_load_dwordx4 v{vL16}, {ws}, s{sCo} offen offset:1024 lds
        buffer_load_dwordx4 v{vL16}, {ws}, s{sCo} offen offset:2048 lds
        buffer_load_dwordx4 v{vL16}, {ws}, s{sCo} offen offset:3072 lds
        s_add_u32 s{sCo}, s{sCo}, 4096
        """)
        if crot:
            wrap(sCo, sCend)

    def wf_dma(j):
        slot = (9 + j + 2) % 5
        P(f"s_add_u32 m0, s{sM}, {slot * SLOT}")
        P("s_nop 0")
        nk = 4 if j < 4 else 2
        for k in range(nk):
            P(f"buffer_load_dwordx4 v{vL16}, {ws}, s{sWo} offen offset:{k * 1024} lds")
        P(f"s_add_u32 s{sWo}, s{sWo}, 4096")
        return nk

    def out_phases(loader):
        outA = "outA" in exp
        ACC = [2, 18]
        HF = [34 + 4 * i for i in range(HDEPTH)]
        BF = [[98, 102], [106, 110]]
        vC0, vC1 = 114, 115
        vG1, vX, vY, vO, vTm = 116, 117, 118, 119, 120
        XR, DR, GR = 50, 58, 60
        if HDEPTH <= 12:
            XR, DR, GR = 82, 90, 92
        T = 34
        use(121)
        P(f"""
        s_mul_i32 s{sHo}, s{sTile}, {72 * 1024}
        s_mul_i32 s{sT}, s{sKH}, {36 * 1024}
        s_add_u32 s{sHo}, s{sHo}, s{sT}
        s_add_u32 s{sHo}, s{sHo}, {WS_HF}
        s_lshl_b32 s{sT}, s{sKH}, 13
        v_add_u32 v{vC0}, s{sT}, v{vL16}
        v_add_u32 v{vC1}, 0x10000, v{vC0}
        """)
        if crot:
            P(f"""
            s_add_u32 s{sHend}, s{sHo}, {9 * 4096}
            s_lshl_b32 s{sT}, s{sRot}, 12
            s_add_u32 s{sHo}, s{sHo}, s{sT}
            """)
        P("s_barrier")
        common.mark(P, 1)
        vm = []
        if loader and rawb:
            for c in range(5):
                cf_dma(c)
                vm.extend([("c", c)] * 4)

        def hload(n):
            if n % 4 == 0 and n > 0:
                P(f"s_add_u32 s{sHo}, s{sHo}, 4096")
                if crot:
                    wrap(sHo, sHend)
            P(f"buffer_load_dwordx4 {vr(HF[n % HDEPTH],4)}, v{vL16}, {ws}, s{sHo} offen offset:{(n % 4) * 1024}" + ("" if "hfl2" in exp else " sc1"))
            vm.append(("h", n))

        early = [e for e in exp if e.startswith("early=")]
        earlyc = int(early[0].split("=")[1]) if early else None
        first = ([1, 5, 9, 13] if loader else [3, 7, 11, 15]) if early else []
        order = first + [m for m in range(18) if m not in first]
        for n in range(HDEPTH):
            hload(n)
        P(f"s_setprio {prio['c']}")
        srd_from_kernarg(P, sP, KA_DSK, 1152)

        def creads(n):
            c, ks = divmod(n, 4)
            slot = (c + 2) % 5
            base, off = (vC1, 0) if slot == 4 else (vC0, slot * SLOT)
            return [f"ds_read_b128 {vr(BF[n & 1][ct],4)}, v{base} offset:{off + ct * 4096 + ks * 1024}" for ct in range(2)]

        def mix_loads_a():
            P(f"""
            v_and_b32 v{vTm}, 31, v{vLane}
            v_lshrrev_b32 v{vY}, 5, v{vLane}
            v_mul_u32_u24 v{vX}, 1152, v{vTm}
            v_lshlrev_b32 v{vY}, 3, v{vY}
            v_add_u32 v{vX}, v{vX}, v{vY}
            s_mul_i32 s{sT}, s{sTile}, {32 * 1152}
            s_lshl_b32 s{sT2}, s{sSB}, 7
            s_lshl_b32 s{sT3}, s{sKH}, 6
            s_add_u32 s{sT2}, s{sT2}, s{sT3}
            s_add_u32 s{sT}, s{sT}, s{sT2}
            """)
            for q in range(4):
                P(f"buffer_load_dwordx2 {vr(XR + 2 * q, 2)}, v{vX}, s[{sAX}:{sAX+3}], s{sT} offen offset:{16 * q}")
            for q in range(4):
                P(f"buffer_load_dwordx2 {vr(DR + 2 * q, 2)}, v{vY}, s[{sP}:{sP+3}], s{sT2} offen offset:{16 * q}")
            P(f"""
            v_lshlrev_b32 v{vX}, 2, v{vTm}
            s_lshl_b32 s{sT}, s{sTile}, 7
            s_add_u32 s{sT}, s{sT}, {WS_G}
            buffer_load_dword v{vG1}, v{vX}, {ws}, s{sT} offen
            v_mul_u32_u24 v{vTm}, 2304, v{vTm}
            v_lshlrev_b32 v{vO}, 1, v{vY}
            v_add_u32 v{vO}, v{vO}, v{vTm}
            """)
            vm.extend([("x", 0)] * 9)

        def mix_loads():
            P(f"""
            v_lshrrev_b32 v{vTm}, 3, v{vLane}
            v_xor_b32 v{vO}, v{vTm}, v{vLane}
            v_and_b32 v{vO}, 7, v{vO}
            v_mul_u32_u24 v{vX}, 1152, v{vTm}
            v_lshlrev_b32 v{vY}, 3, v{vO}
            v_add_u32 v{vX}, v{vX}, v{vY}
            s_mul_i32 s{sT}, s{sTile}, {32 * 1152}
            s_lshl_b32 s{sT2}, s{sSB}, 7
            s_lshl_b32 s{sT3}, s{sKH}, 6
            s_add_u32 s{sT2}, s{sT2}, s{sT3}
            s_add_u32 s{sT}, s{sT}, s{sT2}
            """)
            for i in range(4):
                P(f"buffer_load_dwordx2 {vr(XR + 2 * i, 2)}, v{vX}, s[{sAX}:{sAX+3}], s{sT} offen")
                if i < 3:
                    P(f"s_add_u32 s{sT}, s{sT}, {8 * 1152}")
            P(f"""
            buffer_load_dwordx2 {vr(DR, 2)}, v{vY}, s[{sP}:{sP+3}], s{sT2} offen
            v_lshlrev_b32 v{vY}, 2, v{vTm}
            s_lshl_b32 s{sT}, s{sTile}, 7
            s_add_u32 s{sT}, s{sT}, {WS_G}
            """)
            for i in range(4):
                P(f"buffer_load_dword v{GR + i}, v{vY}, {ws}, s{sT} offen offset:{32 * i}")
            P(f"""
            v_and_b32 v{vX}, 31, v{vLane}
            v_lshlrev_b32 v{vX}, 2, v{vX}
            buffer_load_dword v{vG1}, v{vX}, {ws}, s{sT} offen
            v_mul_u32_u24 v{vTm}, 2304, v{vTm}
            v_lshlrev_b32 v{vO}, 4, v{vO}
            v_add_u32 v{vO}, v{vO}, v{vTm}
            """)
            vm.extend([("x", 0)] * 10)

        for c in range(9):
            if loader and (c >= 5 or rawb):
                idx = max(i for i, e in enumerate(vm) if e == ("c", c))
                P(f"s_waitcnt vmcnt({len(vm) - 1 - idx})")
            P("s_barrier")
            if loader and 1 <= c <= 4:
                cf_dma(c + 4)
                vm.extend([("c", c + 4)] * 4)
            if loader and c >= 5 and "wflate" not in exp:
                vm.extend([("w", c - 5)] * wf_dma(c - 5))
            if early and c == earlyc:
                P(f"""
                s_lshl_b32 s{sOk}, s{sTile}, 7
                s_add_u32 s{sOk}, s{sOk}, {WS_FLG + FLG_ATT2}
                v_and_b32 v121, 3, v{vLane}
                v_lshlrev_b32 v121, 4, v121
                v_add_u32 v121, {(19 if loader else 3) * 4}, v121
                buffer_load_dword v122, v121, {ws}, s{sOk} offen sc1
                """)
                vm.append(("f", 0))
            if c == mixc and "mixlate" not in exp:
                if "mixp" in exp: P("s_setprio 3")
                mix_loads_a() if outA else mix_loads()
                if "mixp" in exp: P(f"s_setprio {prio['c']}")
            if "cmarks" in exp:
                common.mark(P, [4, 5, 6, 7, 8, 14, 15, 12, 13][c])
            else:
                if c == 4: common.mark(P, 14)
                if c == 7: common.mark(P, 15)
            for r in creads(4 * c):
                P(r)
            for ks in range(4):
                n = 4 * c + ks
                if ks < 3:
                    for r in creads(n + 1):
                        P(r)
                for ct in range(2):
                    cop = "0" if n == 0 else vr(ACC[ct], 16)
                    P(f"v_mfma_f32_32x32x16_bf16 {vr(ACC[ct],16)}, {vr(BF[n & 1][ct],4)}, {vr(HF[n % HDEPTH],4)}, {cop}")
                if n + HDEPTH < 36:
                    hload(n + HDEPTH)
            P("s_waitcnt lgkmcnt(0)")
        P("s_setprio 3")
        P("s_barrier")
        if loader:
            if "wflate" in exp:
                for j in range(4):
                    wf_dma(j)
            wf_dma(4)
        if "mixlate" in exp:
            mix_loads_a() if outA else mix_loads()
        OFr = [50 + 4 * i for i in range(ODEPTH)]

        def eload(p):
            m = order[p]
            shared = loader and m >= 14
            P(f"s_add_u32 s{sT2}, s{sHo}, {(m // 4) * 4096}")
            P(f"buffer_load_dwordx4 {vr(OFr[p % ODEPTH],4)}, v{vL16}, {ws}, s{sT2} offen offset:{(m % 4) * 1024}" + ("" if not shared else " sc1"))

        if early:
            lp, dn = P.newlabel(pfx + "_epoll"), P.newlabel(pfx + "_edone")
            P(f"""
            s_mul_i32 s{sT}, s{sKH}, {18 * 1024}
            s_mul_i32 s{sHo}, s{sTile}, {36 * 1024}
            s_add_u32 s{sHo}, s{sHo}, s{sT}
            s_add_u32 s{sHo}, s{sHo}, {WS_OF}
            v_cmp_ne_u32 vcc, {flag}, v122
            s_cbranch_vccz {dn}
            """)
            P.L(lp)
            P(f"""
            s_sleep 1
            buffer_load_dword v122, v121, {ws}, s{sOk} offen sc1
            s_waitcnt vmcnt(0)
            v_cmp_ne_u32 vcc, {flag}, v122
            s_cbranch_vccnz {lp}
            """)
            P.L(dn)
            for p in range(len(first)):
                eload(p)
        tpoll = "tpoll" in exp
        if tpoll:
            if "wflag" in exp:
                P(f"""
                s_lshl_b32 s{sT}, s{sTile}, 7
                s_add_u32 s{sOk}, s{sT}, {WS_FLG + FLG_ATT2}
                v_and_b32 v121, 31, v{vLane}
                {"" if loader else "v_min_u32 v121, 17, v121"}
                """)
            else:
                P(f"""
                s_lshr_b32 s{sT}, s{sTB}, 1
                s_lshl_b32 s{sT}, s{sT}, 7
                s_add_u32 s{sOk}, s{sT}, {WS_FLG + FLG_ATT}
                v_and_b32 v121, 31, v{vLane}
                """)
            P(f"""
            v_lshlrev_b32 v121, 2, v121
            buffer_load_dword v122, v121, {ws}, s{sOk} offen sc1
            """)
        common.mark(P, 2)
        if outA:
            for q in range(4):
                for j in range(4):
                    sx, sd = XR + 2 * q + (j >> 1), DR + 2 * q + (j >> 1)
                    if j & 1:
                        P(f"v_and_b32 v{T + 4 * q + j}, 0xffff0000, v{sx}")
                        P(f"v_and_b32 v{98 + j}, 0xffff0000, v{sd}")
                    else:
                        P(f"v_lshlrev_b32 v{T + 4 * q + j}, 16, v{sx}")
                        P(f"v_lshlrev_b32 v{98 + j}, 16, v{sd}")
                for j in range(4):
                    P(f"v_mul_f32 v{98 + j}, v{vG1}, v{98 + j}")
                for j in range(4):
                    P(f"v_mul_f32 v{T + 4 * q + j}, v{T + 4 * q + j}, v{98 + j}")
        else:
            Df = [98, 99, 100, 101]
            P(f"""
            v_lshlrev_b32 v{Df[0]}, 16, v{DR}
            v_and_b32 v{Df[1]}, 0xffff0000, v{DR}
            v_lshlrev_b32 v{Df[2]}, 16, v{DR+1}
            v_and_b32 v{Df[3]}, 0xffff0000, v{DR+1}
            """)
            for i in range(4):
                for j in range(4):
                    src = XR + 2 * i + (j >> 1)
                    if j & 1:
                        P(f"v_and_b32 v{T + 4 * i + j}, 0xffff0000, v{src}")
                    else:
                        P(f"v_lshlrev_b32 v{T + 4 * i + j}, 16, v{src}")
                for j in range(4):
                    P(f"v_mul_f32 v{T + 4 * i + j}, v{T + 4 * i + j}, v{Df[j]}")
                for j in range(4):
                    P(f"v_mul_f32 v{T + 4 * i + j}, v{T + 4 * i + j}, v{GR + i}")
        for ct in range(2):
            for r in range(16):
                P(f"v_mul_f32 v{ACC[ct] + r}, v{vG1}, v{ACC[ct] + r}")
        common.mark(P, 9)
        if outA:
            P(f"""
            s_lshl_b32 s{sT}, s{sW}, 12
            v_add_u32 v{vX}, s{sT}, v{vL16}
            s_xor_b32 s{sT}, s{sW}, 4
            s_lshl_b32 s{sT}, s{sT}, 12
            v_add_u32 v{vY}, s{sT}, v{vL16}
            """)
        else:
            P(f"""
        v_and_b32 v{vTm}, 31, v{vLane}
        v_lshrrev_b32 v{vX}, 5, v{vLane}
        v_xor_b32 v{vX}, v{vX}, v{vTm}
        v_and_b32 v{vX}, 7, v{vX}
        v_lshlrev_b32 v{vX}, 4, v{vX}
        v_lshlrev_b32 v{vTm}, 7, v{vTm}
        v_add_u32 v{vX}, v{vX}, v{vTm}
        s_lshl_b32 s{sT}, s{sMT}, 14
        s_lshl_b32 s{sT2}, s{sKH}, {12 if xearly is None else 13}
        s_add_u32 s{sT2}, s{sT2}, s{sT}
        v_add_u32 v{vX}, s{sT2}, v{vX}
        s_lshl_b32 s{sT2}, s{sKH}, {13 if xearly is None else 12}
        s_add_u32 s{sT2}, s{sT2}, s{sT}
        v_add_u32 v{vY}, s{sT2}, v{vL16}
        """)
        if not early:
            P(f"""
            s_mul_i32 s{sT}, s{sKH}, {18 * 1024}
            s_mul_i32 s{sHo}, s{sTile}, {36 * 1024}
            s_add_u32 s{sHo}, s{sHo}, s{sT}
            s_add_u32 s{sHo}, s{sHo}, {WS_OF}
            """)
        if tpoll:
            lp, dn = P.newlabel(pfx + "_apoll"), P.newlabel(pfx + "_adone")
            if "tb2" in exp:
                P("s_waitcnt vmcnt(0)")
                P("s_barrier")
            P.L(lp)
            P(f"""
            s_waitcnt vmcnt(0)
            v_cmp_ne_u32 vcc, {flag}, v122
            s_cbranch_vccz {dn}
            s_sleep 1
            buffer_load_dword v122, v121, {ws}, s{sOk} offen sc1
            s_branch {lp}
            """)
            P.L(dn)
            use(123)
        elif not loader:
            lp, dn = P.newlabel(pfx + "_apoll"), P.newlabel(pfx + "_adone")
            P(f"""
            s_cmp_eq_u32 s{sW}, 0
            s_cbranch_scc0 {dn}
            s_lshr_b32 s{sT}, s{sTB}, 1
            s_lshl_b32 s{sT}, s{sT}, 7
            s_add_u32 s{sT}, s{sT}, {WS_FLG + FLG_ATT}
            v_lshlrev_b32 v121, 2, v{vLane}
            s_mov_b32 exec_hi, 0
            """)
            P.L(lp)
            P(f"""
            buffer_load_dword v122, v121, {ws}, s{sT} offen sc1
            s_waitcnt vmcnt(0)
            v_cmp_ne_u32 vcc, {flag}, v122
            s_cbranch_vccz {dn}
            s_sleep 1
            s_branch {lp}
            """)
            P.L(dn)
            P("s_mov_b64 exec, -1")
            use(123)
        if not tpoll:
            P("s_waitcnt vmcnt(0)")
            P("s_barrier")
        common.mark(P, 3)
        OFr = [50 + 4 * i for i in range(ODEPTH)]
        WB = BF

        def oload(n):
            if n % 4 == 0 and n > 0:
                P(f"s_add_u32 s{sHo}, s{sHo}, 4096")
            shared = loader and n >= 14
            P(f"buffer_load_dwordx4 {vr(OFr[n % ODEPTH],4)}, v{vL16}, {ws}, s{sHo} offen offset:{(n % 4) * 1024}" + ("" if "ofl2" in exp and not shared else " sc1"))

        if early:
            assert "ofl2" in exp and xearly is None
            oload = eload
        for n in range(len(first), ODEPTH):
            oload(n)
        if tpoll and "tb2" not in exp:
            P("s_barrier")

        def wreads(n):
            j, ks = divmod(order[n], 4)
            slot = (9 + j + 2) % 5
            base, off = (vC1, 0) if slot == 4 else (vC0, slot * SLOT)
            return [f"ds_read_b128 {vr(WB[n & 1][ct],4)}, v{base} offset:{off + ct * 4096 + ks * 1024}" for ct in range(2)]

        for r in wreads(0):
            P(r)
        for n in range(18):
            if n + 1 < 18:
                for r in wreads(n + 1):
                    P(r)
            for ct in range(2):
                P(f"v_mfma_f32_32x32x16_bf16 {vr(ACC[ct],16)}, {vr(WB[n & 1][ct],4)}, {vr(OFr[n % ODEPTH],4)}, {vr(ACC[ct],16)}")
            if n + ODEPTH < 18:
                oload(n + ODEPTH)
            if xearly is not None and loader and n == xearly:
                P("s_barrier")
        common.mark(P, 10)
        P("s_barrier")
        if xearly is not None and not loader:
            for ct in range(2):
                for q in range(4):
                    a = vX
                    if q:
                        P(f"v_xor_b32 v{vTm}, {32 * q}, v{vX}")
                        a = vTm
                    P(f"ds_write_b128 v{a}, {vr(ACC[ct] + 4 * q, 4)} offset:{ct * 4096}")
            P("s_barrier")
        if "cmarks" not in exp: common.mark(P, 12)
        if outA:
            keep, send = (ACC[1], ACC[0]) if loader else (ACC[0], ACC[1])
            for q in range(4):
                P(f"ds_write_b128 v{vX}, {vr(send + 4 * q, 4)} offset:{q * 1024}")
            for r in range(16):
                P(f"v_add_f32 v{T + r}, v{T + r}, v{keep + r}")
            P(f"""
            s_mul_i32 s{sT}, s{sTile}, {32 * 2304}
            s_lshl_b32 s{sT2}, s{sSB}, 8
            s_add_u32 s{sT}, s{sT}, s{sT2}
            s_lshl_b32 s{sT2}, s{sKH}, 7
            s_add_u32 s{sT}, s{sT}, s{sT2}
            s_waitcnt lgkmcnt(0)
            s_barrier
            """)
            common.mark(P, 13)
            RB = 50
            for q in range(4):
                P(f"ds_read_b128 {vr(RB + 4 * q, 4)}, v{vY} offset:{q * 1024}")
            for q in range(4):
                for j in range(4):
                    P(f"v_add_f32 v{T + 4 * q + j}, v{T + 4 * q + j}, v{RB + 4 * q + j}")
                P(f"buffer_store_dwordx4 {vr(T + 4 * q, 4)}, v{vO}, s[{sOut}:{sOut+3}], s{sT} offen offset:{32 * q}")
        else:
            for ct in range(2 if xearly is None or loader else 0):
                for q in range(4):
                    a = vX
                    if q:
                        P(f"v_xor_b32 v{vTm}, {32 * q}, v{vX}")
                        a = vTm
                    P(f"ds_write_b128 v{a}, {vr(ACC[ct] + 4 * q, 4)} offset:{ct * (8192 if xearly is None else 4096)}")
            P(f"""
            s_mul_i32 s{sT}, s{sTile}, {32 * 2304}
            s_lshl_b32 s{sT2}, s{sSB}, 8
            s_add_u32 s{sT}, s{sT}, s{sT2}
            s_lshl_b32 s{sT2}, s{sKH}, 7
            s_add_u32 s{sT}, s{sT}, s{sT2}
            s_waitcnt lgkmcnt(0)
            s_barrier
            """)
            RB = 50
            common.mark(P, 13)
            for i in range(4):
                for h in range(2):
                    P(f"ds_read_b128 {vr(RB + 8 * i + 4 * h, 4)}, v{vY} offset:{h * (4096 if xearly is None else 8192) + i * 1024}")
            for i in range(4):
                for j in range(4):
                    P(f"v_add_f32 v{T + 4 * i + j}, v{T + 4 * i + j}, v{RB + 8 * i + j}")
                    P(f"v_add_f32 v{T + 4 * i + j}, v{T + 4 * i + j}, v{RB + 8 * i + 4 + j}")
                P(f"buffer_store_dwordx4 {vr(T + 4 * i, 4)}, v{vO}, s[{sOut}:{sOut+3}], s{sT} offen")
                if i < 3:
                    P(f"s_add_u32 s{sT}, s{sT}, {8 * 2304}")
        common.mark(P, 11)
        P(end)

    ACC = [[2, 18], [34, 50]]
    XF = [[66, 70], [74, 78]]
    WF = [[82, 86], [90, 94]]
    vA0, vA1, vB0, vB1 = 98, 99, 100, 101
    lr, li, nli, mr, mi, br, bi = 102, 103, 104, 105, 106, 107, 108
    lamt = "lamt" in exp
    pks = "pks" in exp
    if lamt:
        lr, li, mr, mi, br, bi, nli = 102, 103, 104, 105, 106, 107, 108
    if pks:
        assert lamt and "eaddr" not in exp
        hr, hi_ = 108, 109
    t = 110
    use(121)
    P(f"""
    s_and_b32 s{sWM}, s{sW}, 1
    s_lshr_b32 s{sWN}, s{sW}, 1
    s_lshl_b32 s{sT}, s{sSB}, 6
    s_lshl_b32 s{sT2}, s{sWN}, 5
    s_add_u32 s{sT}, s{sT}, s{sT2}
    v_and_b32 v{t+8}, 31, v{vLane}
    v_add_u32 v{t+8}, s{sT}, v{t+8}
    v_lshlrev_b32 v{t+9}, 1, v{t+8}
    """)
    UP = 66
    if fusedb:
        P(f"""
        s_mul_i32 s{sT}, s{sTB}, 18
        s_lshl_b32 s{sT2}, s{sSB}, 1
        s_add_u32 s{sT}, s{sT}, s{sT2}
        s_add_u32 s{sT}, s{sT}, s{sWN}
        s_lshl_b32 s{sT}, s{sT}, 14
        s_lshl_b32 s{sT2}, s{sWM}, 13
        s_add_u32 s{sT}, s{sT}, s{sT2}
        s_add_u32 s{sT}, s{sT}, {WS_XF if 'ufx' in exp else WS_UF}
        s_add_u32 s{sT2}, s{sT}, 4096
        """)
        for k in range(8):
            P(f"buffer_load_dwordx4 {vr(UP + 4 * k, 4)}, v{vL16}, {ws}, s{sT if k < 4 else sT2} offen offset:{(k & 3) * 1024}")
    if lamt:
        P(f"""
        v_lshlrev_b32 v{t+9}, 5, v{t+8}
        s_mov_b32 s{sT}, {WS_LAM}
        buffer_load_dwordx4 {vr(lr,4)}, v{t+9}, {ws}, s{sT} offen
        buffer_load_dwordx{4 if pks else 2} {vr(br,4 if pks else 2)}, v{t+9}, {ws}, s{sT} offen offset:16
        """)
    for k, ka in enumerate((KA_LRE, KA_LIM, KA_LDT) if not lamt else ()):
        srd_from_kernarg(P, sP, ka, 1152)
        P(f"""
        s_waitcnt lgkmcnt(0)
        buffer_load_ushort v{t+4+k}, v{t+9}, s[{sP}:{sP+3}], 0 offen
        """)
    vXR = [98, 99, 101, 122]
    vB2 = 123
    XSLOT, NX, WSLOT, NWS, WBASE = 16384, 3, 8192, 4, 49152
    if merged:
        P(f"""
        v_and_b32 v{t}, 31, v{vLane}
        v_lshrrev_b32 v{t+1}, 5, v{vLane}
        v_lshrrev_b32 v{t+2}, 1, v{t}
        v_and_b32 v{t+2}, 7, v{t+2}
        v_xor_b32 v{t+2}, v{t+2}, v{t+1}
        v_lshlrev_b32 v{t+2}, 4, v{t+2}
        s_lshl_b32 s{sT}, s{sWM}, 6
        v_add_u32 v{t+3}, s{sT}, v{t}
        v_lshlrev_b32 v{t+3}, 7, v{t+3}
        v_add_u32 v{vXR[0]}, v{t+2}, v{t+3}
        v_xor_b32 v{vXR[1]}, 32, v{vXR[0]}
        v_xor_b32 v{vXR[2]}, 64, v{vXR[0]}
        v_xor_b32 v{vXR[3]}, 0x60, v{vXR[0]}
        """)
        if rawb:
            P(f"""
            v_lshrrev_b32 v{t+2}, 2, v{t}
            v_and_b32 v{t+2}, 3, v{t+2}
            v_xor_b32 v{t+2}, v{t+2}, v{t+1}
            v_lshlrev_b32 v{t+2}, 4, v{t+2}
            v_lshlrev_b32 v{t+3}, 6, v{t}
            s_lshl_b32 s{sT}, s{sWN}, 11
            s_add_u32 s{sT}, s{sT}, {WBASE}
            v_add_u32 v{t+3}, s{sT}, v{t+3}
            v_add_u32 v{vB0}, v{t+2}, v{t+3}
            v_xor_b32 v{vB2}, 32, v{vB0}
            """)
        else:
            P(f"""
            s_lshl_b32 s{sT}, s{sWN}, 12
            s_add_u32 s{sT}, s{sT}, {WBASE}
            v_add_u32 v{vB0}, s{sT}, v{vL16}
            """)
    else:
      P(f"""
    s_lshl_b32 s{sT}, s{sWM}, 12
    v_add_u32 v{vA0}, s{sT}, v{vL16}
    v_add_u32 v{vA1}, 0x10000, v{vA0}
    s_lshl_b32 s{sT}, s{sWN}, 12
    s_add_u32 s{sT}, s{sT}, 8192
    v_add_u32 v{vB0}, s{sT}, v{vL16}
    v_add_u32 v{vB1}, 0x10000, v{vB0}
    """)
    if "smarks" in exp:
        common.mark(P, 5)
        P("s_waitcnt vmcnt(0)")
        common.mark(P, 6)
    if not lamt:
        emit_lambda(P, t + 4, t + 5, t + 6, t, lr, li)
        P(f"v_sub_f32 v{nli}, 0, v{li}")

    def csq(dr, di, sr_, si_):
        P(f"""
        v_mul_f32 v{t}, v{si_}, v{si_}
        v_add_f32 v{t+1}, v{sr_}, v{sr_}
        v_fma_f32 v{dr}, v{sr_}, v{sr_}, -v{t}
        v_mul_f32 v{di}, v{t+1}, v{si_}
        """)

    if not lamt:
        csq(mr, mi, lr, li)
        for _ in range(4):
            csq(mr, mi, mr, mi)
        csq(br, bi, mr, mi)
        csq(br, bi, br, bi)

    early = "eaddr" in exp
    vTW, vTR, vX_ = (109, 126, t + 2) if early else (t, t + 1, t + 2)
    use(126)

    def tr_write_addr():
        P(f"""
        v_and_b32 v{t+4}, 31, v{vLane}
        v_lshrrev_b32 v{t+5}, 1, v{t+4}
        v_and_b32 v{t+5}, 1, v{t+5}
        v_lshlrev_b32 v{t+5}, 2, v{t+5}
        v_lshrrev_b32 v{t+6}, 2, v{t+4}
        v_and_b32 v{t+6}, 1, v{t+6}
        v_lshlrev_b32 v{t+6}, 1, v{t+6}
        v_or_b32 v{t+5}, v{t+5}, v{t+6}
        v_and_b32 v{t+6}, 1, v{t+4}
        v_or_b32 v{t+5}, v{t+5}, v{t+6}
        v_lshrrev_b32 v{t+6}, 5, v{vLane}
        v_lshlrev_b32 v{t+6}, 2, v{t+6}
        v_xor_b32 v{t+5}, v{t+5}, v{t+6}
        v_lshlrev_b32 v{t+5}, 4, v{t+5}
        v_lshlrev_b32 v{t+4}, 7, v{t+4}
        v_add_u32 v{vTW}, v{t+4}, v{t+5}
        s_lshl_b32 s{sT}, s{sW}, 13
        v_add_u32 v{vTW}, s{sT}, v{vTW}
        """)

    def tr_read_addr():
        P(f"""
        v_lshrrev_b32 v{t+4}, 5, v{vLane}
        v_lshlrev_b32 v{t+4}, 3, v{t+4}
        v_lshrrev_b32 v{t+5}, 2, v{vLane}
        v_and_b32 v{t+5}, 3, v{t+5}
        v_add_u32 v{t+4}, v{t+4}, v{t+5}
        v_lshlrev_b32 v{t+4}, 7, v{t+4}
        v_lshrrev_b32 v{t+5}, 4, v{vLane}
        v_and_b32 v{t+5}, 1, v{t+5}
        v_lshlrev_b32 v{t+5}, 1, v{t+5}
        v_lshrrev_b32 v{t+6}, 1, v{vLane}
        v_and_b32 v{t+6}, 1, v{t+6}
        v_or_b32 v{t+5}, v{t+5}, v{t+6}
        v_lshrrev_b32 v{t+6}, 3, v{vLane}
        v_and_b32 v{t+6}, 1, v{t+6}
        v_lshlrev_b32 v{t+6}, 2, v{t+6}
        v_xor_b32 v{t+5}, v{t+5}, v{t+6}
        v_lshrrev_b32 v{t+6}, 2, v{vLane}
        v_and_b32 v{t+6}, 1, v{t+6}
        v_xor_b32 v{t+5}, v{t+5}, v{t+6}
        v_lshlrev_b32 v{t+5}, 4, v{t+5}
        v_and_b32 v{t+6}, 1, v{vLane}
        v_lshlrev_b32 v{t+6}, 3, v{t+6}
        v_add_u32 v{t+4}, v{t+4}, v{t+5}
        v_add_u32 v{t+4}, v{t+4}, v{t+6}
        v_add_u32 v{vTR}, s{sT}, v{t+4}
        """)

    if early:
        tr_write_addr()
        tr_read_addr()
    def reads(n):
        if rawb:
            bb = n & 1
            xo, wo_ = ((n >> 2) % NX) * XSLOT, ((n >> 1) % NWS) * WSLOT
            vb = vB2 if n & 1 else vB0
            return [f"ds_read_b128 {vr(XF[bb][0],4)}, v{vXR[n & 3]} offset:{xo}",
                    f"ds_read_b128 {vr(WF[bb][0],4)}, v{vb} offset:{wo_}",
                    f"ds_read_b128 {vr(WF[bb][1],4)}, v{vb} offset:{wo_ + 4096}",
                    f"ds_read_b128 {vr(XF[bb][1],4)}, v{vXR[n & 3]} offset:{xo + 4096}"]
        if merged:
            bb = n & 1
            xo, wo_ = ((n >> 2) % NX) * XSLOT, ((n >> 1) % NWS) * WSLOT + (n & 1) * 1024
            return [f"ds_read_b128 {vr(XF[bb][0],4)}, v{vXR[n & 3]} offset:{xo}",
                    f"ds_read_b128 {vr(WF[bb][0],4)}, v{vB0} offset:{wo_}",
                    f"ds_read_b128 {vr(WF[bb][1],4)}, v{vB0} offset:{wo_ + 2048}",
                    f"ds_read_b128 {vr(XF[bb][1],4)}, v{vXR[n & 3]} offset:{xo + 4096}"]
        s_, ks = divmod(n, 2)
        slot = s_ % 5
        a, b, off = (vA1, vB1, 0) if slot == 4 else (vA0, vB0, slot * SLOT)
        bb = n & 1
        return [f"ds_read_b128 {vr(XF[bb][0],4)}, v{a} offset:{off + ks * 1024}",
                f"ds_read_b128 {vr(WF[bb][0],4)}, v{b} offset:{off + ks * 1024}",
                f"ds_read_b128 {vr(WF[bb][1],4)}, v{b} offset:{off + 2048 + ks * 1024}",
                f"ds_read_b128 {vr(XF[bb][1],4)}, v{a} offset:{off + 2048 + ks * 1024}"]

    if fusedb:
        common.mark(P, 0)
        for mt in range(2):
            for cp in range(2):
                for k in range(8):
                    src = UP + 16 * mt + 8 * cp + k
                    P(f"v_lshlrev_b32 v{ACC[mt][cp] + 2 * k}, 16, v{src}")
                    P(f"v_and_b32 v{ACC[mt][cp] + 2 * k + 1}, 0xffff0000, v{src}")
    else:
        if merged:
            P("s_barrier")
        if "smarks" in exp: common.mark(P, 7)
        P("s_barrier")
        common.mark(P, 0)
        P(f"s_setprio {prio['b']}")
        for r in reads(0):
            P(r)
    for n in range(36 if not fusedb else 0):
        bb = n & 1
        mf = []
        for mt in range(2):
            for cp in range(2):
                cop = "0" if n == 0 else vr(ACC[mt][cp], 16)
                mf.append(f"v_mfma_f32_32x32x16_bf16 {vr(ACC[mt][cp],16)}, {vr(XF[bb][mt],4)}, {vr(WF[bb][cp],4)}, {cop}")
        P("s_waitcnt lgkmcnt(0)")
        if "bmarks" in exp and n in (3, 11, 19): common.mark(P, {3: 5, 11: 6, 19: 7}[n])
        if bb == 1 and n + 1 < 36:
            P("s_barrier")
        rs = reads(n + 1) if n + 1 < 36 else []
        for k in range(4):
            P(mf[k])
            take = rs[:2] if k < 2 else []
            rs = rs[len(take):]
            for r in take:
                P(r)

    P(f"s_setprio {prio['s']}")
    common.mark(P, 4)
    if lamt:
        P("s_waitcnt vmcnt(0)")
        if not pks:
            P(f"v_sub_f32 v{nli}, 0, v{li}")
    ea, eb = (t, t + 1), (t + 2, t + 3)
    U = lambda tau, cp: ACC[tau >> 4][cp] + (tau & 15)
    EAr = (t + 10, t + 11)

    def pk_step(dst, cur, add):
        L2 = vr(lr, 2)
        P(f"""
        v_pk_fma_f32 {vr(dst[0],2)}, {L2}, {vr(cur[0],2)}, {vr(add[0],2)} op_sel:[0,0,0] op_sel_hi:[0,1,1]
        v_pk_fma_f32 {vr(dst[1],2)}, {L2}, {vr(cur[1],2)}, {vr(add[1],2)} op_sel:[0,0,0] op_sel_hi:[0,1,1]
        v_pk_fma_f32 {vr(dst[0],2)}, {L2}, {vr(cur[1],2)}, {vr(dst[0],2)} op_sel:[1,0,0] op_sel_hi:[1,1,1] neg_lo:[1,0,0] neg_hi:[1,0,0]
        v_pk_fma_f32 {vr(dst[1],2)}, {L2}, {vr(cur[0],2)}, {vr(dst[1],2)} op_sel:[1,0,0] op_sel_hi:[1,1,1]
        """)

    if pks:
        Ureg = U
        Upair = lambda j: (Ureg(2 * j, 0), Ureg(2 * j, 1))
        cur = Upair(0)
        for j in range(1, 16):
            nx = (t, t + 2) if j & 1 else (t + 4, t + 6)
            pk_step(nx, cur, Upair(j))
            cur = nx
        assert cur == (t, t + 2)
        P(f"""
        v_mov_b32 v{EAr[0]}, v{t}
        v_mov_b32 v{EAr[1]}, v{t+2}
        v_fma_f32 v{t+4}, v{hr}, v{t}, v{t+1}
        v_fma_f32 v{t+5}, v{hr}, v{t+2}, v{t+3}
        v_fma_f32 v{t}, -v{hi_}, v{EAr[1]}, v{t+4}
        v_fma_f32 v{t+1}, v{hi_}, v{EAr[0]}, v{t+5}
        """)
        U = lambda tau, cp: Ureg(2 * (tau & 15) + (tau >> 4), cp)
    else:
        cur = (U(0, 0), U(0, 1))
        for tau in range(1, 32):
            nx = ea if tau & 1 else eb
            P(f"""
            v_fma_f32 v{nx[0]}, v{lr}, v{cur[0]}, v{U(tau,0)}
            v_fma_f32 v{nx[1]}, v{lr}, v{cur[1]}, v{U(tau,1)}
            v_fmac_f32 v{nx[0]}, v{nli}, v{cur[1]}
            v_fmac_f32 v{nx[1]}, v{li}, v{cur[0]}
            """)
            cur = nx
        assert cur == ea
    P(f"""
    v_lshrrev_b32 v{t+4}, 5, v{vLane}
    v_lshlrev_b32 v{t+4}, 9, v{t+4}
    v_and_b32 v{t+5}, 31, v{vLane}
    v_lshlrev_b32 v{t+5}, 3, v{t+5}
    s_lshl_b32 s{sT}, s{sWN}, 8
    s_add_u32 s{sT}, s{sT}, {ELOC}
    v_add_u32 v{t+5}, s{sT}, v{t+5}
    s_lshl_b32 s{sT}, s{sWM}, 10
    v_add_u32 v{t+4}, s{sT}, v{t+4}
    v_add_u32 v{t+4}, v{t+4}, v{t+5}
    ds_write_b64 v{t+4}, {vr(ea[0],2)}
    s_waitcnt lgkmcnt(0)
    s_barrier
    """)
    EL = [98, 100, 122, 124]
    for k in range(4):
        P(f"ds_read_b64 {vr(EL[k], 2)}, v{t+5} offset:{k * 512}")

    def cmuladd(dr, di, ar, ai, nai, xr, xi, yr, yi):
        P(f"""
        v_fma_f32 v{t+6}, v{ar}, v{xr}, v{yr}
        v_fma_f32 v{t+7}, v{ar}, v{xi}, v{yi}
        v_fma_f32 v{dr}, -v{ai}, v{xi}, v{t+6}
        v_fma_f32 v{di}, v{ai}, v{xr}, v{t+7}
        """) if (dr, di) != (xr, xi) else P(f"""
        v_fma_f32 v{t+6}, v{ar}, v{xr}, v{yr}
        v_fma_f32 v{t+7}, v{ar}, v{xi}, v{yi}
        v_fma_f32 v{t+7}, v{ai}, v{xr}, v{t+7}
        v_fma_f32 v{dr}, -v{ai}, v{xi}, v{t+6}
        v_mov_b32 v{di}, v{t+7}
        """)

    Eb = 66
    cmuladd(t, t + 1, mr, mi, None, EL[0], EL[0] + 1, EL[1], EL[1] + 1)
    cmuladd(t + 2, t + 3, mr, mi, None, t, t + 1, EL[2], EL[2] + 1)
    cmuladd(Eb, Eb + 2, mr, mi, None, t + 2, t + 3, EL[3], EL[3] + 1)
    nopub = P.newlabel(pfx + "_nopub")
    P(f"""
    v_mov_b32 v{Eb+1}, s{sTag}
    v_mov_b32 v{Eb+3}, s{sTag}
    s_mul_i32 s{sT}, s{sTB}, 576
    v_add_u32 v{t}, s{sT}, v{t+8}
    v_lshlrev_b32 v{t}, 4, v{t}
    s_cmp_eq_u32 s{sWM}, 0
    s_cbranch_scc0 {nopub}
    s_mov_b32 exec_hi, 0
    buffer_store_dwordx4 {vr(Eb,4)}, v{t}, s[{sE}:{sE+3}], 0 offen sc1
    s_mov_b32 exec_hi, -1
    """)
    P.L(nopub)
    EDr = [66 + 4 * i for i in range(8)]
    use(125)
    vN, vEo = t + 2, t + 3
    P(f"""
    v_lshrrev_b32 v{vN}, 5, v{vLane}
    v_lshlrev_b32 v{vN}, 3, v{vN}
    s_sub_i32 s{sT}, s{sTB}, 16
    v_add_u32 v{vN}, s{sT}, v{vN}
    s_movk_i32 s{sT}, 576
    v_mul_lo_u32 v{vEo}, v{vN}, s{sT}
    v_add_u32 v{vEo}, v{vEo}, v{t+8}
    v_lshlrev_b32 v{vEo}, 4, v{vEo}
    """)
    if "pmarks" not in exp and "bmarks" not in exp and "smarks" not in exp: common.mark(P, 5)
    for e in exp:
        if e.startswith("esleep="): P(f"s_sleep {int(e[7:])}")
    ep = P.newlabel(pfx + "_epoll")
    P.L(ep)
    for i in range(8):
        P(f"v_add_u32 v{t}, {i * 9216}, v{vEo}")
        P(f"buffer_load_dwordx4 {vr(EDr[i],4)}, v{t}, s[{sE}:{sE+3}], 0 offen sc1")
    P(f"s_mov_b64 s[{sBad}:{sBad+1}], 0")
    for i in range(8):
        P(f"""
        v_cmp_eq_u32 vcc, s{sTag}, v{EDr[i]+1}
        v_cmp_eq_u32 s[{sOk}:{sOk+1}], s{sTag}, v{EDr[i]+3}
        s_and_b64 s[{sOk}:{sOk+1}], s[{sOk}:{sOk+1}], vcc
        v_cmp_gt_i32 vcc, {-i}, v{vN}
        s_or_b64 s[{sOk}:{sOk+1}], s[{sOk}:{sOk+1}], vcc
        s_orn2_b64 s[{sBad}:{sBad+1}], s[{sBad}:{sBad+1}], s[{sOk}:{sOk+1}]
        """)
    edone = P.newlabel(pfx + "_edone")
    P(f"""
    s_cmp_eq_u64 s[{sBad}:{sBad+1}], 0
    s_cbranch_scc1 {edone}
    s_sleep 2
    s_branch {ep}
    """)
    P.L(edone)
    if "pmarks" not in exp and "bmarks" not in exp and "smarks" not in exp: common.mark(P, 6)
    H = (t + 4, t + 5)
    cmuladd(H[0], H[1], br, bi, None, EDr[0], EDr[0] + 2, EDr[1], EDr[1] + 2)
    for i in range(2, 8):
        cmuladd(H[0], H[1], br, bi, None, H[0], H[1], EDr[i], EDr[i] + 2)
    for _ in range(3):
        csq(br, bi, br, bi)
    a0, a1, b0, b1 = 66, 67, 68, 69
    P(f"""
    v_mov_b32 v{a0}, v{H[0]}
    v_mov_b32 v{b0}, v{H[0]}
    v_mov_b32 v{a1}, v{H[1]}
    v_mov_b32 v{b1}, v{H[1]}
    v_permlane32_swap_b32 v{a0}, v{b0}
    v_permlane32_swap_b32 v{a1}, v{b1}
    """)
    C0, C1, C2, C3 = (82, 83), (84, 85), (86, 87), (88, 89)
    cmuladd(C0[0], C0[1], br, bi, None, a0, a1, b0, b1)
    cmuladd(C1[0], C1[1], mr, mi, None, C0[0], C0[1], EL[0], EL[0] + 1)
    w1, gsel = P.newlabel(pfx + "_wm1"), P.newlabel(pfx + "_gsel")
    g0 = (t, t + 1)
    P(f"""
    v_cmp_le_u32 vcc, 32, v{vLane}
    s_cmp_eq_u32 s{sWM}, 0
    s_cbranch_scc0 {w1}
    v_cndmask_b32 v{g0[0]}, v{C0[0]}, v{C1[0]}, vcc
    v_cndmask_b32 v{g0[1]}, v{C0[1]}, v{C1[1]}, vcc
    s_branch {gsel}
    """)
    P.L(w1)
    cmuladd(C2[0], C2[1], mr, mi, None, C1[0], C1[1], EL[1], EL[1] + 1)
    cmuladd(C3[0], C3[1], mr, mi, None, C2[0], C2[1], EL[2], EL[2] + 1)
    P(f"""
    v_cndmask_b32 v{g0[0]}, v{C2[0]}, v{C3[0]}, vcc
    v_cndmask_b32 v{g0[1]}, v{C2[1]}, v{C3[1]}, vcc
    """)
    P.L(gsel)
    cur = g0
    if pks:
        P(f"""
        v_mov_b32 v{t+2}, v{g0[0]}
        v_mov_b32 v{t+4}, v{g0[1]}
        """)
        cmuladd(t + 3, t + 5, hr, hi_, None, g0[0], g0[1], EAr[0], EAr[1])
        cur = (t + 2, t + 4)
        for j in range(16):
            pk_step(Upair(j), cur, Upair(j))
            cur = Upair(j)
    for tau in range(32 if not pks else 0):
        ur, ui = U(tau, 0), U(tau, 1)
        P(f"""
        v_fmac_f32 v{ur}, v{lr}, v{cur[0]}
        v_fmac_f32 v{ui}, v{lr}, v{cur[1]}
        v_fmac_f32 v{ur}, v{nli}, v{cur[1]}
        v_fmac_f32 v{ui}, v{li}, v{cur[0]}
        """)
        cur = (ur, ui)
    if not early:
        tr_write_addr()
    PK = 66
    for cp in range(2):
        for k in range(16):
            P(f"v_cvt_pk_bf16_f32 v{PK + 16 * cp + k}, v{U(2 * k, cp)}, v{U(2 * k + 1, cp)}")
        for m in range(4):
            P(f"v_xor_b32 v{vX_}, {16 * m}, v{vTW}")
            P(f"ds_write_b128 v{vX_}, {vr(PK + 16 * cp + 4 * m, 4)} offset:{cp * 4096}")
    if not early:
        tr_read_addr()
    P(f"""
    s_lshl_b32 s{sT}, s{sTB}, 2
    s_lshl_b32 s{sT2}, s{sWM}, 1
    s_add_u32 s{sT}, s{sT}, s{sT2}
    s_mul_i32 s{sT}, s{sT}, 72
    s_lshl_b32 s{sT2}, s{sSB}, 2
    s_add_u32 s{sT}, s{sT}, s{sT2}
    s_lshl_b32 s{sT2}, s{sWN}, 1
    s_add_u32 s{sT}, s{sT}, s{sT2}
    s_lshl_b32 s{sT}, s{sT}, 10
    s_add_u32 s{sT}, s{sT}, {WS_HF}
    s_waitcnt lgkmcnt(0)
    """)
    TRA = [t + 4, t + 5, t + 6, t + 7]
    for tt2 in range(2):
        for rd in range(2):
            P(f"v_xor_b32 v{TRA[2 * tt2 + rd]}, {tt2 * 64 + rd * 32}, v{vTR}")
    FR = [2 + 4 * i for i in range(8)]
    k = 0
    for tt2 in range(2):
        for cp in range(2):
            for s16 in range(2):
                for rd in range(2):
                    P(f"ds_read_b64_tr_b16 {vr(FR[k] + 2 * rd, 2)}, v{TRA[2 * tt2 + rd]} offset:{cp * 4096 + s16 * 2048 + rd * 512}")
                k += 1
    k = 0
    for tt2 in range(2):
        for cp in range(2):
            P(f"s_add_u32 s{sT2}, s{sT}, {(tt2 * 72 + cp * 36) * 1024}")
            for s16 in range(2):
                P(f"buffer_store_dwordx4 {vr(FR[k],4)}, v{vL16}, {ws}, s{sT2} offen offset:{s16 * 1024} sc1")
                k += 1
    if "pmarks" not in exp and "bmarks" not in exp and "smarks" not in exp: common.mark(P, 7)
    P("s_waitcnt vmcnt(0)")
    P("s_barrier")
    common.mark(P, 8)
    fl = P.newlabel(pfx + "_noflag")
    if rawb:
        P(f"""
        s_cmp_eq_u32 s{sW}, 0
        s_cbranch_scc0 {fl}
        s_lshl_b32 s{sT}, s{sIdx}, 2
        s_add_u32 s{sT}, s{sT}, {WS_FLG + FLG_PREP}
        v_mov_b32 v2, {flag}
        v_lshlrev_b32 v3, 12, v{vLane}
        s_mov_b32 exec_hi, 0
        s_mov_b32 exec_lo, 0xffff
        buffer_store_dword v2, v3, {ws}, s{sT} offen sc1
        s_mov_b64 exec, -1
        """)
    else:
      P(f"""
    s_cmp_eq_u32 s{sW}, 0
    s_cbranch_scc0 {fl}
    s_lshl_b32 s{sT}, s{sTB}, 6
    s_lshl_b32 s{sT2}, s{sSB}, 2
    s_add_u32 s{sT}, s{sT}, s{sT2}
    s_add_u32 s{sT}, s{sT}, {WS_FLG + FLG_HF}
    v_mov_b32 v2, {flag}
    v_mov_b32 v3, 0
    s_mov_b32 exec_hi, 0
    s_mov_b32 exec_lo, 1
    buffer_store_dword v2, v3, {ws}, s{sT} offen sc1
    s_mov_b64 exec, -1
    """)
    P.L(fl)
    if rawb:
        block_map(False)
        P(f"""
        s_lshl_b32 s{sTile}, s{sTB}, 2
        s_add_u32 s{sTile}, s{sTile}, s{sMT}
        """)
    out_phases(False)

    iL = len(P.items)
    P.L(L("loader"))
    if "lmarks" in exp: common.mark(P, 6)
    P(f"""
    s_lshl_b32 s{sT}, s{sTB}, 2
    s_add_u32 s{sT}, s{sT}, s{sMT}
    s_mul_i32 s{sXo}, s{sT}, {36 * 1024}
    s_add_u32 s{sXo}, s{sXo}, {WS_XF}
    s_lshl_b32 s{sT}, s{sSB}, 2
    s_add_u32 s{sT}, s{sT}, s{sMT}
    s_mul_i32 s{sBo}, s{sT}, {36 * 1024}
    s_add_u32 s{sBo}, s{sBo}, {WS_BF}
    s_lshl_b32 s{sM}, s{sMT}, 11
    """)

    def dmaA(s_):
        slot = s_ % 5
        P(f"""
        s_add_u32 m0, s{sM}, {slot * SLOT}
        s_nop 0
        buffer_load_dwordx4 v{vL16}, {ws}, s{sXo} offen lds
        buffer_load_dwordx4 v{vL16}, {ws}, s{sXo} offen offset:1024 lds
        s_add_u32 m0, s{sM}, {slot * SLOT + 8192}
        s_add_u32 s{sXo}, s{sXo}, 2048
        buffer_load_dwordx4 v{vL16}, {ws}, s{sBo} offen lds
        buffer_load_dwordx4 v{vL16}, {ws}, s{sBo} offen offset:1024 lds
        s_add_u32 s{sBo}, s{sBo}, 2048
        """)

    if merged:
        vDX = [4, 5, 6, 7]
        sMX, sMW, sOffX = sM, 25, 31
        DUX = 4 * 1152 - 1024
        P(f"""
        v_lshrrev_b32 v8, 5, v{vLane}
        v_lshlrev_b32 v8, 5, v8
        v_lshrrev_b32 v9, 3, v{vLane}
        v_and_b32 v9, 3, v9
        v_add_u32 v8, v8, v9
        v_mul_u32_u24 v8, 1152, v8
        v_lshrrev_b32 v9, 4, v{vLane}
        v_and_b32 v10, 7, v{vLane}
        v_xor_b32 v9, v9, v10
        v_lshlrev_b32 v9, 4, v9
        v_xor_b32 v10, 64, v9
        v_add_u32 v{vDX[0]}, v8, v9
        v_add_u32 v10, v8, v10
        v_add_u32 v{vDX[1]}, {DUX}, v10
        v_add_u32 v{vDX[2]}, {2 * DUX}, v{vDX[0]}
        v_add_u32 v{vDX[3]}, {3 * DUX}, v10
        s_lshl_b32 s{sOffX}, s{sTB}, 7
        s_lshr_b32 s{sT}, s{sMT}, 1
        s_lshl_b32 s{sT}, s{sT}, 6
        s_add_u32 s{sOffX}, s{sOffX}, s{sT}
        s_and_b32 s{sT}, s{sMT}, 1
        s_lshl_b32 s{sT}, s{sT}, 4
        s_add_u32 s{sOffX}, s{sOffX}, s{sT}
        s_mul_i32 s{sOffX}, s{sOffX}, 1152
        s_lshl_b32 s{sMX}, s{sMT}, 12
        s_lshl_b32 s{sMW}, s{sMT}, 11
        s_add_u32 s{sMW}, s{sMW}, {WBASE}
        """)
        lp, dn = P.newlabel(pfx + "_ppoll"), P.newlabel(pfx + "_pdone")
        if rawb:
            sB4 = 44
            P(f"""
            s_load_dwordx4 s[52:55], s[0:1], {KA_BRE}
            """.replace("s[52:55]", "s[84:87]"))
            P(f"""
            v_lshrrev_b32 v8, 2, v{vLane}
            s_lshl_b32 s{sT}, s{sSB}, 6
            s_and_b32 s{sT2}, s{sMT}, 1
            s_lshl_b32 s{sT2}, s{sT2}, 5
            s_add_u32 s{sT}, s{sT}, s{sT2}
            v_add_u32 v8, s{sT}, v8
            v_mul_u32_u24 v8, 1152, v8
            v_lshrrev_b32 v9, 4, v{vLane}
            v_xor_b32 v9, v9, v{vLane}
            v_and_b32 v9, 3, v9
            v_lshlrev_b32 v9, 4, v9
            v_add_u32 v2, v8, v9
            v_add_u32 v3, {16 * 1152 - 1024}, v2
            s_mov_b32 s{sB4+2}, {576 * 1152}
            s_mov_b32 s{sB4+3}, 0x00020000
            s_mov_b32 s{sBo}, 0
            s_cmp_ge_u32 s{sMT}, 2
            s_waitcnt lgkmcnt(0)
            s_cselect_b32 s{sB4}, s86, s84
            s_cselect_b32 s{sB4+1}, s87, s85
            """)
            P(f"""
            s_cmp_eq_u32 s{sW}, 4
            s_cbranch_scc0 {dn}
            s_lshl_b32 s{sT}, s{sIdx}, 6
            s_add_u32 s{sT}, s{sT}, {WS_FLG + FLG_GO}
            s_mov_b64 exec, 1
            """)
            if "nogo" in exp:
                P(f"s_branch {dn}")
            P.L(lp)
            P(f"""
            buffer_load_dword v12, off, {ws}, s{sT} sc1
            s_waitcnt vmcnt(0)
            v_cmp_ne_u32 vcc, {flag}, v12
            s_cbranch_vccz {dn}
            s_sleep {psleep}
            s_branch {lp}
            """)
        else:
          P(f"""
        s_cmp_eq_u32 s{sW}, 4
        s_cbranch_scc0 {dn}
        s_and_b32 s{sT2}, s{sIdx}, {NREP - 1}
        s_lshl_b32 s{sT2}, s{sT2}, 12
        s_lshl_b32 s{sT}, s{sIdx}, 6
        s_add_u32 s{sT}, s{sT}, {FLG_GO - FLG_PREP}
        s_sub_u32 s{sT}, s{sT}, s{sT2}
        v_mov_b32 v9, s{sT}
        v_cmp_eq_u32 vcc, 36, v{vLane}
        v_cndmask_b32 v8, v{vL16}, v9, vcc
        s_add_u32 s{sT}, s{sT2}, {WS_FLG + FLG_PREP}
        s_mov_b32 exec_hi, {"0xf" if "nogo" in exp else "0x1f"}
        """)
        if not rawb:
          P.L(lp)
          P(f"""
        buffer_load_dwordx4 v[12:15], v8, {ws}, s{sT} offen sc1
        s_waitcnt vmcnt(0)
        v_cmp_ne_u32 vcc, {flag}, v12
        v_cmp_ne_u32 s[{sOk}:{sOk+1}], {flag}, v13
        s_or_b64 s[{sBad}:{sBad+1}], vcc, s[{sOk}:{sOk+1}]
        v_cmp_ne_u32 vcc, {flag}, v14
        v_cmp_ne_u32 s[{sOk}:{sOk+1}], {flag}, v15
        s_or_b64 s[{sBad}:{sBad+1}], s[{sBad}:{sBad+1}], vcc
        s_or_b64 s[{sBad}:{sBad+1}], s[{sBad}:{sBad+1}], s[{sOk}:{sOk+1}]
        s_cbranch_scc0 {dn}
        s_sleep {psleep}
        s_branch {lp}
        """)
        P.L(dn)
        P("s_mov_b64 exec, -1")
        if "bmarks" in exp: common.mark(P, 5)
        P("s_barrier")
        if "pmarks" in exp: common.mark(P, 7)
        q = []

        def dmax(c):
            P(f"s_add_u32 m0, s{sMX}, {(c % NX) * XSLOT}")
            P("s_nop 0")
            for u in range(4):
                P(f"buffer_load_dwordx4 v{vDX[u]}, s[{sAX}:{sAX+3}], s{sOffX} offen offset:{u * 1024} lds")
            P(f"s_add_u32 s{sOffX}, s{sOffX}, 128")
            q.extend([f"x{c}"] * 4)

        def dmab(b):
            if rawb:
                P(f"""
                s_add_u32 m0, s{sMW}, {(b % NWS) * WSLOT}
                s_nop 0
                buffer_load_dwordx4 v2, s[{sB4}:{sB4+3}], s{sBo} offen lds
                buffer_load_dwordx4 v3, s[{sB4}:{sB4+3}], s{sBo} offen offset:1024 lds
                s_add_u32 s{sBo}, s{sBo}, 64
                """)
                q.extend([f"w{b}"] * 2)
                return
            P(f"""
            s_add_u32 m0, s{sMW}, {(b % NWS) * WSLOT}
            s_nop 0
            buffer_load_dwordx4 v{vL16}, {ws}, s{sBo} offen lds
            buffer_load_dwordx4 v{vL16}, {ws}, s{sBo} offen offset:1024 lds
            s_add_u32 s{sBo}, s{sBo}, 2048
            """)
            q.extend([f"w{b}"] * 2)

        def wait(tags):
            idx = max(i for i, e in enumerate(q) if e in tags)
            P(f"s_waitcnt vmcnt({len(q) - 1 - idx})")

        dmax(0); dmab(0); dmab(1); dmax(1); dmab(2); dmab(3); dmax(2)
        P(f"s_setprio {prio['l']}")
        wait(["x0", "w0"])
        P("s_barrier")
        for b in range(17):
            wait([f"w{b + 1}"] + ([f"x{(b + 1) // 2}"] if b & 1 else []))
            P("s_barrier")
            if b + 4 < 18:
                dmab(b + 4)
            if b & 1 and (b - 1) // 2 + 3 < 9:
                dmax((b - 1) // 2 + 3)
        if rawb:
            from prepm import emit_prep
            emit_prep(P, sIdx, sWave, exp=exp, late=True, mid=lambda: P("s_barrier"))
            base_regs(False)
    elif not fusedb:
        pre = 5
        for e in exp:
            if e.startswith("spre="): pre = int(e[5:])
        issued = []

        def req(s_):
            dmaA(s_)
            issued.append(s_)

        def landed(s_):
            P(f"s_waitcnt vmcnt({4 * (len(issued) - 1 - issued.index(s_))})")

        for s_ in range(pre):
            req(s_)
            if "lmarks" in exp and s_ == 0: common.mark(P, 8)
        if lfirst:
            base_regs(rest=True)
        P(f"s_setprio {prio['l']}")
        if "smarks" in exp: common.mark(P, 5)
        landed(0)
        if "smarks" in exp: common.mark(P, 7)
        P("s_barrier")
        for s_ in range(pre, 5):
            req(s_)
        for s_ in range(17):
            landed(s_ + 1)
            P("s_barrier")
            if s_ + 5 < 18:
                req(s_ + 5)
    P(f"""
    s_lshl_b32 s{sT}, s{sSB}, 1
    s_and_b32 s{sT2}, s{sMT}, 1
    s_add_u32 s{sT}, s{sT}, s{sT2}
    s_mul_i32 s{sCo}, s{sT}, {72 * 1024}
    s_lshr_b32 s{sT2}, s{sMT}, 1
    s_mul_i32 s{sT2}, s{sT2}, {36 * 1024}
    s_add_u32 s{sCo}, s{sCo}, s{sT2}
    s_add_u32 s{sCo}, s{sCo}, {WS_CF}
    s_mul_i32 s{sWo}, s{sT}, {36 * 1024}
    s_lshr_b32 s{sT2}, s{sMT}, 1
    s_mul_i32 s{sT2}, s{sT2}, {18 * 1024}
    s_add_u32 s{sWo}, s{sWo}, s{sT2}
    s_add_u32 s{sWo}, s{sWo}, {WS_WF}
    s_lshl_b32 s{sM}, s{sMT}, 12
    """)
    if crot:
        P(f"""
        s_add_u32 s{sCend}, s{sCo}, {9 * 4096}
        s_lshl_b32 s{sT3}, s{sRot}, 12
        s_add_u32 s{sCo}, s{sCo}, s{sT3}
        """)
    lp, dn = P.newlabel(pfx + "_hpoll"), P.newlabel(pfx + "_hdone")
    if rawb:
        P(f"""
        s_waitcnt vmcnt(0)
        s_barrier
        s_cmp_eq_u32 s{sW}, 4
        s_cbranch_scc0 {dn}
        s_and_b32 s{sT2}, s{sIdx}, {NREP - 1}
        s_lshl_b32 s{sT2}, s{sT2}, 12
        s_add_u32 s{sT}, s{sT2}, {WS_FLG + FLG_K1}
        s_lshl_b32 s{sT2}, s{sTB}, 6
        s_add_u32 s{sT2}, s{sT2}, {FLG_K1T - FLG_K1 - 36 * 16}
        v_add_u32 v9, s{sT2}, v{vL16}
        v_add_u32 v8, {FLG_PREP - FLG_K1}, v{vL16}
        v_cmp_le_u32 vcc, 36, v{vLane}
        v_cndmask_b32 v8, v8, v9, vcc
        s_mov_b32 exec_hi, 0xff
        """)
        P.L(lp)
        P(f"""
        buffer_load_dwordx4 v[12:15], v8, {ws}, s{sT} offen sc1
        s_waitcnt vmcnt(0)
        v_cmp_ne_u32 vcc, {flag}, v12
        v_cmp_ne_u32 s[{sOk}:{sOk+1}], {flag}, v13
        s_or_b64 s[{sBad}:{sBad+1}], vcc, s[{sOk}:{sOk+1}]
        v_cmp_ne_u32 vcc, {flag}, v14
        v_cmp_ne_u32 s[{sOk}:{sOk+1}], {flag}, v15
        s_or_b64 s[{sBad}:{sBad+1}], s[{sBad}:{sBad+1}], vcc
        s_or_b64 s[{sBad}:{sBad+1}], s[{sBad}:{sBad+1}], s[{sOk}:{sOk+1}]
        s_cbranch_scc0 {dn}
        s_sleep 4
        s_branch {lp}
        """)
        P.L(dn)
        P("s_mov_b64 exec, -1")
        out_phases(True)
        return hi[0]
    P("s_barrier")
    cf_dma(0)
    cf_dma(1)
    P("s_barrier")
    for c in (2, 3, 4):
        cf_dma(c)
    P(f"""
    s_cmp_eq_u32 s{sW}, 4
    s_cbranch_scc0 {dn}
    s_lshl_b32 s{sT}, s{sTB}, 6
    s_add_u32 s{sT}, s{sT}, {WS_FLG + FLG_HF}
    v_lshlrev_b32 v2, 2, v{vLane}
    """)
    if merged:
        P(f"""
        s_and_b32 s{sT2}, s{sIdx}, {NREP - 1}
        s_lshl_b32 s{sT2}, s{sT2}, 12
        s_add_u32 s{sT2}, s{sT2}, {FLG_K1T - FLG_HF - 64}
        v_add_u32 v3, s{sT2}, v2
        v_cmp_le_u32 vcc, 16, v{vLane}
        v_cndmask_b32 v2, v2, v3, vcc
        """)
    P(f"""
    s_mov_b32 exec_hi, 0
    s_mov_b32 exec_lo, {"0xffff01ff" if merged else "0x1ff"}
    """)
    P.L(lp)
    P(f"""
    buffer_load_dword v3, v2, {ws}, s{sT} offen sc1
    s_waitcnt vmcnt(0)
    v_cmp_ne_u32 vcc, {flag}, v3
    s_cbranch_vccz {dn}
    s_sleep 2
    s_branch {lp}
    """)
    P.L(dn)
    P("s_mov_b64 exec, -1")
    P("s_waitcnt vmcnt(0)")
    out_phases(True)
    if lfirst:
        P.items = P.items[:iC] + P.items[iL:] + P.items[iC:iL]
    return hi[0]
```

```python
from asmgen import *
from layout import *
from prepk import emit_lambda, srd_from_kernarg, f32
import common

SLOT = 16384
SVC_LDS = 81920
ELOC = 78 * 1024
HDEPTH = 16
ODEPTH = 12


def emit_service(P, sIdx, pfx="svc", end="s_endpgm", exp=(), sWave=None, sNonce=None):
    L = lambda n: f"{pfx}_{n}"
    ws = "s[4:7]"
    prio = {"b": 3, "c": 3, "0": 3, "l": 3, "s": 3}
    psleep = 2
    HDEPTH = globals()["HDEPTH"]
    xearly = None
    for e in exp:
        if e.startswith("xearly="): xearly = int(e[7:])
    mixc = 6
    for e in exp:
        if e.startswith("mixc="): mixc = int(e[5:])
    for e in exp:
        if e.startswith("hd="): HDEPTH = int(e[3:])
    for e in exp:
        if e.startswith("psleep="): psleep = int(e[7:])
        if e.startswith("pb="): prio["b"] = int(e[3:])
        if e.startswith("pc="): prio["c"] = int(e[3:])
        if e.startswith("p0="): prio["0"] = int(e[3:])
        if e.startswith("pl="): prio["l"] = int(e[3:])
        if e.startswith("ps="): prio["s"] = int(e[3:])
    sTB, sSB, sW, sWM, sWN, sM, sXo, sBo, sCo, sHo = 8, 9, 10, 11, 12, 13, 14, 15, 16, 17
    sT, sT2, sT3, sTag, sKH, sMT, sTile = 18, 19, 20, 21, 22, 23, 24
    sOk, sBad = 26, 28
    sWo = 30
    crot = "crot" in exp
    sRot, sHend, sCend = 48, 25, 31
    sE, sAX, sOut, sP = 32, 36, 40, 44
    vLane, vL16 = 0, 1
    hi = [2]

    def use(*regs):
        hi[0] = max(hi[0], max(regs) + 1)

    merged = sWave is not None
    rawb = merged and "rawb" in exp
    fusedb = "fusedb" in exp
    flag = f"s{sTag}" if merged else "1"

    def block_map(scan):
        if scan and rawb and "nomapa" not in exp:
            P(f"""
            s_lshr_b32 s{sT}, s{sIdx}, 3
            s_lshr_b32 s{sT2}, s{sIdx}, 1
            s_and_b32 s{sT2}, s{sT2}, 3
            s_lshl_b32 s{sT2}, s{sT2}, 1
            s_lshr_b32 s{sSB}, s{sT}, 3
            s_add_u32 s{sSB}, s{sSB}, s{sT2}
            s_and_b32 s{sTB}, s{sIdx}, 1
            s_lshl_b32 s{sTB}, s{sTB}, 3
            s_and_b32 s{sT3}, s{sT}, 7
            s_add_u32 s{sTB}, s{sTB}, s{sT3}
            s_cmp_ge_u32 s{sT}, 16
            s_cselect_b32 s{sSB}, 8, s{sSB}
            s_cselect_b32 s{sT2}, s{sT2}, 0
            s_add_u32 s{sTB}, s{sTB}, s{sT2}
            """)
        else:
            P(f"""
            s_and_b32 s{sTB}, s{sIdx}, 7
            s_lshl_b32 s{sTB}, s{sTB}, 1
            s_lshr_b32 s{sT}, s{sIdx}, 3
            s_and_b32 s{sT}, s{sT}, 1
            s_add_u32 s{sTB}, s{sTB}, s{sT}
            s_lshr_b32 s{sSB}, s{sIdx}, 4
            """)

    lfirst = "lfirst" in exp

    def base_min(scan=True):
        P(f"""
        {"v_lshrrev_b32 v2, 6, v0" if not merged else ""}
        {"v_and_b32 v%d, 63, v0" % vLane if not merged else ""}
        {"v_readfirstlane_b32 s%d, v2" % sW if not merged else "s_mov_b32 s%d, s%d" % (sW, sWave)}
        v_lshlrev_b32 v{vL16}, 4, v{vLane}
        """)
        block_map(scan)
        P(f"""
        s_and_b32 s{sMT}, s{sW}, 3
        s_lshr_b32 s{sKH}, s{sW}, 2
        """)

    def base_regs(scan=True, rest=False):
        srd_from_kernarg(P, sAX, KA_AX, 2048 * 1152)
        srd_from_kernarg(P, sOut, KA_OUT, 2048 * 2304)
        if not rest:
            base_min(scan)
        P(f"""
        s_mov_b32 s{sTag}, {TAG if not merged else 's%d' % sNonce}
        s_add_u32 s{sE}, s4, {WS_E}
        s_addc_u32 s{sE+1}, s5, 0
        s_mov_b32 s{sE+2}, {E_BYTES}
        s_mov_b32 s{sE+3}, 0x00020000
        s_lshl_b32 s{sTile}, s{sTB}, 2
        s_add_u32 s{sTile}, s{sTile}, s{sMT}
        s_and_b32 s{sT}, s{sTB}, 1
        s_lshl_b32 s{sT}, s{sT}, 2
        s_add_u32 s{sRot}, s{sSB}, s{sT}
        s_sub_u32 s{sT}, s{sRot}, 9
        s_cmp_ge_u32 s{sRot}, 9
        s_cselect_b32 s{sRot}, s{sT}, s{sRot}
        """)

    if "lmarks" in exp: common.mark(P, 4)
    if lfirst:
        P(f"s_setprio {prio['0']}")
        base_min()
        P(f"""
        s_cmp_eq_u32 s{sKH}, 0
        s_cbranch_scc1 {L('compute')}
        """)
        iC = len(P.items)
        P.L(L("compute"))
        base_regs(rest=True)
    else:
        base_regs()
        P(f"""
        s_setprio {prio['0']}
        s_cmp_eq_u32 s{sKH}, 0
        s_cbranch_scc0 {L('loader')}
        """)


    def wrap(reg, endreg):
        P(f"""
        s_sub_u32 s{sT3}, s{reg}, {9 * 4096}
        s_cmp_ge_u32 s{reg}, s{endreg}
        s_cselect_b32 s{reg}, s{sT3}, s{reg}
        """)

    def cf_dma(c):
        slot = (c + 2) % 5
        P(f"""
        s_add_u32 m0, s{sM}, {slot * SLOT}
        s_nop 0
        buffer_load_dwordx4 v{vL16}, {ws}, s{sCo} offen lds
        buffer_load_dwordx4 v{vL16}, {ws}, s{sCo} offen offset:1024 lds
        buffer_load_dwordx4 v{vL16}, {ws}, s{sCo} offen offset:2048 lds
        buffer_load_dwordx4 v{vL16}, {ws}, s{sCo} offen offset:3072 lds
        s_add_u32 s{sCo}, s{sCo}, 4096
        """)
        if crot:
            wrap(sCo, sCend)

    def wf_dma(j):
        slot = (9 + j + 2) % 5
        P(f"s_add_u32 m0, s{sM}, {slot * SLOT}")
        P("s_nop 0")
        nk = 4 if j < 4 else 2
        for k in range(nk):
            P(f"buffer_load_dwordx4 v{vL16}, {ws}, s{sWo} offen offset:{k * 1024} lds")
        P(f"s_add_u32 s{sWo}, s{sWo}, 4096")
        return nk

    def out_phases(loader):
        outA = "outA" in exp
        ACC = [2, 18]
        HF = [34 + 4 * i for i in range(HDEPTH)]
        BF = [[98, 102], [106, 110]]
        vC0, vC1 = 114, 115
        vG1, vX, vY, vO, vTm = 116, 117, 118, 119, 120
        XR, DR, GR = 50, 58, 60
        if HDEPTH <= 12:
            XR, DR, GR = 82, 90, 92
        T = 34
        use(121)
        P(f"""
        s_mul_i32 s{sHo}, s{sTile}, {72 * 1024}
        s_mul_i32 s{sT}, s{sKH}, {36 * 1024}
        s_add_u32 s{sHo}, s{sHo}, s{sT}
        s_add_u32 s{sHo}, s{sHo}, {WS_HF}
        s_lshl_b32 s{sT}, s{sKH}, 13
        v_add_u32 v{vC0}, s{sT}, v{vL16}
        v_add_u32 v{vC1}, 0x10000, v{vC0}
        """)
        if crot:
            P(f"""
            s_add_u32 s{sHend}, s{sHo}, {9 * 4096}
            s_lshl_b32 s{sT}, s{sRot}, 12
            s_add_u32 s{sHo}, s{sHo}, s{sT}
            """)
        P("s_barrier")
        common.mark(P, 1)
        vm = []
        if loader and rawb:
            for c in range(5):
                cf_dma(c)
                vm.extend([("c", c)] * 4)

        def hload(n):
            if n % 4 == 0 and n > 0:
                P(f"s_add_u32 s{sHo}, s{sHo}, 4096")
                if crot:
                    wrap(sHo, sHend)
            P(f"buffer_load_dwordx4 {vr(HF[n % HDEPTH],4)}, v{vL16}, {ws}, s{sHo} offen offset:{(n % 4) * 1024}" + ("" if "hfl2" in exp else " sc1"))
            vm.append(("h", n))

        fast = [e for e in exp if e.startswith("fast=")]
        fastc = int(fast[0].split("=")[1]) if fast else None
        NF = 8 if fast else 0
        for n in range(HDEPTH):
            hload(n)
        P(f"s_setprio {prio['c']}")
        srd_from_kernarg(P, sP, KA_DSK, 1152)

        def creads(n):
            c, ks = divmod(n, 4)
            slot = (c + 2) % 5
            base, off = (vC1, 0) if slot == 4 else (vC0, slot * SLOT)
            return [f"ds_read_b128 {vr(BF[n & 1][ct],4)}, v{base} offset:{off + ct * 4096 + ks * 1024}" for ct in range(2)]

        def mix_loads_a():
            P(f"""
            v_and_b32 v{vTm}, 31, v{vLane}
            v_lshrrev_b32 v{vY}, 5, v{vLane}
            v_mul_u32_u24 v{vX}, 1152, v{vTm}
            v_lshlrev_b32 v{vY}, 3, v{vY}
            v_add_u32 v{vX}, v{vX}, v{vY}
            s_mul_i32 s{sT}, s{sTile}, {32 * 1152}
            s_lshl_b32 s{sT2}, s{sSB}, 7
            s_lshl_b32 s{sT3}, s{sKH}, 6
            s_add_u32 s{sT2}, s{sT2}, s{sT3}
            s_add_u32 s{sT}, s{sT}, s{sT2}
            """)
            for q in range(4):
                P(f"buffer_load_dwordx2 {vr(XR + 2 * q, 2)}, v{vX}, s[{sAX}:{sAX+3}], s{sT} offen offset:{16 * q}")
            for q in range(4):
                P(f"buffer_load_dwordx2 {vr(DR + 2 * q, 2)}, v{vY}, s[{sP}:{sP+3}], s{sT2} offen offset:{16 * q}")
            P(f"""
            v_lshlrev_b32 v{vX}, 2, v{vTm}
            s_lshl_b32 s{sT}, s{sTile}, 7
            s_add_u32 s{sT}, s{sT}, {WS_G}
            buffer_load_dword v{vG1}, v{vX}, {ws}, s{sT} offen
            v_mul_u32_u24 v{vTm}, 2304, v{vTm}
            v_lshlrev_b32 v{vO}, 1, v{vY}
            v_add_u32 v{vO}, v{vO}, v{vTm}
            """)
            vm.extend([("x", 0)] * 9)

        def mix_loads():
            P(f"""
            v_lshrrev_b32 v{vTm}, 3, v{vLane}
            v_xor_b32 v{vO}, v{vTm}, v{vLane}
            v_and_b32 v{vO}, 7, v{vO}
            v_mul_u32_u24 v{vX}, 1152, v{vTm}
            v_lshlrev_b32 v{vY}, 3, v{vO}
            v_add_u32 v{vX}, v{vX}, v{vY}
            s_mul_i32 s{sT}, s{sTile}, {32 * 1152}
            s_lshl_b32 s{sT2}, s{sSB}, 7
            s_lshl_b32 s{sT3}, s{sKH}, 6
            s_add_u32 s{sT2}, s{sT2}, s{sT3}
            s_add_u32 s{sT}, s{sT}, s{sT2}
            """)
            for i in range(4):
                P(f"buffer_load_dwordx2 {vr(XR + 2 * i, 2)}, v{vX}, s[{sAX}:{sAX+3}], s{sT} offen")
                if i < 3:
                    P(f"s_add_u32 s{sT}, s{sT}, {8 * 1152}")
            P(f"""
            buffer_load_dwordx2 {vr(DR, 2)}, v{vY}, s[{sP}:{sP+3}], s{sT2} offen
            v_lshlrev_b32 v{vY}, 2, v{vTm}
            s_lshl_b32 s{sT}, s{sTile}, 7
            s_add_u32 s{sT}, s{sT}, {WS_G}
            """)
            for i in range(4):
                P(f"buffer_load_dword v{GR + i}, v{vY}, {ws}, s{sT} offen offset:{32 * i}")
            P(f"""
            v_and_b32 v{vX}, 31, v{vLane}
            v_lshlrev_b32 v{vX}, 2, v{vX}
            buffer_load_dword v{vG1}, v{vX}, {ws}, s{sT} offen
            v_mul_u32_u24 v{vTm}, 2304, v{vTm}
            v_lshlrev_b32 v{vO}, 4, v{vO}
            v_add_u32 v{vO}, v{vO}, v{vTm}
            """)
            vm.extend([("x", 0)] * 10)

        for c in range(9):
            if loader and (c >= 5 or rawb):
                idx = max(i for i, e in enumerate(vm) if e == ("c", c))
                P(f"s_waitcnt vmcnt({len(vm) - 1 - idx})")
            P("s_barrier")
            if loader and 1 <= c <= 4:
                cf_dma(c + 4)
                vm.extend([("c", c + 4)] * 4)
            if loader and c >= 5 and "wflate" not in exp:
                vm.extend([("w", c - 5)] * wf_dma(c - 5))
            if fast and c == fastc:
                P(f"""
                s_lshl_b32 s{sOk}, s{sTile}, 7
                s_add_u32 s{sOk}, s{sOk}, {WS_FLG + FLG_ATT2}
                v_and_b32 v121, 31, v{vLane}
                {"" if loader else "v_min_u32 v121, 17, v121"}
                v_lshlrev_b32 v121, 2, v121
                buffer_load_dword v122, v121, {ws}, s{sOk} offen sc1
                """)
                vm.append(("f", 0))
            if c == mixc and "mixlate" not in exp:
                if "mixp" in exp: P("s_setprio 3")
                mix_loads_a() if outA else mix_loads()
                if "mixp" in exp: P(f"s_setprio {prio['c']}")
            if "cmarks" in exp:
                common.mark(P, [4, 5, 6, 7, 8, 14, 15, 12, 13][c])
            else:
                if c == 4: common.mark(P, 14)
                if c == 7: common.mark(P, 15)
            for r in creads(4 * c):
                P(r)
            for ks in range(4):
                n = 4 * c + ks
                if ks < 3:
                    for r in creads(n + 1):
                        P(r)
                for ct in range(2):
                    cop = "0" if n == 0 else vr(ACC[ct], 16)
                    P(f"v_mfma_f32_32x32x16_bf16 {vr(ACC[ct],16)}, {vr(BF[n & 1][ct],4)}, {vr(HF[n % HDEPTH],4)}, {cop}")
                if n + HDEPTH < 36:
                    hload(n + HDEPTH)
            P("s_waitcnt lgkmcnt(0)")
        P("s_setprio 3")
        P("s_barrier")
        if loader:
            if "wflate" in exp:
                for j in range(4):
                    wf_dma(j)
            wf_dma(4)
        if "mixlate" in exp:
            mix_loads_a() if outA else mix_loads()
        tpoll = "tpoll" in exp
        OFr = [50 + 4 * i for i in range(ODEPTH)]

        def fload(n):
            shared = loader and n >= 14
            P(f"s_add_u32 s{sT2}, s{sHo}, {(n // 4) * 4096}")
            P(f"buffer_load_dwordx4 {vr(OFr[n % ODEPTH],4)}, v{vL16}, {ws}, s{sT2} offen offset:{(n % 4) * 1024}" + ("" if not shared else " sc1"))

        if fast:
            assert tpoll and "wflag" in exp and "tb2" in exp and "ofl2" in exp and xearly is None
            lf, lsc = P.newlabel(pfx + "_fast"), P.newlabel(pfx + "_scale")
            P(f"""
            s_mul_i32 s{sT}, s{sKH}, {18 * 1024}
            s_mul_i32 s{sHo}, s{sTile}, {36 * 1024}
            s_add_u32 s{sHo}, s{sHo}, s{sT}
            s_add_u32 s{sHo}, s{sHo}, {WS_OF}
            v_cmp_ne_u32 vcc, {flag}, v122
            s_cbranch_vccz {lf}
            s_mov_b32 s{sOk + 1}, 0
            buffer_load_dword v122, v121, {ws}, s{sOk} offen sc1
            s_branch {lsc}
            """)
            P.L(lf)
            P(f"s_mov_b32 s{sOk + 1}, 1")
            for n in range(NF):
                fload(n)
            P.L(lsc)
        elif tpoll:
            if "wflag" in exp:
                P(f"""
                s_lshl_b32 s{sT}, s{sTile}, 7
                s_add_u32 s{sOk}, s{sT}, {WS_FLG + FLG_ATT2}
                v_and_b32 v121, 31, v{vLane}
                {"" if loader else "v_min_u32 v121, 17, v121"}
                """)
            else:
                P(f"""
                s_lshr_b32 s{sT}, s{sTB}, 1
                s_lshl_b32 s{sT}, s{sT}, 7
                s_add_u32 s{sOk}, s{sT}, {WS_FLG + FLG_ATT}
                v_and_b32 v121, 31, v{vLane}
                """)
            P(f"""
            v_lshlrev_b32 v121, 2, v121
            buffer_load_dword v122, v121, {ws}, s{sOk} offen sc1
            """)
        common.mark(P, 2)
        if outA:
            for q in range(4):
                for j in range(4):
                    sx, sd = XR + 2 * q + (j >> 1), DR + 2 * q + (j >> 1)
                    if j & 1:
                        P(f"v_and_b32 v{T + 4 * q + j}, 0xffff0000, v{sx}")
                        P(f"v_and_b32 v{98 + j}, 0xffff0000, v{sd}")
                    else:
                        P(f"v_lshlrev_b32 v{T + 4 * q + j}, 16, v{sx}")
                        P(f"v_lshlrev_b32 v{98 + j}, 16, v{sd}")
                for j in range(4):
                    P(f"v_mul_f32 v{98 + j}, v{vG1}, v{98 + j}")
                for j in range(4):
                    P(f"v_mul_f32 v{T + 4 * q + j}, v{T + 4 * q + j}, v{98 + j}")
        else:
            Df = [98, 99, 100, 101]
            P(f"""
            v_lshlrev_b32 v{Df[0]}, 16, v{DR}
            v_and_b32 v{Df[1]}, 0xffff0000, v{DR}
            v_lshlrev_b32 v{Df[2]}, 16, v{DR+1}
            v_and_b32 v{Df[3]}, 0xffff0000, v{DR+1}
            """)
            for i in range(4):
                for j in range(4):
                    src = XR + 2 * i + (j >> 1)
                    if j & 1:
                        P(f"v_and_b32 v{T + 4 * i + j}, 0xffff0000, v{src}")
                    else:
                        P(f"v_lshlrev_b32 v{T + 4 * i + j}, 16, v{src}")
                for j in range(4):
                    P(f"v_mul_f32 v{T + 4 * i + j}, v{T + 4 * i + j}, v{Df[j]}")
                for j in range(4):
                    P(f"v_mul_f32 v{T + 4 * i + j}, v{T + 4 * i + j}, v{GR + i}")
        for ct in range(2):
            for r in range(16):
                P(f"v_mul_f32 v{ACC[ct] + r}, v{vG1}, v{ACC[ct] + r}")
        common.mark(P, 9)
        if outA:
            P(f"""
            s_lshl_b32 s{sT}, s{sW}, 12
            v_add_u32 v{vX}, s{sT}, v{vL16}
            s_xor_b32 s{sT}, s{sW}, 4
            s_lshl_b32 s{sT}, s{sT}, 12
            v_add_u32 v{vY}, s{sT}, v{vL16}
            """)
        else:
            P(f"""
        v_and_b32 v{vTm}, 31, v{vLane}
        v_lshrrev_b32 v{vX}, 5, v{vLane}
        v_xor_b32 v{vX}, v{vX}, v{vTm}
        v_and_b32 v{vX}, 7, v{vX}
        v_lshlrev_b32 v{vX}, 4, v{vX}
        v_lshlrev_b32 v{vTm}, 7, v{vTm}
        v_add_u32 v{vX}, v{vX}, v{vTm}
        s_lshl_b32 s{sT}, s{sMT}, 14
        s_lshl_b32 s{sT2}, s{sKH}, {12 if xearly is None else 13}
        s_add_u32 s{sT2}, s{sT2}, s{sT}
        v_add_u32 v{vX}, s{sT2}, v{vX}
        s_lshl_b32 s{sT2}, s{sKH}, {13 if xearly is None else 12}
        s_add_u32 s{sT2}, s{sT2}, s{sT}
        v_add_u32 v{vY}, s{sT2}, v{vL16}
        """)
        if not fast:
            P(f"""
            s_mul_i32 s{sT}, s{sKH}, {18 * 1024}
            s_mul_i32 s{sHo}, s{sTile}, {36 * 1024}
            s_add_u32 s{sHo}, s{sHo}, s{sT}
            s_add_u32 s{sHo}, s{sHo}, {WS_OF}
            """)
        if fast:
            lf2, lcm = P.newlabel(pfx + "_fastb"), P.newlabel(pfx + "_both")
            P(f"""
            s_cmp_eq_u32 s{sOk + 1}, 1
            s_cbranch_scc1 {lf2}
            """)
        if tpoll:
            lp, dn = P.newlabel(pfx + "_apoll"), P.newlabel(pfx + "_adone")
            if "tb2" in exp:
                P("s_waitcnt vmcnt(0)")
                P("s_barrier")
            P.L(lp)
            P(f"""
            s_waitcnt vmcnt(0)
            v_cmp_ne_u32 vcc, {flag}, v122
            s_cbranch_vccz {dn}
            s_sleep 1
            buffer_load_dword v122, v121, {ws}, s{sOk} offen sc1
            s_branch {lp}
            """)
            P.L(dn)
            use(123)
            if fast:
                for n in range(NF):
                    fload(n)
                P(f"s_branch {lcm}")
                P.L(lf2)
                P(f"s_waitcnt vmcnt({NF})")
                P("s_barrier")
                P.L(lcm)
        elif not loader:
            lp, dn = P.newlabel(pfx + "_apoll"), P.newlabel(pfx + "_adone")
            P(f"""
            s_cmp_eq_u32 s{sW}, 0
            s_cbranch_scc0 {dn}
            s_lshr_b32 s{sT}, s{sTB}, 1
            s_lshl_b32 s{sT}, s{sT}, 7
            s_add_u32 s{sT}, s{sT}, {WS_FLG + FLG_ATT}
            v_lshlrev_b32 v121, 2, v{vLane}
            s_mov_b32 exec_hi, 0
            """)
            P.L(lp)
            P(f"""
            buffer_load_dword v122, v121, {ws}, s{sT} offen sc1
            s_waitcnt vmcnt(0)
            v_cmp_ne_u32 vcc, {flag}, v122
            s_cbranch_vccz {dn}
            s_sleep 1
            s_branch {lp}
            """)
            P.L(dn)
            P("s_mov_b64 exec, -1")
            use(123)
        if not tpoll:
            P("s_waitcnt vmcnt(0)")
            P("s_barrier")
        common.mark(P, 3)
        OFr = [50 + 4 * i for i in range(ODEPTH)]
        WB = BF

        def oload(n):
            if n % 4 == 0 and n > 0:
                P(f"s_add_u32 s{sHo}, s{sHo}, 4096")
            shared = loader and n >= 14
            P(f"buffer_load_dwordx4 {vr(OFr[n % ODEPTH],4)}, v{vL16}, {ws}, s{sHo} offen offset:{(n % 4) * 1024}" + ("" if "ofl2" in exp and not shared else " sc1"))

        if fast:
            oload = fload
        for n in range(NF, ODEPTH):
            oload(n)
        if tpoll and "tb2" not in exp:
            P("s_barrier")

        def wreads(n):
            j, ks = divmod(n, 4)
            slot = (9 + j + 2) % 5
            base, off = (vC1, 0) if slot == 4 else (vC0, slot * SLOT)
            return [f"ds_read_b128 {vr(WB[n & 1][ct],4)}, v{base} offset:{off + ct * 4096 + ks * 1024}" for ct in range(2)]

        for r in wreads(0):
            P(r)
        for n in range(18):
            if n + 1 < 18:
                for r in wreads(n + 1):
                    P(r)
            if n < NF:
                P(f"s_waitcnt vmcnt({min(ODEPTH - 1, 17 - n)})")
            for ct in range(2):
                P(f"v_mfma_f32_32x32x16_bf16 {vr(ACC[ct],16)}, {vr(WB[n & 1][ct],4)}, {vr(OFr[n % ODEPTH],4)}, {vr(ACC[ct],16)}")
            if n + ODEPTH < 18:
                oload(n + ODEPTH)
            if xearly is not None and loader and n == xearly:
                P("s_barrier")
        common.mark(P, 10)
        P("s_barrier")
        if xearly is not None and not loader:
            for ct in range(2):
                for q in range(4):
                    a = vX
                    if q:
                        P(f"v_xor_b32 v{vTm}, {32 * q}, v{vX}")
                        a = vTm
                    P(f"ds_write_b128 v{a}, {vr(ACC[ct] + 4 * q, 4)} offset:{ct * 4096}")
            P("s_barrier")
        if "cmarks" not in exp: common.mark(P, 12)
        if outA:
            keep, send = (ACC[1], ACC[0]) if loader else (ACC[0], ACC[1])
            for q in range(4):
                P(f"ds_write_b128 v{vX}, {vr(send + 4 * q, 4)} offset:{q * 1024}")
            for r in range(16):
                P(f"v_add_f32 v{T + r}, v{T + r}, v{keep + r}")
            P(f"""
            s_mul_i32 s{sT}, s{sTile}, {32 * 2304}
            s_lshl_b32 s{sT2}, s{sSB}, 8
            s_add_u32 s{sT}, s{sT}, s{sT2}
            s_lshl_b32 s{sT2}, s{sKH}, 7
            s_add_u32 s{sT}, s{sT}, s{sT2}
            s_waitcnt lgkmcnt(0)
            s_barrier
            """)
            common.mark(P, 13)
            RB = 50
            for q in range(4):
                P(f"ds_read_b128 {vr(RB + 4 * q, 4)}, v{vY} offset:{q * 1024}")
            for q in range(4):
                for j in range(4):
                    P(f"v_add_f32 v{T + 4 * q + j}, v{T + 4 * q + j}, v{RB + 4 * q + j}")
                P(f"buffer_store_dwordx4 {vr(T + 4 * q, 4)}, v{vO}, s[{sOut}:{sOut+3}], s{sT} offen offset:{32 * q}")
        else:
            for ct in range(2 if xearly is None or loader else 0):
                for q in range(4):
                    a = vX
                    if q:
                        P(f"v_xor_b32 v{vTm}, {32 * q}, v{vX}")
                        a = vTm
                    P(f"ds_write_b128 v{a}, {vr(ACC[ct] + 4 * q, 4)} offset:{ct * (8192 if xearly is None else 4096)}")
            P(f"""
            s_mul_i32 s{sT}, s{sTile}, {32 * 2304}
            s_lshl_b32 s{sT2}, s{sSB}, 8
            s_add_u32 s{sT}, s{sT}, s{sT2}
            s_lshl_b32 s{sT2}, s{sKH}, 7
            s_add_u32 s{sT}, s{sT}, s{sT2}
            s_waitcnt lgkmcnt(0)
            s_barrier
            """)
            RB = 50
            common.mark(P, 13)
            for i in range(4):
                for h in range(2):
                    P(f"ds_read_b128 {vr(RB + 8 * i + 4 * h, 4)}, v{vY} offset:{h * (4096 if xearly is None else 8192) + i * 1024}")
            for i in range(4):
                for j in range(4):
                    P(f"v_add_f32 v{T + 4 * i + j}, v{T + 4 * i + j}, v{RB + 8 * i + j}")
                    P(f"v_add_f32 v{T + 4 * i + j}, v{T + 4 * i + j}, v{RB + 8 * i + 4 + j}")
                P(f"buffer_store_dwordx4 {vr(T + 4 * i, 4)}, v{vO}, s[{sOut}:{sOut+3}], s{sT} offen")
                if i < 3:
                    P(f"s_add_u32 s{sT}, s{sT}, {8 * 2304}")
        common.mark(P, 11)
        P(end)

    ACC = [[2, 18], [34, 50]]
    XF = [[66, 70], [74, 78]]
    WF = [[82, 86], [90, 94]]
    vA0, vA1, vB0, vB1 = 98, 99, 100, 101
    lr, li, nli, mr, mi, br, bi = 102, 103, 104, 105, 106, 107, 108
    lamt = "lamt" in exp
    pks = "pks" in exp
    if lamt:
        lr, li, mr, mi, br, bi, nli = 102, 103, 104, 105, 106, 107, 108
    if pks:
        assert lamt and "eaddr" not in exp
        hr, hi_ = 108, 109
    t = 110
    use(121)
    P(f"""
    s_and_b32 s{sWM}, s{sW}, 1
    s_lshr_b32 s{sWN}, s{sW}, 1
    s_lshl_b32 s{sT}, s{sSB}, 6
    s_lshl_b32 s{sT2}, s{sWN}, 5
    s_add_u32 s{sT}, s{sT}, s{sT2}
    v_and_b32 v{t+8}, 31, v{vLane}
    v_add_u32 v{t+8}, s{sT}, v{t+8}
    v_lshlrev_b32 v{t+9}, 1, v{t+8}
    """)
    UP = 66
    if fusedb:
        P(f"""
        s_mul_i32 s{sT}, s{sTB}, 18
        s_lshl_b32 s{sT2}, s{sSB}, 1
        s_add_u32 s{sT}, s{sT}, s{sT2}
        s_add_u32 s{sT}, s{sT}, s{sWN}
        s_lshl_b32 s{sT}, s{sT}, 14
        s_lshl_b32 s{sT2}, s{sWM}, 13
        s_add_u32 s{sT}, s{sT}, s{sT2}
        s_add_u32 s{sT}, s{sT}, {WS_XF if 'ufx' in exp else WS_UF}
        s_add_u32 s{sT2}, s{sT}, 4096
        """)
        for k in range(8):
            P(f"buffer_load_dwordx4 {vr(UP + 4 * k, 4)}, v{vL16}, {ws}, s{sT if k < 4 else sT2} offen offset:{(k & 3) * 1024}")
    if lamt:
        P(f"""
        v_lshlrev_b32 v{t+9}, 5, v{t+8}
        s_mov_b32 s{sT}, {WS_LAM}
        buffer_load_dwordx4 {vr(lr,4)}, v{t+9}, {ws}, s{sT} offen
        buffer_load_dwordx{4 if pks else 2} {vr(br,4 if pks else 2)}, v{t+9}, {ws}, s{sT} offen offset:16
        """)
    for k, ka in enumerate((KA_LRE, KA_LIM, KA_LDT) if not lamt else ()):
        srd_from_kernarg(P, sP, ka, 1152)
        P(f"""
        s_waitcnt lgkmcnt(0)
        buffer_load_ushort v{t+4+k}, v{t+9}, s[{sP}:{sP+3}], 0 offen
        """)
    vXR = [98, 99, 101, 122]
    vB2 = 123
    XSLOT, NX, WSLOT, NWS, WBASE = 16384, 3, 8192, 4, 49152
    if merged:
        P(f"""
        v_and_b32 v{t}, 31, v{vLane}
        v_lshrrev_b32 v{t+1}, 5, v{vLane}
        v_lshrrev_b32 v{t+2}, 1, v{t}
        v_and_b32 v{t+2}, 7, v{t+2}
        v_xor_b32 v{t+2}, v{t+2}, v{t+1}
        v_lshlrev_b32 v{t+2}, 4, v{t+2}
        s_lshl_b32 s{sT}, s{sWM}, 6
        v_add_u32 v{t+3}, s{sT}, v{t}
        v_lshlrev_b32 v{t+3}, 7, v{t+3}
        v_add_u32 v{vXR[0]}, v{t+2}, v{t+3}
        v_xor_b32 v{vXR[1]}, 32, v{vXR[0]}
        v_xor_b32 v{vXR[2]}, 64, v{vXR[0]}
        v_xor_b32 v{vXR[3]}, 0x60, v{vXR[0]}
        """)
        if rawb:
            P(f"""
            v_lshrrev_b32 v{t+2}, 2, v{t}
            v_and_b32 v{t+2}, 3, v{t+2}
            v_xor_b32 v{t+2}, v{t+2}, v{t+1}
            v_lshlrev_b32 v{t+2}, 4, v{t+2}
            v_lshlrev_b32 v{t+3}, 6, v{t}
            s_lshl_b32 s{sT}, s{sWN}, 11
            s_add_u32 s{sT}, s{sT}, {WBASE}
            v_add_u32 v{t+3}, s{sT}, v{t+3}
            v_add_u32 v{vB0}, v{t+2}, v{t+3}
            v_xor_b32 v{vB2}, 32, v{vB0}
            """)
        else:
            P(f"""
            s_lshl_b32 s{sT}, s{sWN}, 12
            s_add_u32 s{sT}, s{sT}, {WBASE}
            v_add_u32 v{vB0}, s{sT}, v{vL16}
            """)
    else:
      P(f"""
    s_lshl_b32 s{sT}, s{sWM}, 12
    v_add_u32 v{vA0}, s{sT}, v{vL16}
    v_add_u32 v{vA1}, 0x10000, v{vA0}
    s_lshl_b32 s{sT}, s{sWN}, 12
    s_add_u32 s{sT}, s{sT}, 8192
    v_add_u32 v{vB0}, s{sT}, v{vL16}
    v_add_u32 v{vB1}, 0x10000, v{vB0}
    """)
    if "smarks" in exp:
        common.mark(P, 5)
        P("s_waitcnt vmcnt(0)")
        common.mark(P, 6)
    if not lamt:
        emit_lambda(P, t + 4, t + 5, t + 6, t, lr, li)
        P(f"v_sub_f32 v{nli}, 0, v{li}")

    def csq(dr, di, sr_, si_):
        P(f"""
        v_mul_f32 v{t}, v{si_}, v{si_}
        v_add_f32 v{t+1}, v{sr_}, v{sr_}
        v_fma_f32 v{dr}, v{sr_}, v{sr_}, -v{t}
        v_mul_f32 v{di}, v{t+1}, v{si_}
        """)

    if not lamt:
        csq(mr, mi, lr, li)
        for _ in range(4):
            csq(mr, mi, mr, mi)
        csq(br, bi, mr, mi)
        csq(br, bi, br, bi)

    early = "eaddr" in exp
    vTW, vTR, vX_ = (109, 126, t + 2) if early else (t, t + 1, t + 2)
    use(126)

    def tr_write_addr():
        P(f"""
        v_and_b32 v{t+4}, 31, v{vLane}
        v_lshrrev_b32 v{t+5}, 1, v{t+4}
        v_and_b32 v{t+5}, 1, v{t+5}
        v_lshlrev_b32 v{t+5}, 2, v{t+5}
        v_lshrrev_b32 v{t+6}, 2, v{t+4}
        v_and_b32 v{t+6}, 1, v{t+6}
        v_lshlrev_b32 v{t+6}, 1, v{t+6}
        v_or_b32 v{t+5}, v{t+5}, v{t+6}
        v_and_b32 v{t+6}, 1, v{t+4}
        v_or_b32 v{t+5}, v{t+5}, v{t+6}
        v_lshrrev_b32 v{t+6}, 5, v{vLane}
        v_lshlrev_b32 v{t+6}, 2, v{t+6}
        v_xor_b32 v{t+5}, v{t+5}, v{t+6}
        v_lshlrev_b32 v{t+5}, 4, v{t+5}
        v_lshlrev_b32 v{t+4}, 7, v{t+4}
        v_add_u32 v{vTW}, v{t+4}, v{t+5}
        s_lshl_b32 s{sT}, s{sW}, 13
        v_add_u32 v{vTW}, s{sT}, v{vTW}
        """)

    def tr_read_addr():
        P(f"""
        v_lshrrev_b32 v{t+4}, 5, v{vLane}
        v_lshlrev_b32 v{t+4}, 3, v{t+4}
        v_lshrrev_b32 v{t+5}, 2, v{vLane}
        v_and_b32 v{t+5}, 3, v{t+5}
        v_add_u32 v{t+4}, v{t+4}, v{t+5}
        v_lshlrev_b32 v{t+4}, 7, v{t+4}
        v_lshrrev_b32 v{t+5}, 4, v{vLane}
        v_and_b32 v{t+5}, 1, v{t+5}
        v_lshlrev_b32 v{t+5}, 1, v{t+5}
        v_lshrrev_b32 v{t+6}, 1, v{vLane}
        v_and_b32 v{t+6}, 1, v{t+6}
        v_or_b32 v{t+5}, v{t+5}, v{t+6}
        v_lshrrev_b32 v{t+6}, 3, v{vLane}
        v_and_b32 v{t+6}, 1, v{t+6}
        v_lshlrev_b32 v{t+6}, 2, v{t+6}
        v_xor_b32 v{t+5}, v{t+5}, v{t+6}
        v_lshrrev_b32 v{t+6}, 2, v{vLane}
        v_and_b32 v{t+6}, 1, v{t+6}
        v_xor_b32 v{t+5}, v{t+5}, v{t+6}
        v_lshlrev_b32 v{t+5}, 4, v{t+5}
        v_and_b32 v{t+6}, 1, v{vLane}
        v_lshlrev_b32 v{t+6}, 3, v{t+6}
        v_add_u32 v{t+4}, v{t+4}, v{t+5}
        v_add_u32 v{t+4}, v{t+4}, v{t+6}
        v_add_u32 v{vTR}, s{sT}, v{t+4}
        """)

    if early:
        tr_write_addr()
        tr_read_addr()
    def reads(n):
        if rawb:
            bb = n & 1
            xo, wo_ = ((n >> 2) % NX) * XSLOT, ((n >> 1) % NWS) * WSLOT
            vb = vB2 if n & 1 else vB0
            return [f"ds_read_b128 {vr(XF[bb][0],4)}, v{vXR[n & 3]} offset:{xo}",
                    f"ds_read_b128 {vr(WF[bb][0],4)}, v{vb} offset:{wo_}",
                    f"ds_read_b128 {vr(WF[bb][1],4)}, v{vb} offset:{wo_ + 4096}",
                    f"ds_read_b128 {vr(XF[bb][1],4)}, v{vXR[n & 3]} offset:{xo + 4096}"]
        if merged:
            bb = n & 1
            xo, wo_ = ((n >> 2) % NX) * XSLOT, ((n >> 1) % NWS) * WSLOT + (n & 1) * 1024
            return [f"ds_read_b128 {vr(XF[bb][0],4)}, v{vXR[n & 3]} offset:{xo}",
                    f"ds_read_b128 {vr(WF[bb][0],4)}, v{vB0} offset:{wo_}",
                    f"ds_read_b128 {vr(WF[bb][1],4)}, v{vB0} offset:{wo_ + 2048}",
                    f"ds_read_b128 {vr(XF[bb][1],4)}, v{vXR[n & 3]} offset:{xo + 4096}"]
        s_, ks = divmod(n, 2)
        slot = s_ % 5
        a, b, off = (vA1, vB1, 0) if slot == 4 else (vA0, vB0, slot * SLOT)
        bb = n & 1
        return [f"ds_read_b128 {vr(XF[bb][0],4)}, v{a} offset:{off + ks * 1024}",
                f"ds_read_b128 {vr(WF[bb][0],4)}, v{b} offset:{off + ks * 1024}",
                f"ds_read_b128 {vr(WF[bb][1],4)}, v{b} offset:{off + 2048 + ks * 1024}",
                f"ds_read_b128 {vr(XF[bb][1],4)}, v{a} offset:{off + 2048 + ks * 1024}"]

    if fusedb:
        common.mark(P, 0)
        for mt in range(2):
            for cp in range(2):
                for k in range(8):
                    src = UP + 16 * mt + 8 * cp + k
                    P(f"v_lshlrev_b32 v{ACC[mt][cp] + 2 * k}, 16, v{src}")
                    P(f"v_and_b32 v{ACC[mt][cp] + 2 * k + 1}, 0xffff0000, v{src}")
    else:
        if merged:
            P("s_barrier")
        if "smarks" in exp: common.mark(P, 7)
        P("s_barrier")
        common.mark(P, 0)
        P(f"s_setprio {prio['b']}")
        for r in reads(0):
            P(r)
    for n in range(36 if not fusedb else 0):
        bb = n & 1
        mf = []
        for mt in range(2):
            for cp in range(2):
                cop = "0" if n == 0 else vr(ACC[mt][cp], 16)
                mf.append(f"v_mfma_f32_32x32x16_bf16 {vr(ACC[mt][cp],16)}, {vr(XF[bb][mt],4)}, {vr(WF[bb][cp],4)}, {cop}")
        P("s_waitcnt lgkmcnt(0)")
        if "bmarks" in exp and n in (3, 11, 19): common.mark(P, {3: 5, 11: 6, 19: 7}[n])
        if bb == 1 and n + 1 < 36:
            P("s_barrier")
        rs = reads(n + 1) if n + 1 < 36 else []
        for k in range(4):
            P(mf[k])
            take = rs[:2] if k < 2 else []
            rs = rs[len(take):]
            for r in take:
                P(r)

    P(f"s_setprio {prio['s']}")
    common.mark(P, 4)
    if lamt:
        P("s_waitcnt vmcnt(0)")
        if not pks:
            P(f"v_sub_f32 v{nli}, 0, v{li}")
    ea, eb = (t, t + 1), (t + 2, t + 3)
    U = lambda tau, cp: ACC[tau >> 4][cp] + (tau & 15)
    EAr = (t + 10, t + 11)

    def pk_step(dst, cur, add):
        L2 = vr(lr, 2)
        P(f"""
        v_pk_fma_f32 {vr(dst[0],2)}, {L2}, {vr(cur[0],2)}, {vr(add[0],2)} op_sel:[0,0,0] op_sel_hi:[0,1,1]
        v_pk_fma_f32 {vr(dst[1],2)}, {L2}, {vr(cur[1],2)}, {vr(add[1],2)} op_sel:[0,0,0] op_sel_hi:[0,1,1]
        v_pk_fma_f32 {vr(dst[0],2)}, {L2}, {vr(cur[1],2)}, {vr(dst[0],2)} op_sel:[1,0,0] op_sel_hi:[1,1,1] neg_lo:[1,0,0] neg_hi:[1,0,0]
        v_pk_fma_f32 {vr(dst[1],2)}, {L2}, {vr(cur[0],2)}, {vr(dst[1],2)} op_sel:[1,0,0] op_sel_hi:[1,1,1]
        """)

    if pks:
        Ureg = U
        Upair = lambda j: (Ureg(2 * j, 0), Ureg(2 * j, 1))
        cur = Upair(0)
        for j in range(1, 16):
            nx = (t, t + 2) if j & 1 else (t + 4, t + 6)
            pk_step(nx, cur, Upair(j))
            cur = nx
        assert cur == (t, t + 2)
        P(f"""
        v_mov_b32 v{EAr[0]}, v{t}
        v_mov_b32 v{EAr[1]}, v{t+2}
        v_fma_f32 v{t+4}, v{hr}, v{t}, v{t+1}
        v_fma_f32 v{t+5}, v{hr}, v{t+2}, v{t+3}
        v_fma_f32 v{t}, -v{hi_}, v{EAr[1]}, v{t+4}
        v_fma_f32 v{t+1}, v{hi_}, v{EAr[0]}, v{t+5}
        """)
        U = lambda tau, cp: Ureg(2 * (tau & 15) + (tau >> 4), cp)
    else:
        cur = (U(0, 0), U(0, 1))
        for tau in range(1, 32):
            nx = ea if tau & 1 else eb
            P(f"""
            v_fma_f32 v{nx[0]}, v{lr}, v{cur[0]}, v{U(tau,0)}
            v_fma_f32 v{nx[1]}, v{lr}, v{cur[1]}, v{U(tau,1)}
            v_fmac_f32 v{nx[0]}, v{nli}, v{cur[1]}
            v_fmac_f32 v{nx[1]}, v{li}, v{cur[0]}
            """)
            cur = nx
        assert cur == ea
    P(f"""
    v_lshrrev_b32 v{t+4}, 5, v{vLane}
    v_lshlrev_b32 v{t+4}, 9, v{t+4}
    v_and_b32 v{t+5}, 31, v{vLane}
    v_lshlrev_b32 v{t+5}, 3, v{t+5}
    s_lshl_b32 s{sT}, s{sWN}, 8
    s_add_u32 s{sT}, s{sT}, {ELOC}
    v_add_u32 v{t+5}, s{sT}, v{t+5}
    s_lshl_b32 s{sT}, s{sWM}, 10
    v_add_u32 v{t+4}, s{sT}, v{t+4}
    v_add_u32 v{t+4}, v{t+4}, v{t+5}
    ds_write_b64 v{t+4}, {vr(ea[0],2)}
    s_waitcnt lgkmcnt(0)
    s_barrier
    """)
    EL = [98, 100, 122, 124]
    for k in range(4):
        P(f"ds_read_b64 {vr(EL[k], 2)}, v{t+5} offset:{k * 512}")

    def cmuladd(dr, di, ar, ai, nai, xr, xi, yr, yi):
        P(f"""
        v_fma_f32 v{t+6}, v{ar}, v{xr}, v{yr}
        v_fma_f32 v{t+7}, v{ar}, v{xi}, v{yi}
        v_fma_f32 v{dr}, -v{ai}, v{xi}, v{t+6}
        v_fma_f32 v{di}, v{ai}, v{xr}, v{t+7}
        """) if (dr, di) != (xr, xi) else P(f"""
        v_fma_f32 v{t+6}, v{ar}, v{xr}, v{yr}
        v_fma_f32 v{t+7}, v{ar}, v{xi}, v{yi}
        v_fma_f32 v{t+7}, v{ai}, v{xr}, v{t+7}
        v_fma_f32 v{dr}, -v{ai}, v{xi}, v{t+6}
        v_mov_b32 v{di}, v{t+7}
        """)

    Eb = 66
    cmuladd(t, t + 1, mr, mi, None, EL[0], EL[0] + 1, EL[1], EL[1] + 1)
    cmuladd(t + 2, t + 3, mr, mi, None, t, t + 1, EL[2], EL[2] + 1)
    cmuladd(Eb, Eb + 2, mr, mi, None, t + 2, t + 3, EL[3], EL[3] + 1)
    nopub = P.newlabel(pfx + "_nopub")
    P(f"""
    v_mov_b32 v{Eb+1}, s{sTag}
    v_mov_b32 v{Eb+3}, s{sTag}
    s_mul_i32 s{sT}, s{sTB}, 576
    v_add_u32 v{t}, s{sT}, v{t+8}
    v_lshlrev_b32 v{t}, 4, v{t}
    s_cmp_eq_u32 s{sWM}, 0
    s_cbranch_scc0 {nopub}
    s_mov_b32 exec_hi, 0
    buffer_store_dwordx4 {vr(Eb,4)}, v{t}, s[{sE}:{sE+3}], 0 offen sc1
    s_mov_b32 exec_hi, -1
    """)
    P.L(nopub)
    EDr = [66 + 4 * i for i in range(8)]
    use(125)
    vN, vEo = t + 2, t + 3
    P(f"""
    v_lshrrev_b32 v{vN}, 5, v{vLane}
    v_lshlrev_b32 v{vN}, 3, v{vN}
    s_sub_i32 s{sT}, s{sTB}, 16
    v_add_u32 v{vN}, s{sT}, v{vN}
    s_movk_i32 s{sT}, 576
    v_mul_lo_u32 v{vEo}, v{vN}, s{sT}
    v_add_u32 v{vEo}, v{vEo}, v{t+8}
    v_lshlrev_b32 v{vEo}, 4, v{vEo}
    """)
    if "pmarks" not in exp and "bmarks" not in exp and "smarks" not in exp: common.mark(P, 5)
    for e in exp:
        if e.startswith("esleep="): P(f"s_sleep {int(e[7:])}")
    ep = P.newlabel(pfx + "_epoll")
    P.L(ep)
    for i in range(8):
        P(f"v_add_u32 v{t}, {i * 9216}, v{vEo}")
        P(f"buffer_load_dwordx4 {vr(EDr[i],4)}, v{t}, s[{sE}:{sE+3}], 0 offen sc1")
    P(f"s_mov_b64 s[{sBad}:{sBad+1}], 0")
    for i in range(8):
        P(f"""
        v_cmp_eq_u32 vcc, s{sTag}, v{EDr[i]+1}
        v_cmp_eq_u32 s[{sOk}:{sOk+1}], s{sTag}, v{EDr[i]+3}
        s_and_b64 s[{sOk}:{sOk+1}], s[{sOk}:{sOk+1}], vcc
        v_cmp_gt_i32 vcc, {-i}, v{vN}
        s_or_b64 s[{sOk}:{sOk+1}], s[{sOk}:{sOk+1}], vcc
        s_orn2_b64 s[{sBad}:{sBad+1}], s[{sBad}:{sBad+1}], s[{sOk}:{sOk+1}]
        """)
    edone = P.newlabel(pfx + "_edone")
    P(f"""
    s_cmp_eq_u64 s[{sBad}:{sBad+1}], 0
    s_cbranch_scc1 {edone}
    s_sleep 2
    s_branch {ep}
    """)
    P.L(edone)
    if "pmarks" not in exp and "bmarks" not in exp and "smarks" not in exp: common.mark(P, 6)
    H = (t + 4, t + 5)
    cmuladd(H[0], H[1], br, bi, None, EDr[0], EDr[0] + 2, EDr[1], EDr[1] + 2)
    for i in range(2, 8):
        cmuladd(H[0], H[1], br, bi, None, H[0], H[1], EDr[i], EDr[i] + 2)
    for _ in range(3):
        csq(br, bi, br, bi)
    a0, a1, b0, b1 = 66, 67, 68, 69
    P(f"""
    v_mov_b32 v{a0}, v{H[0]}
    v_mov_b32 v{b0}, v{H[0]}
    v_mov_b32 v{a1}, v{H[1]}
    v_mov_b32 v{b1}, v{H[1]}
    v_permlane32_swap_b32 v{a0}, v{b0}
    v_permlane32_swap_b32 v{a1}, v{b1}
    """)
    C0, C1, C2, C3 = (82, 83), (84, 85), (86, 87), (88, 89)
    cmuladd(C0[0], C0[1], br, bi, None, a0, a1, b0, b1)
    cmuladd(C1[0], C1[1], mr, mi, None, C0[0], C0[1], EL[0], EL[0] + 1)
    w1, gsel = P.newlabel(pfx + "_wm1"), P.newlabel(pfx + "_gsel")
    g0 = (t, t + 1)
    P(f"""
    v_cmp_le_u32 vcc, 32, v{vLane}
    s_cmp_eq_u32 s{sWM}, 0
    s_cbranch_scc0 {w1}
    v_cndmask_b32 v{g0[0]}, v{C0[0]}, v{C1[0]}, vcc
    v_cndmask_b32 v{g0[1]}, v{C0[1]}, v{C1[1]}, vcc
    s_branch {gsel}
    """)
    P.L(w1)
    cmuladd(C2[0], C2[1], mr, mi, None, C1[0], C1[1], EL[1], EL[1] + 1)
    cmuladd(C3[0], C3[1], mr, mi, None, C2[0], C2[1], EL[2], EL[2] + 1)
    P(f"""
    v_cndmask_b32 v{g0[0]}, v{C2[0]}, v{C3[0]}, vcc
    v_cndmask_b32 v{g0[1]}, v{C2[1]}, v{C3[1]}, vcc
    """)
    P.L(gsel)
    cur = g0
    if pks:
        P(f"""
        v_mov_b32 v{t+2}, v{g0[0]}
        v_mov_b32 v{t+4}, v{g0[1]}
        """)
        cmuladd(t + 3, t + 5, hr, hi_, None, g0[0], g0[1], EAr[0], EAr[1])
        cur = (t + 2, t + 4)
        for j in range(16):
            pk_step(Upair(j), cur, Upair(j))
            cur = Upair(j)
    for tau in range(32 if not pks else 0):
        ur, ui = U(tau, 0), U(tau, 1)
        P(f"""
        v_fmac_f32 v{ur}, v{lr}, v{cur[0]}
        v_fmac_f32 v{ui}, v{lr}, v{cur[1]}
        v_fmac_f32 v{ur}, v{nli}, v{cur[1]}
        v_fmac_f32 v{ui}, v{li}, v{cur[0]}
        """)
        cur = (ur, ui)
    if not early:
        tr_write_addr()
    PK = 66
    for cp in range(2):
        for k in range(16):
            P(f"v_cvt_pk_bf16_f32 v{PK + 16 * cp + k}, v{U(2 * k, cp)}, v{U(2 * k + 1, cp)}")
        for m in range(4):
            P(f"v_xor_b32 v{vX_}, {16 * m}, v{vTW}")
            P(f"ds_write_b128 v{vX_}, {vr(PK + 16 * cp + 4 * m, 4)} offset:{cp * 4096}")
    if not early:
        tr_read_addr()
    P(f"""
    s_lshl_b32 s{sT}, s{sTB}, 2
    s_lshl_b32 s{sT2}, s{sWM}, 1
    s_add_u32 s{sT}, s{sT}, s{sT2}
    s_mul_i32 s{sT}, s{sT}, 72
    s_lshl_b32 s{sT2}, s{sSB}, 2
    s_add_u32 s{sT}, s{sT}, s{sT2}
    s_lshl_b32 s{sT2}, s{sWN}, 1
    s_add_u32 s{sT}, s{sT}, s{sT2}
    s_lshl_b32 s{sT}, s{sT}, 10
    s_add_u32 s{sT}, s{sT}, {WS_HF}
    s_waitcnt lgkmcnt(0)
    """)
    TRA = [t + 4, t + 5, t + 6, t + 7]
    for tt2 in range(2):
        for rd in range(2):
            P(f"v_xor_b32 v{TRA[2 * tt2 + rd]}, {tt2 * 64 + rd * 32}, v{vTR}")
    FR = [2 + 4 * i for i in range(8)]
    k = 0
    for tt2 in range(2):
        for cp in range(2):
            for s16 in range(2):
                for rd in range(2):
                    P(f"ds_read_b64_tr_b16 {vr(FR[k] + 2 * rd, 2)}, v{TRA[2 * tt2 + rd]} offset:{cp * 4096 + s16 * 2048 + rd * 512}")
                k += 1
    k = 0
    for tt2 in range(2):
        for cp in range(2):
            P(f"s_add_u32 s{sT2}, s{sT}, {(tt2 * 72 + cp * 36) * 1024}")
            for s16 in range(2):
                P(f"buffer_store_dwordx4 {vr(FR[k],4)}, v{vL16}, {ws}, s{sT2} offen offset:{s16 * 1024} sc1")
                k += 1
    if "pmarks" not in exp and "bmarks" not in exp and "smarks" not in exp: common.mark(P, 7)
    P("s_waitcnt vmcnt(0)")
    P("s_barrier")
    common.mark(P, 8)
    fl = P.newlabel(pfx + "_noflag")
    if rawb:
        P(f"""
        s_cmp_eq_u32 s{sW}, 0
        s_cbranch_scc0 {fl}
        s_lshl_b32 s{sT}, s{sIdx}, 2
        s_add_u32 s{sT}, s{sT}, {WS_FLG + FLG_PREP}
        v_mov_b32 v2, {flag}
        v_lshlrev_b32 v3, 12, v{vLane}
        s_mov_b32 exec_hi, 0
        s_mov_b32 exec_lo, 0xffff
        buffer_store_dword v2, v3, {ws}, s{sT} offen sc1
        s_mov_b64 exec, -1
        """)
    else:
      P(f"""
    s_cmp_eq_u32 s{sW}, 0
    s_cbranch_scc0 {fl}
    s_lshl_b32 s{sT}, s{sTB}, 6
    s_lshl_b32 s{sT2}, s{sSB}, 2
    s_add_u32 s{sT}, s{sT}, s{sT2}
    s_add_u32 s{sT}, s{sT}, {WS_FLG + FLG_HF}
    v_mov_b32 v2, {flag}
    v_mov_b32 v3, 0
    s_mov_b32 exec_hi, 0
    s_mov_b32 exec_lo, 1
    buffer_store_dword v2, v3, {ws}, s{sT} offen sc1
    s_mov_b64 exec, -1
    """)
    P.L(fl)
    if rawb:
        block_map(False)
        P(f"""
        s_lshl_b32 s{sTile}, s{sTB}, 2
        s_add_u32 s{sTile}, s{sTile}, s{sMT}
        """)
    out_phases(False)

    iL = len(P.items)
    P.L(L("loader"))
    if "lmarks" in exp: common.mark(P, 6)
    P(f"""
    s_lshl_b32 s{sT}, s{sTB}, 2
    s_add_u32 s{sT}, s{sT}, s{sMT}
    s_mul_i32 s{sXo}, s{sT}, {36 * 1024}
    s_add_u32 s{sXo}, s{sXo}, {WS_XF}
    s_lshl_b32 s{sT}, s{sSB}, 2
    s_add_u32 s{sT}, s{sT}, s{sMT}
    s_mul_i32 s{sBo}, s{sT}, {36 * 1024}
    s_add_u32 s{sBo}, s{sBo}, {WS_BF}
    s_lshl_b32 s{sM}, s{sMT}, 11
    """)

    def dmaA(s_):
        slot = s_ % 5
        P(f"""
        s_add_u32 m0, s{sM}, {slot * SLOT}
        s_nop 0
        buffer_load_dwordx4 v{vL16}, {ws}, s{sXo} offen lds
        buffer_load_dwordx4 v{vL16}, {ws}, s{sXo} offen offset:1024 lds
        s_add_u32 m0, s{sM}, {slot * SLOT + 8192}
        s_add_u32 s{sXo}, s{sXo}, 2048
        buffer_load_dwordx4 v{vL16}, {ws}, s{sBo} offen lds
        buffer_load_dwordx4 v{vL16}, {ws}, s{sBo} offen offset:1024 lds
        s_add_u32 s{sBo}, s{sBo}, 2048
        """)

    if merged:
        vDX = [4, 5, 6, 7]
        sMX, sMW, sOffX = sM, 25, 31
        DUX = 4 * 1152 - 1024
        P(f"""
        v_lshrrev_b32 v8, 5, v{vLane}
        v_lshlrev_b32 v8, 5, v8
        v_lshrrev_b32 v9, 3, v{vLane}
        v_and_b32 v9, 3, v9
        v_add_u32 v8, v8, v9
        v_mul_u32_u24 v8, 1152, v8
        v_lshrrev_b32 v9, 4, v{vLane}
        v_and_b32 v10, 7, v{vLane}
        v_xor_b32 v9, v9, v10
        v_lshlrev_b32 v9, 4, v9
        v_xor_b32 v10, 64, v9
        v_add_u32 v{vDX[0]}, v8, v9
        v_add_u32 v10, v8, v10
        v_add_u32 v{vDX[1]}, {DUX}, v10
        v_add_u32 v{vDX[2]}, {2 * DUX}, v{vDX[0]}
        v_add_u32 v{vDX[3]}, {3 * DUX}, v10
        s_lshl_b32 s{sOffX}, s{sTB}, 7
        s_lshr_b32 s{sT}, s{sMT}, 1
        s_lshl_b32 s{sT}, s{sT}, 6
        s_add_u32 s{sOffX}, s{sOffX}, s{sT}
        s_and_b32 s{sT}, s{sMT}, 1
        s_lshl_b32 s{sT}, s{sT}, 4
        s_add_u32 s{sOffX}, s{sOffX}, s{sT}
        s_mul_i32 s{sOffX}, s{sOffX}, 1152
        s_lshl_b32 s{sMX}, s{sMT}, 12
        s_lshl_b32 s{sMW}, s{sMT}, 11
        s_add_u32 s{sMW}, s{sMW}, {WBASE}
        """)
        lp, dn = P.newlabel(pfx + "_ppoll"), P.newlabel(pfx + "_pdone")
        if rawb:
            sB4 = 44
            P(f"""
            s_load_dwordx4 s[52:55], s[0:1], {KA_BRE}
            """.replace("s[52:55]", "s[84:87]"))
            P(f"""
            v_lshrrev_b32 v8, 2, v{vLane}
            s_lshl_b32 s{sT}, s{sSB}, 6
            s_and_b32 s{sT2}, s{sMT}, 1
            s_lshl_b32 s{sT2}, s{sT2}, 5
            s_add_u32 s{sT}, s{sT}, s{sT2}
            v_add_u32 v8, s{sT}, v8
            v_mul_u32_u24 v8, 1152, v8
            v_lshrrev_b32 v9, 4, v{vLane}
            v_xor_b32 v9, v9, v{vLane}
            v_and_b32 v9, 3, v9
            v_lshlrev_b32 v9, 4, v9
            v_add_u32 v2, v8, v9
            v_add_u32 v3, {16 * 1152 - 1024}, v2
            s_mov_b32 s{sB4+2}, {576 * 1152}
            s_mov_b32 s{sB4+3}, 0x00020000
            s_mov_b32 s{sBo}, 0
            s_cmp_ge_u32 s{sMT}, 2
            s_waitcnt lgkmcnt(0)
            s_cselect_b32 s{sB4}, s86, s84
            s_cselect_b32 s{sB4+1}, s87, s85
            """)
            P(f"""
            s_cmp_eq_u32 s{sW}, 4
            s_cbranch_scc0 {dn}
            s_lshl_b32 s{sT}, s{sIdx}, 6
            s_add_u32 s{sT}, s{sT}, {WS_FLG + FLG_GO}
            s_mov_b64 exec, 1
            """)
            if "nogo" in exp:
                P(f"s_branch {dn}")
            P.L(lp)
            P(f"""
            buffer_load_dword v12, off, {ws}, s{sT} sc1
            s_waitcnt vmcnt(0)
            v_cmp_ne_u32 vcc, {flag}, v12
            s_cbranch_vccz {dn}
            s_sleep {psleep}
            s_branch {lp}
            """)
        else:
          P(f"""
        s_cmp_eq_u32 s{sW}, 4
        s_cbranch_scc0 {dn}
        s_and_b32 s{sT2}, s{sIdx}, {NREP - 1}
        s_lshl_b32 s{sT2}, s{sT2}, 12
        s_lshl_b32 s{sT}, s{sIdx}, 6
        s_add_u32 s{sT}, s{sT}, {FLG_GO - FLG_PREP}
        s_sub_u32 s{sT}, s{sT}, s{sT2}
        v_mov_b32 v9, s{sT}
        v_cmp_eq_u32 vcc, 36, v{vLane}
        v_cndmask_b32 v8, v{vL16}, v9, vcc
        s_add_u32 s{sT}, s{sT2}, {WS_FLG + FLG_PREP}
        s_mov_b32 exec_hi, {"0xf" if "nogo" in exp else "0x1f"}
        """)
        if not rawb:
          P.L(lp)
          P(f"""
        buffer_load_dwordx4 v[12:15], v8, {ws}, s{sT} offen sc1
        s_waitcnt vmcnt(0)
        v_cmp_ne_u32 vcc, {flag}, v12
        v_cmp_ne_u32 s[{sOk}:{sOk+1}], {flag}, v13
        s_or_b64 s[{sBad}:{sBad+1}], vcc, s[{sOk}:{sOk+1}]
        v_cmp_ne_u32 vcc, {flag}, v14
        v_cmp_ne_u32 s[{sOk}:{sOk+1}], {flag}, v15
        s_or_b64 s[{sBad}:{sBad+1}], s[{sBad}:{sBad+1}], vcc
        s_or_b64 s[{sBad}:{sBad+1}], s[{sBad}:{sBad+1}], s[{sOk}:{sOk+1}]
        s_cbranch_scc0 {dn}
        s_sleep {psleep}
        s_branch {lp}
        """)
        P.L(dn)
        P("s_mov_b64 exec, -1")
        if "bmarks" in exp: common.mark(P, 5)
        P("s_barrier")
        if "pmarks" in exp: common.mark(P, 7)
        q = []

        def dmax(c):
            P(f"s_add_u32 m0, s{sMX}, {(c % NX) * XSLOT}")
            P("s_nop 0")
            for u in range(4):
                P(f"buffer_load_dwordx4 v{vDX[u]}, s[{sAX}:{sAX+3}], s{sOffX} offen offset:{u * 1024} lds")
            P(f"s_add_u32 s{sOffX}, s{sOffX}, 128")
            q.extend([f"x{c}"] * 4)

        def dmab(b):
            if rawb:
                P(f"""
                s_add_u32 m0, s{sMW}, {(b % NWS) * WSLOT}
                s_nop 0
                buffer_load_dwordx4 v2, s[{sB4}:{sB4+3}], s{sBo} offen lds
                buffer_load_dwordx4 v3, s[{sB4}:{sB4+3}], s{sBo} offen offset:1024 lds
                s_add_u32 s{sBo}, s{sBo}, 64
                """)
                q.extend([f"w{b}"] * 2)
                return
            P(f"""
            s_add_u32 m0, s{sMW}, {(b % NWS) * WSLOT}
            s_nop 0
            buffer_load_dwordx4 v{vL16}, {ws}, s{sBo} offen lds
            buffer_load_dwordx4 v{vL16}, {ws}, s{sBo} offen offset:1024 lds
            s_add_u32 s{sBo}, s{sBo}, 2048
            """)
            q.extend([f"w{b}"] * 2)

        def wait(tags):
            idx = max(i for i, e in enumerate(q) if e in tags)
            P(f"s_waitcnt vmcnt({len(q) - 1 - idx})")

        dmax(0); dmab(0); dmab(1); dmax(1); dmab(2); dmab(3); dmax(2)
        P(f"s_setprio {prio['l']}")
        wait(["x0", "w0"])
        P("s_barrier")
        for b in range(17):
            wait([f"w{b + 1}"] + ([f"x{(b + 1) // 2}"] if b & 1 else []))
            P("s_barrier")
            if b + 4 < 18:
                dmab(b + 4)
            if b & 1 and (b - 1) // 2 + 3 < 9:
                dmax((b - 1) // 2 + 3)
        if rawb:
            from prepm import emit_prep
            emit_prep(P, sIdx, sWave, exp=exp, late=True, mid=lambda: P("s_barrier"))
            base_regs(False)
    elif not fusedb:
        pre = 5
        for e in exp:
            if e.startswith("spre="): pre = int(e[5:])
        issued = []

        def req(s_):
            dmaA(s_)
            issued.append(s_)

        def landed(s_):
            P(f"s_waitcnt vmcnt({4 * (len(issued) - 1 - issued.index(s_))})")

        for s_ in range(pre):
            req(s_)
            if "lmarks" in exp and s_ == 0: common.mark(P, 8)
        if lfirst:
            base_regs(rest=True)
        P(f"s_setprio {prio['l']}")
        if "smarks" in exp: common.mark(P, 5)
        landed(0)
        if "smarks" in exp: common.mark(P, 7)
        P("s_barrier")
        for s_ in range(pre, 5):
            req(s_)
        for s_ in range(17):
            landed(s_ + 1)
            P("s_barrier")
            if s_ + 5 < 18:
                req(s_ + 5)
    P(f"""
    s_lshl_b32 s{sT}, s{sSB}, 1
    s_and_b32 s{sT2}, s{sMT}, 1
    s_add_u32 s{sT}, s{sT}, s{sT2}
    s_mul_i32 s{sCo}, s{sT}, {72 * 1024}
    s_lshr_b32 s{sT2}, s{sMT}, 1
    s_mul_i32 s{sT2}, s{sT2}, {36 * 1024}
    s_add_u32 s{sCo}, s{sCo}, s{sT2}
    s_add_u32 s{sCo}, s{sCo}, {WS_CF}
    s_mul_i32 s{sWo}, s{sT}, {36 * 1024}
    s_lshr_b32 s{sT2}, s{sMT}, 1
    s_mul_i32 s{sT2}, s{sT2}, {18 * 1024}
    s_add_u32 s{sWo}, s{sWo}, s{sT2}
    s_add_u32 s{sWo}, s{sWo}, {WS_WF}
    s_lshl_b32 s{sM}, s{sMT}, 12
    """)
    if crot:
        P(f"""
        s_add_u32 s{sCend}, s{sCo}, {9 * 4096}
        s_lshl_b32 s{sT3}, s{sRot}, 12
        s_add_u32 s{sCo}, s{sCo}, s{sT3}
        """)
    lp, dn = P.newlabel(pfx + "_hpoll"), P.newlabel(pfx + "_hdone")
    if rawb:
        P(f"""
        s_waitcnt vmcnt(0)
        s_barrier
        s_cmp_eq_u32 s{sW}, 4
        s_cbranch_scc0 {dn}
        s_and_b32 s{sT2}, s{sIdx}, {NREP - 1}
        s_lshl_b32 s{sT2}, s{sT2}, 12
        s_add_u32 s{sT}, s{sT2}, {WS_FLG + FLG_K1}
        s_lshl_b32 s{sT2}, s{sTB}, 6
        s_add_u32 s{sT2}, s{sT2}, {FLG_K1T - FLG_K1 - 36 * 16}
        v_add_u32 v9, s{sT2}, v{vL16}
        v_add_u32 v8, {FLG_PREP - FLG_K1}, v{vL16}
        v_cmp_le_u32 vcc, 36, v{vLane}
        v_cndmask_b32 v8, v8, v9, vcc
        s_mov_b32 exec_hi, 0xff
        """)
        P.L(lp)
        P(f"""
        buffer_load_dwordx4 v[12:15], v8, {ws}, s{sT} offen sc1
        s_waitcnt vmcnt(0)
        v_cmp_ne_u32 vcc, {flag}, v12
        v_cmp_ne_u32 s[{sOk}:{sOk+1}], {flag}, v13
        s_or_b64 s[{sBad}:{sBad+1}], vcc, s[{sOk}:{sOk+1}]
        v_cmp_ne_u32 vcc, {flag}, v14
        v_cmp_ne_u32 s[{sOk}:{sOk+1}], {flag}, v15
        s_or_b64 s[{sBad}:{sBad+1}], s[{sBad}:{sBad+1}], vcc
        s_or_b64 s[{sBad}:{sBad+1}], s[{sBad}:{sBad+1}], s[{sOk}:{sOk+1}]
        s_cbranch_scc0 {dn}
        s_sleep 4
        s_branch {lp}
        """)
        P.L(dn)
        P("s_mov_b64 exec, -1")
        out_phases(True)
        return hi[0]
    P("s_barrier")
    cf_dma(0)
    cf_dma(1)
    P("s_barrier")
    for c in (2, 3, 4):
        cf_dma(c)
    P(f"""
    s_cmp_eq_u32 s{sW}, 4
    s_cbranch_scc0 {dn}
    s_lshl_b32 s{sT}, s{sTB}, 6
    s_add_u32 s{sT}, s{sT}, {WS_FLG + FLG_HF}
    v_lshlrev_b32 v2, 2, v{vLane}
    """)
    if merged:
        P(f"""
        s_and_b32 s{sT2}, s{sIdx}, {NREP - 1}
        s_lshl_b32 s{sT2}, s{sT2}, 12
        s_add_u32 s{sT2}, s{sT2}, {FLG_K1T - FLG_HF - 64}
        v_add_u32 v3, s{sT2}, v2
        v_cmp_le_u32 vcc, 16, v{vLane}
        v_cndmask_b32 v2, v2, v3, vcc
        """)
    P(f"""
    s_mov_b32 exec_hi, 0
    s_mov_b32 exec_lo, {"0xffff01ff" if merged else "0x1ff"}
    """)
    P.L(lp)
    P(f"""
    buffer_load_dword v3, v2, {ws}, s{sT} offen sc1
    s_waitcnt vmcnt(0)
    v_cmp_ne_u32 vcc, {flag}, v3
    s_cbranch_vccz {dn}
    s_sleep 2
    s_branch {lp}
    """)
    P.L(dn)
    P("s_mov_b64 exec, -1")
    P("s_waitcnt vmcnt(0)")
    out_phases(True)
    if lfirst:
        P.items = P.items[:iC] + P.items[iL:] + P.items[iC:iL]
    return hi[0]
```
